```python
import torch

def _softmax(x, axis=-1):
    return torch.softmax(x, dim=axis)

def _gelu(x):
    return torch.nn.functional.gelu(x, approximate='tanh')

def _silu(x):
    return torch.nn.functional.silu(x)

def _sigmoid(x):
    return torch.sigmoid(x)

def _layernorm(x, axis=-1, eps=1e-05):
    m = x.mean(dim=axis, keepdim=True)
    v = x.var(dim=axis, keepdim=True, unbiased=False)
    return (x - m) / torch.sqrt(v + eps)

def _scatter_add(tgt, idx, src, axis=0):
    return tgt.clone().index_add_(axis, idx, src)

def _segment_sum(src, seg, n):
    out = torch.zeros((n,) + src.shape[1:], dtype=src.dtype)
    return out.index_add_(0, seg, src)

def _pad(x, pw):
    flat = tuple((v for pair in reversed(pw) for v in pair))
    return torch.nn.functional.pad(x, flat)
kernel_name = 'gated_mix__memory_aug_recurrent_mem_tr__mixer_channel_mlp__prompt'

def setup_inputs():

    _w = lambda a: (lambda t: t.to(torch.bfloat16) if t.is_floating_point() else t)(torch.as_tensor(a))

    def _A_setup():
        B, S, Dm = (1, 2048, 448)
        H, Dh = (16, 256)
        M, seg = (8, 32)
        seg = min(seg, S)
        S = S // seg * seg
        return {'x': _w((lambda *s: torch.randn(*s, dtype=torch.bfloat16) * 0.05)(B, S, Dm)), 'mem0': _w((lambda *s: torch.randn(*s, dtype=torch.bfloat16) * 0.8)(B, M, Dm)), 'Wq': _w((lambda *s: torch.randn(*s, dtype=torch.bfloat16) * 1.6)(Dm, H, Dh) * Dm ** (-0.5)), 'Wk': _w((lambda *s: torch.randn(*s, dtype=torch.bfloat16) * 1.6)(Dm, H, Dh) * Dm ** (-0.5)), 'Wv': _w((lambda *s: torch.randn(*s, dtype=torch.bfloat16) * 0.8)(Dm, H, Dh) * Dm ** (-0.5)), 'Wo': _w((lambda *s: torch.randn(*s, dtype=torch.bfloat16) * 0.8)(H, Dh, Dm) * (H * Dh) ** (-0.5)), 'seg_len': seg}
    _A_in = _A_setup()

    def _B_setup():
        B, S, D, F = (1, 2048, 448, 1792)
        return {'x': _w((lambda *s: torch.randn(*s, dtype=torch.bfloat16) * 0.05)(B, S, D)), 'w1': _w((lambda *s: torch.randn(*s, dtype=torch.bfloat16) * 1.6)(D, F) * D ** (-0.5)), 'b1': _w((lambda *s: torch.randn(*s, dtype=torch.bfloat16) * 0.4)(F)), 'w2': _w((lambda *s: torch.randn(*s, dtype=torch.bfloat16) * 0.05)(F, D) * F ** (-0.5)), 'b2': _w((lambda *s: torch.randn(*s, dtype=torch.bfloat16) * 0.05)(D))}
    _B_in = _B_setup()
    return {'A_x': _A_in['x'], 'A_mem0': _A_in['mem0'], 'A_Wq': _A_in['Wq'], 'A_Wk': _A_in['Wk'], 'A_Wv': _A_in['Wv'], 'A_Wo': _A_in['Wo'], 'A_seg_len': _A_in['seg_len'], 'B_x': _B_in['x'], 'B_w1': _B_in['w1'], 'B_b1': _B_in['b1'], 'B_w2': _B_in['w2'], 'B_b2': _B_in['b2'], 'gate_w': _w((lambda *s: torch.randn(*s, dtype=torch.bfloat16) * 0.05)(448) * 16.0)}

def reference(A_x, A_mem0, A_Wq, A_Wk, A_Wv, A_Wo, A_seg_len, B_x, B_w1, B_b1, B_w2, B_b2, gate_w):

    def _A_ref(x, mem0, Wq, Wk, Wv, Wo, seg_len):
        B, S, Dm = x.shape
        H, Dh = (Wq.shape[1], Wq.shape[2])
        M = mem0.shape[1]
        scale = Dh ** (-0.5)
        n_seg = S // seg_len
        L = M + seg_len
        idx = torch.arange(L)
        mask = (idx[:, None] < M) | (idx[:, None] >= idx[None, :])
        mem = mem0
        outs = []
        for s in range(n_seg):
            xs = x[:, s * seg_len:(s + 1) * seg_len, :].clone()
            h = torch.concatenate([mem, xs], axis=1)
            q = torch.einsum('btd,dhe->bhte', h, Wq)
            k = torch.einsum('btd,dhe->bhte', h, Wk)
            v = torch.einsum('btd,dhe->bhte', h, Wv)
            scores = torch.einsum('bhqe,bhke->bhqk', q, k) * scale
            scores = torch.where(mask[None, None], scores, -1000000000.0)
            p = _softmax(scores, axis=-1)
            o = torch.einsum('bhqk,bhke->bhqe', p, v)
            o = torch.einsum('bhte,hed->btd', o, Wo)
            mem = o[:, :M, :].clone()
            outs.append(o[:, M:, :])
        return torch.concatenate(outs, axis=1)

    def _B_ref(x, w1, b1, w2, b2):
        y = _layernorm(x, axis=-1)
        h = _gelu(torch.einsum('bsd,df->bsf', y, w1) + b1)
        return torch.einsum('bsf,fd->bsd', h, w2) + b2
    x = A_x
    g = _sigmoid((x * gate_w).sum(-1, keepdims=True))
    a = _A_ref(x, A_mem0, A_Wq, A_Wk, A_Wv, A_Wo, A_seg_len)
    b = _B_ref(x, B_w1, B_b1, B_w2, B_b2)
    return g * a + (1 - g) * b
```

```python
import re

TRANS = ('v_exp_f32','v_log_f32','v_rcp_f32','v_rsq_f32','v_sqrt_f32','v_sin_f32','v_cos_f32','v_rcp_iflag_f32')

def _regs(tok):
    tok = tok.strip()
    tok = tok.lstrip('-')
    m = re.match(r'^abs\((.*)\)$', tok)
    if m: tok = m.group(1)
    m = re.match(r'^\|(.*)\|$', tok)
    if m: tok = m.group(1)
    m = re.match(r'^([vas])(\d+)$', tok)
    if m: return {(m.group(1), int(m.group(2)))}
    m = re.match(r'^([vas])\[(\d+):(\d+)\]$', tok)
    if m: return {(m.group(1), i) for i in range(int(m.group(2)), int(m.group(3))+1)}
    if tok == 'vcc': return {('s','vcc_lo'),('s','vcc_hi')}
    if tok in ('vcc_lo','vcc_hi'): return {('s',tok)}
    if tok == 'exec': return {('s','exec')}
    if tok == 'm0': return {('s','m0')}
    return set()

def _split_ops(rest):
    ops=[]; depth=0; cur=''
    for ch in rest:
        if ch in '[(': depth+=1
        if ch in '])': depth-=1
        if ch==',' and depth==0:
            ops.append(cur.strip()); cur=''
        else: cur+=ch
    if cur.strip(): ops.append(cur.strip())
    mods=''
    if ops:
        parts = ops[-1].split(None,1)
        if len(parts)==2 and not ops[-1].startswith('hwreg') :
            ops[-1]=parts[0]; mods=parts[1]
    return ops, mods

class Ins:
    def __init__(self, text):
        self.text=text
        t=text.split(';')[0].strip()
        parts=t.split(None,1)
        self.op=parts[0]
        rest=parts[1] if len(parts)>1 else ''
        self.ops,self.mods=_split_ops(rest)
        op=self.op
        self.kind='other'; self.wr=set(); self.rd=set(); self.passes=0
        self.mA=set(); self.mC=set(); self.dpp=False; self.store_data=set(); self.wide=False
        R=[_regs(o) for o in self.ops]
        if op.startswith('v_mfma') or op.startswith('v_smfmac'):
            self.kind='mfma'
            self.passes = 8 if '32x32' in op else 4
            self.wr=R[0]
            if op.startswith('v_mfma'):
                self.mA=R[1]|R[2]; self.mC=R[3]
            else:
                self.mA=R[1]|R[2]|R[3]; self.mC=R[0]
            self.rd=self.mA|self.mC
        elif op.startswith('v_'):
            self.kind='valu'
            base=op.replace('_e32','').replace('_e64','').replace('_dpp','').replace('_sdwa','')
            self.base=base
            self.dpp = ('_dpp' in op) or any(k in self.mods for k in ('row_','quad_perm','wave_'))
            if base.startswith('v_cmp'):
                self.wr=R[0]; self.rd=set().union(*R[1:])
            elif base in ('v_readfirstlane_b32','v_readlane_b32'):
                self.wr=R[0]; self.rd=set().union(*R[1:])
            elif base.startswith('v_permlane') and 'swap' in base or base=='v_swap_b32':
                self.wr=R[0]|R[1]; self.rd=R[0]|R[1]
            elif base in ('v_add_co_u32','v_sub_co_u32','v_subrev_co_u32','v_addc_co_u32','v_subb_co_u32','v_mad_u64_u32','v_div_scale_f32'):
                self.wr=R[0]|R[1]; self.rd=set().union(*R[2:])
            elif base=='v_nop':
                pass
            else:
                self.wr=R[0]; self.rd=set().union(*R[1:]) if len(R)>1 else set()
                if base in ('v_fmac_f32','v_writelane_b32','v_dot2c_f32_bf16','v_pk_fmac_f16') or self.dpp: self.rd|=R[0]
        elif op.startswith('buffer_') or op.startswith('global_') or op.startswith('flat_'):
            self.kind='vmem'
            if op in ('buffer_wbl2','buffer_inv'): pass
            elif 'lds' in op.split('_') or re.search(r'\blds\b', self.mods):
                self.rd=set().union(*R)|{('s','m0')}; self.ldsdma=True
            elif '_load_' in op:
                self.wr=R[0]; self.rd=set().union(*R[1:])
            elif '_store_' in op:
                self.rd=set().union(*R)
                self.store_data = R[0] if op.startswith('buffer_') else R[1]
                self.wide = op.endswith('x3') or op.endswith('x4')
            elif '_atomic_' in op:
                self.rd=set().union(*R)
                if re.search(r'\bsc0\b', self.mods): self.wr=R[0]
        elif op.startswith('ds_'):
            self.kind='ds'
            if op.startswith('ds_read') or op.startswith('ds_bpermute') or op.startswith('ds_permute') or op.startswith('ds_swizzle') or '_rtn' in op:
                self.wr=R[0]; self.rd=set().union(*R[1:])
            else:
                self.rd=set().union(*R)
        elif op.startswith('s_'):
            self.kind='salu'
            if op.startswith('s_cmp') or op.startswith('s_cbranch') or op in ('s_branch','s_waitcnt','s_nop','s_barrier','s_endpgm','s_sleep','s_setprio','s_bitcmp0_b32','s_bitcmp1_b32'):
                self.rd=set().union(*R) if R else set()
            else:
                self.wr=R[0] if R else set(); self.rd=set().union(*R[1:]) if len(R)>1 else set()
                if 'saveexec' in op: self.wr=self.wr|{('s','exec')}
    def states(self):
        if self.op=='s_nop': return int(self.ops[0],0)+1
        return 1

def need(p, c):
    n=0
    vw = {r for r in p.wr if r[0] in 'va'}
    sw = {r for r in p.wr if r[0]=='s'}
    if p.kind=='valu':
        if c.kind=='mfma' and vw & c.rd: n=max(n,2)
        if c.kind=='valu':
            if c.dpp and vw & c.rd: n=max(n,2)
            if c.base.startswith('v_permlane') and vw & c.rd: n=max(n,2)
            if c.base in ('v_readfirstlane_b32','v_readlane_b32') and vw & c.rd: n=max(n,1)
            if p.base in TRANS and vw & c.rd: n=max(n,1)
            if sw & c.rd:
                n=max(n, 4 if c.base in ('v_readlane_b32','v_writelane_b32','v_div_fmas_f32') else 2)
            if c.base in ('v_cndmask_b32','v_addc_co_u32','v_subb_co_u32','v_div_fmas_f32') and (sw & {('s','vcc_lo')}) and (len(c.ops)<4 or 'vcc' in c.ops[-1]): n=max(n,4 if c.base=='v_div_fmas_f32' else 2)
            if ('sdwa' in p.op or ('op_sel' in p.mods and not p.op.startswith('v_pk_'))) and vw & (c.rd|c.wr): n=max(n,1)
        if c.kind=='vmem' and sw & c.rd: n=max(n,5)
        if c.kind=='mfma' and ('s','exec') in p.wr: n=max(n,4)
    if p.kind=='mfma':
        big = {4:8, 8:12}[p.passes]
        if c.kind=='mfma':
            if p.wr & c.mA: n=max(n,big)
            if p.wr & c.mC:
                if not (p.wr==c.mC and p.passes==c.passes): n=max(n,big-2)
            elif p.wr & c.wr: n=max(n,big)
        elif c.kind in ('valu','vmem','ds'):
            if p.wr & (c.rd|c.wr): n=max(n,big)
            if c.kind=='valu' and p.mC & c.wr: n=max(n,{4:3,8:7}[p.passes])
    if p.kind=='vmem' and p.wide and (p.store_data & c.wr): n=max(n,2)
    if p.kind=='ds' and p.op in ('ds_write_b128','ds_write_b96','ds_write2_b64','ds_write2st64_b64') and c.kind=='valu' and (p.rd & c.wr): n=max(n,1)
    if p.kind=='salu' and ('s','m0') in p.wr and c.kind=='vmem' and getattr(c,'ldsdma',False): n=max(n,1)
    return n

class Asm:
    def __init__(self):
        self.lines=[]
        self.hist=[]
        self.uid=0
        self.nops=0
        self.vq=[]; self.dq=[]; self.outl=[]
    def vm(self, text, tag=None):
        self.i(text); self.vq.append(tag)
    def ds(self, text, tag=None):
        self.i(text); self.dq.append(tag)
    def _cnt(self, q, tag):
        idx=[k for k,t in enumerate(q) if t==tag]
        if not idx: return None
        n=len(q)-idx[-1]-1
        del q[:idx[-1]+1]
        return n
    def wait_vm(self, tag):
        n=self._cnt(self.vq,tag)
        if n is not None: self.i(f's_waitcnt vmcnt({min(n,63)})')
    def wait_ds(self, tag):
        n=self._cnt(self.dq,tag)
        if n is not None: self.i(f's_waitcnt lgkmcnt({min(n,15)})')
    def drain_vm(self):
        self.i('s_waitcnt vmcnt(0)'); self.vq=[]
    def drain_ds(self):
        self.i('s_waitcnt lgkmcnt(0)'); self.dq=[]
    def auto(self, text, tag=None):
        if isinstance(text, tuple):
            if text[0]=='wait_ds': self.wait_ds(text[1])
            elif text[0]=='wait_vm': self.wait_vm(text[1])
            elif text[0]=='ds': self.ds(text[1], text[2])
            elif text[0]=='vm': self.vm(text[1], text[2])
            return
        if text.startswith('ds_'): self.ds(text,tag)
        elif text.startswith('buffer_') or text.startswith('global_'): self.vm(text,tag)
        else: self.i(text)
    def raw(self, s): self.lines.append(s)
    def comment(self, s): self.lines.append('    ; '+s)
    def label(self, name):
        self.lines.append(name+':')
    def newlabel(self, p='L'):
        self.uid+=1; return f'{p}_{self.uid}'
    def flush(self, n=None):
        req=0; dist=0
        for p in reversed(self.hist):
            w=0
            if p.kind=='mfma': w={4:8,8:12}[p.passes]
            elif p.kind=='valu': w=5 if any(r[0]=='s' for r in p.wr) else 2
            elif p.kind=='vmem' and p.wide: w=2
            req=max(req,w-dist); dist+=p.states()
            if dist>=12: break
        if req>0: self.i(f's_nop {req-1}')
    def i(self, text):
        c=Ins(text)
        req=0; dist=0
        k=None; psum=0
        for p in reversed(self.hist):
            d=dist
            if p.kind=='mfma':
                if k is None: k=dist
                else:
                    psum+=p.passes
                    d=max(d, psum+k-1)
            req=max(req, need(p,c)-d)
            dist+=p.states()
            if dist>=20: break
        if req>0:
            nop=Ins(f's_nop {req-1}')
            self.lines.append(f'    s_nop {req-1}')
            self.hist.append(nop); self.nops+=1
        self.lines.append('    '+text)
        self.hist.append(c)
        if len(self.hist)>40: self.hist=self.hist[-30:]
    def __call__(self, text):
        for l in text.strip().split('\n'):
            l=l.strip()
            if not l: continue
            if l.startswith(';'): self.comment(l[1:].strip())
            elif l.endswith(':'): self.label(l[:-1])
            else: self.i(l)
    def text(self): return '\n'.join(self.lines)+'\n'

def vr(b,n=1,k='v'):
    return f'{k}{b}' if n==1 else f'{k}[{b}:{b+n-1}]'
def ar(b,n=1): return vr(b,n,'a')
def sr(b,n=1): return vr(b,n,'s')
```

```python
WS_A    = 0x0000000
WS_B    = 0x0700000
WS_V    = 0x1000000
WS_MEMR = 0x3000000
WS_PR   = 0x3010000
WS_FLAG = 0x3040000
WS_MEMH = 0x3100000
WS_G    = 0x3190000
WS_MBH  = 0x3200000
WS_PX   = 0x3A00000
WS_MLP  = 0x4000000
WS_TS   = 0x5000000
MAT = 401408
SEGV = 458752
SEGMB = 114688
SEGP = 40960
SEGM = 57344
NSTEP = 63
F_W=WS_FLAG; F_V=WS_FLAG+32*128; F_M=WS_FLAG+48*128; F_P=WS_FLAG+64*128; F_T=WS_FLAG+128*128
D_OVF=64; D_INIT=68; D_TEAM=128; D_Q=132
SPIN = 1<<17
SPINS = 1<<15
S_WS=8; S_X=12; S_DBG=16; S_R1=20; S_R2=4
S_WAVE=24; S_ROLE=25; S_STEP=26; S_SPIN=27
S_MCUR=28; S_PCUR=29; S_T0=30; S_T1=31; S_XOFF=32; S_PF=33; S_RST=34; S_VOFF=35; S_MNXT=36; S_HOFF=37
S_ERR=38; S_SLOT=39; S_XL=60; S_SLOW=61; S_VRDY=62; S_MBO=63
S_T2=56; S_T3=57; S_T4=58; S_T5=59
S_XCC=96; S_G=97; S_H=98; S_SEG=99; S_B0=100; S_B1=101
P_X,P_MEM0,P_WQ,P_WK,P_WV,P_WO,P_SEG,P_BX,P_W1,P_B1,P_W2,P_B2,P_GATE,P_OUT,P_DBG,P_WS=[64+2*i for i in range(16)]
def srd(a, s, p, nbytes):
    a(f's_mov_b32 s{s}, s{p}\ns_mov_b32 s{s+1}, s{p+1}\ns_mov_b32 s{s+2}, {nbytes}\ns_mov_b32 s{s+3}, 0x20000')
```

```python
from asmb import *
from layout import *
from work import wait_flags, V_L4, V_LIN as W_LIN
OPT = dict(vload=1, xdma=1, hist=1, full=1)
S_M0=S_R1

def frag_reg(f, nacc=32, vbase=120):
    return ar(8*f,8) if f<nacc else vr(vbase+8*(f-nacc),8)
def frag_half(f, hf, nacc=32, vbase=120):
    return ar(8*f+4*hf,4) if f<nacc else vr(vbase+8*(f-nacc)+4*hf,4)

class Stamps:
    def __init__(self, a, on): self.a=a; self.on=on; self.n=0
    def init(self, n):
        if not self.on: return
        for i in range(12): self.a(f's_mov_b32 s{44+i}, 0')
        self.a('s_memtime s[40:41]\ns_waitcnt lgkmcnt(0)\ns_mov_b32 s42, s40')
    def mark(self, i):
        if self.on==1:
            self.a(f's_memtime s[40:41]\ns_waitcnt lgkmcnt(0)\ns_sub_u32 s43, s40, s42\ns_mov_b32 s42, s40\ns_add_u32 s{44+i}, s{44+i}, s43')
    def abs(self, i):
        if self.on==2: self.a(f's_memtime s[{64+2*i}:{65+2*i}]')
    def endstep(self):
        if self.on==2:
            L=self.a.newlabel('st')
            self.a(f's_waitcnt lgkmcnt(0)\ns_cmp_lg_u32 s{S_STEP}, 30\ns_cbranch_scc1 {L}')
            for i in range(12): self.a(f's_mov_b32 s{44+i}, s{64+2*i}')
            self.a.label(L)

def poll_check(a, regs, tmp):
    r=list(regs)
    a(f'v_max3_u32 v{tmp}, v{r[0]}, v{r[1]}, v{r[2]}')
    a(f'v_max3_u32 v{tmp+1}, v{r[3]}, v{r[4]}, v{r[5]}')
    rest=r[6:]
    k=0
    while len(rest)>=2:
        a(f'v_max3_u32 v{tmp+k}, v{tmp+k}, v{rest[0]}, v{rest[1]}'); rest=rest[2:]; k^=1
    a(f'v_max_u32 v{tmp}, v{tmp}, v{tmp+1}')
    a(f'v_cmp_eq_u32 vcc, -1, v{tmp}')

def mem_poll(a, setA, setB, vg, vl, tmp, lds_mem, bail, st, gap=12):
    def issue(s):
        a(f'buffer_load_dwordx4 {vr(s,4)}, v{vg}, {sr(S_WS,4)}, s{S_MCUR} offen sc1')
        a(f'buffer_load_dwordx4 {vr(s+4,4)}, v{vg}, {sr(S_WS,4)}, s{S_MCUR} offen offset:1024 sc1')
    L=a.newlabel('mpoll'); D=a.newlabel('mdone')
    a(f's_mov_b32 s{S_SPIN}, 0')
    issue(setA)
    if gap: a(f's_nop {gap}\ns_nop {gap}')
    issue(setB)
    a.label(L)
    for s in (setA,setB):
        a('s_waitcnt vmcnt(2)')
        a(f'ds_write_b128 v{vl}, {vr(s,4)} offset:{lds_mem}')
        a(f'ds_write_b128 v{vl}, {vr(s+4,4)} offset:{lds_mem+1024}')
        poll_check(a, range(s,s+8), tmp)
        a(f's_cbranch_vccz {D}')
        a('s_waitcnt lgkmcnt(0)')
        issue(s)
    a(f's_add_u32 s{S_SPIN}, s{S_SPIN}, 1\ns_cmp_lt_u32 s{S_SPIN}, {SPIN}\ns_cbranch_scc1 {L}')
    a(f's_mov_b32 s{S_ERR}, 1')
    a.label(D)
    a('s_waitcnt lgkmcnt(0)')
    st.abs(0)
    a('s_barrier')
    st.abs(1)
    if st.on==2: a('s_waitcnt lgkmcnt(0)')

def pub(a, stores):
    L=a.newlabel('slow'); R=a.newlabel('slowr')
    a(f's_cmp_lg_u32 s{S_SLOW}, 0\ns_cbranch_scc1 {L}')
    for x in stores: a(x)
    a.label(R)
    a.outl.append((L,R,[x+' sc1' if x.startswith('buffer_store') else x for x in stores]))

def emit_outl(a):
    for L,R,st in a.outl:
        a.label(L)
        for x in st: a(x)
        a(f's_branch {R}')
    a.outl=[]

def lane_consts(a, t):
    a(f'v_mbcnt_lo_u32_b32 v{t}, -1, 0\nv_mbcnt_hi_u32_b32 v{t}, -1, v{t}')
    a(f'v_lshrrev_b32 v{t+1}, 4, v{t}\nv_and_b32 v{t+2}, 15, v{t}')

def common_addr(a, t, V_IDX, V_POLLG, V_LDSW, V_LIN):
    a(f'''
    v_and_b32 v{t+3}, 1, v{t}
    v_mov_b32 v{V_IDX}, 0x4444
    v_mov_b32 v{t+4}, 0xeeee
    v_cmp_eq_u32 vcc, 1, v{t+3}
    v_cndmask_b32 v{V_IDX}, v{V_IDX}, v{t+4}, vcc
    v_lshlrev_b32 v{V_LIN}, 4, v{t}
    s_lshl_b32 s{S_T0}, s{S_WAVE}, 11
    v_add_u32 v{V_LDSW}, s{S_T0}, v{V_LIN}
    ''')
    a(f'v_mov_b32 v{V_POLLG}, v{V_LDSW}')

def team_barrier(a, nteam, tmp):
    L=a.newlabel('tb'); D=a.newlabel('tbd'); K=a.newlabel('tbs')
    a('s_waitcnt vmcnt(0)\ns_barrier')
    a(f's_cmp_lg_u32 s{S_WAVE}, 0\ns_cbranch_scc1 {K}')
    a(f'v_mov_b32 v{tmp}, 1\nv_mov_b32 v{tmp+1}, 0')
    a('s_mov_b64 exec, 1')
    a(f'buffer_atomic_add v{tmp}, v{tmp+1}, {sr(S_DBG,4)}, 0 offen offset:{D_TEAM}')
    a(f's_mov_b32 s{S_SPIN}, 0')
    a.label(L)
    a(f'buffer_load_dword v{tmp}, v{tmp+1}, {sr(S_DBG,4)}, 0 offen offset:{D_TEAM} sc1')
    a('s_waitcnt vmcnt(0)')
    a(f'v_cmp_le_u32 vcc, {nteam}, v{tmp}')
    a(f's_cbranch_vccnz {D}')
    a('s_sleep 2')
    a(f's_add_u32 s{S_SPIN}, s{S_SPIN}, 1\ns_cmp_lt_u32 s{S_SPIN}, {SPIN}\ns_cbranch_scc1 {L}')
    a(f's_mov_b32 s{S_ERR}, 2')
    a.label(D)
    a('s_mov_b64 exec, -1')
    a.label(K)
    a('s_barrier')

def role_A(a, stamps=False, end='L_end'):
    st=Stamps(a,stamps)
    MEMA=0; XB=28; MBOP=60; ACC=76; TMP=84; SACC=88; QA=100
    V_IDX,V_POLLG,V_LDSW,V_LIN,V_XG,V_XG4,V_MB,V_MB4,V_QW,V_QW6,V_PFD,V_XR=108,109,110,111,112,113,114,115,116,117,118,119
    LDS_MEM=0; LDS_QT=8192; LDS_SP=16384; LDS_X=24576
    if OPT['full']:
        a(f's_lshl_b32 s{S_T0}, s{S_ROLE}, 7\ns_add_u32 s{S_T0}, s{S_T0}, {F_W}')
        wait_flags(a,V_L4,f's{S_T0}',8,1,sleep=2)
    t=0
    lane_consts(a,t)
    common_addr(a,t,V_IDX,V_POLLG,V_LDSW,V_LIN)
    a(f'''
    v_lshrrev_b32 v{t+6}, 2, v{t}
    v_and_b32 v{t+3}, 1, v{t+6}
    v_lshlrev_b32 v{t+3}, 3, v{t+3}
    v_and_b32 v{t+4}, 2, v{t+6}
    v_lshl_add_u32 v{t+3}, v{t+4}, 1, v{t+3}
    v_and_b32 v{t+4}, 4, v{t+6}
    v_lshrrev_b32 v{t+4}, 1, v{t+4}
    v_add_u32 v{t+3}, v{t+3}, v{t+4}
    v_and_b32 v{t+4}, 8, v{t+6}
    v_lshl_add_u32 v{t+3}, v{t+4}, 1, v{t+3}
    v_mul_u32_u24 v{t+3}, 896, v{t+3}
    v_lshlrev_b32 v{t+4}, 1, v{t+1}
    v_mov_b32 v{t+7}, 0x78
    v_lshrrev_b32 v{t+4}, v{t+4}, v{t+7}
    v_xor_b32 v{t+4}, v{t+4}, v{t}
    v_and_b32 v{t+4}, 3, v{t+4}
    s_mul_i32 s{S_T0}, s{S_WAVE}, 192
    v_lshl_add_u32 v{V_XG}, v{t+4}, 4, v{t+3}
    v_add_u32 v{V_XG}, s{S_T0}, v{V_XG}
    v_and_b32 v{t+4}, 1, v{t+4}
    v_lshl_add_u32 v{V_XG4}, v{t+4}, 4, v{t+3}
    s_lshl_b32 s{S_T0}, s{S_WAVE}, 5
    s_add_u32 s{S_T0}, s{S_T0}, 768
    v_add_u32 v{V_XG4}, s{S_T0}, v{V_XG4}
    v_lshrrev_b32 v{t+4}, 2, v{t+2}
    v_lshlrev_b32 v{t+4}, 1, v{t+4}
    v_lshrrev_b32 v{t+4}, v{t+4}, v{t+7}
    v_xor_b32 v{t+4}, v{t+4}, v{t+1}
    v_and_b32 v{t+4}, 3, v{t+4}
    v_lshlrev_b32 v{V_XR}, 6, v{t+2}
    v_lshl_add_u32 v{V_XR}, v{t+4}, 4, v{V_XR}
    s_lshl_b32 s{S_XL}, s{S_WAVE}, 13
    v_add_u32 v{V_XR}, s{S_XL}, v{V_XR}
    s_add_u32 s{S_XL}, s{S_XL}, {LDS_X}
    ''')
    def xdma():
        for kt in range(2):
            for p in range(4):
                imm = 896*kt + (64*p if p<3 else 0)
                a(f's_add_u32 m0, s{S_XL}, {1024*(4*kt+p)-imm}')
                a(f'buffer_load_dwordx4 v{V_XG if p<3 else V_XG4}, {sr(S_X,4)}, s{S_XOFF} offen offset:{imm} lds')
    a(f'''
    v_and_b32 v{t+3}, 7, v{t+2}
    v_lshlrev_b32 v{t+3}, 5, v{t+3}
    v_and_b32 v{t+4}, 1, v{t+1}
    v_lshl_add_u32 v{t+3}, v{t+4}, 4, v{t+3}
    v_lshrrev_b32 v{t+4}, 1, v{t+1}
    v_lshl_add_u32 v{V_MB}, v{t+4}, 8, v{t+3}
    s_mul_i32 s{S_T0}, s{S_WAVE}, {6*256}
    v_add_u32 v{V_MB}, s{S_T0}, v{V_MB}
    s_lshl_b32 s{S_T0}, s{S_WAVE}, 8
    s_add_u32 s{S_T0}, s{S_T0}, {24*256}
    v_add_u32 v{V_MB4}, s{S_T0}, v{t+3}
    ''')
    a(f'''
    s_lshl_b32 s{S_T0}, s{S_WAVE}, 11
    v_lshlrev_b32 v{t+5}, 6, v{t+1}
    v_add_u32 v{t+5}, s{S_T0}, v{t+5}
    v_lshrrev_b32 v{t+3}, 3, v{t+2}
    v_lshl_add_u32 v{V_QW}, v{t+3}, 8, v{t+5}
    v_and_b32 v{t+3}, 1, v{t+2}
    v_lshl_add_u32 v{V_QW}, v{t+3}, 4, v{V_QW}
    v_bfe_u32 v{t+4}, v{t+2}, 1, 2
    v_lshl_add_u32 v{V_QW}, v{t+4}, 2, v{V_QW}
    ''')
    a(f'''
    v_lshl_add_u32 v{V_QW6}, v{t+3}, 1, v{t+5}
    v_bfe_u32 v{t+4}, v{t+2}, 1, 1
    v_lshl_add_u32 v{V_QW6}, v{t+4}, 4, v{V_QW6}
    v_lshrrev_b32 v{t+4}, 2, v{t+2}
    v_lshl_add_u32 v{V_QW6}, v{t+4}, 2, v{V_QW6}
    ''')
    a(f'v_mov_b32 v{t+8}, 0\nv_mov_b32 v{t+9}, 0\nv_mov_b32 v{t+10}, 0\nv_mov_b32 v{t+11}, 0')
    a(f'ds_write_b128 v{V_LDSW}, {vr(t+8,4)} offset:{LDS_QT+1024}')
    a(f'''
    v_mov_b32 v{t+8}, -1
    v_mov_b32 v{t+9}, -1
    v_mov_b32 v{t+10}, -1
    v_mov_b32 v{t+11}, -1
    s_mul_i32 s{S_HOFF}, s{S_ROLE}, 768
    s_lshl_b32 s{S_T0}, s{S_WAVE}, 14
    s_add_u32 s{S_T0}, s{S_T0}, s{S_HOFF}
    s_add_u32 s{S_T0}, s{S_T0}, {WS_PR}
    s_mov_b32 exec_hi, 0xffff
    ''')
    pub(a,[f'buffer_store_dwordx4 {vr(t+8,4)}, v{V_LIN}, {sr(S_WS,4)}, s{S_T0} offen'])
    a(f'''
    s_mov_b64 exec, -1
    s_lshr_b32 s{S_T0}, s{S_ROLE}, 2
    s_mul_i32 s{S_HOFF}, s{S_T0}, 3072
    s_and_b32 s{S_T0}, s{S_ROLE}, 3
    s_lshl_b32 s{S_T0}, s{S_T0}, 9
    s_add_u32 s{S_HOFF}, s{S_HOFF}, s{S_T0}
    s_sub_u32 s{S_VOFF}, 2048, s{S_T0}
    s_and_b32 s{S_T0}, s{S_ROLE}, 2
    s_lshl_b32 s{S_T0}, s{S_T0}, 8
    s_add_u32 s{S_VOFF}, s{S_VOFF}, s{S_T0}
    s_and_b32 s{S_T0}, s{S_ROLE}, 1
    s_lshl_b32 s{S_T0}, s{S_T0}, 4
    s_add_u32 s{S_VOFF}, s{S_VOFF}, s{S_T0}
    ''')
    a(f'''
    v_lshlrev_b32 v{t+3}, 9, v{t+1}
    v_lshl_add_u32 v{t+4}, v{t+2}, 5, v{t+3}
    v_lshl_add_u32 v{t+5}, v{t+2}, 4, v{t+3}
    s_mul_i32 s{S_T0}, s{S_ROLE}, {MAT}
    s_mul_i32 s{S_T1}, s{S_WAVE}, {3*28672}
    s_add_u32 s{S_T1}, s{S_T1}, s{S_T0}
    s_add_u32 s{S_T1}, s{S_T1}, {WS_A}
    ''')
    for tile in range(6):
        for ks in range(7):
            a(f's_add_u32 s{S_XOFF}, s{S_T1}, {(tile>>1)*28672+ks*4096}')
            for hf in range(2):
                a(f'buffer_load_dwordx4 {frag_half(tile*7+ks,hf)}, v{t+4}, {sr(S_WS,4)}, s{S_XOFF} offen offset:{hf*2048+(tile&1)*16} sc1')
        a('s_waitcnt vmcnt(28)') if tile>=2 else None
    a(f'''
    s_lshr_b32 s{S_T1}, s{S_WAVE}, 1
    s_add_u32 s{S_T1}, s{S_T1}, 12
    s_mul_i32 s{S_T1}, s{S_T1}, 28672
    s_add_u32 s{S_T1}, s{S_T1}, s{S_T0}
    s_and_b32 s{S_T0}, s{S_WAVE}, 1
    s_lshl_b32 s{S_T0}, s{S_T0}, 8
    s_add_u32 s{S_T1}, s{S_T1}, s{S_T0}
    s_add_u32 s{S_T1}, s{S_T1}, {WS_A}
    ''')
    for ks in range(7):
        a(f's_add_u32 s{S_XOFF}, s{S_T1}, {ks*4096}')
        for hf in range(2):
            a(f'buffer_load_dwordx4 {frag_half(42+ks,hf)}, v{t+5}, {sr(S_WS,4)}, s{S_XOFF} offen offset:{hf*2048} sc1')
    a(f's_mov_b32 s{S_XOFF}, 0')
    xdma()
    team_barrier(a,30,t+8)
    for r in range(ACC,ACC+8): a(f'v_mov_b32 v{r}, 0')
    a(f'''
    s_mov_b32 s{S_STEP}, 0
    s_mul_i32 s{S_PF}, s{S_ROLE}, 1792
    s_and_b32 s{S_T0}, s{S_WAVE}, 1
    s_lshl_b32 s{S_T0}, s{S_T0}, 10
    s_add_u32 s{S_PF}, s{S_PF}, s{S_T0}
    s_add_u32 s{S_PF}, s{S_PF}, {2*28672}
    s_memtime s[2:3]
    ''')
    st.init(8)
    LOOP=a.newlabel('Aloop')
    a.label(LOOP)
    a(f'''
    s_and_b32 s{S_T0}, s{S_STEP}, 3
    s_lshl_b32 s{S_MCUR}, s{S_T0}, 13
    s_add_u32 s{S_MCUR}, s{S_MCUR}, {WS_MEMR}
    s_lshl_b32 s{S_PCUR}, s{S_T0}, 14
    s_add_u32 s{S_PCUR}, s{S_PCUR}, s{S_HOFF}
    s_add_u32 s{S_PCUR}, s{S_PCUR}, {WS_PR}
    s_add_u32 s{S_T0}, s{S_STEP}, 3
    s_and_b32 s{S_T0}, s{S_T0}, 3
    s_lshl_b32 s{S_RST}, s{S_T0}, 14
    s_add_u32 s{S_RST}, s{S_RST}, s{S_HOFF}
    s_add_u32 s{S_RST}, s{S_RST}, {WS_PR}
    ''')
    for r in range(SACC,SACC+12): a(f'v_mov_b32 v{r}, 0')
    mem_poll(a, MBOP, MBOP+8, V_POLLG, V_LDSW, TMP, LDS_MEM, end, st)
    st.mark(0)
    for ks in range(7):
        a(f'ds_read_b128 {vr(MEMA+4*ks,4)}, v{V_LIN} offset:{LDS_MEM+1024*ks}')
    xl=[f'ds_read_b128 {vr(XB+4*p,4)}, v{V_XR} offset:{LDS_X+1024*p}' for p in range(8)]
    def post(tile):
        acc=ACC+4*(tile&1); o=[]
        if tile<6:
            tb=TMP+2*(tile&1)
            o+= [f'v_add_f32 v{tb}, v{acc}, v{acc+1}', f'v_add_f32 v{tb+1}, v{acc+2}, v{acc+3}']
            o+= [f'v_mov_b64 {vr(acc,2)}, 0', f'v_mov_b64 {vr(acc+2,2)}, 0']
            if tile&1:
                tp=tile>>1
                o+= [f'v_cvt_pk_bf16_f32 v{TMP}, v{TMP}, v{TMP+2}', f'v_cvt_pk_bf16_f32 v{TMP+1}, v{TMP+1}, v{TMP+3}']
                o+= [f'ds_write_b32 v{V_QW}, v{TMP} offset:{LDS_QT+512*tp}', f'ds_write_b32 v{V_QW}, v{TMP+1} offset:{LDS_QT+512*tp+32}']
        return o
    fill=[]
    for tile in range(7):
        acc=ACC+4*(tile&1)
        for ks in range(7):
            if tile==0: a(f's_waitcnt lgkmcnt({6-ks})')
            a(f'v_smfmac_f32_16x16x64_bf16 {vr(acc,4)}, {vr(MEMA+4*ks,4)}, {frag_reg(tile*7+ks)}, v{V_IDX}')
            if tile==0:
                if ks==6: a(f'buffer_load_dword v{V_PFD}, v{V_LIN}, {sr(S_X,4)}, s{S_PF} offen')
            elif ks>=2:
                for _ in range(2):
                    if fill: a(fill.pop(0))
            elif tile<5:
                a(xl.pop(0))
            elif tile==5 and ks==0:
                a('s_waitcnt vmcnt(1)')
                a(f'ds_read_b128 {vr(MBOP,4)}, v{V_MB} offset:{LDS_MEM}')
                a(f'ds_read_b128 {vr(MBOP+4,4)}, v{V_MB} offset:{LDS_MEM+512}')
            elif tile==5 and ks==1:
                a(f'ds_read_b128 {vr(MBOP+8,4)}, v{V_MB} offset:{LDS_MEM+1024}')
                a(f'ds_read_b128 {vr(MBOP+12,4)}, v{V_MB4} offset:{LDS_MEM}')
            elif tile==6 and ks==0:
                a(f'ds_read_b128 {vr(QA,4)}, v{V_LDSW} offset:{LDS_QT}')
        assert not fill
        fill=post(tile)
    st.mark(1); st.abs(2)
    a('s_waitcnt lgkmcnt(0)')
    a(f'v_smfmac_f32_16x16x64_bf16 {vr(SACC,4)}, {vr(QA,4)}, {vr(XB,8)}, v{V_IDX}')
    a(f'v_smfmac_f32_16x16x64_bf16 {vr(SACC+4,4)}, {vr(QA,4)}, {vr(XB+16,8)}, v{V_IDX}')
    a(f'v_add_f32 v{TMP}, v{ACC}, v{ACC+1}')
    a(f'v_add_f32 v{TMP+1}, v{ACC+2}, v{ACC+3}')
    a(f'v_cvt_pk_bf16_f32 v{TMP}, v{TMP}, v{TMP+1}')
    a(f'ds_write_b16 v{V_QW6}, v{TMP} offset:{LDS_QT+1536}')
    a(f'ds_write_b16_d16_hi v{V_QW6}, v{TMP} offset:{LDS_QT+1536+32}')
    a(f'ds_read_b128 {vr(QA+4,4)}, v{V_LDSW} offset:{LDS_QT+1024}')
    a(f'v_smfmac_f32_16x16x64_bf16 {vr(SACC+8,4)}, {vr(QA,4)}, {vr(MBOP,8)}, v{V_IDX}')
    a(f'v_mov_b64 {vr(ACC,2)}, 0\nv_mov_b64 {vr(ACC+2,2)}, 0')
    a('s_waitcnt lgkmcnt(0)')
    a(f'v_smfmac_f32_16x16x64_bf16 {vr(SACC,4)}, {vr(QA+4,4)}, {vr(XB+8,8)}, v{V_IDX}')
    a(f'v_smfmac_f32_16x16x64_bf16 {vr(SACC+4,4)}, {vr(QA+4,4)}, {vr(XB+24,8)}, v{V_IDX}')
    a(f'v_smfmac_f32_16x16x64_bf16 {vr(SACC+8,4)}, {vr(QA+4,4)}, {vr(MBOP+8,8)}, v{V_IDX}')
    st.abs(3)
    for kt in range(3):
        a(f'v_add_f32 v{kt}, v{SACC+4*kt}, v{SACC+4*kt+1}')
        a(f'v_add_f32 v{4+kt}, v{SACC+4*kt+2}, v{SACC+4*kt+3}')
    a(f'ds_write_b128 v{V_LDSW}, v[0:3] offset:{LDS_SP}')
    a(f'ds_write_b128 v{V_LDSW}, v[4:7] offset:{LDS_SP+1024}')
    a(f'''
    v_lshrrev_b32 v27, 8, v{V_LIN}
    v_bfe_u32 v26, v{V_LIN}, 4, 4
    v_lshlrev_b32 v27, 6, v27
    v_bfe_u32 v24, v{V_LIN}, 7, 1
    v_lshl_add_u32 v24, v24, 8, v27
    v_and_b32 v25, 7, v26
    v_lshl_add_u32 v24, v25, 2, v24
    v_bfe_u32 v25, v{V_LIN}, 6, 1
    v_lshl_add_u32 v25, v25, 8, v27
    v_and_b32 v27, 3, v26
    v_lshl_add_u32 v25, v27, 2, v25
    v_add_u32 v25, s{S_VOFF}, v25
    v_cmp_gt_u32 vcc, 8, v26
    ''')
    a('s_waitcnt lgkmcnt(0)')
    st.abs(4)
    a('s_barrier')
    st.mark(2)
    SK=a.newlabel('Askip'); U1=a.newlabel('Au1'); SM=a.newlabel('Asm')
    a(f's_cmp_ge_u32 s{S_WAVE}, 2\ns_cbranch_scc1 {SK}')
    a(f's_cmp_eq_u32 s{S_WAVE}, 1\ns_cbranch_scc1 {U1}')
    for u in range(2):
        if u==1: a.label(U1)
        others=[w for w in range(4) if w!=u]
        for k,w in enumerate(others):
            a(f'ds_read_b128 {vr(8+4*k,4)}, v{V_LIN} offset:{LDS_SP+2048*w+1024*u}')
        if u==1:
            a('v_mov_b32 v0, v4\nv_mov_b32 v1, v5\nv_mov_b32 v2, v6')
            a('v_add_u32 v24, 32, v24\nv_add_u32 v25, 32, v25')
        else:
            a(f's_branch {SM}')
    a.label(SM)
    a('v_cndmask_b32 v26, 0, 1.0, vcc')
    a('s_waitcnt lgkmcnt(2)')
    for k in range(3): a(f'v_add_f32 v{k}, v{k}, v{8+k}')
    a('s_waitcnt lgkmcnt(0)')
    for k in range(3): a(f'v_add_f32 v{12+k}, v{12+k}, v{16+k}')
    for k in range(3): a(f'v_add_f32 v{k}, v{k}, v{12+k}')
    st.abs(5)
    a('v_max3_f32 v3, v0, v1, v2')
    for sh in (1,2,4,8):
        a(f'v_max_f32_dpp v3, v3, v3 row_ror:{sh} row_mask:0xf bank_mask:0xf')
    for k in range(3): a(f'v_sub_f32 v{k}, v{k}, v3')
    for k in range(3): a(f'v_exp_f32 v{k}, v{k}')
    a('v_add_f32 v3, v0, v1')
    a('v_fmac_f32 v3, v2, v26')
    for sh in (1,2,4,8):
        a(f'v_add_f32_dpp v3, v3, v3 row_ror:{sh} row_mask:0xf bank_mask:0xf')
    a('v_rcp_f32 v3, v3')
    a('v_mul_f32 v0, v0, v3\nv_mul_f32 v1, v1, v3\nv_mul_f32 v2, v2, v3')
    a('v_cvt_pk_bf16_f32 v0, |v0|, |v1|\nv_cvt_pk_bf16_f32 v2, |v2|, |v2|')
    st.abs(6)
    pub(a,[f'buffer_store_dword v0, v24, {sr(S_WS,4)}, s{S_PCUR} offen',
           f'buffer_store_dword v2, v25, {sr(S_WS,4)}, s{S_PCUR} offen',
           'v_mov_b32 v3, -1',
           f'buffer_store_dword v3, v24, {sr(S_WS,4)}, s{S_RST} offen',
           f'buffer_store_dword v3, v25, {sr(S_WS,4)}, s{S_RST} offen'])
    a.label(SK)
    a('s_barrier')
    st.mark(3)
    a(f's_add_u32 s{S_XOFF}, s{S_XOFF}, 28672')
    st.abs(7)
    if OPT['xdma']: xdma()
    st.abs(8)
    st.endstep()
    a(f'''
    s_add_u32 s{S_PF}, s{S_PF}, 28672
    s_add_u32 s{S_STEP}, s{S_STEP}, 1
    s_cmp_lg_u32 s{S_ERR}, 0
    s_cbranch_scc1 {end}
    s_cmp_lt_u32 s{S_STEP}, {NSTEP}
    s_cbranch_scc1 {LOOP}
    ''')
    a(f's_branch {end}')
    emit_outl(a)

def role_B(a, stamps=False, end='L_end'):
    st=Stamps(a,stamps)
    MEMA=0; VP=28; MBOP=60; ACC=76; FACC=84; PP=92; MP=116; STG=132;
    V_IDX,V_POLLG,V_LDSW,V_LIN,V_VG,V_PX,V_PM,V_MST,V_WL,V_FW,V_HST,V_HIST,TMP=164,165,166,167,168,169,170,171,172,173,174,175,176
    LDS_MEM=0; LDS_FP=8192; LDS_W=16384
    fr=lambda f: frag_reg(f,32,192)
    fh=lambda f,hf: frag_half(f,hf,32,192)
    a(f's_sub_u32 s{S_ROLE}, s{S_ROLE}, 16')
    MBP=PP
    if OPT['full']:
        a(f'''
        v_lshrrev_b32 v0, 5, v{V_L4}
        v_lshlrev_b32 v0, 7, v0
        v_and_b32 v1, 31, v{V_L4}
        v_add_u32 v0, v0, v1
        s_lshl_b32 s{S_T0}, s{S_WAVE}, 9
        s_add_u32 s{S_T0}, s{S_T0}, {F_W+16*128}
        ''')
        wait_flags(a,0,f's{S_T0}',32,1,sleep=2)
    srd(a,S_M0,P_MEM0,7168)
    t=0
    lane_consts(a,t)
    common_addr(a,t,V_IDX,V_POLLG,V_LDSW,V_LIN)
    a(f'''
    v_lshlrev_b32 v{V_VG}, 9, v{t+1}
    v_lshl_add_u32 v{V_VG}, v{t+2}, 4, v{V_VG}
    ''')
    a(f'''
    s_mul_i32 s{S_T0}, s{S_WAVE}, 3072
    v_add_u32 v{V_PX}, s{S_T0}, v{V_LIN}
    ''')
    a(f'''
    s_lshl_b32 s{S_T0}, s{S_ROLE}, 9
    s_lshl_b32 s{S_T1}, s{S_WAVE}, 5
    s_add_u32 s{S_T0}, s{S_T0}, s{S_T1}
    v_lshlrev_b32 v{V_MST}, 6, v{t+1}
    v_lshrrev_b32 v{t+3}, 3, v{t+2}
    v_lshl_add_u32 v{V_MST}, v{t+3}, 8, v{V_MST}
    v_and_b32 v{t+3}, 7, v{t+2}
    v_lshl_add_u32 v{V_MST}, v{t+3}, 2, v{V_MST}
    v_add_u32 v{V_MST}, s{S_T0}, v{V_MST}
    s_lshl_b32 s{S_T0}, s{S_WAVE}, 15
    v_add_u32 v{V_WL}, s{S_T0}, v{V_LIN}
    v_add_u32 v{V_WL}, {LDS_W}, v{V_WL}
    v_lshrrev_b32 v{V_FW}, 1, v{V_LDSW}
    v_and_b32 v{t+3}, 3, v{t+2}
    v_lshlrev_b32 v{t+3}, 3, v{t+3}
    v_and_b32 v{t+4}, 4, v{t+2}
    v_add_u32 v{t+3}, v{t+3}, v{t+4}
    v_and_b32 v{V_HST}, -29, v{V_MST}
    v_add_u32 v{V_HST}, v{V_HST}, v{t+3}
    v_lshlrev_b32 v{V_PM}, 7, v{t+2}
    ''')
    K=a.newlabel('Bi'); K2=a.newlabel('Bi2')
    a(f's_cmp_ge_u32 s{S_WAVE}, 2\ns_cbranch_scc1 {K}')
    a(f'''
    v_lshl_add_u32 v{t+3}, v{t+1}, 1, s{S_WAVE}
    v_mul_u32_u24 v{t+3}, 896, v{t+3}
    v_lshl_add_u32 v{t+3}, v{t+2}, 2, v{t+3}
    s_lshl_b32 s{S_T0}, s{S_ROLE}, 6
    buffer_load_dword v{t+4}, v{t+3}, {sr(S_M0,4)}, s{S_T0} offen
    v_mov_b32 v{t+5}, -1
    s_mov_b32 s{S_T0}, {WS_MEMR}
    s_mov_b32 s{S_T1}, {WS_MEMR+8192}
    s_mov_b32 s{S_T2}, {WS_MEMR+2*8192}
    s_mov_b32 s{S_T3}, {WS_MEMR+3*8192}
    s_waitcnt vmcnt(0)
    v_min_u32 v{t+4}, -2, v{t+4}
    ''')
    pub(a,[f'buffer_store_dword v{t+(4 if k==S_T0 else 5)}, v{V_MST}, {sr(S_WS,4)}, s{k} offen' for k in (S_T0,S_T1,S_T2,S_T3)])
    a(f'''
    v_mov_b32 v{V_HIST}, v{t+4}
    s_branch {K}_b
    ''')
    a.label(K)
    a(f'v_mov_b32 v{V_HST}, 0x7f000000\nv_mov_b32 v{V_HIST}, 0')
    a.label(K+'_b')
    a(f's_cmp_lg_u32 s{S_ROLE}, 0\ns_cbranch_scc1 {K2}')
    a(f'''
    v_mov_b32 v{t+8}, 0
    v_mov_b32 v{t+9}, 0
    v_mov_b32 v{t+10}, 0
    v_mov_b32 v{t+11}, 0
    s_lshl_b32 s{S_T0}, s{S_WAVE}, 13
    s_add_u32 s{S_T0}, s{S_T0}, {WS_MEMR+7168}
    ''')
    pub(a,[f'buffer_store_dwordx4 {vr(t+8,4)}, v{V_LIN}, {sr(S_WS,4)}, s{S_T0} offen'])
    a.label(K2)
    a(f'''
    s_lshl_b32 s{S_T0}, s{S_WAVE}, 2
    s_mul_i32 s{S_T0}, s{S_T0}, {MAT}
    s_mul_i32 s{S_T1}, s{S_ROLE}, 28672
    s_add_u32 s{S_T1}, s{S_T1}, s{S_T0}
    s_add_u32 s{S_T1}, s{S_T1}, {WS_B}
    ''')
    for tile in range(8):
        hd,tt=tile>>1,tile&1
        for ks in range(7):
            a(f's_add_u32 s{S_XOFF}, s{S_T1}, {hd*MAT+ks*4096}')
            for hf in range(2):
                dst = fh(tile*5+ks,hf) if ks<5 else vr(STG+16*(tile&1)+8*(ks-5)+4*hf,4)
                a(f'buffer_load_dwordx4 {dst}, v{V_VG}, {sr(S_WS,4)}, s{S_XOFF} offen offset:{hf*2048+tt*256} sc1')
        if tile>=1:
            a('s_waitcnt vmcnt(14)')
            p=tile-1
            for k in range(4): a(f'ds_write_b128 v{V_WL}, {vr(STG+16*(p&1)+4*k,4)} offset:{p*4096+k*1024}')
            a('s_waitcnt lgkmcnt(0)')
    a('s_waitcnt vmcnt(0)')
    for k in range(4): a(f'ds_write_b128 v{V_WL}, {vr(STG+16+4*k,4)} offset:{7*4096+k*1024}')
    a('s_waitcnt lgkmcnt(0)')
    team_barrier(a,30,t+8)
    for r in range(ACC,ACC+8): a(f'v_mov_b32 v{r}, 0')
    a(f'''
    s_mov_b32 s{S_STEP}, 0
    s_mul_i32 s{S_VOFF}, s{S_ROLE}, 32768
    s_lshl_b32 s{S_T0}, s{S_WAVE}, 13
    s_add_u32 s{S_VOFF}, s{S_VOFF}, s{S_T0}
    s_add_u32 s{S_VOFF}, s{S_VOFF}, {WS_V}
    s_mov_b32 s{S_HOFF}, {WS_MEMH}
    s_lshl_b32 s{S_MBO}, s{S_ROLE}, 13
    s_lshl_b32 s{S_T0}, s{S_WAVE}, 11
    s_add_u32 s{S_MBO}, s{S_MBO}, s{S_T0}
    s_add_u32 s{S_MBO}, s{S_MBO}, {WS_MBH}
    s_lshl_b32 s{S_PF}, s{S_ROLE}, 4
    s_lshl_b32 s{S_T0}, s{S_WAVE}, 2
    s_add_u32 s{S_PF}, s{S_PF}, s{S_T0}
    s_add_u32 s{S_PF}, s{S_PF}, {F_T}
    s_mov_b32 s{S_VRDY}, {0 if OPT['full'] else 64}
    s_memtime s[2:3]
    ''')
    st.init(8)
    LOOP=a.newlabel('Bloop')
    a.label(LOOP)
    a(f'''
    s_and_b32 s{S_T0}, s{S_STEP}, 3
    s_lshl_b32 s{S_MCUR}, s{S_T0}, 13
    s_add_u32 s{S_MCUR}, s{S_MCUR}, {WS_MEMR}
    s_lshl_b32 s{S_PCUR}, s{S_T0}, 14
    s_add_u32 s{S_PCUR}, s{S_PCUR}, {WS_PR}
    s_add_u32 s{S_T0}, s{S_STEP}, 1
    s_and_b32 s{S_T0}, s{S_T0}, 3
    s_lshl_b32 s{S_MNXT}, s{S_T0}, 13
    s_add_u32 s{S_MNXT}, s{S_MNXT}, {WS_MEMR}
    s_add_u32 s{S_T0}, s{S_STEP}, 3
    s_and_b32 s{S_T0}, s{S_T0}, 3
    s_lshl_b32 s{S_RST}, s{S_T0}, 13
    s_add_u32 s{S_RST}, s{S_RST}, {WS_MEMR}
    s_add_u32 s{S_XOFF}, s{S_VOFF}, 4096
    ''')
    VL=a.newlabel('vr'); VD=a.newlabel('vrd')
    a(f's_mov_b32 s{S_SPIN}, 0')
    a.label(VL)
    a(f'''
    s_cmp_lt_u32 s{S_STEP}, s{S_VRDY}
    s_cbranch_scc1 {VD}
    s_lshl_b32 s{S_T0}, s{S_WAVE}, 4
    s_add_u32 s{S_T0}, s{S_T0}, {F_V}
    buffer_load_dwordx4 {vr(TMP,4)}, v{V_PM}, {sr(S_WS,4)}, s{S_T0} offen sc1
    s_waitcnt vmcnt(0)
    v_min3_u32 v{TMP}, v{TMP}, v{TMP+1}, v{TMP+2}
    v_min_u32 v{TMP}, v{TMP}, v{TMP+3}
    v_cmp_ne_u32 vcc, 0, v{TMP}
    s_and_b32 s{S_T0}, vcc_lo, 0xffff
    s_ff0_i32_b32 s{S_VRDY}, s{S_T0}
    s_lshl_b32 s{S_VRDY}, s{S_VRDY}, 2
    s_add_u32 s{S_SPIN}, s{S_SPIN}, 1
    s_cmp_lt_u32 s{S_SPIN}, {SPIN}
    s_cbranch_scc1 {VL}
    s_mov_b32 s{S_ERR}, 4
    ''')
    a.label(VD)
    for k in range(4): a(f'ds_read_b128 {vr(STG+4*k,4)}, v{V_WL} offset:{k*1024}')
    mem_poll(a, MP, MP+8, V_POLLG, V_LDSW, TMP, LDS_MEM, end, st)
    st.mark(0)
    for ks in range(7):
        a(f'ds_read_b128 {vr(MEMA+4*ks,4)}, v{V_LIN} offset:{LDS_MEM+1024*ks}')
    vl=[]
    for aa in range(2):
        for tt in range(2):
            for hb in range(2):
                so = S_VOFF if aa==0 else S_XOFF
                vl.append(f'buffer_load_dwordx4 {vr(VP+16*aa+8*tt+4*hb,4)}, v{V_VG}, {sr(S_WS,4)}, s{so} offen offset:{hb*2048+tt*256} sc1')
    def post(tile):
        hd,tt=tile>>1,tile&1; acc=ACC+4*(tile&1)
        b=MBOP+8*tt+4*(hd>>1)+(hd&1)
        return [f'v_add_f32 v{TMP}, v{acc}, v{acc+1}', f'v_add_f32 v{TMP+1}, v{acc+2}, v{acc+3}',
                f'v_cvt_pk_bf16_f32 v{b}, v{acc}, v{acc+1}', f'v_cvt_pk_bf16_f32 v{b+2}, v{acc+2}, v{acc+3}',
                f'v_mov_b64 {vr(acc,2)}, 0', f'v_mov_b64 {vr(acc+2,2)}, 0',
                f'v_cvt_pk_bf16_f32 v{MBP+4*tt+hd}, v{TMP}, v{TMP+1}']
    fill=[]
    for tile in range(8):
        acc=ACC+4*(tile&1)
        for ks in range(7):
            if tile==0: a(f's_waitcnt lgkmcnt({6-ks})')
            elif ks==5: a('s_waitcnt lgkmcnt(4)' if tile<7 else 's_waitcnt lgkmcnt(0)')
            src = fr(tile*5+ks) if ks<5 else vr(STG+16*(tile&1)+8*(ks-5),8)
            a(f'v_smfmac_f32_16x16x64_bf16 {vr(acc,4)}, {vr(MEMA+4*ks,4)}, {src}, v{V_IDX}')
            if tile==0:
                if ks==6:
                    for k in range(4): a(f'ds_read_b128 {vr(STG+16+4*k,4)}, v{V_WL} offset:{4096+k*1024}')
            else:
                if ks in (0,1) and tile<7:
                    n=tile+1
                    for k in (2*ks,2*ks+1): a(f'ds_read_b128 {vr(STG+16*(n&1)+4*k,4)}, v{V_WL} offset:{n*4096+k*1024}')
                if ks>=2:
                    for _ in range(2):
                        if fill: a(fill.pop(0))
            if tile==0 and ks==2 and OPT['hist']:
                a(f'buffer_store_dword v{V_HIST}, v{V_HST}, {sr(S_WS,4)}, s{S_HOFF} offen sc1')
            if ks in (1,6) and vl and tile>=1 and OPT['vload']: a(vl.pop(0))
        fill=post(tile)
    for r in range(FACC,FACC+8,2): a(f'v_mov_b64 {vr(r,2)}, 0')
    for f in fill: a(f)
    for tt in range(2):
        b=MBP+4*tt
        a(f'v_permlane32_swap_b32 v{b}, v{b+2}\nv_permlane32_swap_b32 v{b+1}, v{b+3}')
    for tt in range(2):
        b=MBP+4*tt
        a(f'v_permlane16_swap_b32 v{b}, v{b+1}\nv_permlane16_swap_b32 v{b+2}, v{b+3}')
    for tt in range(2):
        a(f'buffer_store_dwordx4 {vr(MBP+4*tt,4)}, v{V_VG}, {sr(S_WS,4)}, s{S_MBO} offen offset:{256*tt} sc1')
    FIN=a.newlabel('Bfin')
    a(f's_cmp_eq_u32 s{S_STEP}, {NSTEP}\ns_cbranch_scc1 {FIN}')
    st.mark(1); st.abs(2)
    def issue(s):
        a(f'buffer_load_dwordx4 {vr(s,4)}, v{V_PX}, {sr(S_WS,4)}, s{S_PCUR} offen sc1')
        a(f'buffer_load_dwordx4 {vr(s+4,4)}, v{V_PX}, {sr(S_WS,4)}, s{S_PCUR} offen offset:1024 sc1')
        a(f'buffer_load_dwordx4 {vr(s+8,4)}, v{V_PX}, {sr(S_WS,4)}, s{S_PCUR} offen offset:2048 sc1')
    L=a.newlabel('ppoll'); D=[a.newlabel('pdone'),a.newlabel('pdone')]; J=a.newlabel('pjoin')
    a(f's_mov_b32 s{S_SPIN}, 0')
    issue(PP); a('s_nop 12\ns_nop 12'); issue(PP+12)
    a.label(L)
    for k,s in enumerate((PP,PP+12)):
        a('s_waitcnt vmcnt(3)')
        poll_check(a, range(s,s+12), TMP)
        a(f's_cbranch_vccz {D[k]}')
        issue(s)
    a(f's_add_u32 s{S_SPIN}, s{S_SPIN}, 1\ns_cmp_lt_u32 s{S_SPIN}, {SPIN}\ns_cbranch_scc1 {L}')
    a(f's_mov_b32 s{S_ERR}, 3')
    for k,s in enumerate((PP,PP+12)):
        a.label(D[k])
        st.mark(2); st.abs(3)
        for tt in range(2):
            a(f'v_smfmac_f32_16x16x64_bf16 {vr(FACC+4*tt,4)}, {vr(s,4)}, {vr(VP+8*tt,8)}, v{V_IDX}')
            a(f'v_smfmac_f32_16x16x64_bf16 {vr(FACC+4*tt,4)}, {vr(s+4,4)}, {vr(VP+16+8*tt,8)}, v{V_IDX}')
            a(f'v_smfmac_f32_16x16x64_bf16 {vr(FACC+4*tt,4)}, {vr(s+8,4)}, {vr(MBOP+8*tt,8)}, v{V_IDX}')
        if k==0: a(f's_branch {J}')
    a.label(J)
    a(f'v_add_f32 v{TMP}, v{FACC}, v{FACC+1}')
    a(f'v_add_f32 v{TMP+2}, v{FACC+2}, v{FACC+3}')
    a(f'v_add_f32 v{TMP+1}, v{FACC+4}, v{FACC+5}')
    a(f'v_add_f32 v{TMP+3}, v{FACC+6}, v{FACC+7}')
    a(f'ds_write_b64 v{V_FW}, {vr(TMP,2)} offset:{LDS_FP}')
    a(f'ds_write_b64 v{V_FW}, {vr(TMP+2,2)} offset:{LDS_FP+512}')
    a(f'v_lshrrev_b32 v{TMP+4}, 1, v{V_LIN}')
    a('s_waitcnt lgkmcnt(0)')
    st.abs(4)
    a('s_barrier')
    st.abs(5)
    if st.on==2: a('s_waitcnt lgkmcnt(0)')
    SK=a.newlabel('Bskip'); U1=a.newlabel('Bu1'); SM=a.newlabel('Bsm')
    a(f's_cmp_ge_u32 s{S_WAVE}, 2\ns_cbranch_scc1 {SK}')
    a(f's_cmp_eq_u32 s{S_WAVE}, 1\ns_cbranch_scc1 {U1}')
    for u in range(2):
        if u==1: a.label(U1)
        others=[w for w in range(4) if w!=u]
        for k,w in enumerate(others):
            a(f'ds_read_b64 {vr(TMP+6+2*k,2)}, v{TMP+4} offset:{LDS_FP+1024*w+512*u}')
        if u==1: a(f'v_mov_b32 v{TMP}, v{TMP+2}\nv_mov_b32 v{TMP+1}, v{TMP+3}')
        else: a(f's_branch {SM}')
    a.label(SM)
    a('s_waitcnt lgkmcnt(2)')
    a(f'v_add_f32 v{TMP}, v{TMP}, v{TMP+6}\nv_add_f32 v{TMP+1}, v{TMP+1}, v{TMP+7}')
    a('s_waitcnt lgkmcnt(0)')
    a(f'v_add_f32 v{TMP+8}, v{TMP+8}, v{TMP+10}\nv_add_f32 v{TMP+9}, v{TMP+9}, v{TMP+11}')
    a(f'v_add_f32 v{TMP}, v{TMP}, v{TMP+8}\nv_add_f32 v{TMP+1}, v{TMP+1}, v{TMP+9}')
    a(f'v_cvt_pk_bf16_f32 v{TMP}, v{TMP}, v{TMP+1}')
    a(f'v_min_u32 v{TMP}, -2, v{TMP}')
    st.abs(6)
    pub(a,[f'buffer_store_dword v{TMP}, v{V_MST}, {sr(S_WS,4)}, s{S_MNXT} offen',
           f'v_mov_b32 v{TMP+1}, -1',
           f'buffer_store_dword v{TMP+1}, v{V_MST}, {sr(S_WS,4)}, s{S_RST} offen'])
    a(f'v_mov_b32 v{V_HIST}, v{TMP}')
    a.label(SK)
    a('s_barrier')
    st.mark(3); st.abs(7)
    st.endstep()
    def flag():
        a(f'''
        s_add_u32 s{S_STEP}, s{S_STEP}, 1
        v_mov_b32 v{TMP+2}, s{S_STEP}
        v_mov_b32 v{TMP+3}, 0
        s_mov_b64 exec, 1
        buffer_store_dword v{TMP+2}, v{TMP+3}, {sr(S_WS,4)}, s{S_PF} offen sc1
        s_mov_b64 exec, -1
        ''')
    flag()
    a(f'''
    s_add_u32 s{S_VOFF}, s{S_VOFF}, {SEGV}
    s_add_u32 s{S_HOFF}, s{S_HOFF}, 8192
    s_add_u32 s{S_MBO}, s{S_MBO}, {SEGMB}
    s_cmp_lg_u32 s{S_ERR}, 0
    s_cbranch_scc1 {end}
    s_branch {LOOP}
    ''')
    a.label(FIN)
    a('s_waitcnt vmcnt(0)')
    flag()
    a(f's_branch {end}')
    emit_outl(a)
```

```python
from asmb import *
from layout import *
import math, struct
def f32(x): return '0x%08x'%struct.unpack('<I',struct.pack('<f',x))[0]
LOG2E=1.4426950408889634

V_LIN,V_LIN2,V_DMA,V_XS,V_XR0,V_XR1,V_L4,V_ZERO,V_TR,V_TR2,V_TQ,V_TQ2,V_RM1,V_RM2,V_HH16,V_RANK=range(192,208)
VT=208
ACC=112; SAC=144; EX=160
AW=112; AMEM=144
LDS_XST=28672; LDS_TAB=143360; LDS_BC=163824

def wait_flags(a, vaddr, soff, nl, thresh, width=1, sleep=4, err=9):
    L=a.newlabel('wf'); D=a.newlabel('wfd')
    t=VT+40
    if nl<32: a(f's_mov_b64 exec, {hex((1<<nl)-1)}')
    elif nl==32: a('s_mov_b32 exec_hi, 0')
    elif nl<64: a(f's_mov_b32 exec_hi, {hex((1<<(nl-32))-1)}')
    a(f's_mov_b32 s{S_SPIN}, 0')
    a.label(L)
    if width==1:
        a(f'buffer_load_dword v{t}, v{vaddr}, {sr(S_WS,4)}, {soff} offen sc1\ns_waitcnt vmcnt(0)')
    else:
        a(f'buffer_load_dwordx4 {vr(t,4)}, v{vaddr}, {sr(S_WS,4)}, {soff} offen sc1\ns_waitcnt vmcnt(0)')
        a(f'v_min3_u32 v{t}, v{t}, v{t+1}, v{t+2}\nv_min_u32 v{t}, v{t}, v{t+3}')
    a(f'v_cmp_gt_u32 vcc, {thresh}, v{t}')
    a(f's_cbranch_vccz {D}')
    a(f's_sleep {sleep}')
    a(f's_add_u32 s{S_SPIN}, s{S_SPIN}, 1\ns_cmp_lt_u32 s{S_SPIN}, {SPINS}\ns_cbranch_scc1 {L}')
    a(f's_mov_b32 s{S_ERR}, {err}')
    a.label(D)
    a('s_mov_b64 exec, -1')
    a.vq=[]

def set_flag(a, soff, val='1'):
    t=VT+40
    a(f'v_mov_b32 v{t}, {val}\ns_mov_b64 exec, 1')
    a(f'buffer_store_dword v{t}, v{V_ZERO}, {sr(S_WS,4)}, {soff} offen sc1')
    a('s_mov_b64 exec, -1')

def wg_flag(a, soff):
    K=a.newlabel('sf')
    a.drain_vm(); a('s_barrier')
    a(f's_cmp_lg_u32 s{S_WAVE}, 0\ns_cbranch_scc1 {K}')
    set_flag(a,soff)
    a.label(K)

def work_consts(a):
    t=VT
    a(f'''
    v_mbcnt_lo_u32_b32 v{t}, -1, 0
    v_mbcnt_hi_u32_b32 v{t}, -1, v{t}
    v_lshlrev_b32 v{V_LIN}, 4, v{t}
    v_add_u32 v{V_LIN2}, 57344, v{V_LIN}
    s_mul_i32 s{S_T0}, s{S_WAVE}, 7168
    v_add_u32 v{V_DMA}, s{S_T0}, v{V_LIN}
    v_lshlrev_b32 v{V_L4}, 2, v{t}
    v_mov_b32 v{V_ZERO}, 0
    v_lshrrev_b32 v{t+1}, 4, v{t}
    v_xor_b32 v{t+1}, v{t+1}, v{t}
    v_and_b32 v{t+1}, 3, v{t+1}
    v_lshlrev_b32 v{t+1}, 4, v{t+1}
    v_lshrrev_b32 v{t+2}, 2, v{t}
    v_mul_u32_u24 v{V_XS}, 896, v{t+2}
    v_add_u32 v{V_XS}, v{V_XS}, v{t+1}
    v_lshrrev_b32 v{t+3}, 5, v{t}
    v_bfe_u32 v{t+4}, v{t}, 2, 2
    v_xor_b32 v{t+4}, v{t+4}, v{t+3}
    v_lshlrev_b32 v{t+4}, 4, v{t+4}
    v_and_b32 v{t+5}, 31, v{t}
    v_lshl_add_u32 v{V_XR0}, v{t+5}, 6, v{t+4}
    v_xor_b32 v{V_XR1}, 32, v{V_XR0}
    v_lshlrev_b32 v{V_HH16}, 4, v{t+3}
    v_bfe_u32 v{t+4}, v{t}, 2, 2
    v_lshlrev_b32 v{t+4}, 6, v{t+4}
    v_and_b32 v{t+5}, 3, v{t}
    v_lshl_add_u32 v{t+4}, v{t+5}, 3, v{t+4}
    v_bfe_u32 v{t+5}, v{t}, 4, 1
    v_lshl_add_u32 v{t+4}, v{t+5}, 5, v{t+4}
    v_lshl_add_u32 v{V_TR}, v{t+3}, 9, v{t+4}
    v_add_u32 v{V_TR2}, 57344, v{V_TR}
    v_lshl_add_u32 v{V_TQ}, v{t+3}, 8, v{t+4}
    v_add_u32 v{V_TQ2}, 57344, v{V_TQ}
    s_mul_i32 s{S_T0}, s{S_WAVE}, 112
    v_add_u32 v{t+2}, s{S_T0}, v{t+2}
    v_and_b32 v{t+5}, 3, v{t}
    v_lshlrev_b32 v{t+5}, 4, v{t+5}
    v_mul_u32_u24 v{V_RM1}, 3584, v{t+2}
    v_add_u32 v{V_RM1}, v{V_RM1}, v{t+5}
    v_mul_u32_u24 v{V_RM2}, 896, v{t+2}
    v_add_u32 v{V_RM2}, v{V_RM2}, v{t+5}
    ''')

def prep(a):
    t=VT
    BF=0; AF=64
    PA=128
    V_RS,V_ST,V_BR0,V_BR1,V_AR0,V_AR1,V_AR2,V_AR3=t+8,t+9,t+10,t+11,t+12,t+13,t+14,t+15
    a(f'''
    s_and_b32 s{S_T0}, s2, 7
    s_lshl_b32 s{S_T0}, s{S_T0}, 2
    s_lshr_b32 s{S_T1}, s2, 6
    s_add_u32 s{S_G}, s{S_T0}, s{S_T1}
    s_bfe_u32 s{S_SEG}, s2, 0x30003
    s_and_b32 s{S_H}, s{S_G}, 15
    s_and_b32 s{S_T0}, s{S_SEG}, 3
    s_lshl_b32 s{S_T2}, s{S_T0}, 2
    s_min_u32 s{S_T2}, s{S_T2}, 10
    s_add_u32 s{S_T2}, s{S_T2}, s{S_WAVE}
    s_lshr_b32 s{S_T3}, s{S_SEG}, 2
    s_mul_i32 s{S_T3}, s{S_T3}, 7
    v_lshrrev_b32 v{t}, 6, v{V_LIN}
    v_lshlrev_b32 v{V_RS}, 13, v{t}
    v_and_b32 v{t+1}, 48, v{V_XS}
    v_mul_u32_u24 v{t+2}, 896, v{t}
    v_sub_u32 v{t+1}, v{V_XS}, v{t+2}
    v_add_u32 v{V_RS}, v{V_RS}, v{t+1}
    s_lshl_b32 s{S_T4}, s{S_WAVE}, 14
    s_add_u32 s{S_T4}, s{S_T4}, {6*16384}
    v_add_u32 v{V_AR2}, 65536, v{V_XR0}
    v_add_u32 v{V_AR3}, 65536, v{V_XR1}
    ''')
    LB=a.newlabel('prepB'); LJ=a.newlabel('prepJ'); LB2=a.newlabel('prepB2'); LJ2=a.newlabel('prepJ2')
    def dtile_dma(dt, slot):
        for rh in range(2):
            a(f's_add_u32 s{S_T0}, s{S_B0}, {(dt*32+16*rh)*8192}')
            for c in range(2):
                a(f's_add_u32 m0, s{S_B1}, {slot*16384+(2*c+rh)*1024-64*c}')
                a.vm(f'buffer_load_dwordx4 v{V_RS}, {sr(S_R1,4)}, s{S_T0} offen offset:{64*c} lds', f'd{dt}')
    a(f's_cmp_ge_u32 s{S_G}, 16\ns_cbranch_scc1 {LB}')
    srd(a,S_R1,P_WQ,3670016); srd(a,S_R2,P_WK,3670016)
    a(f'''
    s_mov_b32 s{S_T5}, {f32(LOG2E/16)}
    v_mov_b32 v{V_ST}, v{V_LIN}
    s_lshl_b32 s{S_T0}, s{S_T2}, 18
    s_lshl_b32 s{S_T1}, s{S_H}, 9
    s_add_u32 s{S_T0}, s{S_T0}, s{S_T1}
    s_add_u32 s{S_T1}, s{S_T0}, {16*8192}
    ''')
    for ch in range(8):
        for rh in range(2):
            a(f's_add_u32 m0, s{S_T4}, {(2*ch+rh)*1024-64*ch}')
            a(f'buffer_load_dwordx4 v{V_RS}, {sr(S_R2,4)}, s{S_T1 if rh else S_T0} offen offset:{64*ch} lds')
    a(f's_mul_i32 s{S_T1}, s{S_H}, {MAT}\ns_add_u32 s{S_VOFF}, s{S_T1}, {WS_A}')
    a(f's_branch {LJ}')
    a.label(LB)
    srd(a,S_R1,P_WV,3670016); srd(a,S_R2,P_WO,3670016)
    a(f'''
    s_mov_b32 s{S_T5}, 1.0
    v_bfe_u32 v{t}, v{V_LIN}, 5, 4
    v_bfe_u32 v{t+1}, v{V_LIN}, 4, 1
    v_lshl_add_u32 v{t}, v{t+1}, 4, v{t}
    v_and_b32 v{t+1}, 512, v{V_LIN}
    v_lshl_add_u32 v{V_ST}, v{t}, 4, v{t+1}
    v_lshrrev_b32 v{t}, 6, v{V_LIN}
    v_mul_u32_u24 v{t}, 896, v{t}
    v_and_b32 v{t+1}, 48, v{V_LIN}
    v_add_u32 v{t}, v{t}, v{t+1}
    s_mul_i32 s{S_T0}, s{S_H}, 229376
    s_lshl_b32 s{S_T1}, s{S_T2}, 6
    s_add_u32 s{S_T0}, s{S_T0}, s{S_T1}
    ''')
    for i in range(16):
        a(f's_add_u32 m0, s{S_T4}, {i*1024}')
        a(f'buffer_load_dwordx4 v{t}, {sr(S_R2,4)}, s{S_T0} offen lds')
        a(f's_add_u32 s{S_T0}, s{S_T0}, {16*896}')
    a(f's_mul_i32 s{S_T1}, s{S_H}, {MAT}\ns_add_u32 s{S_VOFF}, s{S_T1}, {WS_B}')
    a.label(LJ)
    a.vq=['b']
    a(f'''
    s_lshl_b32 s{S_B0}, s{S_T3}, 18
    s_lshl_b32 s{S_T0}, s{S_H}, 9
    s_add_u32 s{S_B0}, s{S_B0}, s{S_T0}
    s_lshl_b32 s{S_T0}, s{S_WAVE}, 7
    s_add_u32 s{S_B0}, s{S_B0}, s{S_T0}
    s_lshl_b32 s{S_B1}, s{S_WAVE}, 12
    s_mul_i32 s{S_T0}, s{S_T2}, 28672
    s_add_u32 s{S_VOFF}, s{S_VOFF}, s{S_T0}
    s_lshl_b32 s{S_T0}, s{S_T3}, 11
    s_add_u32 s{S_VOFF}, s{S_VOFF}, s{S_T0}
    v_add_u32 v{V_BR0}, s{S_T4}, v{V_XR0}
    v_add_u32 v{V_BR1}, s{S_T4}, v{V_XR1}
    ''')
    for dt in range(6): dtile_dma(dt,dt)
    a.wait_vm('b')
    a(f's_cmp_ge_u32 s{S_G}, 16\ns_cbranch_scc1 {LB2}')
    for k in range(16):
        a(f'ds_read_b128 {vr(BF+4*k,4)}, v{V_BR1 if k&1 else V_BR0} offset:{2048*(k>>1)}')
    a(f's_branch {LJ2}')
    a.label(LB2)
    a(f'v_add_u32 v{V_BR0}, s{S_T4}, v{V_TR}')
    for k in range(16):
        a(f'ds_read_b64_tr_b16 {vr(BF+4*k,2)}, v{V_BR0} offset:{1024*k}')
        a(f'ds_read_b64_tr_b16 {vr(BF+4*k+2,2)}, v{V_BR0} offset:{1024*k+256}')
    a.label(LJ2)
    a.drain_ds()
    a.wait_vm('d0')
    a('s_barrier')
    K=a.newlabel('ini')
    a(f's_or_b32 s{S_T0}, s2, s{S_WAVE}\ns_cmp_lg_u32 s{S_T0}, 0\ns_cbranch_scc1 {K}')
    a(f'v_mov_b32 v{t}, 1\ns_mov_b64 exec, 1')
    a(f'buffer_store_dword v{t}, v{V_ZERO}, {sr(S_DBG,4)}, 0 offen offset:{D_INIT} sc1')
    a('s_mov_b64 exec, -1')
    a.label(K)
    dtile_dma(6,6)
    def epi(dt):
        acc=PA+16*(dt&1); o=[]
        for r in range(16): o.append(f'v_mul_f32 v{acc+r}, s{S_T5}, v{acc+r}')
        for p in range(2):
            for d,(x,y) in enumerate(((0,1),(4,5),(2,3),(6,7))):
                o.append(f'v_cvt_pk_bf16_f32 v{EX+4*p+d}, v{acc+8*p+x}, v{acc+8*p+y}')
        o.append(f's_add_u32 s{S_T0}, s{S_VOFF}, {dt*2048}')
        for p in range(2):
            o.append(f'buffer_store_dwordx4 {vr(EX+4*p,4)}, v{V_ST}, {sr(S_WS,4)}, s{S_T0} offen offset:{1024*p} sc1')
        return o
    fill=[]
    for dt in range(7):
        if dt>0:
            a.wait_vm(f'd{dt}'); a('s_barrier')
        base=dt*16384
        for k in range(16):
            off=base+2048*(k>>1)
            reg=(V_XR1 if k&1 else V_XR0) if off<65536 else (V_AR3 if k&1 else V_AR2)
            a.ds(f'ds_read_b128 {vr(AF+4*k,4)}, v{reg} offset:{off%65536}', f'a{k}')
        acc=PA+16*(dt&1)
        for k in range(16):
            a.wait_ds(f'a{k}')
            a(f'v_mfma_f32_32x32x16_bf16 {vr(acc,16)}, {vr(AF+4*k,4)}, {vr(BF+4*k,4)}, {vr(acc,16) if k else 0}')
            for _ in range(3):
                if fill: a.auto(fill.pop(0))
        assert not fill
        fill=epi(dt)
    for f in fill: a.auto(f)
    a.drain_vm(); a('s_barrier')
    K=a.newlabel('pf'); L=a.newlabel('pfl'); D=a.newlabel('pfd')
    a(f's_cmp_lg_u32 s{S_WAVE}, 0\ns_cbranch_scc1 {K}')
    a(f's_mov_b32 s{S_SPIN}, 0')
    a.label(L)
    a(f'buffer_load_dword v{t}, v{V_ZERO}, {sr(S_DBG,4)}, 0 offen offset:{D_INIT} sc1\ns_waitcnt vmcnt(0)')
    a(f'v_cmp_eq_u32 vcc, 0, v{t}\ns_cbranch_vccz {D}\ns_sleep 2')
    a(f's_add_u32 s{S_SPIN}, s{S_SPIN}, 1\ns_cmp_lt_u32 s{S_SPIN}, {SPINS}\ns_cbranch_scc1 {L}')
    a(f's_mov_b32 s{S_ERR}, 8')
    a.label(D)
    a(f's_lshl_b32 s{S_T0}, s{S_G}, 7\ns_lshl_b32 s{S_T1}, s{S_SEG}, 2\ns_add_u32 s{S_T0}, s{S_T0}, s{S_T1}\ns_add_u32 s{S_T0}, s{S_T0}, {F_W}')
    set_flag(a,f's{S_T0}')
    a.label(K)

def dma_piece(t, sbase):
    o=[]; buf=(t%4)*28672
    for grp in range(2):
        o.append(f's_add_u32 s{S_T0}, s{sbase}, {t*28672+4096*grp}')
        o.append(f's_add_u32 m0, s{S_XL}, {buf+4096*grp}')
        for i in range(4 if grp==0 else 3):
            o.append(('vm',f'buffer_load_dwordx4 v{V_DMA}, {sr(S_WS,4)}, s{S_T0} offen offset:{1024*i} sc1 lds',f'w{t}'))
    return o
def dma_rows(t, tloc, srdreg, vreg, sbase, stride):
    o=[]; buf=(t%4)*28672
    for i in range(7):
        o.append(f's_add_u32 s{S_T0}, s{sbase}, {64*tloc+i*16*stride}')
        o.append(f's_add_u32 m0, s{S_XL}, {buf+1024*i}')
        o.append(('vm',f'buffer_load_dwordx4 v{vreg}, {sr(srdreg,4)}, s{S_T0} offen lds',f'w{t}'))
    return o
def rd_piece(t,k,dst):
    off=(t%4)*28672+1024*k
    return [f'ds_read_b128 {ar(dst,4)}, v{V_LIN if off<57344 else V_LIN2} offset:{off%57344}']
def rd_tr(t,k,dst,va,vb,second):
    off=(t%4)*28672+1024*k
    v=va if off<57344 else vb
    return [f'ds_read_b64_tr_b16 {ar(dst,2)}, v{v} offset:{off%57344}', f'ds_read_b64_tr_b16 {ar(dst+2,2)}, v{v} offset:{off%57344+second}']

def gemm(a, nt, dma, rd, mf, epi, pre=None, depth=7, finish_by=None):
    for t in (1,2):
        for o in dma(t): a.auto(o)
    if pre:
        for o in pre(0): a.auto(o)
    a.wait_vm('w0'); a('s_barrier')
    N=28*nt
    def read(g):
        if g<N:
            for o in rd(g//28,g%28,AW+4*(g%8)): a.ds(o,f'r{g}')
    for g in range(depth): read(g)
    fill=list(pre(1)) if pre else []
    for t in range(nt):
        acc=ACC+16*(t&1)
        lim = finish_by(t) if finish_by else 27
        dq=[]
        for k in range(28):
            g=28*t+k
            if k==28-depth-1 and t+1<nt:
                a.wait_vm(f'w{t+1}'); a('s_barrier')
                if t+3<nt: dq=dma(t+3)
            if k==lim:
                while fill: a.auto(fill.pop(0))
            if k==0: a.wait_ds(f'pre{t}')
            a.wait_ds(f'r{g}')
            a(mf(t,k,ar(AW+4*(g%8),4),vr(acc,16)))
            read(g+depth)
            if dq:
                while dq:
                    o=dq.pop(0); a.auto(o)
                    if isinstance(o,tuple): break
            if k>=2 and fill:
                n=math.ceil(len(fill)/max(1,lim-k))
                for _ in range(n):
                    if fill: a.auto(fill.pop(0))
        while dq: a.auto(dq.pop(0))
        while fill: a.auto(fill.pop(0))
        fill=list(epi(t,acc))
        if pre and t+2<nt: fill+=list(pre(t+2))
    while fill: a.auto(fill.pop(0))

def load_x(a, natural):
    a(f'''
    s_mul_i32 s{S_T1}, s{S_SEG}, 28672
    s_add_u32 s{S_T2}, s{S_T1}, 14336
    s_mul_i32 s{S_T3}, s{S_WAVE}, 28672
    s_add_u32 s{S_T3}, s{S_T3}, {LDS_XST}
    v_add_u32 v{VT}, s{S_T3}, v{V_XR0}
    v_add_u32 v{VT+1}, s{S_T3}, v{V_XR1}
    ''')
    for ch in range(14):
        for rh in range(2):
            a(f's_add_u32 m0, s{S_T3}, {(2*ch+rh)*1024-64*ch}')
            a.vm(f'buffer_load_dwordx4 v{V_XS}, {sr(S_X,4)}, s{S_T2 if rh else S_T1} offen offset:{64*ch} lds',f'x{ch}')
    for ch in range(14):
        a.wait_vm(f'x{ch}')
        for kl in range(2):
            a.ds(f'ds_read_b128 {vr(8*ch+4*kl,4)}, v{VT+kl} offset:{2048*ch}',f'xr{2*ch+kl}')
    if natural:
        a.drain_ds()
    else:
        for kb in range(28):
            r=4*kb
            a.wait_ds(f'xr{kb}')
            a(f'v_permlane32_swap_b32 v{r}, v{r+2}\nv_permlane32_swap_b32 v{r+1}, v{r+3}')
        for kb in range(28):
            r=4*kb
            for d,s in enumerate((0,2,1,3)): a(f'v_accvgpr_write_b32 a{r+d}, v{r+s}')
    a('s_barrier')

def unit_head(a, mat0, wsbase):
    a(f'''
    s_lshl_b32 s{S_SEG}, s{S_G}, 2
    s_add_u32 s{S_SEG}, s{S_SEG}, s{S_WAVE}
    s_lshl_b32 s{S_T0}, s{S_H}, 7
    s_add_u32 s{S_T0}, s{S_T0}, {F_W+128*mat0}
    s_mul_i32 s{S_B0}, s{S_H}, {MAT}
    s_add_u32 s{S_B0}, s{S_B0}, {wsbase}
    s_mul_i32 s{S_XL}, s{S_WAVE}, 7168
    ''')
    wait_flags(a,V_L4,f's{S_T0}',8,1)
    for o in dma_piece(0,S_B0): a.auto(o)
    load_x(a,False)

def unit_V(a):
    a.comment('==== V unit ====')
    unit_head(a,16,WS_B)
    a(f'''
    s_mul_i32 s{S_B1}, s{S_SEG}, {SEGV}
    s_lshl_b32 s{S_T0}, s{S_H}, 11
    s_add_u32 s{S_B1}, s{S_B1}, s{S_T0}
    s_add_u32 s{S_B1}, s{S_B1}, {WS_V}
    ''')
    def epi(t,acc):
        o=[f'v_cvt_pk_bf16_f32 v{EX+d}, v{acc+2*d}, v{acc+2*d+1}' for d in range(8)]
        o.append(f's_add_u32 s{S_T1}, s{S_B1}, {t*32768}')
        o+=[f'buffer_store_dwordx4 {vr(EX+4*p,4)}, v{V_LIN}, {sr(S_WS,4)}, s{S_T1} offen offset:{1024*p} sc1' for p in range(2)]
        return o
    gemm(a,14,lambda t:dma_piece(t,S_B0),rd_piece,
         lambda t,k,w,acc:f'v_mfma_f32_32x32x16_bf16 {acc}, {ar(4*k,4)}, {w}, {acc if k else 0}', epi)
    a(f's_lshl_b32 s{S_T0}, s{S_G}, 7\ns_lshl_b32 s{S_T1}, s{S_H}, 2\ns_add_u32 s{S_T0}, s{S_T0}, s{S_T1}\ns_add_u32 s{S_T0}, s{S_T0}, {F_V}')
    wg_flag(a,f's{S_T0}')

def unit_Q(a):
    a.comment('==== Q unit ====')
    unit_head(a,0,WS_A)
    def epi(t,acc):
        o=[]
        for p in range(2):
            for d,(x,y) in enumerate(((0,1),(4,5),(2,3),(6,7))):
                o.append(f'v_cvt_pk_bf16_f32 v{8*t+4*p+d}, v{acc+8*p+x}, v{acc+8*p+y}')
        for p in range(2):
            kb=2*t+p
            o.append(f'v_mfma_f32_32x32x16_bf16 {vr(SAC,16)}, {ar(4*kb,4)}, {vr(4*kb,4)}, {vr(SAC,16) if kb else 0}')
        return o
    gemm(a,14,lambda t:dma_piece(t,S_B0),rd_piece,
         lambda t,k,w,acc:f'v_mfma_f32_32x32x16_bf16 {acc}, {w}, {ar(4*k,4)}, {acc if k else 0}', epi)
    t=VT
    a(f'''
    v_bfe_u32 v{t}, v{V_LIN}, 4, 5
    v_lshrrev_b32 v{t+1}, 2, v{V_HH16}
    v_sub_u32 v{t}, v{t}, v{t+1}
    v_mov_b32 v{t+1}, {f32(-1e9*LOG2E)}
    ''')
    for r in range(16):
        a(f'v_cmp_le_i32 vcc, {8*(r>>2)+(r&3)}, v{t}')
        a(f'v_cndmask_b32 v{SAC+r}, v{t+1}, v{SAC+r}, vcc')
    a(f'v_max3_f32 v{t+2}, v{SAC}, v{SAC+1}, v{SAC+2}')
    for r in range(3,15,2): a(f'v_max3_f32 v{t+2}, v{t+2}, v{SAC+r}, v{SAC+r+1}')
    a(f'v_max_f32 v{t+2}, v{t+2}, v{SAC+15}')
    a(f'''
    v_and_b32 v{t+3}, 0x1f0, v{V_LIN}
    v_lshl_add_u32 v{t+4}, v{t+3}, 1, v{V_HH16}
    v_lshrrev_b32 v{t+5}, 1, v{V_HH16}
    v_add_u32 v{t+5}, v{t+5}, v{t+3}
    s_add_u32 s{S_T1}, s{S_SEG}, 1
    s_mov_b32 s{S_T0}, {F_T}
    ''')
    wait_flags(a,V_L4,f's{S_T0}',56,f's{S_T1}',sleep=8)
    a(f's_lshl_b32 s{S_T0}, s{S_SEG}, 13\ns_add_u32 s{S_T0}, s{S_T0}, {WS_MEMH}\ns_add_u32 s{S_T1}, s{S_T0}, 4096')
    for i in range(7):
        a.vm(f'buffer_load_dwordx4 {ar(AMEM+4*i,4)}, v{t+4}, {sr(S_WS,4)}, s{S_T0 if i<4 else S_T1} offen offset:{1024*(i%4)} sc1',f'm{i}')
    accs=[ACC,ACC+16,EX,EX+16]
    for i in range(7):
        a.wait_vm(f'm{i}')
        for j in range(4):
            a(f'v_mfma_f32_32x32x16_bf16 {vr(accs[j],16)}, {ar(AMEM+4*i,4)}, {vr(4*(4*i+j),4)}, {vr(accs[j],16) if i else 0}')
    a(f'''
    s_mul_i32 s{S_T0}, s{S_SEG}, {SEGP}
    s_lshr_b32 s{S_T1}, s{S_H}, 2
    s_mul_i32 s{S_T1}, s{S_T1}, 10240
    s_add_u32 s{S_T0}, s{S_T0}, s{S_T1}
    s_add_u32 s{S_T0}, s{S_T0}, {WS_PX}
    s_and_b32 s{S_T2}, s{S_H}, 3
    s_lshl_b32 s{S_T1}, s{S_T2}, 9
    s_add_u32 s{S_T1}, s{S_T1}, s{S_T0}
    s_add_u32 s{S_T1}, s{S_T1}, 8192
    s_lshl_b32 s{S_T2}, s{S_T2}, 11
    s_add_u32 s{S_T0}, s{S_T0}, s{S_T2}
    ''')
    M=t+8
    for r in range(4):
        a(f'v_add_f32 v{M+r}, v{accs[0]+r}, v{accs[1]+4+r}')
    for r in range(4):
        a(f'v_add_f32 v{M+4+r}, v{accs[2]+8+r}, v{accs[3]+12+r}')
    for r in range(4):
        a(f'v_add_f32 v{M+r}, v{M+r}, v{M+4+r}')
    a(f'v_max3_f32 v{t+2}, v{t+2}, v{M}, v{M+1}\nv_max3_f32 v{t+2}, v{t+2}, v{M+2}, v{M+3}')
    a(f'v_mov_b32 v{t+6}, v{t+2}\nv_permlane32_swap_b32 v{t+2}, v{t+6}\nv_max_f32 v{t+2}, v{t+2}, v{t+6}')
    vals=[SAC+r for r in range(16)]+[M+r for r in range(4)]
    for v in vals: a(f'v_sub_f32 v{v}, v{v}, v{t+2}')
    for v in vals: a(f'v_exp_f32 v{v}, v{v}')
    a(f'v_add_f32 v{t+6}, v{vals[0]}, v{vals[1]}\nv_add_f32 v{t+7}, v{vals[2]}, v{vals[3]}')
    for k in range(4,20,2):
        a(f'v_add_f32 v{t+6}, v{t+6}, v{vals[k]}\nv_add_f32 v{t+7}, v{t+7}, v{vals[k+1]}')
    a(f'v_add_f32 v{t+6}, v{t+6}, v{t+7}\nv_mov_b32 v{t+7}, v{t+6}\nv_permlane32_swap_b32 v{t+6}, v{t+7}\nv_add_f32 v{t+6}, v{t+6}, v{t+7}')
    a(f'v_rcp_f32 v{t+6}, v{t+6}')
    for v in vals: a(f'v_mul_f32 v{v}, v{v}, v{t+6}')
    for d in range(10): a(f'v_cvt_pk_bf16_f32 v{ACC+d}, v{vals[2*d]}, v{vals[2*d+1]}')
    a(f'buffer_store_dwordx4 {vr(ACC,4)}, v{V_LIN}, {sr(S_WS,4)}, s{S_T0} offen sc1')
    a(f'buffer_store_dwordx4 {vr(ACC+4,4)}, v{V_LIN}, {sr(S_WS,4)}, s{S_T0} offen offset:1024 sc1')
    a(f'buffer_store_dwordx2 {vr(ACC+8,2)}, v{t+5}, {sr(S_WS,4)}, s{S_T1} offen sc1')
    a(f's_lshl_b32 s{S_T0}, s{S_SEG}, 7\ns_lshl_b32 s{S_T1}, s{S_H}, 2\ns_add_u32 s{S_T0}, s{S_T0}, s{S_T1}\ns_add_u32 s{S_T0}, s{S_T0}, {F_P}')
    a.drain_vm()
    set_flag(a,f's{S_T0}')

def unit_M(a):
    a.comment('==== MLP unit ====')
    t=VT
    T1=LDS_TAB; T2=LDS_TAB+2048; TG=LDS_TAB+4096
    srd(a,S_R1,P_W1,448*1792*2)
    a(f'''
    s_lshl_b32 s{S_SEG}, s{S_G}, 2
    s_add_u32 s{S_SEG}, s{S_SEG}, s{S_WAVE}
    s_mul_i32 s{S_XL}, s{S_WAVE}, 7168
    s_mul_i32 s{S_B0}, s{S_H}, 896
    s_mul_i32 s{S_B1}, s{S_H}, {448*896}
    ''')
    d1=lambda tt: dma_rows(tt,tt,S_R1,V_RM1,S_B0,3584)
    d2=lambda tt: dma_rows(tt,tt-14,S_R2,V_RM2,S_B1,896)
    for o in d1(0): a.auto(o)
    a(f's_lshl_b32 s{S_T0}, s{S_WAVE}, 8\nv_add_u32 v{t+2}, s{S_T0}, v{V_L4}')
    srd(a,S_R2,P_B1,3584)
    a.vm(f'buffer_load_dword v{t+3}, v{t+2}, {sr(S_R2,4)}, s{S_B0} offen','tb')
    srd(a,S_R2,P_B2,896)
    a(f's_lshl_b32 s{S_T0}, s{S_H}, 12')
    a.vm(f'buffer_load_dword v{t+4}, v{t+2}, {sr(S_R2,4)}, s{S_T0} offen','tb')
    srd(a,S_R2,P_GATE,896)
    a.vm(f'buffer_load_dword v{t+5}, v{t+2}, {sr(S_R2,4)}, 0 offen','tb')
    a.wait_vm('tb')
    srd(a,S_R2,P_W2,448*1792*2)
    a(f'''
    v_lshlrev_b32 v{t+6}, 16, v{t+3}
    v_and_b32 v{t+7}, 0xffff0000, v{t+3}
    v_lshlrev_b32 v{t+8}, 16, v{t+4}
    v_and_b32 v{t+9}, 0xffff0000, v{t+4}
    v_lshlrev_b32 v{t+10}, 1, v{t+2}
    v_add_u32 v{t+10}, {LDS_TAB}, v{t+10}
    v_add_u32 v{t+11}, {TG}, v{t+2}
    ds_write_b64 v{t+10}, {vr(t+6,2)}
    ds_write_b64 v{t+10}, {vr(t+8,2)} offset:2048
    ds_write_b32 v{t+11}, v{t+5}
    v_add_u32 v{t+12}, {LDS_TAB}, v{V_HH16}
    ''')
    V_TAB=t+12
    load_x(a,True)
    K=a.newlabel('nog')
    a(f's_cmp_lg_u32 s{S_H}, 0\ns_cbranch_scc1 {K}')
    a(f'v_mov_b32 v{t+2}, 0\nv_mov_b32 v{t+3}, 0')
    for kb0 in range(0,28,7):
        for kb in range(kb0,kb0+7): a.ds(f'ds_read_b128 {vr(ACC+4*(kb-kb0),4)}, v{V_TAB} offset:{4096+32*kb}',f'g{kb}')
        for kb in range(kb0,kb0+7):
            a.wait_ds(f'g{kb}')
            for d in range(4): a(f'v_dot2_f32_bf16 v{t+2+(d&1)}, v{4*kb+d}, v{ACC+4*(kb-kb0)+d}, v{t+2+(d&1)}')
        a('s_nop 2')
    a(f'''
    v_add_f32 v{t+2}, v{t+2}, v{t+3}
    v_mov_b32 v{t+3}, v{t+2}
    v_permlane32_swap_b32 v{t+2}, v{t+3}
    v_add_f32 v{t+2}, v{t+2}, v{t+3}
    v_mul_f32 v{t+2}, {f32(-LOG2E)}, v{t+2}
    v_exp_f32 v{t+2}, v{t+2}
    v_add_f32 v{t+2}, 1.0, v{t+2}
    v_rcp_f32 v{t+2}, v{t+2}
    v_and_b32 v{t+3}, 127, v{V_L4}
    s_lshl_b32 s{S_T0}, s{S_SEG}, 7
    s_add_u32 s{S_T0}, s{S_T0}, {WS_G}
    buffer_store_dword v{t+2}, v{t+3}, {sr(S_WS,4)}, s{S_T0} offen sc1
    ''')
    a.label(K)
    a(f'v_mov_b32 v{t+2}, 0\nv_mov_b32 v{t+3}, 0\nv_mov_b32 v{t+4}, 0x3f803f80')
    for r in range(112): a(f'v_dot2_f32_bf16 v{t+2+(r&1)}, v{r}, v{t+4}, v{t+2+(r&1)}')
    a(f'''
    s_nop 2
    v_add_f32 v{t+2}, v{t+2}, v{t+3}
    v_mov_b32 v{t+3}, v{t+2}
    v_permlane32_swap_b32 v{t+2}, v{t+3}
    v_add_f32 v{t+2}, v{t+2}, v{t+3}
    v_mul_f32 v{t+2}, {f32(1/448)}, v{t+2}
    v_mov_b32 v{t+3}, 0
    v_mov_b32 v{t+4}, 0
    s_mov_b32 s{S_T0}, 0xffff0000
    ''')
    for r in range(112):
        a(f'v_lshlrev_b32 v{t+5}, 16, v{r}\nv_and_b32 v{t+6}, s{S_T0}, v{r}')
        a(f'v_sub_f32 v{t+5}, v{t+5}, v{t+2}\nv_sub_f32 v{t+6}, v{t+6}, v{t+2}')
        a(f'v_fmac_f32 v{t+3}, v{t+5}, v{t+5}\nv_fmac_f32 v{t+4}, v{t+6}, v{t+6}')
    a(f'''
    v_add_f32 v{t+3}, v{t+3}, v{t+4}
    v_mov_b32 v{t+4}, v{t+3}
    v_permlane32_swap_b32 v{t+3}, v{t+4}
    v_add_f32 v{t+3}, v{t+3}, v{t+4}
    v_mov_b32 v{t+4}, {f32(1e-5)}
    v_fmac_f32 v{t+4}, {f32(1/448)}, v{t+3}
    v_rsq_f32 v{t+3}, v{t+4}
    ''')
    for r in range(112):
        a(f'v_lshlrev_b32 v{t+5}, 16, v{r}\nv_and_b32 v{t+6}, s{S_T0}, v{r}')
        a(f'v_sub_f32 v{t+5}, v{t+5}, v{t+2}\nv_sub_f32 v{t+6}, v{t+6}, v{t+2}')
        a(f'v_mul_f32 v{t+5}, v{t+5}, v{t+3}\nv_mul_f32 v{t+6}, v{t+6}, v{t+3}')
        a(f'v_cvt_pk_bf16_f32 v{t+5}, v{t+5}, v{t+6}\nv_accvgpr_write_b32 a{r}, v{t+5}')
    kk=2*math.sqrt(2/math.pi)*LOG2E
    a(f'''
    s_mov_b32 s{S_T4}, {f32(-kk*0.044715)}
    v_mov_b32 v{t+2}, {f32(-kk)}
    v_and_b32 v{t+3}, 0x1f0, v{V_LIN}
    v_lshl_add_u32 v{t+3}, v{t+3}, 1, v{V_HH16}
    s_mul_i32 s{S_T5}, s{S_H}, {64*SEGM}
    s_mul_i32 s{S_T1}, s{S_SEG}, {SEGM}
    s_add_u32 s{S_T5}, s{S_T5}, s{S_T1}
    s_add_u32 s{S_T5}, s{S_T5}, {WS_MLP}
    ''')
    def pre(tt):
        acc=ACC+16*(tt&1); base=(0 if tt<14 else 2048)+128*(tt%14)
        return [('ds',f'ds_read_b128 {vr(acc+4*q,4)}, v{V_TAB} offset:{base+32*q}',f'pre{tt}') for q in range(4)]
    def epi(tt,acc):
        o=[]
        if tt<14:
            for h in range(2):
                R=range(8*h,8*h+8); x=lambda r: SAC+(r&7)
                o+=[f'v_mul_f32 v{x(r)}, v{acc+r}, v{acc+r}' for r in R]
                o+=[f'v_fma_f32 v{x(r)}, v{x(r)}, s{S_T4}, v{t+2}' for r in R]
                o+=[f'v_mul_f32 v{x(r)}, v{x(r)}, v{acc+r}' for r in R]
                o+=[f'v_exp_f32 v{x(r)}, v{x(r)}' for r in R]
                o+=[f'v_add_f32 v{x(r)}, 1.0, v{x(r)}' for r in R]
                o+=[f'v_rcp_f32 v{x(r)}, v{x(r)}' for r in R]
                o+=[f'v_mul_f32 v{x(r)}, v{x(r)}, v{acc+r}' for r in R]
                o+=[f'v_cvt_pk_bf16_f32 v{8*tt+4*h+d}, v{SAC+2*d}, v{SAC+2*d+1}' for d in range(4)]
        else:
            o.append(f's_add_u32 s{S_T1}, s{S_T5}, {(tt-14)*4096}')
            o+=[f'buffer_store_dwordx4 {vr(acc+4*q,4)}, v{t+3}, {sr(S_WS,4)}, s{S_T1} offen offset:{1024*q} sc1' for q in range(4)]
            o.append('s_nop 1')
        return o
    gemm(a,28,lambda tt: d1(tt) if tt<14 else d2(tt),
         lambda tt,k,dst: rd_tr(tt,k,dst,V_TR,V_TR2,256) if tt<14 else rd_tr(tt,k,dst,V_TQ,V_TQ2,512),
         lambda tt,k,w,acc: f'v_mfma_f32_32x32x16_bf16 {acc}, {w}, {ar(4*k,4) if tt<14 else vr(4*k,4)}, {acc}',
         epi, pre=pre, depth=5, finish_by=lambda tt: 26)
    a(f's_lshl_b32 s{S_T0}, s{S_G}, 7\ns_lshl_b32 s{S_T1}, s{S_H}, 2\ns_add_u32 s{S_T0}, s{S_T0}, s{S_T1}\ns_add_u32 s{S_T0}, s{S_T0}, {F_M}')
    wg_flag(a,f's{S_T0}')

def unit_F(a):
    a.comment('==== final unit ====')
    t=VT
    VV=0; PX=64; PM=96; MB=104; FA=120; ML=152; GG=184
    a(f'''
    s_lshr_b32 s{S_G}, s{S_SEG}, 2
    s_lshl_b32 s{S_T0}, s{S_G}, 7
    s_lshl_b32 s{S_T5}, s{S_WAVE}, 4
    s_add_u32 s{S_T1}, s{S_T0}, s{S_T5}
    s_add_u32 s{S_T1}, s{S_T1}, {F_V}
    s_add_u32 s{S_T2}, s{S_T0}, {F_M}
    ''')
    wait_flags(a,V_L4,f's{S_T1}',4,1)
    a(f'''
    s_mul_i32 s{S_B0}, s{S_SEG}, {SEGV}
    s_lshl_b32 s{S_T0}, s{S_H}, 16
    s_add_u32 s{S_B0}, s{S_B0}, s{S_T0}
    s_lshl_b32 s{S_T0}, s{S_WAVE}, 13
    s_add_u32 s{S_B0}, s{S_B0}, s{S_T0}
    s_add_u32 s{S_B0}, s{S_B0}, {WS_V}
    ''')
    for n in range(2):
        for g in range(2):
            a(f's_add_u32 s{S_T0}, s{S_B0}, {n*32768+g*4096}')
            for i in range(4):
                a(f'buffer_load_dwordx4 {vr(VV+32*n+16*g+4*i,4)}, v{V_LIN}, {sr(S_WS,4)}, s{S_T0} offen offset:{1024*i} sc1')
    wait_flags(a,V_L4,f's{S_T2}',4,1)
    a(f'''
    v_and_b32 v{t}, 0x1f0, v{V_LIN}
    v_lshlrev_b32 v{t}, 1, v{t}
    v_lshl_add_u32 v{t}, v{V_HH16}, 6, v{t}
    s_mul_i32 s{S_T0}, s{S_SEG}, {SEGM}
    s_lshl_b32 s{S_T1}, s{S_H}, 13
    s_add_u32 s{S_T0}, s{S_T0}, s{S_T1}
    s_lshl_b32 s{S_T1}, s{S_WAVE}, 11
    s_add_u32 s{S_T0}, s{S_T0}, s{S_T1}
    s_add_u32 s{S_T0}, s{S_T0}, {WS_MLP}
    ''')
    for c in range(4):
        a(f'buffer_load_dwordx4 {vr(ML+8*c,4)}, v{t}, {sr(S_WS,4)}, s{S_T0} offen sc1')
        a(f'buffer_load_dwordx4 {vr(ML+8*c+4,4)}, v{t}, {sr(S_WS,4)}, s{S_T0} offen offset:16 sc1')
        if c<3: a(f's_add_u32 s{S_T0}, s{S_T0}, {64*SEGM}')
    a(f'''
    v_and_b32 v{t+1}, 127, v{V_L4}
    s_lshl_b32 s{S_T0}, s{S_SEG}, 7
    s_add_u32 s{S_T1}, s{S_T0}, {WS_G}
    buffer_load_dword v{GG}, v{t+1}, {sr(S_WS,4)}, s{S_T1} offen sc1
    s_add_u32 s{S_T1}, s{S_T0}, s{S_T5}
    s_add_u32 s{S_T1}, s{S_T1}, {F_P}
    ''')
    a(f'''
    s_lshl_b32 s{S_T2}, s{S_H}, 5
    s_lshl_b32 s{S_T3}, s{S_WAVE}, 2
    s_add_u32 s{S_T2}, s{S_T2}, s{S_T3}
    s_add_u32 s{S_T2}, s{S_T2}, {F_T}
    s_add_u32 s{S_T3}, s{S_SEG}, 1
    ''')
    wait_flags(a,V_LIN,f's{S_T2}',2,f's{S_T3}',sleep=8)
    a(f'''
    s_mul_i32 s{S_T0}, s{S_SEG}, {SEGMB}
    s_lshl_b32 s{S_T2}, s{S_H}, 14
    s_add_u32 s{S_T0}, s{S_T0}, s{S_T2}
    s_lshl_b32 s{S_T2}, s{S_WAVE}, 11
    s_add_u32 s{S_T0}, s{S_T0}, s{S_T2}
    s_add_u32 s{S_T0}, s{S_T0}, {WS_MBH}
    s_add_u32 s{S_T2}, s{S_T0}, 8192
    ''')
    for n in range(2):
        for k in range(2):
            a(f'buffer_load_dwordx4 {vr(MB+8*n+4*k,4)}, v{V_LIN}, {sr(S_WS,4)}, s{S_T2 if n else S_T0} offen offset:{1024*k} sc1')
    for r in range(8):
        a(f'v_add_f32 v{ML+r}, v{ML+r}, v{ML+8+r}\nv_add_f32 v{ML+16+r}, v{ML+16+r}, v{ML+24+r}')
    for r in range(8): a(f'v_add_f32 v{ML+r}, v{ML+r}, v{ML+16+r}')
    a(f'v_sub_f32 v{GG+1}, 1.0, v{GG}')
    for r in range(8): a(f'v_mul_f32 v{ML+r}, v{ML+r}, v{GG+1}')
    wait_flags(a,V_L4,f's{S_T1}',4,1,sleep=4)
    a(f'''
    s_mul_i32 s{S_T0}, s{S_SEG}, {SEGP}
    s_mul_i32 s{S_T1}, s{S_WAVE}, 10240
    s_add_u32 s{S_T0}, s{S_T0}, s{S_T1}
    s_add_u32 s{S_T0}, s{S_T0}, {WS_PX}
    ''')
    for i in range(10):
        if i in (4,8): a(f's_add_u32 s{S_T0}, s{S_T0}, 4096')
        a.vm(f'buffer_load_dwordx4 {vr(PX+4*i,4)}, v{V_LIN}, {sr(S_WS,4)}, s{S_T0} offen offset:{1024*(i%4)} sc1',f'p{i}')
    srd(a,S_R1,P_OUT,2048*448*2)
    a(f'''
    v_bfe_u32 v{t}, v{V_LIN}, 4, 5
    v_mul_u32_u24 v{t}, 896, v{t}
    v_add_u32 v{t}, v{t}, v{V_HH16}
    s_mul_i32 s{S_T0}, s{S_SEG}, 28672
    s_lshl_b32 s{S_T1}, s{S_H}, 7
    s_add_u32 s{S_T0}, s{S_T0}, s{S_T1}
    s_lshl_b32 s{S_T1}, s{S_WAVE}, 5
    s_add_u32 s{S_T0}, s{S_T0}, s{S_T1}
    s_lshl_b32 s{S_T1}, s{S_WAVE}, 13
    v_add_u32 v{t+1}, s{S_T1}, v{V_LIN}
    s_lshr_b32 s{S_T1}, s{S_WAVE}, 1
    s_lshl_b32 s{S_T1}, s{S_T1}, 12
    s_and_b32 s{S_T2}, s{S_WAVE}, 1
    s_lshl_b32 s{S_T2}, s{S_T2}, 10
    s_add_u32 s{S_T1}, s{S_T1}, s{S_T2}
    v_add_u32 v{t+2}, s{S_T1}, v{V_LIN}
    ''')
    for i in range(10):
        a.wait_vm(f'p{i}')
        for n in range(2):
            A = vr(VV+32*n+4*i,4) if i<8 else vr(MB+8*n+4*(i-8),4)
            a(f'v_mfma_f32_32x32x16_bf16 {vr(FA+16*n,16)}, {A}, {vr(PX+4*i,4)}, {vr(FA+16*n,16) if i else 0}')
    for n in range(2):
        for q in range(4):
            a(f'ds_write_b128 v{t+1}, {vr(FA+16*n+4*q,4)} offset:{4096*n+1024*q}')
    a('s_waitcnt lgkmcnt(0)\ns_barrier')
    for w in range(4):
        a(f'ds_read_b128 {vr(VV+8*w,4)}, v{t+2} offset:{8192*w}')
        a(f'ds_read_b128 {vr(VV+8*w+4,4)}, v{t+2} offset:{8192*w+2048}')
    a('s_waitcnt lgkmcnt(0)')
    for r in range(8):
        a(f'v_add_f32 v{VV+r}, v{VV+r}, v{VV+8+r}\nv_add_f32 v{VV+16+r}, v{VV+16+r}, v{VV+24+r}')
    for r in range(8): a(f'v_add_f32 v{VV+r}, v{VV+r}, v{VV+16+r}')
    for r in range(4):
        a(f'v_fma_f32 v{ML+2*r}, v{VV+r}, v{GG}, v{ML+2*r}\nv_fma_f32 v{ML+2*r+1}, v{VV+4+r}, v{GG}, v{ML+2*r+1}')
    for d in range(4): a(f'v_cvt_pk_bf16_f32 v{ML+8+d}, v{ML+2*d}, v{ML+2*d+1}')
    a(f'buffer_store_dwordx4 {vr(ML+8,4)}, v{t}, {sr(S_R1,4)}, s{S_T0} offen')
    a.vq=[]; a.dq=[]
```

```python
import sys
from asmb import *
from layout import *
import team, work
from work import *
KN='gated_mix__memory_aug_recurrent_mem_tr__mixer_channel_mlp__prompt'
HDR=open('cdna_kernels/'+KN+'.s.ref').read().split('; Override launch geometry')[0]

def build(name=KN+'_kernel', stamps=0, force_slow=False, diag=False):
    a=Asm()
    a.raw(HDR+f'''; Generated by a hand-written generator. One persistent launch, one 256-thread workgroup per CU.
; @launch grid=(256,1,1) block=(256,1,1) lds=163840
.amdgcn_target "amdgcn-amd-amdhsa--gfx950"
.text
.globl {name}
.p2align 8
.type {name},@function
{name}:''')
    t=VT
    a(f'''
    s_cmp_ge_u32 s2, 256
    s_cbranch_scc1 L_exit
    s_load_dwordx16 s[64:79], s[0:1], 0
    s_load_dwordx16 s[80:95], s[0:1], 64
    s_getreg_b32 s{S_XCC}, hwreg(HW_REG_XCC_ID, 0, 4)
    v_lshrrev_b32 v1, 6, v0
    v_readfirstlane_b32 s{S_WAVE}, v1
    s_mov_b32 s{S_ERR}, 0
    ''')
    if diag: a('s_memrealtime s[40:41]')
    if force_slow: a(f's_lshr_b32 s{S_XCC}, s2, 5')
    work_consts(a)
    a('s_waitcnt lgkmcnt(0)')
    srd(a,S_X,P_X,1835008); srd(a,S_DBG,P_DBG,256); srd(a,S_WS,P_WS,0x10000000)
    srd(a,S_R1,P_X,1835008); srd(a,S_R2,P_X,1835008)
    a(f'''
    v_mov_b32 v{V_RANK}, 1
    s_cmp_lg_u32 s{S_WAVE}, 0
    s_cbranch_scc1 L_norank
    s_lshl_b32 s{S_T0}, s{S_XCC}, 2
    s_mov_b64 exec, 1
    buffer_atomic_add v{V_RANK}, v{V_ZERO}, {sr(S_DBG,4)}, s{S_T0} offen sc0
    s_mov_b64 exec, -1
    L_norank:
    s_cmp_lg_u32 s2, 0
    s_cbranch_scc1 L_nozero
    v_mov_b32 v0, 0
    v_mov_b32 v1, 0
    v_mov_b32 v2, 0
    v_mov_b32 v3, 0
    s_mul_i32 s{S_T0}, s{S_WAVE}, 5120
    s_add_u32 s{S_T0}, s{S_T0}, {WS_FLAG}
    s_add_u32 s{S_T1}, s{S_T0}, 4096
    ''')
    for i in range(5):
        a(f'buffer_store_dwordx4 v[0:3], v{V_LIN}, {sr(S_WS,4)}, s{S_T0 if i<4 else S_T1} offen offset:{1024*(i%4)} sc1')
    a.label('L_nozero')
    prep(a)
    if diag: a('s_memrealtime s[42:43]')
    a(f'''
    v_mov_b32 v{t+1}, {LDS_BC}
    s_cmp_lg_u32 s{S_WAVE}, 0
    s_cbranch_scc1 L_slotw
    v_readfirstlane_b32 s{S_T0}, v{V_RANK}
    s_lshl_b32 s{S_SLOT}, s{S_XCC}, 5
    s_add_u32 s{S_SLOT}, s{S_SLOT}, s{S_T0}
    s_mov_b32 s{S_SLOW}, 0
    s_mov_b32 s{S_T5}, 1
    s_cmp_ge_u32 s{S_XCC}, 8
    s_cbranch_scc1 L_ovf
    s_cmp_ge_u32 s{S_T0}, 32
    s_cbranch_scc1 L_ovf
    s_cmp_ge_u32 s{S_SLOT}, 30
    s_cbranch_scc1 L_slotok
    s_mov_b32 s{S_T5}, 0
    s_branch L_census
    L_ovf:
    v_mov_b32 v{t}, 1
    s_mov_b64 exec, 1
    buffer_atomic_add v{t}, v{V_ZERO}, {sr(S_DBG,4)}, 0 offen offset:{D_OVF} sc0
    s_waitcnt vmcnt(0)
    s_mov_b64 exec, -1
    v_readfirstlane_b32 s{S_T4}, v{t}
    L_census:
    s_mov_b32 s{S_SPIN}, 0
    L_cl:
    buffer_load_dword v{t}, v{V_L4}, {sr(S_DBG,4)}, 0 offen sc1
    s_waitcnt vmcnt(0)
    v_readlane_b32 s{S_T1}, v{t}, 0
    s_cmp_ge_u32 s{S_T1}, 30
    s_cselect_b32 s{S_SLOW}, 0, 1
    s_or_b32 s{S_T0}, s{S_SLOW}, s{S_T5}
    s_cmp_eq_u32 s{S_T0}, 0
    s_cbranch_scc1 L_slotok
    ''')
    for i in range(1,16):
        a(f'v_readlane_b32 s{S_T0}, v{t}, {i}\ns_add_u32 s{S_T1}, s{S_T1}, s{S_T0}')
    a(f'''
    s_cmp_ge_u32 s{S_T1}, 256
    s_cbranch_scc1 L_all
    s_sleep 4
    s_add_u32 s{S_SPIN}, s{S_SPIN}, 1
    s_cmp_lt_u32 s{S_SPIN}, {SPINS}
    s_cbranch_scc1 L_cl
    s_mov_b32 s{S_SLOT}, 31
    s_branch L_slotok
    L_all:
    s_cmp_eq_u32 s{S_T5}, 0
    s_cbranch_scc1 L_slotok
    s_mov_b32 s{S_SLOT}, 31
    ''')
    for i in range(8):
        a(f'''
        v_readlane_b32 s{S_T0}, v{t}, {i}
        s_min_u32 s{S_T0}, s{S_T0}, 32
        s_add_u32 s{S_T4}, s{S_T4}, s{S_T0}
        s_add_u32 s{S_SLOT}, s{S_T4}, {32*i}
        s_cmp_lt_u32 s{S_T4}, 32
        s_cbranch_scc1 L_slotok
        s_sub_u32 s{S_T4}, s{S_T4}, 32
        ''')
    a(f'''
    s_mov_b32 s{S_SLOT}, 31
    L_slotok:
    ''')
    if force_slow: a(f's_mov_b32 s{S_SLOW}, 1')
    a(f'''
    s_lshl_b32 s{S_T0}, s{S_SLOW}, 16
    s_or_b32 s{S_T0}, s{S_T0}, s{S_SLOT}
    v_mov_b32 v{t}, s{S_T0}
    ds_write_b32 v{t+1}, v{t}
    s_waitcnt lgkmcnt(0)
    L_slotw:
    s_barrier
    ds_read_b32 v{t}, v{t+1}
    s_waitcnt lgkmcnt(0)
    v_readfirstlane_b32 s{S_T0}, v{t}
    s_barrier
    s_and_b32 s{S_SLOT}, s{S_T0}, 0xffff
    s_lshr_b32 s{S_SLOW}, s{S_T0}, 16
    s_mov_b32 s{S_ROLE}, s{S_SLOT}
    s_cmp_ge_u32 s{S_SLOT}, 32
    s_cbranch_scc1 L_worker
    s_cmp_ge_u32 s{S_SLOT}, 30
    s_cbranch_scc1 L_end
    s_cmp_ge_u32 s{S_SLOT}, 16
    s_cbranch_scc1 L_roleB
    ''')
    team.role_A(a,stamps)
    a.label('L_roleB')
    team.role_B(a,stamps)
    a.label('L_worker')
    a(f'''
    s_sub_u32 s{S_T0}, s{S_SLOT}, 32
    s_mul_i32 s{S_H}, s{S_T0}, 4682
    s_lshr_b32 s{S_H}, s{S_H}, 16
    s_mul_i32 s{S_T1}, s{S_H}, 14
    s_sub_u32 s{S_G}, s{S_T0}, s{S_T1}
    ''')
    a.label('L_uV'); unit_V(a)
    a.label('L_next')
    a(f'''
    s_cmp_lg_u32 s{S_ERR}, 0
    s_cbranch_scc1 L_end
    v_mov_b32 v{t+1}, {LDS_BC}
    s_cmp_lg_u32 s{S_WAVE}, 0
    s_cbranch_scc1 L_popw
    v_mov_b32 v{t}, 1
    s_mov_b64 exec, 1
    buffer_atomic_add v{t}, v{V_ZERO}, {sr(S_DBG,4)}, 0 offen offset:{D_Q} sc0
    s_waitcnt vmcnt(0)
    ds_write_b32 v{t+1}, v{t}
    s_waitcnt lgkmcnt(0)
    s_mov_b64 exec, -1
    L_popw:
    s_barrier
    ds_read_b32 v{t}, v{t+1}
    s_waitcnt lgkmcnt(0)
    v_readfirstlane_b32 s{S_T0}, v{t}
    s_barrier
    s_cmp_ge_u32 s{S_T0}, 800
    s_cbranch_scc1 L_end
    s_cmp_ge_u32 s{S_T0}, 32
    s_cbranch_scc1 L_n1
    s_and_b32 s{S_G}, s{S_T0}, 1
    s_add_u32 s{S_G}, s{S_G}, 14
    s_lshr_b32 s{S_H}, s{S_T0}, 1
    s_branch L_uV
    L_n1:
    s_cmp_ge_u32 s{S_T0}, 96
    s_cbranch_scc1 L_n2
    s_sub_u32 s{S_T0}, s{S_T0}, 32
    s_lshr_b32 s{S_G}, s{S_T0}, 2
    s_and_b32 s{S_H}, s{S_T0}, 3
    s_branch L_uM
    L_n2:
    s_sub_u32 s{S_T0}, s{S_T0}, 96
    s_mul_i32 s{S_G}, s{S_T0}, 1490
    s_lshr_b32 s{S_G}, s{S_G}, 16
    s_mul_i32 s{S_T1}, s{S_G}, 44
    s_sub_u32 s{S_H}, s{S_T0}, s{S_T1}
    s_cmp_lt_u32 s{S_H}, 16
    s_cbranch_scc1 L_uQ
    s_sub_u32 s{S_H}, s{S_H}, 16
    s_mul_i32 s{S_T0}, s{S_H}, 37
    s_lshr_b32 s{S_T0}, s{S_T0}, 8
    s_mul_i32 s{S_T1}, s{S_T0}, 7
    s_sub_u32 s{S_H}, s{S_H}, s{S_T1}
    s_lshl_b32 s{S_SEG}, s{S_G}, 2
    s_add_u32 s{S_SEG}, s{S_SEG}, s{S_T0}
    ''')
    assert all((u*4682)>>16==u//14 for u in range(224)) and all((u*1490)>>16==u//44 for u in range(704)) and all((u*37)>>8==u//7 for u in range(28))
    unit_F(a); a('s_branch L_next')
    a.label('L_uQ'); unit_Q(a); a('s_branch L_next')
    a.label('L_uM'); unit_M(a); a('s_branch L_next')
    a.label('L_end')
    if diag:
        a(f'''
        s_memtime s[6:7]
        s_memrealtime s[4:5]
        s_waitcnt lgkmcnt(0) vmcnt(0)
        s_sub_u32 s6, s6, s2
        s_lshl_b32 s{S_T0}, s{S_SLOT}, 2
        s_add_u32 s{S_T0}, s{S_T0}, s{S_WAVE}
        s_lshl_b32 s{S_T0}, s{S_T0}, 7
        s_add_u32 s{S_T0}, s{S_T0}, {WS_TS}
        v_mov_b32 v0, 0
        s_mov_b64 exec, 1
        ''')
        for i,sg in enumerate([6,S_ERR,S_STEP,S_SLOW]+list(range(44,56))+[40,42,4]):
            a(f'v_mov_b32 v1, s{sg}\nbuffer_store_dword v1, v0, {sr(S_WS,4)}, s{S_T0} offen offset:{4*i}')
        a('s_waitcnt vmcnt(0)')
    a.label('L_exit')
    a('s_endpgm')
    a.raw(f'''.section .rodata,"a"
.p2align 6
.amdhsa_kernel {name}
  .amdhsa_next_free_vgpr 512
  .amdhsa_next_free_sgpr 102
  .amdhsa_accum_offset 256
  .amdhsa_group_segment_fixed_size 0
  .amdhsa_kernarg_size 128
  .amdhsa_user_sgpr_count 2
  .amdhsa_user_sgpr_kernarg_segment_ptr 1
  .amdhsa_system_sgpr_workgroup_id_x 1
.end_amdhsa_kernel''')
    return a.text()

if __name__=='__main__':
    open('cdna_kernels/'+KN+'.s','w').write(build())
    open('full_diag.s','w').write(build('bench_kernel',diag=True))
    open('full_slow.s','w').write(build('bench_kernel',diag=True,force_slow=True))
```

```python
WS_A    = 0x0000000
WS_B    = 0x0700000
WS_V    = 0x1000000
WS_MEMR = 0x3000000
WS_PR   = 0x3010000
WS_FLAG = 0x3040000
WS_MEMH = 0x3100000
WS_G    = 0x3190000
WS_MBH  = 0x3220000
WS_PX   = 0x3A00000
WS_XF   = 0x3D00000
WS_MLP  = 0x4000000
WS_TS   = 0x5000000
MAT = 401408
SEGV = 458752
SEGMB = 114688
SEGP = 40960
SEGM = 57344
NSTEP = 63
F_W=WS_FLAG; F_V=WS_FLAG+32*128; F_M=WS_FLAG+48*128; F_P=WS_FLAG+64*128; F_T=WS_FLAG+128*128; F_R=WS_FLAG+130*128
F_EP=WS_FLAG+146*128; F_EM=WS_FLAG+160*128
F_B=WS_FLAG+170*128
NTEAM=30
D_OVF=64; D_INIT=68; D_TEAM=128; D_Q=132
SPIN = 1<<17
SPINS = 1<<15
S_WS=8; S_X=12; S_DBG=16; S_R1=20; S_R2=4
S_WAVE=24; S_ROLE=25; S_STEP=26; S_SPIN=27
S_MCUR=28; S_PCUR=29; S_T0=30; S_T1=31; S_XOFF=32; S_PF=33; S_RST=34; S_VOFF=35; S_MNXT=36; S_HOFF=37
S_ERR=38; S_SLOT=39; S_XL=60; S_SLOW=61; S_VRDY=62; S_MBO=63
S_T2=56; S_T3=57; S_T4=58; S_T5=59
S_XCC=96; S_G=97; S_H=98; S_SEG=99; S_B0=100; S_B1=101
P_X,P_MEM0,P_WQ,P_WK,P_WV,P_WO,P_SEG,P_BX,P_W1,P_B1,P_W2,P_B2,P_GATE,P_OUT,P_DBG,P_WS=[64+2*i for i in range(16)]
def srd(a, s, p, nbytes):
    a(f's_mov_b32 s{s}, s{p}\ns_mov_b32 s{s+1}, s{p+1}\ns_mov_b32 s{s+2}, {nbytes}\ns_mov_b32 s{s+3}, 0x20000')
def rt(a,i):
    if getattr(a,'diag',False): a(f's_memrealtime s[{48+2*i}:{49+2*i}]\ns_waitcnt lgkmcnt(0)')
```

```python
from asmb import *
from layout import *
from work import wait_flags, wait_prog, V_L4, V_ZERO, VT
OPT = dict(vload=1, xdma=1, hist=1, full=1, two=3, wb=0, vnt=0, x0=12, xsp=4, vpf=0, ahead=3, pf=0, xadv=1, rp=4, rm=8, nearly=5, hfirst=0, vsp=2, fgap=9, apos=5, bpos=1, cnt=0, asleep=9, a2sleep=5, bsleep=4, pgap=12, agap=12)
S_M0=S_R1

def frag_reg(f, nacc=32, vbase=120):
    return ar(8*f,8) if f<nacc else vr(vbase+8*(f-nacc),8)
def frag_half(f, hf, nacc=32, vbase=120):
    return ar(8*f+4*hf,4) if f<nacc else vr(vbase+8*(f-nacc)+4*hf,4)

class Stamps:
    def __init__(self, a, on): self.a=a; self.on=on; self.n=0
    def init(self, n):
        if not self.on: return
        for i in range(12): self.a(f's_mov_b32 s{44+i}, 0')
        if self.on==1: self.a('s_memtime s[40:41]\ns_waitcnt lgkmcnt(0)\ns_mov_b32 s42, s40')
    def mark(self, i):
        if self.on==1:
            self.a(f's_memtime s[40:41]\ns_waitcnt lgkmcnt(0)\ns_sub_u32 s43, s40, s42\ns_mov_b32 s42, s40\ns_add_u32 s{44+i}, s{44+i}, s43')
    def abs(self, i):
        if self.on==2: self.a(f's_memtime s[{64+2*i}:{65+2*i}]')
    def endstep(self, t, d=0):
        if self.on==2:
            a=self.a
            SK=a.newlabel('nost')
            if d: a(f's_and_b32 s44, s{S_STEP}, 3\ns_cbranch_scc1 {SK}')
            a('s_waitcnt lgkmcnt(0)')
            for i in range(14): a(f'v_writelane_b32 v{t}, s{64+2*i}, {i}')
            a(f'''
            v_mbcnt_lo_u32_b32 v{t+1}, -1, 0
            v_lshlrev_b32 v{t+1}, 2, v{t+1}
            s_lshl_b32 s44, s{S_WAVE}, 6
            s_add_u32 s44, s44, s{S_STEP}
            s_lshl_b32 s44, s44, 6
            s_add_u32 s44, s44, 147456
            v_add_u32 v{t+1}, s44, v{t+1}
            s_mov_b64 exec, 0x3fff
            ds_write_b32 v{t+1}, v{t}
            s_mov_b64 exec, -1
            ''')
            a.label(SK)

def poll_check(a, regs, tmp):
    r=list(regs)
    a(f'v_max3_u32 v{tmp}, v{r[0]}, v{r[1]}, v{r[2]}')
    a(f'v_max3_u32 v{tmp+1}, v{r[3]}, v{r[4]}, v{r[5]}')
    rest=r[6:]
    k=0
    while len(rest)>=2:
        a(f'v_max3_u32 v{tmp+k}, v{tmp+k}, v{rest[0]}, v{rest[1]}'); rest=rest[2:]; k^=1
    a(f'v_max_u32 v{tmp}, v{tmp}, v{tmp+1}')
    a(f'v_cmp_eq_u32 vcc, -1, v{tmp}')


def calib(a):
    L=a.newlabel('cal')
    a('s_memrealtime s[6:7]\ns_waitcnt lgkmcnt(0)')
    a.label(L)
    a(f's_memrealtime s[0:1]\ns_memtime s[2:3]\ns_waitcnt lgkmcnt(0)\ns_cmp_eq_u32 s0, s6\ns_cbranch_scc1 {L}')

def chk4(a, r, tmp):
    a(f'v_max3_u32 v{tmp}, v{r}, v{r+1}, v{r+2}\nv_max_u32 v{tmp}, v{tmp}, v{r+3}\nv_cmp_eq_u32 vcc, -1, v{tmp}')

def repoll(a, load, r, tmp, err):
    L=a.newlabel('rp'); R=a.newlabel('rpr')
    a(f's_cbranch_vccnz {L}')
    a.label(R)
    a.outl.append(('raw',[f'{L}:', load, 's_waitcnt vmcnt(0)',
        f'v_max3_u32 v{tmp}, v{r}, v{r+1}, v{r+2}', f'v_max_u32 v{tmp}, v{tmp}, v{r+3}', f'v_cmp_eq_u32 vcc, -1, v{tmp}',
        f's_cbranch_vccz {R}', f's_add_u32 s{S_SPIN}, s{S_SPIN}, 1', f's_cmp_lt_u32 s{S_SPIN}, {SPIN}', f's_cbranch_scc1 {L}',
        f's_mov_b32 s{S_ERR}, {err}', f's_branch {R}']))

def ring_poll(a, loads, regs, tmp, gap, err):
    n=len(loads); L=a.newlabel('poll'); T=[a.newlabel('first') for _ in range(n)]
    a(f's_mov_b32 s{S_SPIN}, 0')
    for k in range(n):
        a(loads[k])
        if k<n-1 and gap: a(f's_nop {gap}')
    a.label(L)
    for k in range(n):
        a(f's_waitcnt vmcnt({n-1})')
        chk4(a,regs[k],tmp)
        a(f's_cbranch_vccz {T[k]}')
        a(loads[k])
    a(f's_add_u32 s{S_SPIN}, s{S_SPIN}, 1\ns_cmp_lt_u32 s{S_SPIN}, {SPIN}\ns_cbranch_scc1 {L}')
    a(f's_mov_b32 s{S_ERR}, {err}\ns_waitcnt vmcnt(0)')
    return T

def flag_poll(a, load, regs, thr, err, pre=False):
    n=len(regs); L=a.newlabel('fp'); D=a.newlabel('fpd')
    a(f's_mov_b32 s{S_SPIN}, 0')
    for k,r in enumerate(regs):
        if pre: break
        a(load(r))
        if k<n-1: a(f's_nop {OPT["fgap"]}')
    a.label(L)
    for r in regs:
        a(f's_waitcnt vmcnt({n-1})\nv_cmp_gt_u32 vcc, s{thr}, v{r}\ns_cbranch_vccz {D}')
        a(load(r))
    a(f's_add_u32 s{S_SPIN}, s{S_SPIN}, 1\ns_cmp_lt_u32 s{S_SPIN}, {SPIN}\ns_cbranch_scc1 {L}')
    a(f's_mov_b32 s{S_ERR}, {err}\ns_branch L_end')
    a.label(D)

def redo_block(L, back, loads, regs, tmp, zero, err):
    r=list(regs); o=[f'{L}:']+loads+['s_waitcnt vmcnt(0)', f'v_max3_u32 v{tmp}, v{r[0]}, v{r[1]}, v{r[2]}']
    r=r[3:]
    while len(r)>=2: o.append(f'v_max3_u32 v{tmp}, v{tmp}, v{r[0]}, v{r[1]}'); r=r[2:]
    o+=[f'v_max_u32 v{tmp}, v{tmp}, v{r[0]}', f'v_cmp_eq_u32 vcc, -1, v{tmp}', f's_cbranch_vccz {L}_ok',
        f's_add_u32 s{S_SPIN}, s{S_SPIN}, 1', f's_cmp_lt_u32 s{S_SPIN}, {SPIN}', f's_cbranch_scc1 {L}', f's_mov_b32 s{S_ERR}, {err}', 's_branch L_end',
        f'{L}_ok:']+(['s_add_u32 s55, s55, 1'] if OPT['cnt'] else [])+[f'v_mov_b64 {vr(z,2)}, 0' for z in zero]+['s_nop 1', f's_branch {back}']
    return ('raw',o)

def pub(a, stores, cmp=True):
    L=a.newlabel('slow'); R=a.newlabel('slowr')
    if cmp: a(f's_cmp_lg_u32 s{S_SLOW}, 0')
    a(f's_cbranch_scc1 {L}')
    for x in stores: a(x)
    a.label(R)
    a.outl.append((L,R,[x+' sc1' if x.startswith('buffer_store') else x for x in stores]))

def emit_outl(a):
    for e in a.outl:
        if e[0]=='raw':
            a('\n'.join(e[1])); continue
        L,R,st=e
        a.label(L)
        for x in st: a(x)
        a(f's_branch {R}')
    a.outl=[]

def lane_consts(a, t):
    a(f'v_mbcnt_lo_u32_b32 v{t}, -1, 0\nv_mbcnt_hi_u32_b32 v{t}, -1, v{t}')
    a(f'v_lshrrev_b32 v{t+1}, 4, v{t}\nv_and_b32 v{t+2}, 15, v{t}')

def common_addr(a, t, V_IDX, V_LDSW, V_LIN):
    a(f'''
    v_and_b32 v{t+3}, 1, v{t}
    v_mov_b32 v{V_IDX}, 0x4444
    v_mov_b32 v{t+4}, 0xeeee
    v_cmp_eq_u32 vcc, 1, v{t+3}
    v_cndmask_b32 v{V_IDX}, v{V_IDX}, v{t+4}, vcc
    v_lshlrev_b32 v{V_LIN}, 4, v{t}
    s_lshl_b32 s{S_T0}, s{S_WAVE}, 11
    v_add_u32 v{V_LDSW}, s{S_T0}, v{V_LIN}
    ''')

def team_barrier(a, nteam, tmp):
    L=a.newlabel('tb'); D=a.newlabel('tbd'); K=a.newlabel('tbs')
    a('s_waitcnt vmcnt(0)')
    rt(a,3)
    a('s_barrier')
    a(f's_cmp_lg_u32 s{S_WAVE}, 0\ns_cbranch_scc1 {K}')
    a(f'v_mov_b32 v{tmp}, 1\nv_mov_b32 v{tmp+1}, 0')
    a('s_mov_b64 exec, 1')
    a(f'buffer_atomic_add v{tmp}, v{tmp+1}, {sr(S_DBG,4)}, 0 offen offset:{D_TEAM}')
    a(f's_mov_b32 s{S_SPIN}, 0')
    a.label(L)
    a(f'buffer_load_dword v{tmp}, v{tmp+1}, {sr(S_DBG,4)}, 0 offen offset:{D_TEAM} sc1')
    a('s_waitcnt vmcnt(0)')
    a(f'v_cmp_le_u32 vcc, {nteam}, v{tmp}')
    a(f's_cbranch_vccnz {D}')
    a('s_sleep 2')
    a(f's_add_u32 s{S_SPIN}, s{S_SPIN}, 1\ns_cmp_lt_u32 s{S_SPIN}, {SPIN}\ns_cbranch_scc1 {L}')
    a(f's_mov_b32 s{S_ERR}, 2')
    a.label(D)
    a('s_mov_b64 exec, -1')
    a.label(K)
    a('s_barrier')

SMF='v_smfmac_f32_16x16x64_bf16'
def role_A(a, stamps=False, end='L_end'):
    st=Stamps(a,stamps)
    MEMA=0; XB=28; ACC=60; SACC=88; QA=100
    V_IDX,V_LIN,V_LDSW,V_XG,V_XR,V_QW,V_QW2,V_QW6,V_PSX,V_PSM,V_EW,V_ER=range(108,120)
    V_PFD=QA+6; V_EV=QA+7
    CT=QA
    LDS_QT=0; LDS_SP=8192; LDS_X=16384
    S_PH=S_T4; S_PAR=S_T5; S_XR0=S_MNXT; S_XR1=S_MBO; S_M2=S_VRDY
    rt(a,0)
    t=0
    lane_consts(a,t)
    common_addr(a,t,V_IDX,V_LDSW,V_LIN)
    a(f's_lshr_b32 s{S_PH}, s{S_WAVE}, 1\ns_and_b32 s{S_PAR}, s{S_WAVE}, 1')
    a(f'''
    v_lshrrev_b32 v{t+6}, 2, v{t}
    v_and_b32 v{t+3}, 1, v{t+6}
    v_lshlrev_b32 v{t+3}, 3, v{t+3}
    v_and_b32 v{t+4}, 2, v{t+6}
    v_lshl_add_u32 v{t+3}, v{t+4}, 1, v{t+3}
    v_and_b32 v{t+4}, 4, v{t+6}
    v_lshrrev_b32 v{t+4}, 1, v{t+4}
    v_add_u32 v{t+3}, v{t+3}, v{t+4}
    v_and_b32 v{t+4}, 8, v{t+6}
    v_lshl_add_u32 v{t+3}, v{t+4}, 1, v{t+3}
    v_mul_u32_u24 v{t+3}, 896, v{t+3}
    v_lshrrev_b32 v{t+4}, 1, v{t+1}
    v_xor_b32 v{t+4}, v{t+4}, v{t+1}
    v_xor_b32 v{t+4}, v{t+4}, v{t}
    v_and_b32 v{t+4}, 3, v{t+4}
    v_lshl_add_u32 v{t+8}, v{t+4}, 4, v{t+3}
    s_lshl_b32 s{S_T0}, s{S_ROLE}, 2
    s_add_u32 s{S_T0}, s{S_T0}, s{S_WAVE}
    s_mul_i32 s{S_T1}, s{S_T0}, 28672
    s_lshl_b32 s{S_T2}, s{S_T0}, 15
    s_add_u32 s{S_T2}, s{S_T2}, {WS_XF}
    s_mul_i32 s{S_XL}, s{S_WAVE}, 28672
    s_add_u32 s{S_XL}, s{S_XL}, {LDS_X}
    v_lshrrev_b32 v{t+4}, 2, v{t+2}
    v_lshrrev_b32 v{t+5}, 1, v{t+4}
    v_xor_b32 v{t+4}, v{t+4}, v{t+5}
    v_and_b32 v{t+5}, 1, v{t+1}
    v_lshlrev_b32 v{t+5}, 1, v{t+5}
    v_xor_b32 v{t+4}, v{t+4}, v{t+5}
    v_lshlrev_b32 v{t+9}, 6, v{t+2}
    v_lshl_add_u32 v{t+9}, v{t+4}, 4, v{t+9}
    v_lshrrev_b32 v{t+4}, 1, v{t+1}
    v_lshl_add_u32 v{t+9}, v{t+4}, 11, v{t+9}
    v_add_u32 v{t+9}, s{S_XL}, v{t+9}
    v_xor_b32 v{t+10}, 16, v{t+9}
    ''')
    for ch in range(14):
        for kt in range(2):
            imm=64*ch+896*kt
            a(f's_add_u32 m0, s{S_XL}, {(2*ch+kt)*1024-imm}')
            a(f'buffer_load_dwordx4 v{t+8}, {sr(S_X,4)}, s{S_T1} offen offset:{imm} lds')
    a('s_waitcnt vmcnt(0)')
    xst=[]
    for cw in range(4):
        for kt in range(2):
            for p in range(4):
                P=(2*(cw>>1)+p) if p<2 else (4+(cw>>1)+(p&1))
                i=cw*8+kt*4+p
                a(f'ds_read_b128 {ar(4*i,4)}, v{t+9+(cw&1)} offset:{4096*P+1024*kt}')
                if i%4==0: xst.append(f's_add_u32 s{S_T0}, s{S_T2}, {1024*i}')
                xst.append(f'buffer_store_dwordx4 {ar(4*i,4)}, v{V_LIN}, {sr(S_WS,4)}, s{S_T0} offen offset:{1024*(i%4)}')
    a('s_waitcnt lgkmcnt(0)')
    pub(a,xst)
    a(f's_lshl_b32 s{S_T0}, s{S_WAVE}, 13\nv_add_u32 v{V_XG}, s{S_T0}, v{V_LIN}\nv_add_u32 v{V_XR}, 4096, v{V_XG}')
    def xload(ks):
        return [f'buffer_load_dwordx4 {vr(XB+16*kt+8*ks+4*hf,4)}, v{V_XR if kt else V_XG}, {sr(S_WS,4)}, s{S_XOFF} offen offset:{2048*ks+1024*hf} sc1' for kt in range(2) for hf in range(2)]
    rt(a,1)
    a(f's_lshl_b32 s{S_T0}, s{S_ROLE}, 7\ns_add_u32 s{S_T0}, s{S_T0}, {F_W}')
    wait_flags(a,V_L4,f's{S_T0}',8,1,sleep=2)
    rt(a,2)
    a(f'''
    v_lshlrev_b32 v{t+3}, 9, v{t+1}
    v_lshrrev_b32 v{t+4}, 3, v{t+2}
    v_mul_u32_u24 v{t+5}, 28672, v{t+4}
    v_add_u32 v{t+5}, v{t+5}, v{t+3}
    v_bfe_u32 v{t+6}, v{t+2}, 2, 1
    v_lshl_add_u32 v{t+5}, v{t+6}, 8, v{t+5}
    v_and_b32 v{t+6}, 3, v{t+2}
    v_lshl_add_u32 v{t+5}, v{t+6}, 5, v{t+5}
    v_lshl_add_u32 v{t+7}, v{t+4}, 8, v{t+3}
    v_and_b32 v{t+6}, 7, v{t+2}
    v_lshl_add_u32 v{t+7}, v{t+6}, 4, v{t+7}
    s_mul_i32 s{S_T0}, s{S_ROLE}, {MAT}
    s_lshl_b32 s{S_T1}, s{S_PAR}, 7
    s_add_u32 s{S_T0}, s{S_T0}, s{S_T1}
    s_add_u32 s{S_T0}, s{S_T0}, {WS_A}
    s_mul_i32 s{S_T1}, s{S_PH}, {4*28672}
    s_add_u32 s{S_T1}, s{S_T1}, s{S_T0}
    s_mul_i32 s{S_T2}, s{S_PH}, 28672
    s_add_u32 s{S_T2}, s{S_T2}, s{S_T0}
    ''')
    for tile in range(7):
        for ks in range(7):
            if tile<6:
                P2=(2*(tile>>1) if tile<4 else 8)
                a(f's_add_u32 s{S_XOFF}, s{S_T1}, {P2*28672+ks*4096}')
            else:
                a(f's_add_u32 s{S_XOFF}, s{S_T2}, {10*28672+ks*4096}')
            for hf in range(2):
                a(f'buffer_load_dwordx4 {frag_half(tile*7+ks,hf)}, v{t+5 if tile<6 else t+7}, {sr(S_WS,4)}, s{S_XOFF} offen offset:{hf*2048+((tile&1)*16 if tile<6 else 0)} sc1')
        if tile>=2: a('s_waitcnt vmcnt(28)')
    a(f'''
    s_lshl_b32 s{S_T0}, s{S_WAVE}, 11
    v_lshlrev_b32 v{t+5}, 6, v{t+1}
    v_add_u32 v{t+5}, s{S_T0}, v{t+5}
    v_lshrrev_b32 v{t+3}, 3, v{t+2}
    v_lshl_add_u32 v{V_QW}, v{t+3}, 8, v{t+5}
    v_and_b32 v{t+3}, 1, v{t+2}
    v_lshl_add_u32 v{V_QW}, v{t+3}, 4, v{V_QW}
    v_bfe_u32 v{t+4}, v{t+2}, 1, 2
    v_lshl_add_u32 v{V_QW}, v{t+4}, 2, v{V_QW}
    s_lshl_b32 s{S_T0}, s{S_PH}, 9
    v_add_u32 v{V_QW2}, s{S_T0}, v{V_QW}
    v_lshl_add_u32 v{V_QW6}, v{t+3}, 1, v{t+5}
    v_bfe_u32 v{t+4}, v{t+2}, 1, 1
    v_lshl_add_u32 v{V_QW6}, v{t+4}, 4, v{V_QW6}
    v_lshrrev_b32 v{t+4}, 2, v{t+2}
    v_lshl_add_u32 v{V_QW6}, v{t+4}, 2, v{V_QW6}
    s_lshl_b32 s{S_T0}, s{S_PH}, 8
    s_sub_u32 s{S_T0}, 512, s{S_T0}
    v_add_u32 v{V_QW6}, s{S_T0}, v{V_QW6}
    v_mov_b32 v{t+8}, 0
    v_mov_b32 v{t+9}, 0
    v_mov_b32 v{t+10}, 0
    v_mov_b32 v{t+11}, 0
    ds_write_b128 v{V_LDSW}, {vr(t+8,4)} offset:{LDS_QT+1024}
    ''')
    a(f'''
    v_mov_b32 v{t+12}, -1
    v_mov_b32 v{t+13}, -1
    v_mov_b32 v{t+14}, -1
    v_mov_b32 v{t+15}, -1
    s_mul_i32 s{S_T1}, s{S_ROLE}, 768
    s_lshl_b32 s{S_T0}, s{S_WAVE}, 14
    s_add_u32 s{S_T0}, s{S_T0}, s{S_T1}
    s_add_u32 s{S_T0}, s{S_T0}, {WS_PR}
    s_mov_b32 exec_hi, 0xffff
    ''')
    pub(a,[f'buffer_store_dwordx4 {vr(t+12,4)}, v{V_LIN}, {sr(S_WS,4)}, s{S_T0} offen'])
    a(f'''
    s_mov_b64 exec, -1
    ; x part: 3072(h>>2)+512(h&3) + 256(n>>3)+64q+32u+4(n&7) ; mem part: 3072(h>>2)+2048+512((h>>1)&1)+16(h&1) + 256(n>>3)+64q+32u+4((n>>1)&3)
    s_lshr_b32 s{S_T0}, s{S_ROLE}, 2
    s_mul_i32 s{S_T0}, s{S_T0}, 3072
    s_lshl_b32 s{S_T1}, s{S_PAR}, 5
    s_add_u32 s{S_T0}, s{S_T0}, s{S_T1}
    v_lshrrev_b32 v{t+3}, 3, v{t+2}
    v_lshlrev_b32 v{t+3}, 8, v{t+3}
    v_lshl_add_u32 v{t+3}, v{t+1}, 6, v{t+3}
    v_add_u32 v{t+3}, s{S_T0}, v{t+3}
    v_and_b32 v{t+4}, 7, v{t+2}
    v_lshl_add_u32 v{V_PSX}, v{t+4}, 2, v{t+3}
    s_and_b32 s{S_T1}, s{S_ROLE}, 3
    s_lshl_b32 s{S_T1}, s{S_T1}, 9
    v_add_u32 v{V_PSX}, s{S_T1}, v{V_PSX}
    v_bfe_u32 v{t+4}, v{t+2}, 1, 2
    v_lshl_add_u32 v{V_PSM}, v{t+4}, 2, v{t+3}
    s_and_b32 s{S_T1}, s{S_ROLE}, 2
    s_lshl_b32 s{S_T1}, s{S_T1}, 8
    s_and_b32 s{S_T2}, s{S_ROLE}, 1
    s_lshl_b32 s{S_T2}, s{S_T2}, 4
    s_add_u32 s{S_T1}, s{S_T1}, s{S_T2}
    s_add_u32 s{S_T1}, s{S_T1}, 2048
    v_add_u32 v{V_PSM}, s{S_T1}, v{V_PSM}
    s_mov_b32 s{S_XOFF}, {WS_XF-32768}
    v_lshlrev_b32 v{V_EW}, 7, v{t}
    s_lshl_b32 s{S_T0}, s{S_ROLE}, 1
    s_add_u32 s{S_T0}, s{S_T0}, s{S_PAR}
    s_lshl_b32 s{S_T0}, s{S_T0}, 2
    s_add_u32 s{S_T0}, s{S_T0}, {F_EP}
    v_add_u32 v{V_EW}, s{S_T0}, v{V_EW}
    v_mov_b32 v{t+3}, 0x7f000000
    v_cmp_gt_u32 vcc, {OPT['rp']}, v{t}
    v_cndmask_b32 v{V_EW}, v{t+3}, v{V_EW}, vcc
    v_min_u32 v{t+3}, 55, v{t}
    s_and_b32 s{S_T0}, s{S_ROLE}, {OPT['rm']//2-1}
    s_lshl_b32 s{S_T0}, s{S_T0}, 7
    s_add_u32 s{S_T0}, s{S_T0}, {F_EM}
    v_lshl_add_u32 v{V_ER}, v{t+3}, 1, s{S_T0}
    ''')
    team_barrier(a,NTEAM,t+8)
    a(f'''
    s_mov_b32 s{S_STEP}, 0
    s_lshl_b32 s{S_PF}, s{S_ROLE}, 11
    s_lshl_b32 s{S_T0}, s{S_PAR}, 10
    s_add_u32 s{S_PF}, s{S_PF}, s{S_T0}
    s_add_u32 s{S_PF}, s{S_PF}, {WS_XF+2*32768}
    ''')
    if a.diag: calib(a)
    st.init(8)
    LOOP=a.newlabel('Aloop'); NOSL=a.newlabel('Anosl')
    a(f's_branch {NOSL}')
    a.label(LOOP)
    if OPT['asleep']: a(f's_sleep {OPT["asleep"]}')
    a.label(NOSL)
    a(f'''
    s_and_b32 s{S_T0}, s{S_STEP}, 3
    s_lshl_b32 s{S_MCUR}, s{S_T0}, 13
    s_add_u32 s{S_MCUR}, s{S_MCUR}, {WS_MEMR}
    s_add_u32 s{S_M2}, s{S_MCUR}, 4096
    s_lshl_b32 s{S_PCUR}, s{S_T0}, 14
    s_add_u32 s{S_PCUR}, s{S_PCUR}, {WS_PR}
    s_add_u32 s{S_T0}, s{S_STEP}, 3
    s_and_b32 s{S_T0}, s{S_T0}, 3
    s_lshl_b32 s{S_RST}, s{S_T0}, 14
    s_add_u32 s{S_RST}, s{S_RST}, {WS_PR}
    s_add_u32 s{S_XOFF}, s{S_XOFF}, {32768*OPT['xadv']}
    ''')
    for r in range(ACC,SACC+12,2): a(f'v_mov_b64 {vr(r,2)}, 0')
    ml=[f'buffer_load_dwordx4 {vr(MEMA+4*k,4)}, v{V_LIN}, {sr(S_WS,4)}, s{S_MCUR if k<4 else S_M2} offen offset:{1024*(k%4)} sc1' for k in range(7)]
    a(f's_cmp_lg_u32 s{S_SLOW}, 0\ns_cselect_b32 s{S_T1}, 0, s{S_STEP}')
    flag_poll(a, lambda r: f'buffer_load_ushort v{r}, v{V_ER}, {sr(S_WS,4)}, 0 offen sc1', [QA+1,QA+2,QA+3,QA+4], S_T1, 1)
    st.abs(8)
    for k in range(4):
        a(ml[k])
        if k<3: a(f's_nop {OPT["agap"]}')
    def mm(tile,ks): a(f'{SMF} {vr(ACC+4*tile,4)}, {vr(MEMA+4*ks,4)}, {frag_reg(tile*7+ks)}, v{V_IDX}')
    G0=a.newlabel('Ago'); RDO=a.newlabel('Aredo')
    a.outl.append(redo_block(RDO,G0,ml,range(MEMA,MEMA+28),CT,range(ACC,ACC+28,2),1))
    def chk(k):
        r=MEMA+4*k
        if k==0: return [f'v_max3_u32 v{CT}, v{r}, v{r+1}, v{r+2}', f'v_max_u32 v{CT}, v{CT}, v{r+3}']
        return [f'v_max3_u32 v{CT}, v{CT}, v{r}, v{r+1}', f'v_max3_u32 v{CT}, v{CT}, v{r+2}, v{r+3}']
    a.label(G0)
    xl=xload(0)+xload(1)
    vplan={0:('m4',ml[4]),4:('m5',ml[5]),8:('m6',ml[6])}
    for k in range(8): vplan[OPT['x0']+OPT['xsp']*k]=(f'x{k//4}',xl[k])
    a.vq=['m0','m1','m2','m3']
    def vissue(g):
        if g in vplan: a.vm(vplan[g][1],vplan[g][0])
    for rnd in range(3):
        a.wait_vm(f'm{rnd}')
        if rnd==0: st.abs(0)
        for tile in range(7):
            mm(tile,rnd)
            vissue(7*rnd+tile)
            if tile in (2,3): a(chk(rnd)[tile-2])
    st.abs(1)
    def post(tp):
        e=ACC+8*tp; o_=e+4
        vq=V_QW if tp<2 else V_QW2
        return [f'v_add_f32 v{e}, v{e}, v{e+1}', f'v_add_f32 v{e+2}, v{e+2}, v{e+3}'], \
               [f'v_add_f32 v{o_}, v{o_}, v{o_+1}', f'v_add_f32 v{o_+2}, v{o_+2}, v{o_+3}',
                f'v_cvt_pk_bf16_f32 v{e+1}, v{e}, v{o_}', f'v_cvt_pk_bf16_f32 v{e+3}, v{e+2}, v{o_+2}',
                f'ds_write_b32 v{vq}, v{e+1} offset:{LDS_QT+512*tp}', f'ds_write_b32 v{vq}, v{e+3} offset:{LDS_QT+512*tp+32}']
    seq=[(tl,ks) for ks in (3,4,5,6) for tl in (0,1)]+[(tl,ks) for tl in range(2,7) for ks in (3,4,5,6)]
    c6={2*(k-3)+i:[chk(k)[i]] for k in (3,4,5,6) for i in range(2)}
    c6[8]=[f'v_cmp_eq_u32 vcc, -1, v{CT}']; c6[10]=[f's_cbranch_vccnz {RDO}']
    run=a
    def gap(idx,ready):
        av=[x for x in ready if x[0]<=idx]
        if not av: return
        if av[0][1].startswith('ds_'):
            a(av[0][1]); ready.remove(av[0])
            nx=[x for x in av[1:] if not x[1].startswith('ds_')]
            if nx: a(nx[0][1]); ready.remove(nx[0])
        else:
            a(av[0][1]); ready.remove(av[0])
            if OPT['two'] and len(av)>OPT['two'] and not av[1][1].startswith('ds_'):
                a(av[1][1]); ready.remove(av[1])
    ready=[]
    TL=[a.newlabel('Atail') for _ in range(4)]; FIN=a.newlabel('Afin')
    SPLIT=20
    def body(lo,hi,ready):
        for idx in range(lo,hi):
            tl,ks=seq[idx]
            a.wait_vm(f'm{ks}')
            mm(tl,ks)
            vissue(21+idx)
            for op in c6.get(idx,[]): run(op)
            if idx==SPLIT-4: a(f's_cmp_eq_u32 s{S_WAVE}, 3')
            gap(idx,ready)
            if ks==6 and tl<6:
                ready+=[(idx+3,o) for o in post(tl>>1)[tl&1]]
                if tl==3: ready.append((idx+3,f'ds_read_b128 {vr(QA,4)}, v{V_LDSW} offset:{LDS_QT}'))
    body(0,SPLIT,ready)
    a(f's_cbranch_scc1 {TL[3]}\ns_cmp_eq_u32 s{S_WAVE}, 2\ns_cbranch_scc1 {TL[2]}\ns_cmp_eq_u32 s{S_WAVE}, 1\ns_cbranch_scc1 {TL[1]}')
    hist0=list(a.hist); vq0=list(a.vq)
    for w in range(4):
        ph,par=w>>1,w&1
        a.label(TL[w]); a.hist=list(hist0[:len(hist0)-5+{0:5,1:5,2:3,3:1}[w]])
        rd=list(ready); a.vq=list(vq0)
        body(SPLIT,28,rd)
        st.abs(2)
        L6=ACC+24
        pend=[o for _,o in rd]
        if any('ds_read' in o for o in pend):
            while any('ds_read' in o for o in pend): a(pend.pop(0))
        last=[f'v_add_f32 v{L6}, v{L6}, v{L6+1}', f'v_add_f32 v{L6+2}, v{L6+2}, v{L6+3}', f'v_cvt_pk_bf16_f32 v{L6}, v{L6}, v{L6+2}',
              f'ds_write_b16 v{V_QW6}, v{L6} offset:{LDS_QT+1024}', f'ds_write_b16_d16_hi v{V_QW6}, v{L6} offset:{LDS_QT+1024+32}',
              f'ds_read_b128 {vr(QA+4,4)}, v{V_LDSW} offset:{LDS_QT+1024}']
        for o in pend+last: a(o)
        a(f's_waitcnt lgkmcnt({sum(1 for o in pend+last if o.startswith("ds_"))})')
        a.wait_vm('x0')
        a(f'{SMF} {vr(SACC,4)}, {vr(QA,4)}, {vr(XB,8)}, v{V_IDX}')
        a(f'{SMF} {vr(SACC+4,4)}, {vr(QA,4)}, {vr(XB+16,8)}, v{V_IDX}')
        a(f'{SMF} {vr(SACC+8,4)}, {vr(QA,4)}, {vr(MEMA+8*ph,8)}, v{V_IDX}')
        a('s_waitcnt lgkmcnt(0)')
        a(f'{SMF} {vr(SACC+8,4)}, {vr(QA+4,4)}, {vr(MEMA+16+4*ph,8)}, v{V_IDX}')
        a.wait_vm('x1')
        a(f'{SMF} {vr(SACC,4)}, {vr(QA+4,4)}, {vr(XB+8,8)}, v{V_IDX}')
        a(f'{SMF} {vr(SACC+4,4)}, {vr(QA+4,4)}, {vr(XB+24,8)}, v{V_IDX}')
        st.abs(3)
        E=ACC
        qp='[0,0,2,2]' if par==0 else '[1,1,3,3]'
        a(f'v_add_f32 v{E+3}, v{SACC+8}, v{SACC+9}\nv_add_f32 v{E+7}, v{SACC+10}, v{SACC+11}')
        a(f'v_add_f32 v{E}, v{SACC}, v{SACC+1}\nv_add_f32 v{E+4}, v{SACC+2}, v{SACC+3}')
        a(f'v_mov_b32_dpp v{E+2}, v{E+3} quad_perm:{qp} row_mask:0xf bank_mask:0xf')
        a(f'v_mov_b32_dpp v{E+6}, v{E+7} quad_perm:{qp} row_mask:0xf bank_mask:0xf')
        a(f'v_add_f32 v{E+1}, v{SACC+4}, v{SACC+5}\nv_add_f32 v{E+5}, v{SACC+6}, v{SACC+7}')
        for u in range(2):
            if u!=w: a(f'ds_write_b128 v{V_LDSW}, {vr(E+4*u,4)} offset:{LDS_SP+1024*u}')
        a('s_waitcnt lgkmcnt(0)')
        st.abs(4)
        a('s_barrier')
        if w<2:
            u=w; X=E+4*u; R=E+8
            for k,ww in enumerate([x for x in range(4) if x!=u]):
                a(f'ds_read_b128 {vr(R+4*k,4)}, v{V_LIN} offset:{LDS_SP+2048*ww+1024*u}')
            ew=f'buffer_store_dword v{QA}, v{V_EW}, {sr(S_WS,4)}, 0 offen'
            a(f's_add_u32 s{S_T0}, s{S_STEP}, 1\nv_mov_b32 v{QA}, s{S_T0}')
            if st.on==2: ew='s_memtime s[82:83]\n'+ew
            if OPT['apos']==0: a(ew)
            a(f's_cmp_lg_u32 s{S_SLOW}, 0')
            a('s_waitcnt lgkmcnt(2)')
            for k in range(3): a(f'v_add_f32 v{X+k}, v{X+k}, v{R+k}')
            if OPT['apos']==1: a(ew)
            a('s_waitcnt lgkmcnt(0)')
            for k in range(3): a(f'v_add_f32 v{R+4+k}, v{R+4+k}, v{R+8+k}')
            for k in range(3): a(f'v_add_f32 v{X+k}, v{X+k}, v{R+4+k}')
            st.abs(5)
            M=X+3
            a(f'v_max3_f32 v{M}, v{X}, v{X+1}, v{X+2}')
            for i_,sh in enumerate((1,2,4,8)):
                if OPT['apos']==2+i_: a(ew)
                a(f'v_max_f32_dpp v{M}, v{M}, v{M} row_ror:{sh} row_mask:0xf bank_mask:0xf')
            if OPT['apos']==6: a(ew)
            for k in range(3): a(f'v_sub_f32 v{X+k}, v{X+k}, v{M}')
            for k in range(3): a(f'v_exp_f32 v{X+k}, v{X+k}')
            a(f'v_add_f32 v{M}, v{X}, v{X+1}')
            a(f'v_fmac_f32 v{M}, 0.5, v{X+2}')
            if OPT['apos']==7: a(ew)
            for sh in (1,2,4,8): a(f'v_add_f32_dpp v{M}, v{M}, v{M} row_ror:{sh} row_mask:0xf bank_mask:0xf')
            a(f'v_rcp_f32 v{M}, v{M}')
            for k in range(3): a(f'v_mul_f32 v{X+k}, v{X+k}, v{M}')
            a(f'v_cvt_pk_bf16_f32 v{X}, |v{X}|, |v{X+1}|\nv_cvt_pk_bf16_f32 v{X+2}, |v{X+2}|, |v{X+2}|')
            st.abs(6)
            pub(a,[f'buffer_store_dword v{X}, v{V_PSX}, {sr(S_WS,4)}, s{S_PCUR} offen',
                   f'buffer_store_dword v{X+2}, v{V_PSM}, {sr(S_WS,4)}, s{S_PCUR} offen',
                   f'v_mov_b32 v{M}, -1',
                   f'buffer_store_dword v{M}, v{V_PSX}, {sr(S_WS,4)}, s{S_RST} offen',
                   f'buffer_store_dword v{M}, v{V_PSM}, {sr(S_WS,4)}, s{S_RST} offen'], cmp=False)
        else:
            if OPT['pf']: a(f'buffer_load_dword v{V_PFD}, v{V_LIN}, {sr(S_WS,4)}, s{S_PF} offen sc1')
            a(f's_sleep {OPT["a2sleep"]}')
        if w<3: a(f's_branch {FIN}')
    a.label(FIN)
    st.abs(7)
    st.endstep(ACC+24)
    a(f'''
    s_add_u32 s{S_PF}, s{S_PF}, 32768
    s_add_u32 s{S_STEP}, s{S_STEP}, 1
    s_cmp_lg_u32 s{S_ERR}, 0
    s_cbranch_scc1 {end}
    s_cmp_lt_u32 s{S_STEP}, {NSTEP}
    s_cbranch_scc1 {LOOP}
    s_branch {end}
    ''')
    emit_outl(a)
MEMA=0; VP=28; MBOP=60; FACC=84; PP=92; MBP=104; STG=132
B_IDX,B_M4,B_LDSW,B_LIN,B_VG,B_PX,B_PM,B_MST,B_WL,B_FW,B_HST,B_HIST,TMP=range(164,177)
B_EW,B_ER,B_EV,B_EM,FR=112,113,114,115,124
LDS_MEM=0; LDS_FP=8192; LDS_W=16384
bfr=lambda f: frag_reg(f,32,192)
stg=lambda n: [(f'ds_read_b128 {vr(STG+16*(n&1)+4*k,4)}, v{B_WL} offset:{(n%8)*4096+k*1024}',f's{n}') for k in range(4)]

def b_setup(a):
    t=0
    lane_consts(a,t)
    common_addr(a,t,B_IDX,B_LDSW,B_LIN)
    a(f'''
    v_lshlrev_b32 v{B_VG}, 9, v{t+1}
    v_lshl_add_u32 v{B_VG}, v{t+2}, 4, v{B_VG}
    s_lshl_b32 s{S_T0}, s{S_WAVE}, 15
    v_add_u32 v{B_WL}, s{S_T0}, v{B_LIN}
    v_add_u32 v{B_WL}, {LDS_W}, v{B_WL}
    ''')

def b_weights(a):
    a(f'''
    v_lshrrev_b32 v3, 3, v0
    v_lshlrev_b32 v3, 7, v3
    v_and_b32 v4, 7, v0
    v_lshl_add_u32 v3, v4, 2, v3
    s_lshl_b32 s{S_T0}, s{S_WAVE}, 9
    s_add_u32 s{S_T0}, s{S_T0}, {F_W+16*128}
    ''')
    rt(a,1)
    wait_flags(a,3,f's{S_T0}',32,1,sleep=2)
    rt(a,2)
    a(f'''
    s_lshl_b32 s{S_T0}, s{S_WAVE}, 2
    s_mul_i32 s{S_T0}, s{S_T0}, {MAT}
    s_mul_i32 s{S_T1}, s{S_ROLE}, 28672
    s_add_u32 s{S_T1}, s{S_T1}, s{S_T0}
    s_add_u32 s{S_T1}, s{S_T1}, {WS_B}
    s_lshl_b32 s{S_T2}, s{S_WAVE}, 15
    s_add_u32 s{S_T2}, s{S_T2}, {LDS_W}
    ''')
    for tile in range(8):
        hd,tt=tile>>1,tile&1
        for ks in range(7):
            a(f's_add_u32 s{S_XOFF}, s{S_T1}, {hd*MAT+ks*4096}')
            for hf in range(2):
                imm=hf*2048+tt*256
                if ks<5:
                    a(f'buffer_load_dwordx4 {frag_half(tile*5+ks,hf,32,192)}, v{B_VG}, {sr(S_WS,4)}, s{S_XOFF} offen offset:{imm} sc1')
                else:
                    a(f's_add_u32 m0, s{S_T2}, {tile*4096+(2*(ks-5)+hf)*1024-imm}')
                    a(f'buffer_load_dwordx4 v{B_VG}, {sr(S_WS,4)}, s{S_XOFF} offen offset:{imm} sc1 lds')
        if tile>=2: a('s_waitcnt vmcnt(28)')

def b_gemm(a, ACCS, post, hook):
    seq=[(tl,ks) for ks in range(7) for tl in (0,1)]+[(tl,ks) for tl in range(2,8) for ks in range(7)]
    a.dq=[f'm{k}' for k in range(7)]
    fill=[]; rd=[]
    for i,(tile,ks) in enumerate(seq):
        a.wait_ds(f'm{ks}')
        if ks==5: a.wait_ds(f's{tile}')
        src = bfr(tile*5+ks) if ks<5 else vr(STG+16*(tile&1)+8*(ks-5),8)
        a(f'{SMF} {vr(ACCS[tile],4)}, {vr(MEMA+4*ks,4)}, {src}, v{B_IDX}')
        if not hook(i,'mem') and rd: a.ds(*rd.pop(0))
        if not hook(i,'valu') and fill and fill[0][0]<=i: a(fill.pop(0)[1])
        hook(i,'salu')
        if ks==6:
            fill+=[(i+3,o) for o in post(tile)]
            rd+=stg(tile+2)
    for o in rd: a.ds(*o)
    for _,f in fill: a(f)
    a.dq=[]

def role_B(a, stamps=False, end='L_end'):
    st=Stamps(a,stamps)
    rt(a,0)
    a(f's_sub_u32 s{S_ROLE}, s{S_ROLE}, 16')
    srd(a,S_M0,P_MEM0,7168)
    t=0
    b_setup(a)
    a(f'''
    s_mul_i32 s{S_T0}, s{S_WAVE}, 3072
    v_add_u32 v{B_PX}, s{S_T0}, v{B_LIN}
    ; mem store: 512j + 256(n>>3) + 32*(2q+u) + 4(n&7), u = wave
    s_lshl_b32 s{S_T0}, s{S_ROLE}, 9
    s_lshl_b32 s{S_T1}, s{S_WAVE}, 5
    s_add_u32 s{S_T0}, s{S_T0}, s{S_T1}
    v_lshlrev_b32 v{B_MST}, 6, v{t+1}
    v_lshrrev_b32 v{t+3}, 3, v{t+2}
    v_lshl_add_u32 v{B_MST}, v{t+3}, 8, v{B_MST}
    v_and_b32 v{t+3}, 7, v{t+2}
    v_lshl_add_u32 v{B_MST}, v{t+3}, 2, v{B_MST}
    v_add_u32 v{B_MST}, s{S_T0}, v{B_MST}
    v_lshrrev_b32 v{B_FW}, 1, v{B_LDSW}
    s_and_b32 s{S_T0}, s{S_WAVE}, 1
    s_lshl_b32 s{S_T0}, s{S_T0}, 12
    v_add_u32 v{B_M4}, s{S_T0}, v{B_LIN}
    v_lshlrev_b32 v{B_PM}, 7, v{t+2}
    v_lshlrev_b32 v{B_EW}, 7, v{t}
    s_lshl_b32 s{S_T0}, s{S_ROLE}, 2
    s_add_u32 s{S_T0}, s{S_T0}, s{S_WAVE}
    s_lshl_b32 s{S_T1}, s{S_T0}, 1
    s_add_u32 s{S_T1}, s{S_T1}, {F_EM}
    v_add_u32 v{B_EW}, s{S_T1}, v{B_EW}
    v_mov_b32 v{t+3}, 0x7f000000
    v_cmp_gt_u32 vcc, {OPT['rm']}, v{t}
    v_cndmask_b32 v{B_EW}, v{t+3}, v{B_EW}, vcc
    v_and_b32 v{t+3}, 7, v{t}
    s_and_b32 s{S_T1}, s{S_T0}, {4*OPT['rp']-1}
    s_lshl_b32 s{S_T1}, s{S_T1}, 5
    s_add_u32 s{S_T1}, s{S_T1}, {F_EP}
    v_lshl_add_u32 v{B_ER}, v{t+3}, 2, s{S_T1}
    v_min_u32 v{t+3}, 55, v{t}
    s_and_b32 s{S_T0}, s{S_ROLE}, {OPT['rm']//2-1}
    s_lshl_b32 s{S_T0}, s{S_T0}, 7
    s_add_u32 s{S_T0}, s{S_T0}, {F_EM+OPT['rm']//2*128}
    v_lshl_add_u32 v{B_EM}, v{t+3}, 1, s{S_T0}
    ''')
    K=a.newlabel('Bi')
    a(f's_cmp_ge_u32 s{S_WAVE}, 2\ns_cbranch_scc1 {K}')
    a(f'''
    v_lshl_add_u32 v{t+3}, v{t+1}, 1, s{S_WAVE}
    v_mul_u32_u24 v{t+3}, 896, v{t+3}
    v_lshl_add_u32 v{t+3}, v{t+2}, 2, v{t+3}
    s_lshl_b32 s{S_T0}, s{S_ROLE}, 6
    buffer_load_dword v{t+4}, v{t+3}, {sr(S_M0,4)}, s{S_T0} offen
    v_mov_b32 v{t+5}, -1
    s_mov_b32 s{S_T0}, {WS_MEMR}
    s_mov_b32 s{S_T1}, {WS_MEMR+8192}
    s_mov_b32 s{S_T2}, {WS_MEMR+2*8192}
    s_mov_b32 s{S_T3}, {WS_MEMR+3*8192}
    s_waitcnt vmcnt(0)
    v_min_u32 v{B_HIST}, -2, v{t+4}
    v_mov_b32 v{B_HST}, v{B_MST}
    ''')
    pub(a,[f'buffer_store_dword v{B_HIST if k==S_T0 else t+5}, v{B_MST}, {sr(S_WS,4)}, s{k} offen' for k in (S_T0,S_T1,S_T2,S_T3)])
    a(f's_branch {K}_b')
    a.label(K)
    a(f'v_mov_b32 v{B_HST}, 0x7f000000\nv_mov_b32 v{B_HIST}, 0')
    a.label(K+'_b')
    b_weights(a)
    team_barrier(a,NTEAM,t+8)
    ACCS=[76,80,128,116,120,188,104,108]
    S_V2=S_XOFF; S_THM=S_T4
    V_FR,V_SENT,V_PG=TMP+4,TMP+5,B_LDSW
    a(f'''
    s_mov_b32 s{S_STEP}, 0
    s_mul_i32 s{S_VOFF}, s{S_ROLE}, 32768
    s_lshl_b32 s{S_T0}, s{S_WAVE}, 13
    s_add_u32 s{S_VOFF}, s{S_VOFF}, s{S_T0}
    s_add_u32 s{S_VOFF}, s{S_VOFF}, {WS_V}
    s_mov_b32 s{S_HOFF}, {WS_MEMH}
    s_lshl_b32 s{S_PF}, s{S_ROLE}, 4
    s_lshl_b32 s{S_T0}, s{S_WAVE}, 2
    s_add_u32 s{S_PF}, s{S_PF}, s{S_T0}
    s_add_u32 s{S_PF}, s{S_PF}, {F_T}
    s_mov_b32 s{S_VRDY}, 0
    s_mov_b32 s{S_MCUR}, {WS_MEMR}
    s_mov_b32 s{S_THM}, 0
    s_add_u32 s{S_V2}, s{S_VOFF}, 4096
    v_lshrrev_b32 v{V_FR}, 1, v{B_LIN}
    v_mov_b32 v{V_SENT}, -1
    v_mov_b32 v{B_EV}, 0
    v_mov_b32 v{V_PG}, 0x7f000000
    v_writelane_b32 v{V_PG}, 0, 0
    s_and_b32 s{S_T0}, s{S_WAVE}, 1
    s_lshl_b32 m0, s{S_T0}, 12
    s_mov_b32 s{S_SPIN}, 0
    ''')
    if a.diag: calib(a)
    st.init(8)
    def vready():
        VL=a.newlabel('vr'); VD=a.newlabel('vrd')
        a(f's_cmp_ge_u32 s{S_STEP}, s{S_VRDY}\ns_cbranch_scc1 {VL}')
        a.label(VD)
        a.outl.append(('raw',f'''
        {VL}:
        s_mov_b32 s{S_SPIN}, 0
        {VL}_l:
        s_lshl_b32 s{S_T0}, s{S_WAVE}, 4
        s_add_u32 s{S_T0}, s{S_T0}, {F_V}
        buffer_load_dwordx4 {vr(TMP,4)}, v{B_PM}, {sr(S_WS,4)}, s{S_T0} offen sc1
        s_waitcnt vmcnt(0)
        v_min3_u32 v{TMP}, v{TMP}, v{TMP+1}, v{TMP+2}
        v_min_u32 v{TMP}, v{TMP}, v{TMP+3}
        v_cmp_ne_u32 vcc, 0, v{TMP}
        s_and_b32 s{S_T0}, vcc_lo, 0xffff
        s_ff0_i32_b32 s{S_VRDY}, s{S_T0}
        s_lshl_b32 s{S_VRDY}, s{S_VRDY}, 2
        s_cmp_lt_u32 s{S_STEP}, s{S_VRDY}
        s_cbranch_scc1 {VD}
        s_add_u32 s{S_SPIN}, s{S_SPIN}, 1
        s_cmp_lt_u32 s{S_SPIN}, {SPIN}
        s_cbranch_scc1 {VL}_l
        s_mov_b32 s{S_ERR}, 4
        s_branch {end}
        '''.split('\n')))
    for o,_ in stg(0)+stg(1): a(o)
    vready()
    LOOP=a.newlabel('Bloop'); L=a.newlabel('mpoll'); MOK=a.newlabel('mok'); H01=a.newlabel('Bh01'); FIN=a.newlabel('Bfin')
    def house():
        for r in ACCS+[FACC,FACC+4]: a(f'v_mov_b64 {vr(r,2)}, 0\nv_mov_b64 {vr(r+2,2)}, 0')
    hist=f'buffer_store_dword v{B_HIST}, v{B_HST}, {sr(S_WS,4)}, s{S_HOFF} offen sc1'
    prog=f'buffer_store_dword v{B_EV}, v{V_PG}, {sr(S_WS,4)}, s{S_PF} offen'
    a(f's_cmp_ge_u32 s{S_WAVE}, 2\ns_cbranch_scc1 {LOOP}')
    a.label(H01)
    a(f's_cmp_eq_u32 s{S_STEP}, {NSTEP}\ns_cbranch_scc1 {FIN}')
    house()
    a(f's_waitcnt lgkmcnt(0)\ns_branch {MOK}')
    a.label(LOOP)
    a(f's_cmp_eq_u32 s{S_STEP}, {NSTEP}\ns_cbranch_scc1 {FIN}')
    fl=lambda r: f'buffer_load_ushort v{r}, v{B_EM}, {sr(S_WS,4)}, 0 offen sc1'
    flag_poll(a, fl, [FR,FR+1,FR+2,FR+3], S_THM, 2)
    if OPT['bsleep']: a(f's_nop {OPT["bsleep"]}')
    mlo=[f'buffer_load_dwordx4 v{B_M4}, {sr(S_WS,4)}, s{S_MCUR} offen offset:{1024*k} sc1 lds' for k in range(4)]
    for x in mlo: a(x)
    st.abs(11)
    house()
    a('s_waitcnt vmcnt(0) lgkmcnt(0)')
    a.label(MOK)
    mrd=[f'ds_read_b128 {vr(MEMA+4*ks,4)}, v{B_LIN} offset:{LDS_MEM+1024*ks}' for ks in range(7)]
    mck=[f'v_max3_u32 v{TMP}, v{MEMA}, v{MEMA+1}, v{MEMA+2}', f'v_max_u32 v{TMP}, v{TMP}, v{MEMA+3}']+[f'v_max3_u32 v{TMP}, v{TMP}, v{MEMA+r}, v{MEMA+r+1}' for r in range(4,28,2)]+[f'v_cmp_eq_u32 vcc, -1, v{TMP}']
    a.outl.append(('raw',[f'{L}:','s_waitcnt lgkmcnt(0)','s_barrier',f's_cmp_lt_u32 s{S_WAVE}, 2',f's_cbranch_scc1 {L}_w']+mlo+['s_waitcnt vmcnt(0)',f'{L}_w:','s_barrier']+mrd+['s_waitcnt lgkmcnt(0)']+mck+
        [f's_cbranch_vccz {L}_ok',f's_add_u32 s{S_SPIN}, s{S_SPIN}, 1',f's_cmp_lt_u32 s{S_SPIN}, {SPIN}',f's_cbranch_scc1 {L}',f's_mov_b32 s{S_ERR}, 2',f's_branch {end}',f'{L}_ok:']+
        (['s_add_u32 s54, s54, 1'] if OPT['cnt'] else [])+[o for o,_ in stg(0)+stg(1)]+[f'v_mov_b64 {vr(r+k,2)}, 0' for r in ACCS[:3] for k in (0,2)]+['s_waitcnt lgkmcnt(0)',f's_branch {MOK}']))
    st.abs(0)
    a('s_barrier')
    for x in mrd: a(x)
    vl=[hist] if OPT['hist'] else []
    if OPT['vload']:
        for aa in (1,0):
            for tt in range(2):
                for hb in range(2):
                    vl.append(f'buffer_load_dwordx4 {vr(VP+16*aa+8*tt+4*hb,4)}, v{B_VG}, {sr(S_WS,4)}, s{S_V2 if aa else S_VOFF} offen offset:{hb*2048+tt*256} '+('sc1','sc1 nt','nt')[OPT['vnt']])
    for _ in range(min(OPT['nearly'],len(vl))): a(vl.pop(0))
    pfl=lambda r: f'buffer_load_dword v{r}, v{B_ER}, {sr(S_WS,4)}, 0 offen sc1'
    def post(tile):
        hd,tt=tile>>1,tile&1; acc=ACCS[tile]
        b=MBOP+8*tt+4*(hd>>1)+(hd&1)
        return [f'v_cvt_pk_bf16_f32 v{b}, v{acc}, v{acc+1}', f'v_cvt_pk_bf16_f32 v{b+2}, v{acc+2}, v{acc+3}']
    book=f'''s_add_u32 s{S_VOFF}, s{S_VOFF}, {SEGV}
    s_add_u32 s{S_V2}, s{S_V2}, {SEGV}
    s_add_u32 s{S_HOFF}, s{S_HOFF}, 8192
    s_and_b32 s{S_T0}, s{S_STEP}, 3
    s_lshl_b32 s{S_PCUR}, s{S_T0}, 14
    s_add_u32 s{S_PCUR}, s{S_PCUR}, {WS_PR}
    s_add_u32 s{S_STEP}, s{S_STEP}, 1
    s_add_u32 s{S_RST}, s{S_MCUR}, 0x6000
    s_and_b32 s{S_RST}, s{S_RST}, 0x6000
    s_add_u32 s{S_RST}, s{S_RST}, {WS_MEMR}
    s_add_u32 s{S_MCUR}, s{S_MCUR}, 0x2000
    s_and_b32 s{S_MCUR}, s{S_MCUR}, 0x6000
    s_add_u32 s{S_MCUR}, s{S_MCUR}, {WS_MEMR}
    s_cmp_lg_u32 s{S_SLOW}, 0
    s_cselect_b32 s{S_THM}, 0, s{S_STEP}'''.split('\n')
    def hook(i,kind):
        if kind=='mem':
            for k,n in ((0,5),(14,7),(35,12),(55,13)):
                if i==k: st.abs(n)
            if vl and i%OPT['vsp']==0: a(vl.pop(0)); return True
            if i==26: pub(a,[prog]); return True
            if i in (46,49,52,55): a(pfl(FR+(i-46)//3)); return i!=49
        if kind=='valu':
            if i<15: a(mck[i]); return True
            if i==16: a(f's_cbranch_vccnz {L}')
            if i==54: a(f'v_mov_b32 v{B_EV}, s{S_STEP}'); return True
        if kind=='salu' and i>=28 and book and (i%7) in (0,1,4,5,6): a(book.pop(0).strip())
        return False
    b_gemm(a,ACCS,post,hook)
    assert not book and not vl
    EL=a.newlabel('Bearly')
    a(f's_cmp_eq_u32 s{S_STEP}, {NSTEP}\ns_cbranch_scc1 {EL}')
    a.label(EL+'_r')
    a.outl.append(('raw',[f'{EL}:','s_waitcnt vmcnt(4)',f's_cmp_lg_u32 s{S_SLOW}, 0',f's_cbranch_scc1 {EL}_r',prog,f's_branch {EL}_r']))
    vready()
    st.abs(2)
    st.endstep(TMP+6, -2)
    if st.on==2: a('s_waitcnt vmcnt(4)')
    st.abs(10)
    pl=[f'buffer_load_dwordx4 {vr(PP+4*k,4)}, v{B_PX}, {sr(S_WS,4)}, s{S_PCUR} offen offset:{1024*k} sc1' for k in range(3)]
    flag_poll(a, pfl, [FR,FR+1,FR+2,FR+3], S_THM, 3, pre=True)
    for k in range(3):
        a(pl[k])
        if k==0: st.abs(9)
        if k<2 and OPT['pgap']: a(f's_nop {OPT["pgap"]}')
    G0=a.newlabel('Bgo'); RDO=a.newlabel('Bredo')
    a.outl.append(redo_block(RDO,G0,pl,range(PP,PP+12),TMP,range(FACC,FACC+8,2),3))
    fsrc=lambda k,tt: vr(VP+16*k+8*tt,8) if k<2 else vr(MBOP+8*tt,8)
    ew=f'buffer_store_short v{B_EV}, v{B_EW}, {sr(S_WS,4)}, 0 offen'
    if st.on==2: ew='s_memtime s[66:67]\n'+ew
    a.label(G0)
    for k in range(3):
        r=PP+4*k
        a(f's_waitcnt vmcnt({2-k})')
        if k==0: st.abs(3)
        a(f'{SMF} {vr(FACC,4)}, {vr(r,4)}, {fsrc(k,0)}, v{B_IDX}')
        a(f'v_max3_u32 v{TMP}, v{r}, v{r+1}, v{r+2}' if k==0 else f'v_max3_u32 v{TMP}, v{TMP}, v{r}, v{r+1}')
        a(f'{SMF} {vr(FACC+4,4)}, {vr(r,4)}, {fsrc(k,1)}, v{B_IDX}')
        a(f'v_max_u32 v{TMP}, v{TMP}, v{r+3}' if k==0 else f'v_max3_u32 v{TMP}, v{TMP}, v{r+2}, v{r+3}')
    a(f'v_cmp_eq_u32 vcc, -1, v{TMP}\ns_cbranch_vccnz {RDO}')
    st.abs(8)
    if OPT['bpos']==0: a(ew)
    a(f'v_add_f32 v{TMP}, v{FACC}, v{FACC+1}')
    a(f'v_add_f32 v{TMP+2}, v{FACC+2}, v{FACC+3}')
    a(f'v_add_f32 v{TMP+1}, v{FACC+4}, v{FACC+5}')
    a(f'v_add_f32 v{TMP+3}, v{FACC+6}, v{FACC+7}')
    a(f'ds_write_b64 v{B_FW}, {vr(TMP,2)} offset:{LDS_FP}')
    a(f'ds_write_b64 v{B_FW}, {vr(TMP+2,2)} offset:{LDS_FP+512}')
    if OPT['bpos']==1: a(ew)
    U1=a.newlabel('Bu1'); W23=a.newlabel('Bw23')
    a(f's_cmp_ge_u32 s{S_WAVE}, 2\ns_cbranch_scc1 {W23}\ns_cmp_eq_u32 s{S_WAVE}, 1\ns_cbranch_scc1 {U1}')
    def sync():
        a('s_waitcnt lgkmcnt(0)')
        if OPT['bpos']==2: a(ew)
        st.abs(4)
        a('s_barrier')
    for u in range(2):
        if u==1: a.label(U1)
        a(f's_cmp_lg_u32 s{S_SLOW}, 0')
        sync()
        X=TMP+2*u
        for k,w in enumerate([w for w in range(4) if w!=u]):
            a(f'ds_read_b64 {vr(TMP+6+2*k,2)}, v{TMP+4} offset:{LDS_FP+1024*w+512*u}')
        a('s_waitcnt lgkmcnt(2)')
        a(f'v_add_f32 v{X}, v{X}, v{TMP+6}\nv_add_f32 v{X+1}, v{X+1}, v{TMP+7}')
        a('s_waitcnt lgkmcnt(0)')
        a(f'v_add_f32 v{TMP+8}, v{TMP+8}, v{TMP+10}\nv_add_f32 v{TMP+9}, v{TMP+9}, v{TMP+11}')
        a(f'v_add_f32 v{X}, v{X}, v{TMP+8}\nv_add_f32 v{X+1}, v{X+1}, v{TMP+9}')
        a(f'v_cvt_pk_bf16_f32 v{X}, v{X}, v{X+1}')
        a(f'v_min_u32 v{B_HIST}, -2, v{X}')
        st.abs(6)
        pub(a,[f'buffer_store_dword v{B_HIST}, v{B_MST}, {sr(S_WS,4)}, s{S_MCUR} offen',
               f'buffer_store_dword v{TMP+5}, v{B_MST}, {sr(S_WS,4)}, s{S_RST} offen'], cmp=False)
        a(f's_branch {H01}')
    a.label(W23)
    sync()
    a(f's_branch {LOOP}')
    a.label(FIN)
    a(hist)
    a(f'v_mov_b32 v{B_EV}, {NSTEP+1}\ns_waitcnt vmcnt(0)')
    pub(a,[prog])
    a(f's_branch {end}')
    emit_outl(a)

def role_F(a, end='L_next'):
    a.comment('==== follower: column tile j = S_ROLE ====')
    b_setup(a)
    b_weights(a)
    ACCS=[76,80,128,116,120,188,92,96]
    a(f'''
    s_mov_b32 s{S_STEP}, 1
    s_mov_b32 s{S_HOFF}, {WS_MEMH}
    s_lshl_b32 s{S_MBO}, s{S_ROLE}, 13
    s_lshl_b32 s{S_T0}, s{S_WAVE}, 11
    s_add_u32 s{S_MBO}, s{S_MBO}, s{S_T0}
    s_add_u32 s{S_MBO}, s{S_MBO}, {WS_MBH}
    s_mov_b32 m0, s{S_T0}
    s_lshl_b32 s{S_PF}, s{S_ROLE}, 7
    s_lshl_b32 s{S_T0}, s{S_WAVE}, 2
    s_add_u32 s{S_PF}, s{S_PF}, s{S_T0}
    s_add_u32 s{S_PF}, s{S_PF}, {F_B}
    v_mov_b32 v{TMP+1}, 0
    v_mov_b32 v{TMP+2}, 0
    s_mov_b32 s{S_VRDY}, 0
    s_waitcnt vmcnt(0)
    ''')
    for o,_ in stg(0)+stg(1): a(o)
    LOOP=a.newlabel('Floop')
    a.label(LOOP)
    for r in ACCS: a(f'v_mov_b64 {vr(r,2)}, 0\nv_mov_b64 {vr(r+2,2)}, 0')
    fst=f's_mov_b64 exec, 1\nbuffer_store_dword v{TMP+2}, v{TMP+1}, {sr(S_WS,4)}, s{S_PF} offen sc1\ns_mov_b64 exec, -1'
    KN=a.newlabel('Fkn'); NF=a.newlabel('Fnf')
    a(f's_mov_b32 s{S_T5}, 1\ns_cmp_ge_u32 s{S_VRDY}, s{S_STEP}\ns_cbranch_scc1 {KN}')
    a(f's_mov_b32 s{S_T5}, 0\ns_waitcnt vmcnt(0)')
    a(fst)
    wait_prog(a,S_STEP,t=TMP,vz=TMP+1,known=S_VRDY)
    a(f's_cmp_lg_u32 s{S_ERR}, 0\ns_cbranch_scc1 L_end')
    a.label(KN)
    a('s_barrier')
    for k in range(2): a(f'buffer_load_dwordx4 v{B_LDSW}, {sr(S_WS,4)}, s{S_HOFF} offen offset:{1024*k} sc1 lds')
    a(f's_waitcnt vmcnt(0) lgkmcnt(0)\ns_barrier\ns_cmp_eq_u32 s{S_T5}, 0\ns_cbranch_scc1 {NF}')
    a(fst)
    a.label(NF)
    for ks in range(7): a(f'ds_read_b128 {vr(MEMA+4*ks,4)}, v{B_LIN} offset:{LDS_MEM+1024*ks}')
    def post(tile):
        hd,tt=tile>>1,tile&1; acc=ACCS[tile]
        return [f'v_add_f32 v{acc}, v{acc}, v{acc+1}', f'v_add_f32 v{acc+2}, v{acc+2}, v{acc+3}', f'v_cvt_pk_bf16_f32 v{MBP+4*tt+hd}, v{acc}, v{acc+2}']
    b_gemm(a,ACCS,post,lambda i,k: False)
    for tt in range(2):
        b=MBP+4*tt
        a(f'v_permlane32_swap_b32 v{b}, v{b+2}\nv_permlane32_swap_b32 v{b+1}, v{b+3}')
    for tt in range(2):
        b=MBP+4*tt
        a(f'v_permlane16_swap_b32 v{b}, v{b+1}\nv_permlane16_swap_b32 v{b+2}, v{b+3}')
    for tt in range(2):
        a(f'buffer_store_dwordx4 {vr(MBP+4*tt,4)}, v{B_VG}, {sr(S_WS,4)}, s{S_MBO} offen offset:{256*tt} sc1')
    a(f'''
    v_mov_b32 v{TMP+2}, s{S_STEP}
    s_add_u32 s{S_HOFF}, s{S_HOFF}, 8192
    s_add_u32 s{S_MBO}, s{S_MBO}, {SEGMB}
    s_add_u32 s{S_STEP}, s{S_STEP}, 1
    s_cmp_le_u32 s{S_STEP}, 64
    s_cbranch_scc1 {LOOP}
    s_waitcnt vmcnt(0)
    ''')
    a(fst)
    a('s_branch L_end')

def role_R(a, end='L_end'):
    a.comment('==== relay: min of the 56 per-wave progress words -> 16 replicated lines ====')
    t=VT
    L=a.newlabel('relay'); N=a.newlabel('relayn')
    a(f'''
    s_add_u32 s{S_T5}, s{S_WAVE}, 3
    s_cmp_lg_u32 s{S_WAVE}, 0
    s_cbranch_scc1 L_warm
    s_mov_b32 s{S_STEP}, 1
    s_mov_b32 s{S_SPIN}, 0
    s_mov_b32 s{S_T0}, {F_T}
    s_mov_b32 s{S_T1}, {F_R}
    v_lshlrev_b32 v{t+1}, 5, v{V_L4}
    s_mov_b32 exec_hi, 0xffffff
    {L}:
    buffer_load_dword v{t}, v{V_L4}, {sr(S_WS,4)}, s{S_T0} offen sc1
    s_waitcnt vmcnt(0)
    v_cmp_gt_u32 vcc, s{S_STEP}, v{t}
    s_cbranch_vccnz {N}
    {L}_m:
    s_add_u32 s{S_STEP}, s{S_STEP}, 1
    v_cmp_gt_u32 vcc, s{S_STEP}, v{t}
    s_cbranch_vccz {L}_m
    s_sub_u32 s{S_STEP}, s{S_STEP}, 1
    v_mov_b32 v{t+2}, s{S_STEP}
    s_mov_b64 exec, 0xffff
    buffer_store_dword v{t+2}, v{t+1}, {sr(S_WS,4)}, s{S_T1} offen sc1
    s_mov_b32 exec_lo, -1
    s_mov_b32 exec_hi, 0xffffff
    s_add_u32 s{S_STEP}, s{S_STEP}, 1
    s_mov_b32 s{S_SPIN}, 0
    s_cmp_le_u32 s{S_STEP}, {NSTEP+1}
    s_cbranch_scc1 {L}
    s_mov_b64 exec, -1
    s_branch {end}
    {N}:
    s_sleep 1
    s_add_u32 s{S_SPIN}, s{S_SPIN}, 1
    s_cmp_lt_u32 s{S_SPIN}, {SPIN}
    s_cbranch_scc1 {L}
    s_mov_b64 exec, -1
    s_mov_b32 s{S_ERR}, 5
    s_branch {end}
    ''')

def role_W(a, end='L_end'):
    a.comment('==== cache warmer: touches x fragments and half of V a few segments ahead of the team ====')
    t=VT
    L=a.newlabel('warm'); N=a.newlabel('warmn'); B0=a.newlabel('warmb'); NX=a.newlabel('warmx'); VR=a.newlabel('warmv')
    a(f'''
    s_mov_b32 s{S_SPIN}, 0
    {B0}:
    buffer_load_dword v{t}, v{V_ZERO}, {sr(S_DBG,4)}, 0 offen offset:{D_TEAM} sc1
    s_waitcnt vmcnt(0)
    v_cmp_le_u32 vcc, {NTEAM}, v{t}
    s_cbranch_vccnz {B0}_d
    s_sleep 8
    s_add_u32 s{S_SPIN}, s{S_SPIN}, 1
    s_cmp_lt_u32 s{S_SPIN}, {SPINS}
    s_cbranch_scc1 {B0}
    s_branch {end}
    {B0}_d:
    v_lshlrev_b32 v{t+1}, 5, v{V_L4}
    v_and_b32 v{t+3}, 0xfff, v{t+1}
    v_and_b32 v{t+4}, 0x1000, v{t+1}
    v_lshl_add_u32 v{t+3}, v{t+4}, 1, v{t+3}
    v_and_b32 v{t+4}, 0x780, v{t+1}
    v_lshrrev_b32 v{t+5}, 6, v{V_L4}
    v_lshl_add_u32 v{t+4}, v{t+5}, 4, v{t+4}
    s_lshl_b32 s{S_B0}, s{S_T5}, 16
    s_add_u32 s{S_B0}, s{S_B0}, {WS_V}
    s_sub_u32 s{S_B1}, s{S_T5}, 4
    s_lshl_b32 s{S_B1}, s{S_B1}, 14
    s_add_u32 s{S_B1}, s{S_B1}, {WS_XF}
    s_mov_b32 s{S_T0}, {F_T}
    s_mov_b32 s{S_STEP}, 1
    s_mov_b32 s{S_VRDY}, 0
    s_mov_b32 s{S_SPIN}, 0
    {L}:
    buffer_load_dword v{t}, v{V_ZERO}, {sr(S_WS,4)}, s{S_T0} offen sc1
    s_waitcnt vmcnt(0)
    v_readfirstlane_b32 s{S_T2}, v{t}
    s_add_u32 s{S_T3}, s{S_T2}, 1
    s_max_u32 s{S_STEP}, s{S_STEP}, s{S_T3}
    s_cmp_ge_u32 s{S_STEP}, {NSTEP}
    s_cbranch_scc1 {end}
    s_add_u32 s{S_T2}, s{S_T2}, {OPT['ahead']}
    s_cmp_gt_u32 s{S_STEP}, s{S_T2}
    s_cbranch_scc1 {N}
    s_cmp_lt_u32 s{S_STEP}, s{S_VRDY}
    s_cbranch_scc1 {VR}
    s_mov_b32 s{S_T1}, {F_V}
    buffer_load_dwordx4 {vr(t+8,4)}, v{t+4}, {sr(S_WS,4)}, s{S_T1} offen sc1
    s_waitcnt vmcnt(0)
    v_min3_u32 v{t+8}, v{t+8}, v{t+9}, v{t+10}
    v_min_u32 v{t+8}, v{t+8}, v{t+11}
    v_cmp_ne_u32 vcc, 0, v{t+8}
    s_and_b32 s{S_T1}, vcc_lo, vcc_hi
    s_lshr_b32 s{S_T2}, s{S_T1}, 16
    s_and_b32 s{S_T1}, s{S_T1}, s{S_T2}
    s_ff0_i32_b32 s{S_VRDY}, s{S_T1}
    s_lshl_b32 s{S_VRDY}, s{S_VRDY}, 2
    s_cmp_ge_u32 s{S_STEP}, s{S_VRDY}
    s_cbranch_scc1 {N}
    {VR}:
    s_cmp_lt_u32 s{S_T5}, 4
    s_cbranch_scc1 {NX}
    s_lshl_b32 s{S_T1}, s{S_STEP}, 15
    s_add_u32 s{S_T1}, s{S_T1}, s{S_B1}
    s_add_u32 s{S_T1}, s{S_T1}, 32768
    buffer_load_dword v{t+2}, v{t+1}, {sr(S_WS,4)}, s{S_T1} offen sc1
    s_add_u32 s{S_T1}, s{S_T1}, 8192
    buffer_load_dword v{t+2}, v{t+1}, {sr(S_WS,4)}, s{S_T1} offen sc1
    {NX}:
    s_mul_i32 s{S_T1}, s{S_STEP}, {SEGV}
    s_add_u32 s{S_T1}, s{S_T1}, s{S_B0}
    ''')
    for k in range(4 if OPT['vpf'] else 0):
        a(f'buffer_load_dword v{t+2}, v{t+3}, {sr(S_WS,4)}, s{S_T1} offen sc1')
        if k<3: a(f's_add_u32 s{S_T1}, s{S_T1}, 16384')
    a(f'''
    s_add_u32 s{S_STEP}, s{S_STEP}, 1
    s_mov_b32 s{S_SPIN}, 0
    s_branch {L}
    {N}:
    s_sleep 4
    s_add_u32 s{S_SPIN}, s{S_SPIN}, 1
    s_cmp_lt_u32 s{S_SPIN}, {SPIN}
    s_cbranch_scc1 {L}
    s_branch {end}
    ''')
```

```python
from asmb import *
from layout import *
import math, struct
def f32(x): return '0x%08x'%struct.unpack('<I',struct.pack('<f',x))[0]
LOG2E=1.4426950408889634

V_LIN,V_LIN2,V_DMA,V_XS,V_XR0,V_XR1,V_L4,V_ZERO,V_TR,V_TR2,V_TQ,V_TQ2,V_RM1,V_RM2,V_HH16,V_RANK=range(192,208)
VT=208
ACC=112; SAC=144; EX=160
AW=112; AMEM=144
LDS_XST=28672; LDS_TAB=143360; LDS_BC=163824

def wait_flags(a, vaddr, soff, nl, thresh, width=1, sleep=4, err=9):
    L=a.newlabel('wf'); D=a.newlabel('wfd')
    t=VT+40
    if nl<32: a(f's_mov_b64 exec, {hex((1<<nl)-1)}')
    elif nl==32: a('s_mov_b32 exec_hi, 0')
    elif nl<64: a(f's_mov_b32 exec_hi, {hex((1<<(nl-32))-1)}')
    a(f's_mov_b32 s{S_SPIN}, 0')
    a.label(L)
    if width==1:
        a(f'buffer_load_dword v{t}, v{vaddr}, {sr(S_WS,4)}, {soff} offen sc1\ns_waitcnt vmcnt(0)')
    else:
        a(f'buffer_load_dwordx4 {vr(t,4)}, v{vaddr}, {sr(S_WS,4)}, {soff} offen sc1\ns_waitcnt vmcnt(0)')
        a(f'v_min3_u32 v{t}, v{t}, v{t+1}, v{t+2}\nv_min_u32 v{t}, v{t}, v{t+3}')
    a(f'v_cmp_gt_u32 vcc, {thresh}, v{t}')
    a(f's_cbranch_vccz {D}')
    a(f's_sleep {sleep}')
    a(f's_add_u32 s{S_SPIN}, s{S_SPIN}, 1\ns_cmp_lt_u32 s{S_SPIN}, {SPINS}\ns_cbranch_scc1 {L}')
    a(f's_mov_b32 s{S_ERR}, {err}')
    a.label(D)
    a('s_mov_b64 exec, -1')
    a.vq=[]

def wait_prog(a, thresh, t=VT+40, vz=V_ZERO, known=None):
    L=a.newlabel('wp'); D=a.newlabel('wpd'); S=a.newlabel('wps')
    a(f'''
    s_and_b32 s{S_T0}, s{S_SLOT}, 15
    s_lshl_b32 s{S_T0}, s{S_T0}, 7
    s_add_u32 s{S_T0}, s{S_T0}, {F_R}
    s_mov_b32 s{S_SPIN}, 0
    s_mov_b64 exec, 1
    {L}:
    buffer_load_dword v{t}, v{vz}, {sr(S_WS,4)}, s{S_T0} offen sc1
    s_waitcnt vmcnt(0)
    v_readfirstlane_b32 s{S_T4}, v{t}
    s_cmp_ge_u32 s{S_T4}, s{thresh}
    s_cbranch_scc1 {D}
    s_add_u32 s{S_T4}, s{S_T4}, 2
    s_cmp_gt_u32 s{S_T4}, s{thresh}
    s_cbranch_scc1 {S}
    s_sleep 24
    {S}:
    s_sleep 2
    s_add_u32 s{S_SPIN}, s{S_SPIN}, 1
    s_cmp_lt_u32 s{S_SPIN}, {SPINS}
    s_cbranch_scc1 {L}
    s_mov_b32 s{S_ERR}, 10
    {D}:
    s_mov_b64 exec, -1
    ''')
    if known: a(f's_mov_b32 s{known}, s{S_T4}')
    a.vq=[]

def set_flag(a, soff, val='1'):
    t=VT+40
    a(f'v_mov_b32 v{t}, {val}\ns_mov_b64 exec, 1')
    a(f'buffer_store_dword v{t}, v{V_ZERO}, {sr(S_WS,4)}, {soff} offen sc1')
    a('s_mov_b64 exec, -1')

def wg_flag(a, soff):
    K=a.newlabel('sf')
    a.drain_vm(); a('s_barrier')
    a(f's_cmp_lg_u32 s{S_WAVE}, 0\ns_cbranch_scc1 {K}')
    set_flag(a,soff)
    a.label(K)

def work_consts(a):
    t=VT
    a(f'''
    v_mbcnt_lo_u32_b32 v{t}, -1, 0
    v_mbcnt_hi_u32_b32 v{t}, -1, v{t}
    v_lshlrev_b32 v{V_LIN}, 4, v{t}
    v_add_u32 v{V_LIN2}, 57344, v{V_LIN}
    s_mul_i32 s{S_T0}, s{S_WAVE}, 7168
    v_add_u32 v{V_DMA}, s{S_T0}, v{V_LIN}
    v_lshlrev_b32 v{V_L4}, 2, v{t}
    v_mov_b32 v{V_ZERO}, 0
    v_lshrrev_b32 v{t+1}, 4, v{t}
    v_xor_b32 v{t+1}, v{t+1}, v{t}
    v_and_b32 v{t+1}, 3, v{t+1}
    v_lshlrev_b32 v{t+1}, 4, v{t+1}
    v_lshrrev_b32 v{t+2}, 2, v{t}
    v_mul_u32_u24 v{V_XS}, 896, v{t+2}
    v_add_u32 v{V_XS}, v{V_XS}, v{t+1}
    v_lshrrev_b32 v{t+3}, 5, v{t}
    v_bfe_u32 v{t+4}, v{t}, 2, 2
    v_xor_b32 v{t+4}, v{t+4}, v{t+3}
    v_lshlrev_b32 v{t+4}, 4, v{t+4}
    v_and_b32 v{t+5}, 31, v{t}
    v_lshl_add_u32 v{V_XR0}, v{t+5}, 6, v{t+4}
    v_xor_b32 v{V_XR1}, 32, v{V_XR0}
    v_lshlrev_b32 v{V_HH16}, 4, v{t+3}
    v_bfe_u32 v{t+4}, v{t}, 2, 2
    v_lshlrev_b32 v{t+4}, 6, v{t+4}
    v_and_b32 v{t+5}, 3, v{t}
    v_lshl_add_u32 v{t+4}, v{t+5}, 3, v{t+4}
    v_bfe_u32 v{t+5}, v{t}, 4, 1
    v_lshl_add_u32 v{t+4}, v{t+5}, 5, v{t+4}
    v_lshl_add_u32 v{V_TR}, v{t+3}, 9, v{t+4}
    v_add_u32 v{V_TR2}, 57344, v{V_TR}
    v_lshl_add_u32 v{V_TQ}, v{t+3}, 8, v{t+4}
    v_add_u32 v{V_TQ2}, 57344, v{V_TQ}
    s_mul_i32 s{S_T0}, s{S_WAVE}, 112
    v_add_u32 v{t+2}, s{S_T0}, v{t+2}
    v_and_b32 v{t+5}, 3, v{t}
    v_lshlrev_b32 v{t+5}, 4, v{t+5}
    v_mul_u32_u24 v{V_RM1}, 3584, v{t+2}
    v_add_u32 v{V_RM1}, v{V_RM1}, v{t+5}
    v_mul_u32_u24 v{V_RM2}, 896, v{t+2}
    v_add_u32 v{V_RM2}, v{V_RM2}, v{t+5}
    ''')

def prep(a):
    t=VT
    BF=0; AF=64
    PA=128
    V_RS,V_ST,V_BR0,V_BR1,V_AR0,V_AR1,V_AR2,V_AR3=t+8,t+9,t+10,t+11,t+12,t+13,t+14,t+15
    a(f'''
    s_and_b32 s{S_T0}, s2, 7
    s_lshl_b32 s{S_T0}, s{S_T0}, 2
    s_lshr_b32 s{S_T1}, s2, 6
    s_add_u32 s{S_G}, s{S_T0}, s{S_T1}
    s_bfe_u32 s{S_SEG}, s2, 0x30003
    s_and_b32 s{S_H}, s{S_G}, 15
    s_and_b32 s{S_T0}, s{S_SEG}, 3
    s_lshl_b32 s{S_T2}, s{S_T0}, 2
    s_min_u32 s{S_T2}, s{S_T2}, 10
    s_add_u32 s{S_T2}, s{S_T2}, s{S_WAVE}
    s_lshr_b32 s{S_T3}, s{S_SEG}, 2
    s_mul_i32 s{S_T3}, s{S_T3}, 7
    v_lshrrev_b32 v{t}, 6, v{V_LIN}
    v_lshlrev_b32 v{V_RS}, 13, v{t}
    v_and_b32 v{t+1}, 48, v{V_XS}
    v_mul_u32_u24 v{t+2}, 896, v{t}
    v_sub_u32 v{t+1}, v{V_XS}, v{t+2}
    v_add_u32 v{V_RS}, v{V_RS}, v{t+1}
    s_lshl_b32 s{S_T4}, s{S_WAVE}, 14
    s_add_u32 s{S_T4}, s{S_T4}, {6*16384}
    v_add_u32 v{V_AR2}, 65536, v{V_XR0}
    v_add_u32 v{V_AR3}, 65536, v{V_XR1}
    ''')
    LB=a.newlabel('prepB'); LJ=a.newlabel('prepJ'); LB2=a.newlabel('prepB2'); LJ2=a.newlabel('prepJ2')
    def dtile_dma(dt, slot):
        for rh in range(2):
            a(f's_add_u32 s{S_T0}, s{S_B0}, {(dt*32+16*rh)*8192}')
            for c in range(2):
                a(f's_add_u32 m0, s{S_B1}, {slot*16384+(2*c+rh)*1024-64*c}')
                a.vm(f'buffer_load_dwordx4 v{V_RS}, {sr(S_R1,4)}, s{S_T0} offen offset:{64*c} lds', f'd{dt}')
    a(f's_cmp_ge_u32 s{S_G}, 16\ns_cbranch_scc1 {LB}')
    srd(a,S_R1,P_WQ,3670016); srd(a,S_R2,P_WK,3670016)
    a(f'''
    s_mov_b32 s{S_T5}, {f32(LOG2E/16)}
    v_mov_b32 v{V_ST}, v{V_LIN}
    s_lshl_b32 s{S_T0}, s{S_T2}, 18
    s_lshl_b32 s{S_T1}, s{S_H}, 9
    s_add_u32 s{S_T0}, s{S_T0}, s{S_T1}
    s_add_u32 s{S_T1}, s{S_T0}, {16*8192}
    ''')
    for ch in range(8):
        for rh in range(2):
            a(f's_add_u32 m0, s{S_T4}, {(2*ch+rh)*1024-64*ch}')
            a(f'buffer_load_dwordx4 v{V_RS}, {sr(S_R2,4)}, s{S_T1 if rh else S_T0} offen offset:{64*ch} lds')
    a(f's_mul_i32 s{S_T1}, s{S_H}, {MAT}\ns_add_u32 s{S_VOFF}, s{S_T1}, {WS_A}')
    a(f's_branch {LJ}')
    a.label(LB)
    srd(a,S_R1,P_WV,3670016); srd(a,S_R2,P_WO,3670016)
    a(f'''
    s_mov_b32 s{S_T5}, 1.0
    v_bfe_u32 v{t}, v{V_LIN}, 5, 4
    v_bfe_u32 v{t+1}, v{V_LIN}, 4, 1
    v_lshl_add_u32 v{t}, v{t+1}, 4, v{t}
    v_and_b32 v{t+1}, 512, v{V_LIN}
    v_lshl_add_u32 v{V_ST}, v{t}, 4, v{t+1}
    v_lshrrev_b32 v{t}, 6, v{V_LIN}
    v_mul_u32_u24 v{t}, 896, v{t}
    v_and_b32 v{t+1}, 48, v{V_LIN}
    v_add_u32 v{t}, v{t}, v{t+1}
    s_mul_i32 s{S_T0}, s{S_H}, 229376
    s_lshl_b32 s{S_T1}, s{S_T2}, 6
    s_add_u32 s{S_T0}, s{S_T0}, s{S_T1}
    ''')
    for i in range(16):
        a(f's_add_u32 m0, s{S_T4}, {i*1024}')
        a(f'buffer_load_dwordx4 v{t}, {sr(S_R2,4)}, s{S_T0} offen lds')
        a(f's_add_u32 s{S_T0}, s{S_T0}, {16*896}')
    a(f's_mul_i32 s{S_T1}, s{S_H}, {MAT}\ns_add_u32 s{S_VOFF}, s{S_T1}, {WS_B}')
    a.label(LJ)
    a.vq=['b']
    a(f'''
    s_lshl_b32 s{S_B0}, s{S_T3}, 18
    s_lshl_b32 s{S_T0}, s{S_H}, 9
    s_add_u32 s{S_B0}, s{S_B0}, s{S_T0}
    s_lshl_b32 s{S_T0}, s{S_WAVE}, 7
    s_add_u32 s{S_B0}, s{S_B0}, s{S_T0}
    s_lshl_b32 s{S_B1}, s{S_WAVE}, 12
    s_mul_i32 s{S_T0}, s{S_T2}, 28672
    s_add_u32 s{S_VOFF}, s{S_VOFF}, s{S_T0}
    s_lshl_b32 s{S_T0}, s{S_T3}, 11
    s_add_u32 s{S_VOFF}, s{S_VOFF}, s{S_T0}
    v_add_u32 v{V_BR0}, s{S_T4}, v{V_XR0}
    v_add_u32 v{V_BR1}, s{S_T4}, v{V_XR1}
    ''')
    for dt in range(6): dtile_dma(dt,dt)
    a.wait_vm('b')
    a(f's_cmp_ge_u32 s{S_G}, 16\ns_cbranch_scc1 {LB2}')
    for k in range(16):
        a(f'ds_read_b128 {vr(BF+4*k,4)}, v{V_BR1 if k&1 else V_BR0} offset:{2048*(k>>1)}')
    a(f's_branch {LJ2}')
    a.label(LB2)
    a(f'v_add_u32 v{V_BR0}, s{S_T4}, v{V_TR}')
    for k in range(16):
        a(f'ds_read_b64_tr_b16 {vr(BF+4*k,2)}, v{V_BR0} offset:{1024*k}')
        a(f'ds_read_b64_tr_b16 {vr(BF+4*k+2,2)}, v{V_BR0} offset:{1024*k+256}')
    a.label(LJ2)
    a.drain_ds()
    if a.diag: a('s_memrealtime s[44:45]\ns_waitcnt lgkmcnt(0)')
    a.wait_vm('d0')
    a('s_barrier')
    K=a.newlabel('ini')
    a(f's_or_b32 s{S_T0}, s2, s{S_WAVE}\ns_cmp_lg_u32 s{S_T0}, 0\ns_cbranch_scc1 {K}')
    a(f'v_mov_b32 v{t}, 1\ns_mov_b64 exec, 1')
    a(f'buffer_store_dword v{t}, v{V_ZERO}, {sr(S_DBG,4)}, 0 offen offset:{D_INIT} sc1')
    a('s_mov_b64 exec, -1')
    a.label(K)
    dtile_dma(6,6)
    def epi(dt):
        acc=PA+16*(dt&1); o=[]
        for r in range(16): o.append(f'v_mul_f32 v{acc+r}, s{S_T5}, v{acc+r}')
        for p in range(2):
            for d,(x,y) in enumerate(((0,1),(4,5),(2,3),(6,7))):
                o.append(f'v_cvt_pk_bf16_f32 v{EX+4*p+d}, v{acc+8*p+x}, v{acc+8*p+y}')
        o.append(f's_add_u32 s{S_T0}, s{S_VOFF}, {dt*2048}')
        for p in range(2):
            o.append(f'buffer_store_dwordx4 {vr(EX+4*p,4)}, v{V_ST}, {sr(S_WS,4)}, s{S_T0} offen offset:{1024*p} sc1')
        return o
    fill=[]
    for dt in range(7):
        if dt>0:
            a.wait_vm(f'd{dt}'); a('s_barrier')
        base=dt*16384
        for k in range(16):
            off=base+2048*(k>>1)
            reg=(V_XR1 if k&1 else V_XR0) if off<65536 else (V_AR3 if k&1 else V_AR2)
            a.ds(f'ds_read_b128 {vr(AF+4*k,4)}, v{reg} offset:{off%65536}', f'a{k}')
        acc=PA+16*(dt&1)
        for k in range(16):
            a.wait_ds(f'a{k}')
            a(f'v_mfma_f32_32x32x16_bf16 {vr(acc,16)}, {vr(AF+4*k,4)}, {vr(BF+4*k,4)}, {vr(acc,16) if k else 0}')
            for _ in range(3):
                if fill: a.auto(fill.pop(0))
        assert not fill
        fill=epi(dt)
    for f in fill: a.auto(f)
    if a.diag: a('s_memrealtime s[46:47]\ns_waitcnt lgkmcnt(0)')
    a.drain_vm(); a('s_barrier')
    K=a.newlabel('pf'); L=a.newlabel('pfl'); D=a.newlabel('pfd')
    a(f's_cmp_lg_u32 s{S_WAVE}, 0\ns_cbranch_scc1 {K}')
    a(f's_mov_b32 s{S_SPIN}, 0')
    a.label(L)
    a(f'buffer_load_dword v{t}, v{V_ZERO}, {sr(S_DBG,4)}, 0 offen offset:{D_INIT} sc1\ns_waitcnt vmcnt(0)')
    a(f'v_cmp_eq_u32 vcc, 0, v{t}\ns_cbranch_vccz {D}\ns_sleep 2')
    a(f's_add_u32 s{S_SPIN}, s{S_SPIN}, 1\ns_cmp_lt_u32 s{S_SPIN}, {SPINS}\ns_cbranch_scc1 {L}')
    a(f's_mov_b32 s{S_ERR}, 8')
    a.label(D)
    a(f's_lshl_b32 s{S_T0}, s{S_G}, 7\ns_lshl_b32 s{S_T1}, s{S_SEG}, 2\ns_add_u32 s{S_T0}, s{S_T0}, s{S_T1}\ns_add_u32 s{S_T0}, s{S_T0}, {F_W}')
    set_flag(a,f's{S_T0}')
    a.label(K)

def dma_piece(t, sbase):
    o=[]; buf=(t%4)*28672
    for grp in range(2):
        o.append(f's_add_u32 s{S_T0}, s{sbase}, {t*28672+4096*grp}')
        o.append(f's_add_u32 m0, s{S_XL}, {buf+4096*grp}')
        for i in range(4 if grp==0 else 3):
            o.append(('vm',f'buffer_load_dwordx4 v{V_DMA}, {sr(S_WS,4)}, s{S_T0} offen offset:{1024*i} sc1 lds',f'w{t}'))
    return o
def dma_rows(t, tloc, srdreg, vreg, sbase, stride):
    o=[]; buf=(t%4)*28672
    for i in range(7):
        o.append(f's_add_u32 s{S_T0}, s{sbase}, {64*tloc+i*16*stride}')
        o.append(f's_add_u32 m0, s{S_XL}, {buf+1024*i}')
        o.append(('vm',f'buffer_load_dwordx4 v{vreg}, {sr(srdreg,4)}, s{S_T0} offen lds',f'w{t}'))
    return o
def rd_piece(t,k,dst):
    off=(t%4)*28672+1024*k
    return [f'ds_read_b128 {ar(dst,4)}, v{V_LIN if off<57344 else V_LIN2} offset:{off%57344}']
def rd_tr(t,k,dst,va,vb,second):
    off=(t%4)*28672+1024*k
    v=va if off<57344 else vb
    return [f'ds_read_b64_tr_b16 {ar(dst,2)}, v{v} offset:{off%57344}', f'ds_read_b64_tr_b16 {ar(dst+2,2)}, v{v} offset:{off%57344+second}']

def gemm(a, nt, dma, rd, mf, epi, pre=None, depth=7, finish_by=None):
    for t in (1,2):
        for o in dma(t): a.auto(o)
    if pre:
        for o in pre(0): a.auto(o)
    a.wait_vm('w0'); a('s_barrier')
    N=28*nt
    def read(g):
        if g<N:
            for o in rd(g//28,g%28,AW+4*(g%8)): a.ds(o,f'r{g}')
    for g in range(depth): read(g)
    fill=list(pre(1)) if pre else []
    for t in range(nt):
        acc=ACC+16*(t&1)
        lim = finish_by(t) if finish_by else 27
        dq=[]
        for k in range(28):
            g=28*t+k
            if k==28-depth-1 and t+1<nt:
                a.wait_vm(f'w{t+1}'); a('s_barrier')
                if t+3<nt: dq=dma(t+3)
            if k==lim:
                while fill: a.auto(fill.pop(0))
            if k==0: a.wait_ds(f'pre{t}')
            a.wait_ds(f'r{g}')
            a(mf(t,k,ar(AW+4*(g%8),4),vr(acc,16)))
            read(g+depth)
            if dq:
                while dq:
                    o=dq.pop(0); a.auto(o)
                    if isinstance(o,tuple): break
            if k>=2 and fill:
                n=math.ceil(len(fill)/max(1,lim-k))
                for _ in range(n):
                    if fill: a.auto(fill.pop(0))
        while dq: a.auto(dq.pop(0))
        while fill: a.auto(fill.pop(0))
        fill=list(epi(t,acc))
        if pre and t+2<nt: fill+=list(pre(t+2))
    while fill: a.auto(fill.pop(0))

def load_x(a, natural):
    a(f'''
    s_mul_i32 s{S_T1}, s{S_SEG}, 28672
    s_add_u32 s{S_T2}, s{S_T1}, 14336
    s_mul_i32 s{S_T3}, s{S_WAVE}, 28672
    s_add_u32 s{S_T3}, s{S_T3}, {LDS_XST}
    v_add_u32 v{VT}, s{S_T3}, v{V_XR0}
    v_add_u32 v{VT+1}, s{S_T3}, v{V_XR1}
    ''')
    for ch in range(14):
        for rh in range(2):
            a(f's_add_u32 m0, s{S_T3}, {(2*ch+rh)*1024-64*ch}')
            a.vm(f'buffer_load_dwordx4 v{V_XS}, {sr(S_X,4)}, s{S_T2 if rh else S_T1} offen offset:{64*ch} lds',f'x{ch}')
    for ch in range(14):
        a.wait_vm(f'x{ch}')
        for kl in range(2):
            a.ds(f'ds_read_b128 {vr(8*ch+4*kl,4)}, v{VT+kl} offset:{2048*ch}',f'xr{2*ch+kl}')
    if natural:
        a.drain_ds()
    else:
        for kb in range(28):
            r=4*kb
            a.wait_ds(f'xr{kb}')
            a(f'v_permlane32_swap_b32 v{r}, v{r+2}\nv_permlane32_swap_b32 v{r+1}, v{r+3}')
        for kb in range(28):
            r=4*kb
            for d,s in enumerate((0,2,1,3)): a(f'v_accvgpr_write_b32 a{r+d}, v{r+s}')
    a('s_barrier')

def unit_head(a, mat0, wsbase):
    a(f'''
    s_lshl_b32 s{S_SEG}, s{S_G}, 2
    s_add_u32 s{S_SEG}, s{S_SEG}, s{S_WAVE}
    s_lshl_b32 s{S_T0}, s{S_H}, 7
    s_add_u32 s{S_T0}, s{S_T0}, {F_W+128*mat0}
    s_mul_i32 s{S_B0}, s{S_H}, {MAT}
    s_add_u32 s{S_B0}, s{S_B0}, {wsbase}
    s_mul_i32 s{S_XL}, s{S_WAVE}, 7168
    ''')
    wait_flags(a,V_L4,f's{S_T0}',8,1)
    for o in dma_piece(0,S_B0): a.auto(o)
    load_x(a,False)

def unit_V(a):
    a.comment('==== V unit ====')
    unit_head(a,16,WS_B)
    a(f'''
    s_mul_i32 s{S_B1}, s{S_SEG}, {SEGV}
    s_lshl_b32 s{S_T0}, s{S_H}, 11
    s_add_u32 s{S_B1}, s{S_B1}, s{S_T0}
    s_add_u32 s{S_B1}, s{S_B1}, {WS_V}
    ''')
    def epi(t,acc):
        o=[f'v_cvt_pk_bf16_f32 v{EX+d}, v{acc+2*d}, v{acc+2*d+1}' for d in range(8)]
        o.append(f's_add_u32 s{S_T1}, s{S_B1}, {t*32768}')
        o+=[f'buffer_store_dwordx4 {vr(EX+4*p,4)}, v{V_LIN}, {sr(S_WS,4)}, s{S_T1} offen offset:{1024*p} sc1' for p in range(2)]
        return o
    gemm(a,14,lambda t:dma_piece(t,S_B0),rd_piece,
         lambda t,k,w,acc:f'v_mfma_f32_32x32x16_bf16 {acc}, {ar(4*k,4)}, {w}, {acc if k else 0}', epi)
    a(f's_lshl_b32 s{S_T0}, s{S_G}, 7\ns_lshl_b32 s{S_T1}, s{S_H}, 2\ns_add_u32 s{S_T0}, s{S_T0}, s{S_T1}\ns_add_u32 s{S_T0}, s{S_T0}, {F_V}')
    wg_flag(a,f's{S_T0}')

def unit_Q(a):
    a.comment('==== Q unit ====')
    unit_head(a,0,WS_A)
    def epi(t,acc):
        o=[]
        for p in range(2):
            for d,(x,y) in enumerate(((0,1),(4,5),(2,3),(6,7))):
                o.append(f'v_cvt_pk_bf16_f32 v{8*t+4*p+d}, v{acc+8*p+x}, v{acc+8*p+y}')
        for p in range(2):
            kb=2*t+p
            o.append(f'v_mfma_f32_32x32x16_bf16 {vr(SAC,16)}, {ar(4*kb,4)}, {vr(4*kb,4)}, {vr(SAC,16) if kb else 0}')
        return o
    gemm(a,14,lambda t:dma_piece(t,S_B0),rd_piece,
         lambda t,k,w,acc:f'v_mfma_f32_32x32x16_bf16 {acc}, {w}, {ar(4*k,4)}, {acc if k else 0}', epi)
    t=VT
    a(f'''
    v_bfe_u32 v{t}, v{V_LIN}, 4, 5
    v_lshrrev_b32 v{t+1}, 2, v{V_HH16}
    v_sub_u32 v{t}, v{t}, v{t+1}
    v_mov_b32 v{t+1}, {f32(-1e9*LOG2E)}
    ''')
    for r in range(16):
        a(f'v_cmp_le_i32 vcc, {8*(r>>2)+(r&3)}, v{t}')
        a(f'v_cndmask_b32 v{SAC+r}, v{t+1}, v{SAC+r}, vcc')
    a(f'v_max3_f32 v{t+2}, v{SAC}, v{SAC+1}, v{SAC+2}')
    for r in range(3,15,2): a(f'v_max3_f32 v{t+2}, v{t+2}, v{SAC+r}, v{SAC+r+1}')
    a(f'v_max_f32 v{t+2}, v{t+2}, v{SAC+15}')
    a(f'''
    v_and_b32 v{t+3}, 0x1f0, v{V_LIN}
    v_lshl_add_u32 v{t+4}, v{t+3}, 1, v{V_HH16}
    v_lshrrev_b32 v{t+5}, 1, v{V_HH16}
    v_add_u32 v{t+5}, v{t+5}, v{t+3}
    s_add_u32 s{S_T1}, s{S_SEG}, 1
    ''')
    wait_prog(a,S_T1)
    a(f's_lshl_b32 s{S_T0}, s{S_SEG}, 13\ns_add_u32 s{S_T0}, s{S_T0}, {WS_MEMH}\ns_add_u32 s{S_T1}, s{S_T0}, 4096')
    MF=t+16
    for i in range(7):
        a.vm(f'buffer_load_dwordx4 {vr(MF+4*i,4)}, v{t+4}, {sr(S_WS,4)}, s{S_T0 if i<4 else S_T1} offen offset:{1024*(i%4)} sc1',f'm{i}')
    accs=[ACC,ACC+16,EX,EX+16]
    def fix(i):
        r=MF+4*i
        a.wait_vm(f'm{i}')
        a(f'v_permlane32_swap_b32 v{r}, v{r+2}\nv_permlane32_swap_b32 v{r+1}, v{r+3}\nv_swap_b32 v{r+1}, v{r+2}')
    fix(0)
    for i in range(7):
        for j in range(4):
            a(f'v_mfma_f32_32x32x16_bf16 {vr(accs[j],16)}, {vr(MF+4*i,4)}, {vr(4*(4*i+j),4)}, {vr(accs[j],16) if i else 0}')
            if j==1 and i<6: fix(i+1)
    a(f'''
    s_mul_i32 s{S_T0}, s{S_SEG}, {SEGP}
    s_lshr_b32 s{S_T1}, s{S_H}, 2
    s_mul_i32 s{S_T1}, s{S_T1}, 10240
    s_add_u32 s{S_T0}, s{S_T0}, s{S_T1}
    s_add_u32 s{S_T0}, s{S_T0}, {WS_PX}
    s_and_b32 s{S_T2}, s{S_H}, 3
    s_lshl_b32 s{S_T1}, s{S_T2}, 9
    s_add_u32 s{S_T1}, s{S_T1}, s{S_T0}
    s_add_u32 s{S_T1}, s{S_T1}, 8192
    s_lshl_b32 s{S_T2}, s{S_T2}, 11
    s_add_u32 s{S_T0}, s{S_T0}, s{S_T2}
    ''')
    M=t+8
    for r in range(4):
        a(f'v_add_f32 v{M+r}, v{accs[0]+r}, v{accs[1]+4+r}')
    for r in range(4):
        a(f'v_add_f32 v{M+4+r}, v{accs[2]+8+r}, v{accs[3]+12+r}')
    for r in range(4):
        a(f'v_add_f32 v{M+r}, v{M+r}, v{M+4+r}')
    a(f'v_max3_f32 v{t+2}, v{t+2}, v{M}, v{M+1}\nv_max3_f32 v{t+2}, v{t+2}, v{M+2}, v{M+3}')
    a(f'v_mov_b32 v{t+6}, v{t+2}\nv_permlane32_swap_b32 v{t+2}, v{t+6}\nv_max_f32 v{t+2}, v{t+2}, v{t+6}')
    vals=[SAC+r for r in range(16)]+[M+r for r in range(4)]
    for v in vals: a(f'v_sub_f32 v{v}, v{v}, v{t+2}')
    for v in vals: a(f'v_exp_f32 v{v}, v{v}')
    a(f'v_add_f32 v{t+6}, v{vals[0]}, v{vals[1]}\nv_add_f32 v{t+7}, v{vals[2]}, v{vals[3]}')
    for k in range(4,20,2):
        a(f'v_add_f32 v{t+6}, v{t+6}, v{vals[k]}\nv_add_f32 v{t+7}, v{t+7}, v{vals[k+1]}')
    a(f'v_add_f32 v{t+6}, v{t+6}, v{t+7}\nv_mov_b32 v{t+7}, v{t+6}\nv_permlane32_swap_b32 v{t+6}, v{t+7}\nv_add_f32 v{t+6}, v{t+6}, v{t+7}')
    a(f'v_rcp_f32 v{t+6}, v{t+6}')
    for v in vals: a(f'v_mul_f32 v{v}, v{v}, v{t+6}')
    for d in range(10): a(f'v_cvt_pk_bf16_f32 v{ACC+d}, v{vals[2*d]}, v{vals[2*d+1]}')
    a(f'buffer_store_dwordx4 {vr(ACC,4)}, v{V_LIN}, {sr(S_WS,4)}, s{S_T0} offen sc1')
    a(f'buffer_store_dwordx4 {vr(ACC+4,4)}, v{V_LIN}, {sr(S_WS,4)}, s{S_T0} offen offset:1024 sc1')
    a(f'buffer_store_dwordx2 {vr(ACC+8,2)}, v{t+5}, {sr(S_WS,4)}, s{S_T1} offen sc1')
    a(f's_lshl_b32 s{S_T0}, s{S_SEG}, 7\ns_lshl_b32 s{S_T1}, s{S_H}, 2\ns_add_u32 s{S_T0}, s{S_T0}, s{S_T1}\ns_add_u32 s{S_T0}, s{S_T0}, {F_P}')
    a.drain_vm()
    set_flag(a,f's{S_T0}')

def unit_M(a):
    a.comment('==== MLP unit ====')
    t=VT
    T1=LDS_TAB; T2=LDS_TAB+2048; TG=LDS_TAB+4096
    srd(a,S_R1,P_W1,448*1792*2)
    a(f'''
    s_lshl_b32 s{S_SEG}, s{S_G}, 2
    s_add_u32 s{S_SEG}, s{S_SEG}, s{S_WAVE}
    s_mul_i32 s{S_XL}, s{S_WAVE}, 7168
    s_mul_i32 s{S_B0}, s{S_H}, 896
    s_mul_i32 s{S_B1}, s{S_H}, {448*896}
    ''')
    d1=lambda tt: dma_rows(tt,tt,S_R1,V_RM1,S_B0,3584)
    d2=lambda tt: dma_rows(tt,tt-14,S_R2,V_RM2,S_B1,896)
    for o in d1(0): a.auto(o)
    a(f's_lshl_b32 s{S_T0}, s{S_WAVE}, 8\nv_add_u32 v{t+2}, s{S_T0}, v{V_L4}')
    srd(a,S_R2,P_B1,3584)
    a.vm(f'buffer_load_dword v{t+3}, v{t+2}, {sr(S_R2,4)}, s{S_B0} offen','tb')
    srd(a,S_R2,P_B2,896)
    a(f's_lshl_b32 s{S_T0}, s{S_H}, 12')
    a.vm(f'buffer_load_dword v{t+4}, v{t+2}, {sr(S_R2,4)}, s{S_T0} offen','tb')
    srd(a,S_R2,P_GATE,896)
    a.vm(f'buffer_load_dword v{t+5}, v{t+2}, {sr(S_R2,4)}, 0 offen','tb')
    a.wait_vm('tb')
    srd(a,S_R2,P_W2,448*1792*2)
    a(f'''
    v_lshlrev_b32 v{t+6}, 16, v{t+3}
    v_and_b32 v{t+7}, 0xffff0000, v{t+3}
    v_lshlrev_b32 v{t+8}, 16, v{t+4}
    v_and_b32 v{t+9}, 0xffff0000, v{t+4}
    v_lshlrev_b32 v{t+10}, 1, v{t+2}
    v_add_u32 v{t+10}, {LDS_TAB}, v{t+10}
    v_add_u32 v{t+11}, {TG}, v{t+2}
    ds_write_b64 v{t+10}, {vr(t+6,2)}
    ds_write_b64 v{t+10}, {vr(t+8,2)} offset:2048
    ds_write_b32 v{t+11}, v{t+5}
    v_add_u32 v{t+12}, {LDS_TAB}, v{V_HH16}
    ''')
    V_TAB=t+12
    load_x(a,True)
    K=a.newlabel('nog')
    a(f's_cmp_lg_u32 s{S_H}, 0\ns_cbranch_scc1 {K}')
    a(f'v_mov_b32 v{t+2}, 0\nv_mov_b32 v{t+3}, 0')
    for kb0 in range(0,28,7):
        for kb in range(kb0,kb0+7): a.ds(f'ds_read_b128 {vr(ACC+4*(kb-kb0),4)}, v{V_TAB} offset:{4096+32*kb}',f'g{kb}')
        for kb in range(kb0,kb0+7):
            a.wait_ds(f'g{kb}')
            for d in range(4): a(f'v_dot2_f32_bf16 v{t+2+(d&1)}, v{4*kb+d}, v{ACC+4*(kb-kb0)+d}, v{t+2+(d&1)}')
        a('s_nop 2')
    a(f'''
    v_add_f32 v{t+2}, v{t+2}, v{t+3}
    v_mov_b32 v{t+3}, v{t+2}
    v_permlane32_swap_b32 v{t+2}, v{t+3}
    v_add_f32 v{t+2}, v{t+2}, v{t+3}
    v_mul_f32 v{t+2}, {f32(-LOG2E)}, v{t+2}
    v_exp_f32 v{t+2}, v{t+2}
    v_add_f32 v{t+2}, 1.0, v{t+2}
    v_rcp_f32 v{t+2}, v{t+2}
    v_and_b32 v{t+3}, 127, v{V_L4}
    s_lshl_b32 s{S_T0}, s{S_SEG}, 7
    s_add_u32 s{S_T0}, s{S_T0}, {WS_G}
    buffer_store_dword v{t+2}, v{t+3}, {sr(S_WS,4)}, s{S_T0} offen sc1
    ''')
    a.label(K)
    a(f'v_mov_b32 v{t+2}, 0\nv_mov_b32 v{t+3}, 0\nv_mov_b32 v{t+4}, 0x3f803f80')
    for r in range(112): a(f'v_dot2_f32_bf16 v{t+2+(r&1)}, v{r}, v{t+4}, v{t+2+(r&1)}')
    a(f'''
    s_nop 2
    v_add_f32 v{t+2}, v{t+2}, v{t+3}
    v_mov_b32 v{t+3}, v{t+2}
    v_permlane32_swap_b32 v{t+2}, v{t+3}
    v_add_f32 v{t+2}, v{t+2}, v{t+3}
    v_mul_f32 v{t+2}, {f32(1/448)}, v{t+2}
    v_mov_b32 v{t+3}, 0
    v_mov_b32 v{t+4}, 0
    s_mov_b32 s{S_T0}, 0xffff0000
    ''')
    for r in range(112):
        a(f'v_lshlrev_b32 v{t+5}, 16, v{r}\nv_and_b32 v{t+6}, s{S_T0}, v{r}')
        a(f'v_sub_f32 v{t+5}, v{t+5}, v{t+2}\nv_sub_f32 v{t+6}, v{t+6}, v{t+2}')
        a(f'v_fmac_f32 v{t+3}, v{t+5}, v{t+5}\nv_fmac_f32 v{t+4}, v{t+6}, v{t+6}')
    a(f'''
    v_add_f32 v{t+3}, v{t+3}, v{t+4}
    v_mov_b32 v{t+4}, v{t+3}
    v_permlane32_swap_b32 v{t+3}, v{t+4}
    v_add_f32 v{t+3}, v{t+3}, v{t+4}
    v_mov_b32 v{t+4}, {f32(1e-5)}
    v_fmac_f32 v{t+4}, {f32(1/448)}, v{t+3}
    v_rsq_f32 v{t+3}, v{t+4}
    ''')
    for r in range(112):
        a(f'v_lshlrev_b32 v{t+5}, 16, v{r}\nv_and_b32 v{t+6}, s{S_T0}, v{r}')
        a(f'v_sub_f32 v{t+5}, v{t+5}, v{t+2}\nv_sub_f32 v{t+6}, v{t+6}, v{t+2}')
        a(f'v_mul_f32 v{t+5}, v{t+5}, v{t+3}\nv_mul_f32 v{t+6}, v{t+6}, v{t+3}')
        a(f'v_cvt_pk_bf16_f32 v{t+5}, v{t+5}, v{t+6}\nv_accvgpr_write_b32 a{r}, v{t+5}')
    kk=2*math.sqrt(2/math.pi)*LOG2E
    a(f'''
    s_mov_b32 s{S_T4}, {f32(-kk*0.044715)}
    v_mov_b32 v{t+2}, {f32(-kk)}
    v_and_b32 v{t+3}, 0x1f0, v{V_LIN}
    v_lshl_add_u32 v{t+3}, v{t+3}, 1, v{V_HH16}
    s_mul_i32 s{S_T5}, s{S_H}, {64*SEGM}
    s_mul_i32 s{S_T1}, s{S_SEG}, {SEGM}
    s_add_u32 s{S_T5}, s{S_T5}, s{S_T1}
    s_add_u32 s{S_T5}, s{S_T5}, {WS_MLP}
    ''')
    def pre(tt):
        acc=ACC+16*(tt&1); base=(0 if tt<14 else 2048)+128*(tt%14)
        return [('ds',f'ds_read_b128 {vr(acc+4*q,4)}, v{V_TAB} offset:{base+32*q}',f'pre{tt}') for q in range(4)]
    def epi(tt,acc):
        o=[]
        if tt<14:
            for h in range(2):
                R=range(8*h,8*h+8); x=lambda r: SAC+(r&7)
                o+=[f'v_mul_f32 v{x(r)}, v{acc+r}, v{acc+r}' for r in R]
                o+=[f'v_fma_f32 v{x(r)}, v{x(r)}, s{S_T4}, v{t+2}' for r in R]
                o+=[f'v_mul_f32 v{x(r)}, v{x(r)}, v{acc+r}' for r in R]
                o+=[f'v_exp_f32 v{x(r)}, v{x(r)}' for r in R]
                o+=[f'v_add_f32 v{x(r)}, 1.0, v{x(r)}' for r in R]
                o+=[f'v_rcp_f32 v{x(r)}, v{x(r)}' for r in R]
                o+=[f'v_mul_f32 v{x(r)}, v{x(r)}, v{acc+r}' for r in R]
                o+=[f'v_cvt_pk_bf16_f32 v{8*tt+4*h+d}, v{SAC+2*d}, v{SAC+2*d+1}' for d in range(4)]
        else:
            o.append(f's_add_u32 s{S_T1}, s{S_T5}, {(tt-14)*4096}')
            o+=[f'buffer_store_dwordx4 {vr(acc+4*q,4)}, v{t+3}, {sr(S_WS,4)}, s{S_T1} offen offset:{1024*q} sc1' for q in range(4)]
            o.append('s_nop 1')
        return o
    gemm(a,28,lambda tt: d1(tt) if tt<14 else d2(tt),
         lambda tt,k,dst: rd_tr(tt,k,dst,V_TR,V_TR2,256) if tt<14 else rd_tr(tt,k,dst,V_TQ,V_TQ2,512),
         lambda tt,k,w,acc: f'v_mfma_f32_32x32x16_bf16 {acc}, {w}, {ar(4*k,4) if tt<14 else vr(4*k,4)}, {acc}',
         epi, pre=pre, depth=5, finish_by=lambda tt: 26)
    a(f's_lshl_b32 s{S_T0}, s{S_G}, 7\ns_lshl_b32 s{S_T1}, s{S_H}, 2\ns_add_u32 s{S_T0}, s{S_T0}, s{S_T1}\ns_add_u32 s{S_T0}, s{S_T0}, {F_M}')
    wg_flag(a,f's{S_T0}')

def unit_F(a):
    a.comment('==== final unit ====')
    t=VT
    VV=0; PX=64; PM=96; MB=104; FA=120; ML=152; GG=184
    a(f'''
    s_lshr_b32 s{S_G}, s{S_SEG}, 2
    s_lshl_b32 s{S_T0}, s{S_G}, 7
    s_lshl_b32 s{S_T5}, s{S_WAVE}, 4
    s_add_u32 s{S_T1}, s{S_T0}, s{S_T5}
    s_add_u32 s{S_T1}, s{S_T1}, {F_V}
    s_add_u32 s{S_T2}, s{S_T0}, {F_M}
    ''')
    wait_flags(a,V_L4,f's{S_T1}',4,1)
    a(f'''
    s_mul_i32 s{S_B0}, s{S_SEG}, {SEGV}
    s_lshl_b32 s{S_T0}, s{S_H}, 16
    s_add_u32 s{S_B0}, s{S_B0}, s{S_T0}
    s_lshl_b32 s{S_T0}, s{S_WAVE}, 13
    s_add_u32 s{S_B0}, s{S_B0}, s{S_T0}
    s_add_u32 s{S_B0}, s{S_B0}, {WS_V}
    ''')
    for n in range(2):
        for g in range(2):
            a(f's_add_u32 s{S_T0}, s{S_B0}, {n*32768+g*4096}')
            for i in range(4):
                a(f'buffer_load_dwordx4 {vr(VV+32*n+16*g+4*i,4)}, v{V_LIN}, {sr(S_WS,4)}, s{S_T0} offen offset:{1024*i} sc1')
    wait_flags(a,V_L4,f's{S_T2}',4,1)
    a(f'''
    v_and_b32 v{t}, 0x1f0, v{V_LIN}
    v_lshlrev_b32 v{t}, 1, v{t}
    v_lshl_add_u32 v{t}, v{V_HH16}, 6, v{t}
    s_mul_i32 s{S_T0}, s{S_SEG}, {SEGM}
    s_lshl_b32 s{S_T1}, s{S_H}, 13
    s_add_u32 s{S_T0}, s{S_T0}, s{S_T1}
    s_lshl_b32 s{S_T1}, s{S_WAVE}, 11
    s_add_u32 s{S_T0}, s{S_T0}, s{S_T1}
    s_add_u32 s{S_T0}, s{S_T0}, {WS_MLP}
    ''')
    for c in range(4):
        a(f'buffer_load_dwordx4 {vr(ML+8*c,4)}, v{t}, {sr(S_WS,4)}, s{S_T0} offen sc1')
        a(f'buffer_load_dwordx4 {vr(ML+8*c+4,4)}, v{t}, {sr(S_WS,4)}, s{S_T0} offen offset:16 sc1')
        if c<3: a(f's_add_u32 s{S_T0}, s{S_T0}, {64*SEGM}')
    a(f'''
    v_and_b32 v{t+1}, 127, v{V_L4}
    s_lshl_b32 s{S_T0}, s{S_SEG}, 7
    s_add_u32 s{S_T1}, s{S_T0}, {WS_G}
    buffer_load_dword v{GG}, v{t+1}, {sr(S_WS,4)}, s{S_T1} offen sc1
    s_add_u32 s{S_T1}, s{S_T0}, s{S_T5}
    s_add_u32 s{S_T1}, s{S_T1}, {F_P}
    ''')
    a(f's_add_u32 s{S_T3}, s{S_SEG}, 1')
    wait_prog(a,S_T3)
    a(f'''
    v_lshlrev_b32 v{t+1}, 3, v{V_LIN}
    s_lshl_b32 s{S_T2}, s{S_H}, 8
    s_lshl_b32 s{S_T0}, s{S_WAVE}, 2
    s_add_u32 s{S_T2}, s{S_T2}, s{S_T0}
    s_add_u32 s{S_T2}, s{S_T2}, {F_B}
    ''')
    wait_flags(a,t+1,f's{S_T2}',2,f's{S_T3}',sleep=2)
    a(f'''
    s_mul_i32 s{S_T0}, s{S_SEG}, {SEGMB}
    s_lshl_b32 s{S_T2}, s{S_H}, 14
    s_add_u32 s{S_T0}, s{S_T0}, s{S_T2}
    s_lshl_b32 s{S_T2}, s{S_WAVE}, 11
    s_add_u32 s{S_T0}, s{S_T0}, s{S_T2}
    s_add_u32 s{S_T0}, s{S_T0}, {WS_MBH}
    s_add_u32 s{S_T2}, s{S_T0}, 8192
    ''')
    for n in range(2):
        for k in range(2):
            a(f'buffer_load_dwordx4 {vr(MB+8*n+4*k,4)}, v{V_LIN}, {sr(S_WS,4)}, s{S_T2 if n else S_T0} offen offset:{1024*k} sc1')
    for r in range(8):
        a(f'v_add_f32 v{ML+r}, v{ML+r}, v{ML+8+r}\nv_add_f32 v{ML+16+r}, v{ML+16+r}, v{ML+24+r}')
    for r in range(8): a(f'v_add_f32 v{ML+r}, v{ML+r}, v{ML+16+r}')
    a(f'v_sub_f32 v{GG+1}, 1.0, v{GG}')
    for r in range(8): a(f'v_mul_f32 v{ML+r}, v{ML+r}, v{GG+1}')
    wait_flags(a,V_L4,f's{S_T1}',4,1,sleep=4)
    a(f'''
    s_mul_i32 s{S_T0}, s{S_SEG}, {SEGP}
    s_mul_i32 s{S_T1}, s{S_WAVE}, 10240
    s_add_u32 s{S_T0}, s{S_T0}, s{S_T1}
    s_add_u32 s{S_T0}, s{S_T0}, {WS_PX}
    ''')
    for i in range(10):
        if i in (4,8): a(f's_add_u32 s{S_T0}, s{S_T0}, 4096')
        a.vm(f'buffer_load_dwordx4 {vr(PX+4*i,4)}, v{V_LIN}, {sr(S_WS,4)}, s{S_T0} offen offset:{1024*(i%4)} sc1',f'p{i}')
    srd(a,S_R1,P_OUT,2048*448*2)
    a(f'''
    v_bfe_u32 v{t}, v{V_LIN}, 4, 5
    v_mul_u32_u24 v{t}, 896, v{t}
    v_add_u32 v{t}, v{t}, v{V_HH16}
    s_mul_i32 s{S_T0}, s{S_SEG}, 28672
    s_lshl_b32 s{S_T1}, s{S_H}, 7
    s_add_u32 s{S_T0}, s{S_T0}, s{S_T1}
    s_lshl_b32 s{S_T1}, s{S_WAVE}, 5
    s_add_u32 s{S_T0}, s{S_T0}, s{S_T1}
    s_lshl_b32 s{S_T1}, s{S_WAVE}, 13
    v_add_u32 v{t+1}, s{S_T1}, v{V_LIN}
    s_lshr_b32 s{S_T1}, s{S_WAVE}, 1
    s_lshl_b32 s{S_T1}, s{S_T1}, 12
    s_and_b32 s{S_T2}, s{S_WAVE}, 1
    s_lshl_b32 s{S_T2}, s{S_T2}, 10
    s_add_u32 s{S_T1}, s{S_T1}, s{S_T2}
    v_add_u32 v{t+2}, s{S_T1}, v{V_LIN}
    ''')
    for i in range(10):
        a.wait_vm(f'p{i}')
        for n in range(2):
            A = vr(VV+32*n+4*i,4) if i<8 else vr(MB+8*n+4*(i-8),4)
            a(f'v_mfma_f32_32x32x16_bf16 {vr(FA+16*n,16)}, {A}, {vr(PX+4*i,4)}, {vr(FA+16*n,16) if i else 0}')
    for n in range(2):
        for q in range(4):
            a(f'ds_write_b128 v{t+1}, {vr(FA+16*n+4*q,4)} offset:{4096*n+1024*q}')
    a('s_waitcnt lgkmcnt(0)\ns_barrier')
    for w in range(4):
        a(f'ds_read_b128 {vr(VV+8*w,4)}, v{t+2} offset:{8192*w}')
        a(f'ds_read_b128 {vr(VV+8*w+4,4)}, v{t+2} offset:{8192*w+2048}')
    a('s_waitcnt lgkmcnt(0)')
    for r in range(8):
        a(f'v_add_f32 v{VV+r}, v{VV+r}, v{VV+8+r}\nv_add_f32 v{VV+16+r}, v{VV+16+r}, v{VV+24+r}')
    for r in range(8): a(f'v_add_f32 v{VV+r}, v{VV+r}, v{VV+16+r}')
    for r in range(4):
        a(f'v_fma_f32 v{ML+2*r}, v{VV+r}, v{GG}, v{ML+2*r}\nv_fma_f32 v{ML+2*r+1}, v{VV+4+r}, v{GG}, v{ML+2*r+1}')
    for d in range(4): a(f'v_cvt_pk_bf16_f32 v{ML+8+d}, v{ML+2*d}, v{ML+2*d+1}')
    a(f'buffer_store_dwordx4 {vr(ML+8,4)}, v{t}, {sr(S_R1,4)}, s{S_T0} offen')
    a.vq=[]; a.dq=[]
```

```python
import sys
from asmb import *
from layout import *
import team, work
from work import *
KN='gated_mix__memory_aug_recurrent_mem_tr__mixer_channel_mlp__prompt'
HDR=open('cdna_kernels/'+KN+'.s.ref').read().split('; Override launch geometry')[0]

def build(name=KN+'_kernel', stamps=0, force_slow=False, diag=False):
    a=Asm(); a.diag=diag
    a.raw(HDR+f'''; Generated by a hand-written generator. One persistent launch, one 256-thread workgroup per CU.
; @launch grid=(256,1,1) block=(256,1,1) lds=163840
.amdgcn_target "amdgcn-amd-amdhsa--gfx950"
.text
.globl {name}
.p2align 8
.type {name},@function
{name}:''')
    t=VT
    a(f'''
    s_cmp_ge_u32 s2, 256
    s_cbranch_scc1 L_exit
    s_load_dwordx16 s[64:79], s[0:1], 0
    s_load_dwordx16 s[80:95], s[0:1], 64
    s_getreg_b32 s{S_XCC}, hwreg(HW_REG_XCC_ID, 0, 4)
    v_lshrrev_b32 v1, 6, v0
    v_readfirstlane_b32 s{S_WAVE}, v1
    s_mov_b32 s{S_ERR}, 0
    ''')
    if diag: a('s_memrealtime s[40:41]')
    if force_slow: a(f's_lshr_b32 s{S_XCC}, s2, 5')
    work_consts(a)
    a('s_waitcnt lgkmcnt(0)')
    srd(a,S_X,P_X,1835008); srd(a,S_DBG,P_DBG,256); srd(a,S_WS,P_WS,0x10000000)
    srd(a,S_R1,P_X,1835008); srd(a,S_R2,P_X,1835008)
    a(f'''
    v_mov_b32 v{V_RANK}, 1
    s_cmp_lg_u32 s{S_WAVE}, 0
    s_cbranch_scc1 L_norank
    s_lshl_b32 s{S_T0}, s{S_XCC}, 2
    s_mov_b64 exec, 1
    buffer_atomic_add v{V_RANK}, v{V_ZERO}, {sr(S_DBG,4)}, s{S_T0} offen sc0
    s_mov_b64 exec, -1
    L_norank:
    s_cmp_lg_u32 s2, 0
    s_cbranch_scc1 L_nozero
    v_mov_b32 v0, 0
    v_mov_b32 v1, 0
    v_mov_b32 v2, 0
    v_mov_b32 v3, 0
    s_mul_i32 s{S_T0}, s{S_WAVE}, 6144
    s_add_u32 s{S_T0}, s{S_T0}, {WS_FLAG}
    s_add_u32 s{S_T1}, s{S_T0}, 4096
    ''')
    for i in range(6):
        a(f'buffer_store_dwordx4 v[0:3], v{V_LIN}, {sr(S_WS,4)}, s{S_T0 if i<4 else S_T1} offen offset:{1024*(i%4)} sc1')
    a.label('L_nozero')
    prep(a)
    if diag: a('s_memrealtime s[42:43]')
    a(f'''
    v_mov_b32 v{t+1}, {LDS_BC}
    s_cmp_lg_u32 s{S_WAVE}, 0
    s_cbranch_scc1 L_slotw
    v_readfirstlane_b32 s{S_T0}, v{V_RANK}
    s_lshl_b32 s{S_SLOT}, s{S_XCC}, 5
    s_add_u32 s{S_SLOT}, s{S_SLOT}, s{S_T0}
    s_mov_b32 s{S_SLOW}, 0
    s_mov_b32 s{S_T5}, 1
    s_cmp_ge_u32 s{S_XCC}, 8
    s_cbranch_scc1 L_ovf
    s_cmp_ge_u32 s{S_T0}, 32
    s_cbranch_scc1 L_ovf
    s_cmp_ge_u32 s{S_SLOT}, 30
    s_cbranch_scc1 L_slotok
    s_mov_b32 s{S_T5}, 0
    s_branch L_census
    L_ovf:
    v_mov_b32 v{t}, 1
    s_mov_b64 exec, 1
    buffer_atomic_add v{t}, v{V_ZERO}, {sr(S_DBG,4)}, 0 offen offset:{D_OVF} sc0
    s_waitcnt vmcnt(0)
    s_mov_b64 exec, -1
    v_readfirstlane_b32 s{S_T4}, v{t}
    L_census:
    s_mov_b32 s{S_SPIN}, 0
    L_cl:
    buffer_load_dword v{t}, v{V_L4}, {sr(S_DBG,4)}, 0 offen sc1
    s_waitcnt vmcnt(0)
    v_readlane_b32 s{S_T1}, v{t}, 0
    s_cmp_ge_u32 s{S_T1}, 31
    s_cselect_b32 s{S_SLOW}, 0, 1
    s_or_b32 s{S_T0}, s{S_SLOW}, s{S_T5}
    s_cmp_eq_u32 s{S_T0}, 0
    s_cbranch_scc1 L_slotok
    ''')
    for i in range(1,16):
        a(f'v_readlane_b32 s{S_T0}, v{t}, {i}\ns_add_u32 s{S_T1}, s{S_T1}, s{S_T0}')
    a(f'''
    s_cmp_ge_u32 s{S_T1}, 256
    s_cbranch_scc1 L_all
    s_sleep 4
    s_add_u32 s{S_SPIN}, s{S_SPIN}, 1
    s_cmp_lt_u32 s{S_SPIN}, {SPINS}
    s_cbranch_scc1 L_cl
    s_mov_b32 s{S_SLOT}, 31
    s_branch L_slotok
    L_all:
    s_cmp_eq_u32 s{S_T5}, 0
    s_cbranch_scc1 L_slotok
    s_mov_b32 s{S_SLOT}, 31
    ''')
    for i in range(8):
        a(f'''
        v_readlane_b32 s{S_T0}, v{t}, {i}
        s_min_u32 s{S_T0}, s{S_T0}, 32
        s_add_u32 s{S_T4}, s{S_T4}, s{S_T0}
        s_add_u32 s{S_SLOT}, s{S_T4}, {32*i}
        s_cmp_lt_u32 s{S_T4}, 32
        s_cbranch_scc1 L_slotok
        s_sub_u32 s{S_T4}, s{S_T4}, 32
        ''')
    a(f'''
    s_mov_b32 s{S_SLOT}, 31
    L_slotok:
    ''')
    if force_slow: a(f's_mov_b32 s{S_SLOW}, 1')
    a(f'''
    s_lshl_b32 s{S_T0}, s{S_SLOW}, 16
    s_or_b32 s{S_T0}, s{S_T0}, s{S_SLOT}
    v_mov_b32 v{t}, s{S_T0}
    ds_write_b32 v{t+1}, v{t}
    s_waitcnt lgkmcnt(0)
    L_slotw:
    s_barrier
    ds_read_b32 v{t}, v{t+1}
    s_waitcnt lgkmcnt(0)
    v_readfirstlane_b32 s{S_T0}, v{t}
    s_barrier
    s_and_b32 s{S_SLOT}, s{S_T0}, 0xffff
    s_lshr_b32 s{S_SLOW}, s{S_T0}, 16
    s_mov_b32 s{S_ROLE}, s{S_SLOT}
    s_cmp_ge_u32 s{S_SLOT}, 32
    s_cbranch_scc1 L_worker
    s_cmp_eq_u32 s{S_SLOT}, 31
    s_cbranch_scc1 L_roleW
    s_cmp_eq_u32 s{S_SLOT}, 30
    s_cbranch_scc1 L_roleR
    s_cmp_ge_u32 s{S_SLOT}, 16
    s_cbranch_scc1 L_roleB
    ''')
    team.role_A(a,stamps)
    a.label('L_roleB')
    team.role_B(a,stamps)
    a.label('L_roleR')
    team.role_R(a)
    a.label('L_roleW')
    a(f's_mov_b32 s{S_T5}, s{S_WAVE}')
    a.label('L_warm')
    team.role_W(a)
    a.label('L_roleF')
    team.role_F(a)
    a.label('L_worker')
    a(f'''
    ; ranks 0,1 of dies 1..7 follow the team; the others start with a V unit: u = 30*(die-1) + rank-2
    s_lshr_b32 s{S_T1}, s{S_SLOT}, 5
    s_sub_u32 s{S_T1}, s{S_T1}, 1
    s_and_b32 s{S_T0}, s{S_SLOT}, 31
    s_lshl_b32 s{S_ROLE}, s{S_T1}, 1
    s_add_u32 s{S_ROLE}, s{S_ROLE}, s{S_T0}
    s_cmp_lt_u32 s{S_T0}, 2
    s_cbranch_scc1 L_roleF
    s_mul_i32 s{S_T1}, s{S_T1}, 30
    s_add_u32 s{S_T0}, s{S_T0}, s{S_T1}
    s_sub_u32 s{S_T0}, s{S_T0}, 2
    s_cmp_ge_u32 s{S_T0}, 208
    s_cbranch_scc1 L_next
    s_mul_i32 s{S_H}, s{S_T0}, 5042
    s_lshr_b32 s{S_H}, s{S_H}, 16
    s_mul_i32 s{S_T1}, s{S_H}, 13
    s_sub_u32 s{S_G}, s{S_T0}, s{S_T1}
    ''')
    assert all((u*5042)>>16==u//13 for u in range(208))
    a.label('L_uV'); unit_V(a)
    a.label('L_next')
    a(f'''
    s_cmp_lg_u32 s{S_ERR}, 0
    s_cbranch_scc1 L_end
    v_mov_b32 v{t+1}, {LDS_BC}
    s_cmp_lg_u32 s{S_WAVE}, 0
    s_cbranch_scc1 L_popw
    v_mov_b32 v{t}, 1
    s_mov_b64 exec, 1
    buffer_atomic_add v{t}, v{V_ZERO}, {sr(S_DBG,4)}, 0 offen offset:{D_Q} sc0
    s_waitcnt vmcnt(0)
    ds_write_b32 v{t+1}, v{t}
    s_waitcnt lgkmcnt(0)
    s_mov_b64 exec, -1
    L_popw:
    s_barrier
    ds_read_b32 v{t}, v{t+1}
    s_waitcnt lgkmcnt(0)
    v_readfirstlane_b32 s{S_T0}, v{t}
    s_barrier
    s_cmp_ge_u32 s{S_T0}, 816
    s_cbranch_scc1 L_end
    s_cmp_ge_u32 s{S_T0}, 48
    s_cbranch_scc1 L_n1
    s_lshr_b32 s{S_G}, s{S_T0}, 4
    s_add_u32 s{S_G}, s{S_G}, 13
    s_and_b32 s{S_H}, s{S_T0}, 15
    s_branch L_uV
    L_n1:
    s_cmp_ge_u32 s{S_T0}, 112
    s_cbranch_scc1 L_n2
    s_sub_u32 s{S_T0}, s{S_T0}, 48
    s_lshr_b32 s{S_G}, s{S_T0}, 2
    s_and_b32 s{S_H}, s{S_T0}, 3
    s_branch L_uM
    L_n2:
    s_sub_u32 s{S_T0}, s{S_T0}, 112
    s_mul_i32 s{S_G}, s{S_T0}, 1490
    s_lshr_b32 s{S_G}, s{S_G}, 16
    s_mul_i32 s{S_T1}, s{S_G}, 44
    s_sub_u32 s{S_H}, s{S_T0}, s{S_T1}
    s_cmp_lt_u32 s{S_H}, 16
    s_cbranch_scc1 L_uQ
    s_sub_u32 s{S_H}, s{S_H}, 16
    s_mul_i32 s{S_T0}, s{S_H}, 37
    s_lshr_b32 s{S_T0}, s{S_T0}, 8
    s_mul_i32 s{S_T1}, s{S_T0}, 7
    s_sub_u32 s{S_H}, s{S_H}, s{S_T1}
    s_lshl_b32 s{S_SEG}, s{S_G}, 2
    s_add_u32 s{S_SEG}, s{S_SEG}, s{S_T0}
    ''')
    assert all((u*4682)>>16==u//14 for u in range(224)) and all((u*1490)>>16==u//44 for u in range(704)) and all((u*37)>>8==u//7 for u in range(28))
    unit_F(a); a('s_branch L_next')
    a.label('L_uQ'); unit_Q(a); a('s_branch L_next')
    a.label('L_uM'); unit_M(a); a('s_branch L_next')
    a.label('L_end')
    if stamps==2:
        a(f'''
        s_cmp_ge_u32 s{S_SLOT}, 30
        s_cbranch_scc1 L_nost
        s_mov_b64 exec, -1
        v_mbcnt_lo_u32_b32 v0, -1, 0
        v_mbcnt_hi_u32_b32 v0, -1, v0
        v_lshlrev_b32 v0, 4, v0
        s_lshl_b32 s44, s{S_WAVE}, 12
        s_add_u32 s45, s44, 147456
        v_add_u32 v1, s45, v0
        s_lshl_b32 s45, s{S_SLOT}, 14
        s_add_u32 s44, s44, s45
        s_add_u32 s44, s44, {WS_TS+0x100000}
        ''')
        for i in range(4):
            a(f'ds_read_b128 v[4:7], v1 offset:{1024*i}\ns_waitcnt lgkmcnt(0)\nbuffer_store_dwordx4 v[4:7], v0, {sr(S_WS,4)}, s44 offen offset:{1024*i}\ns_waitcnt vmcnt(0)')
        a.label('L_nost')
    if diag:
        a(f'''
        s_memtime s[6:7]
        s_memrealtime s[4:5]
        s_waitcnt lgkmcnt(0) vmcnt(0)
        s_sub_u32 s6, s6, s2
        s_lshl_b32 s{S_T0}, s{S_SLOT}, 2
        s_add_u32 s{S_T0}, s{S_T0}, s{S_WAVE}
        s_lshl_b32 s{S_T0}, s{S_T0}, 7
        s_add_u32 s{S_T0}, s{S_T0}, {WS_TS}
        v_mov_b32 v0, 0
        s_mov_b64 exec, 1
        ''')
        for i,sg in enumerate([6,S_ERR,S_STEP,S_SLOW]+list(range(44,56))+[40,42,4,0,2]):
            a(f'v_mov_b32 v1, s{sg}\nbuffer_store_dword v1, v0, {sr(S_WS,4)}, s{S_T0} offen offset:{4*i}')
        a('s_waitcnt vmcnt(0)')
    a.label('L_exit')
    a('s_endpgm')
    a.raw(f'''.section .rodata,"a"
.p2align 6
.amdhsa_kernel {name}
  .amdhsa_next_free_vgpr 512
  .amdhsa_next_free_sgpr 102
  .amdhsa_accum_offset 256
  .amdhsa_group_segment_fixed_size 0
  .amdhsa_kernarg_size 128
  .amdhsa_user_sgpr_count 2
  .amdhsa_user_sgpr_kernarg_segment_ptr 1
  .amdhsa_system_sgpr_workgroup_id_x 1
.end_amdhsa_kernel''')
    return a.text()

if __name__=='__main__':
    if len(sys.argv)==1:
        open('cdna_kernels/'+KN+'.s','w').write(build())
        open('full_diag.s','w').write(build('bench_kernel',diag=True))
        open('full_slow.s','w').write(build('bench_kernel',diag=True,force_slow=True))
    for arg in sys.argv[1:]:
        nm,_,kv=arg.partition(':')
        base=dict(team.OPT); st=0; prod=False
        for e in filter(None,kv.split(',')):
            k,v=e.split('=')
            if k=='st': st=int(v)
            elif k=='prod': prod=True
            else: team.OPT[k]=int(v)
        if prod: open(f'exp/{nm}.s','w').write(build())
        else: open(f'exp/{nm}.s','w').write(build('bench_kernel',stamps=st,diag=True))
        team.OPT.clear(); team.OPT.update(base)
```

```python
WS_A    = 0x0000000
WS_B    = 0x0700000
WS_V    = 0x1000000
WS_MEMR = 0x3000000
WS_PR   = 0x3010000
WS_FLAG = 0x3040000
WS_MEMH = 0x3100000
WS_G    = 0x3190000
WS_MBH  = 0x3220000
WS_PX   = 0x3A00000
WS_XF   = 0x3D00000
WS_MLP  = 0x4000000
WS_TS   = 0x5000000
MAT = 401408
SEGV = 458752
SEGMB = 114688
SEGP = 40960
SEGM = 57344
NSTEP = 63
F_W=WS_FLAG; F_V=WS_FLAG+32*128; F_M=WS_FLAG+48*128; F_P=WS_FLAG+64*128; F_T=WS_FLAG+128*128; F_R=WS_FLAG+130*128
F_EP=WS_FLAG+224*128; F_EM=WS_FLAG+240*128
F_B=WS_FLAG+170*128
F_X=WS_FLAG+192*128; F_OVF=WS_FLAG+208*128; F_TEAM=WS_FLAG+209*128; F_Q=WS_FLAG+210*128
NTEAM=30
D_INIT=4; D_OVF=8; D_SIDE=12; D_POL=24
SPIN = 1<<17
SPINS = 1<<15
S_WS=8; S_X=12; S_DBG=16; S_R1=20; S_R2=4
S_WAVE=24; S_ROLE=25; S_STEP=26; S_SPIN=27
S_MCUR=28; S_PCUR=29; S_T0=30; S_T1=31; S_XOFF=32; S_PF=33; S_RST=34; S_VOFF=35; S_MNXT=36; S_HOFF=37
S_ERR=38; S_SLOT=39; S_XL=60; S_SLOW=61; S_VRDY=62; S_MBO=63
S_T2=56; S_T3=57; S_T4=58; S_T5=59
S_POL=97; S_FX=98; S_DRY=99
S_XCC=96; S_G=97; S_H=98; S_SEG=99; S_B0=100; S_B1=101
P_X,P_MEM0,P_WQ,P_WK,P_WV,P_WO,P_SEG,P_BX,P_W1,P_B1,P_W2,P_B2,P_GATE,P_OUT,P_DBG,P_WS=[64+2*i for i in range(16)]
def srd(a, s, p, nbytes):
    a(f's_mov_b32 s{s}, s{p}\ns_mov_b32 s{s+1}, s{p+1}\ns_mov_b32 s{s+2}, {nbytes}\ns_mov_b32 s{s+3}, 0x20000')
def rt(a,i):
    if i==4: i=14
    if getattr(a,'diag',False): a(f's_memrealtime s[{48+2*i}:{49+2*i}]\ns_waitcnt lgkmcnt(0)')
def pp(a,i):
    if getattr(a,'pprof',0): a(f's_memtime s[76:77]\ns_waitcnt lgkmcnt(0)\nv_writelane_b32 v254, s76, {i}')
```

```python
from asmb import *
from layout import *
from work import wait_flags, wait_prog, V_L4, V_ZERO, VT, V_LIN as W_LIN
OPT = dict(vload=1, xdma=1, hist=1, full=1, two=3, wb=0, vnt=0, x0=12, xsp=4, vpf=0, ahead=3, pf=0, xadv=1, rp=4, rm=8, nearly=4, hfirst=0, vsp=2, fgap=9, apos=5, bpos=1, cnt=0, asleep=9, a2sleep=5, bsleep=4, pgap=12, agap=12)
S_M0=S_R1

def frag_reg(f, nacc=32, vbase=120):
    return ar(8*f,8) if f<nacc else vr(vbase+8*(f-nacc),8)
def frag_half(f, hf, nacc=32, vbase=120):
    return ar(8*f+4*hf,4) if f<nacc else vr(vbase+8*(f-nacc)+4*hf,4)

class Stamps:
    def __init__(self, a, on): self.a=a; self.on=on; self.n=0
    def init(self, n):
        if not self.on: return
        for i in range(12): self.a(f's_mov_b32 s{44+i}, 0')
        if self.on==1: self.a('s_memtime s[40:41]\ns_waitcnt lgkmcnt(0)\ns_mov_b32 s42, s40')
    def mark(self, i):
        if self.on==1:
            self.a(f's_memtime s[40:41]\ns_waitcnt lgkmcnt(0)\ns_sub_u32 s43, s40, s42\ns_mov_b32 s42, s40\ns_add_u32 s{44+i}, s{44+i}, s43')
    def abs(self, i):
        if self.on==2: self.a(f's_memtime s[{64+2*i}:{65+2*i}]')
    def endstep(self, t, d=0):
        if self.on==2:
            a=self.a
            SK=a.newlabel('nost')
            if d: a(f's_and_b32 s44, s{S_STEP}, 3\ns_cbranch_scc1 {SK}')
            a('s_waitcnt lgkmcnt(0)')
            for i in range(14): a(f'v_writelane_b32 v{t}, s{64+2*i}, {i}')
            a(f'''
            v_mbcnt_lo_u32_b32 v{t+1}, -1, 0
            v_lshlrev_b32 v{t+1}, 2, v{t+1}
            s_lshl_b32 s44, s{S_WAVE}, 6
            s_add_u32 s44, s44, s{S_STEP}
            s_lshl_b32 s44, s44, 6
            s_add_u32 s44, s44, 147456
            v_add_u32 v{t+1}, s44, v{t+1}
            s_mov_b64 exec, 0x3fff
            ds_write_b32 v{t+1}, v{t}
            s_mov_b64 exec, -1
            ''')
            a.label(SK)

def poll_check(a, regs, tmp):
    r=list(regs)
    a(f'v_max3_u32 v{tmp}, v{r[0]}, v{r[1]}, v{r[2]}')
    a(f'v_max3_u32 v{tmp+1}, v{r[3]}, v{r[4]}, v{r[5]}')
    rest=r[6:]
    k=0
    while len(rest)>=2:
        a(f'v_max3_u32 v{tmp+k}, v{tmp+k}, v{rest[0]}, v{rest[1]}'); rest=rest[2:]; k^=1
    a(f'v_max_u32 v{tmp}, v{tmp}, v{tmp+1}')
    a(f'v_cmp_eq_u32 vcc, -1, v{tmp}')


def calib(a):
    L=a.newlabel('cal')
    a('s_memrealtime s[6:7]\ns_waitcnt lgkmcnt(0)')
    a.label(L)
    a(f's_memrealtime s[0:1]\ns_memtime s[2:3]\ns_waitcnt lgkmcnt(0)\ns_cmp_eq_u32 s0, s6\ns_cbranch_scc1 {L}')

def chk4(a, r, tmp):
    a(f'v_max3_u32 v{tmp}, v{r}, v{r+1}, v{r+2}\nv_max_u32 v{tmp}, v{tmp}, v{r+3}\nv_cmp_eq_u32 vcc, -1, v{tmp}')

def repoll(a, load, r, tmp, err):
    L=a.newlabel('rp'); R=a.newlabel('rpr')
    a(f's_cbranch_vccnz {L}')
    a.label(R)
    a.outl.append(('raw',[f'{L}:', load, 's_waitcnt vmcnt(0)',
        f'v_max3_u32 v{tmp}, v{r}, v{r+1}, v{r+2}', f'v_max_u32 v{tmp}, v{tmp}, v{r+3}', f'v_cmp_eq_u32 vcc, -1, v{tmp}',
        f's_cbranch_vccz {R}', f's_add_u32 s{S_SPIN}, s{S_SPIN}, 1', f's_cmp_lt_u32 s{S_SPIN}, {SPIN}', f's_cbranch_scc1 {L}',
        f's_mov_b32 s{S_ERR}, {err}', f's_branch {R}']))

def ring_poll(a, loads, regs, tmp, gap, err):
    n=len(loads); L=a.newlabel('poll'); T=[a.newlabel('first') for _ in range(n)]
    a(f's_mov_b32 s{S_SPIN}, 0')
    for k in range(n):
        a(loads[k])
        if k<n-1 and gap: a(f's_nop {gap}')
    a.label(L)
    for k in range(n):
        a(f's_waitcnt vmcnt({n-1})')
        chk4(a,regs[k],tmp)
        a(f's_cbranch_vccz {T[k]}')
        a(loads[k])
    a(f's_add_u32 s{S_SPIN}, s{S_SPIN}, 1\ns_cmp_lt_u32 s{S_SPIN}, {SPIN}\ns_cbranch_scc1 {L}')
    a(f's_mov_b32 s{S_ERR}, {err}\ns_waitcnt vmcnt(0)')
    return T

def flag_poll(a, load, regs, thr, err, pre=False):
    n=len(regs); L=a.newlabel('fp'); D=a.newlabel('fpd')
    a(f's_mov_b32 s{S_SPIN}, 0')
    for k,r in enumerate(regs):
        if pre: break
        a(load(r))
        if k<n-1: a(f's_nop {OPT["fgap"]}')
    a.label(L)
    for r in regs:
        a(f's_waitcnt vmcnt({n-1})\nv_cmp_gt_u32 vcc, {thr if isinstance(thr,str) else "s%d"%thr}, v{r}\ns_cbranch_vccz {D}')
        a(load(r))
    a(f's_add_u32 s{S_SPIN}, s{S_SPIN}, 1\ns_cmp_lt_u32 s{S_SPIN}, {SPIN}\ns_cbranch_scc1 {L}')
    a(f's_mov_b32 s{S_ERR}, {err}\ns_branch L_end')
    a.label(D)

def redo_block(L, back, loads, regs, tmp, zero, err):
    r=list(regs); o=[f'{L}:']+loads+['s_waitcnt vmcnt(0)', f'v_max3_u32 v{tmp}, v{r[0]}, v{r[1]}, v{r[2]}']
    r=r[3:]
    while len(r)>=2: o.append(f'v_max3_u32 v{tmp}, v{tmp}, v{r[0]}, v{r[1]}'); r=r[2:]
    o+=[f'v_max_u32 v{tmp}, v{tmp}, v{r[0]}', f'v_cmp_eq_u32 vcc, -1, v{tmp}', f's_cbranch_vccz {L}_ok',
        f's_add_u32 s{S_SPIN}, s{S_SPIN}, 1', f's_cmp_lt_u32 s{S_SPIN}, {SPIN}', f's_cbranch_scc1 {L}', f's_mov_b32 s{S_ERR}, {err}', 's_branch L_end',
        f'{L}_ok:']+(['s_add_u32 s55, s55, 1'] if OPT['cnt'] else [])+[f'v_mov_b64 {vr(z,2)}, 0' for z in zero]+['s_nop 1', f's_branch {back}']
    return ('raw',o)

def pub(a, stores, cmp=True):
    L=a.newlabel('slow'); R=a.newlabel('slowr')
    if cmp: a(f's_cmp_lg_u32 s{S_SLOW}, 0')
    a(f's_cbranch_scc1 {L}')
    for x in stores: a(x)
    a.label(R)
    a.outl.append((L,R,[x+' sc1' if x.startswith('buffer_store') else x for x in stores]))

def emit_outl(a):
    for e in a.outl:
        if e[0]=='raw':
            a('\n'.join(e[1])); continue
        L,R,st=e
        a.label(L)
        for x in st: a(x)
        a(f's_branch {R}')
    a.outl=[]

def lane_consts(a, t):
    a(f'v_mbcnt_lo_u32_b32 v{t}, -1, 0\nv_mbcnt_hi_u32_b32 v{t}, -1, v{t}')
    a(f'v_lshrrev_b32 v{t+1}, 4, v{t}\nv_and_b32 v{t+2}, 15, v{t}')

def common_addr(a, t, V_IDX, V_LDSW, V_LIN):
    a(f'''
    v_and_b32 v{t+3}, 1, v{t}
    v_mov_b32 v{V_IDX}, 0x4444
    v_mov_b32 v{t+4}, 0xeeee
    v_cmp_eq_u32 vcc, 1, v{t+3}
    v_cndmask_b32 v{V_IDX}, v{V_IDX}, v{t+4}, vcc
    v_lshlrev_b32 v{V_LIN}, 4, v{t}
    s_lshl_b32 s{S_T0}, s{S_WAVE}, 11
    v_add_u32 v{V_LDSW}, s{S_T0}, v{V_LIN}
    ''')

def team_barrier(a, nteam, tmp):
    L=a.newlabel('tb'); D=a.newlabel('tbd'); K=a.newlabel('tbs')
    a('s_waitcnt vmcnt(0)')
    rt(a,3)
    a('s_barrier')
    a(f's_cmp_lg_u32 s{S_WAVE}, 3\ns_cbranch_scc1 {K}')
    a(f'v_mov_b32 v{tmp}, 1\nv_mov_b32 v{tmp+1}, 0')
    a('s_mov_b64 exec, 1')
    a(f's_lshl_b32 s{S_T0}, s{S_SLOT}, 2\ns_add_u32 s{S_T0}, s{S_T0}, {F_TEAM}')
    pub(a,[f'buffer_store_dword v{tmp}, v{tmp+1}, {sr(S_WS,4)}, s{S_T0} offen'])
    a('s_mov_b64 exec, -1')
    a.label(K)
    a(f's_cmp_eq_u32 s{S_SLOW}, 0\ns_cbranch_scc1 {D}')
    team_wait(a,'L_end',tmp)
    a.label(D)

def team_wait(a, end, t):
    B0=a.newlabel('tw')
    a(f'''
    v_mbcnt_lo_u32_b32 v{t+1}, -1, 0
    v_min_u32 v{t+1}, {NTEAM-1}, v{t+1}
    v_lshlrev_b32 v{t+1}, 2, v{t+1}
    s_mov_b32 s{S_SPIN}, 0
    s_mov_b32 s{S_T0}, {F_TEAM}
    {B0}:
    buffer_load_dword v{t}, v{t+1}, {sr(S_WS,4)}, s{S_T0} offen sc1
    s_waitcnt vmcnt(0)
    v_cmp_eq_u32 vcc, 0, v{t}
    s_cbranch_vccz {B0}_d
    s_sleep 2
    s_add_u32 s{S_SPIN}, s{S_SPIN}, 1
    s_cmp_lt_u32 s{S_SPIN}, {SPIN}
    s_cbranch_scc1 {B0}
    s_mov_b32 s{S_ERR}, 6
    s_branch {end}
    {B0}_d:
    ''')

def census(a, t):
    L=a.newlabel('cen'); D=a.newlabel('cend')
    a(f'''
    v_mbcnt_lo_u32_b32 v{t+1}, -1, 0
    v_and_b32 v{t+1}, 15, v{t+1}
    v_lshlrev_b32 v{t+1}, 7, v{t+1}
    s_mov_b32 s{S_SPIN}, 0
    s_mov_b32 s{S_T3}, {F_X}
    {L}:
    buffer_load_dword v{t}, v{t+1}, {sr(S_WS,4)}, s{S_T3} offen sc1
    s_waitcnt vmcnt(0)
    v_readlane_b32 s{S_PF}, v{t}, 0
    s_mov_b32 s{S_SLOW}, {1 if a.force_slow else 0}
    s_cmp_ge_u32 s{S_PF}, 31
    s_cbranch_scc1 {D}
    s_mov_b32 s{S_SLOW}, 1
    ''')
    for i in range(1,16): a(f'v_readlane_b32 s{S_T0}, v{t}, {i}\ns_add_u32 s{S_PF}, s{S_PF}, s{S_T0}')
    a(f'''
    s_cmp_ge_u32 s{S_PF}, 256
    s_cbranch_scc1 {D}
    s_sleep 2
    s_add_u32 s{S_SPIN}, s{S_SPIN}, 1
    s_cmp_lt_u32 s{S_SPIN}, {SPINS}
    s_cbranch_scc1 {L}
    s_mov_b32 s{S_ERR}, 7
    s_branch L_end
    {D}:
    ''')

STAGE1=(0,1,2,7,8,9)
SMF='v_smfmac_f32_16x16x64_bf16'
def role_A(a, stamps=False, end='L_end'):
    st=Stamps(a,stamps)
    MEMA=0; XB=28; ACC=60; SACC=88; QA=100
    V_IDX,V_LIN,V_LDSW,V_XG,V_XR,V_QW,V_QW2,V_QW6,V_PSX,V_PSM,V_EW,V_ER=range(108,120)
    V_PFD=QA+6; V_EV=QA+7
    CT=QA
    LDS_QT=0; LDS_SP=8192; LDS_X=16384
    S_PH=S_T4; S_PAR=S_T5; S_XR0=S_MNXT; S_XR1=S_MBO; S_M2=S_VRDY
    rt(a,0)
    t=0
    lane_consts(a,t)
    common_addr(a,t,V_IDX,V_LDSW,V_LIN)
    a(f's_lshr_b32 s{S_PH}, s{S_WAVE}, 1\ns_and_b32 s{S_PAR}, s{S_WAVE}, 1')
    a(f's_lshl_b32 s{S_T0}, s{S_WAVE}, 13\nv_add_u32 v{V_XG}, s{S_T0}, v{V_LIN}\nv_add_u32 v{V_XR}, 4096, v{V_XG}')
    def xload(ks):
        return [f'buffer_load_dwordx4 {vr(XB+16*kt+8*ks+4*hf,4)}, v{V_XR if kt else V_XG}, {sr(S_WS,4)}, s{S_XOFF} offen offset:{2048*ks+1024*hf} sc1' for kt in range(2) for hf in range(2)]
    a(f'''
    v_lshlrev_b32 v{t+3}, 9, v{t+1}
    v_lshrrev_b32 v{t+4}, 3, v{t+2}
    v_mul_u32_u24 v{t+5}, 28672, v{t+4}
    v_add_u32 v{t+5}, v{t+5}, v{t+3}
    v_bfe_u32 v{t+6}, v{t+2}, 2, 1
    v_lshl_add_u32 v{t+5}, v{t+6}, 8, v{t+5}
    v_and_b32 v{t+6}, 3, v{t+2}
    v_lshl_add_u32 v{t+5}, v{t+6}, 5, v{t+5}
    v_lshl_add_u32 v{t+7}, v{t+4}, 8, v{t+3}
    v_and_b32 v{t+6}, 7, v{t+2}
    v_lshl_add_u32 v{t+7}, v{t+6}, 4, v{t+7}
    s_mul_i32 s{S_T0}, s{S_ROLE}, {MAT}
    s_lshl_b32 s{S_T1}, s{S_PAR}, 7
    s_add_u32 s{S_T0}, s{S_T0}, s{S_T1}
    s_add_u32 s{S_T0}, s{S_T0}, {WS_A}
    s_mul_i32 s{S_T1}, s{S_PH}, {4*28672}
    s_add_u32 s{S_T1}, s{S_T1}, s{S_T0}
    s_mul_i32 s{S_T2}, s{S_PH}, 28672
    s_add_u32 s{S_T2}, s{S_T2}, s{S_T0}
    ''')
    a(f's_lshl_b32 s{S_RST}, s{S_ROLE}, 7\ns_add_u32 s{S_RST}, s{S_RST}, {F_W}\nv_lshlrev_b32 v{t+8}, 2, v{t}')
    rt(a,1)
    for stage in (1,2):
        wait_flags(a,t+8,f's{S_RST}',8,stage,sleep=1,t=t+10)
        if stage==1: rt(a,2)
        else: census(a,t+10)
        n=0
        for tp in range(4):
            for dt in range(14):
                if (dt in STAGE1)!=(stage==1): continue
                ks,hf=dt>>1,dt&1
                if tp<3: a(f's_add_u32 s{S_XOFF}, s{S_T1}, {(2*tp if tp<2 else 8)*28672+dt*2048}')
                else: a(f's_add_u32 s{S_XOFF}, s{S_T2}, {10*28672+dt*2048}')
                for e in range(2 if tp<3 else 1):
                    a(f'buffer_load_dwordx4 {frag_half((2*tp+e)*7+ks,hf)}, v{t+5 if tp<3 else t+7}, {sr(S_WS,4)}, s{S_XOFF} offen offset:{e*16} sc1')
    a(f'''
    s_lshl_b32 s{S_T0}, s{S_WAVE}, 11
    v_lshlrev_b32 v{t+5}, 6, v{t+1}
    v_add_u32 v{t+5}, s{S_T0}, v{t+5}
    v_lshrrev_b32 v{t+3}, 3, v{t+2}
    v_lshl_add_u32 v{V_QW}, v{t+3}, 8, v{t+5}
    v_and_b32 v{t+3}, 1, v{t+2}
    v_lshl_add_u32 v{V_QW}, v{t+3}, 4, v{V_QW}
    v_bfe_u32 v{t+4}, v{t+2}, 1, 2
    v_lshl_add_u32 v{V_QW}, v{t+4}, 2, v{V_QW}
    s_lshl_b32 s{S_T0}, s{S_PH}, 9
    v_add_u32 v{V_QW2}, s{S_T0}, v{V_QW}
    v_lshl_add_u32 v{V_QW6}, v{t+3}, 1, v{t+5}
    v_bfe_u32 v{t+4}, v{t+2}, 1, 1
    v_lshl_add_u32 v{V_QW6}, v{t+4}, 4, v{V_QW6}
    v_lshrrev_b32 v{t+4}, 2, v{t+2}
    v_lshl_add_u32 v{V_QW6}, v{t+4}, 2, v{V_QW6}
    s_lshl_b32 s{S_T0}, s{S_PH}, 8
    s_sub_u32 s{S_T0}, 512, s{S_T0}
    v_add_u32 v{V_QW6}, s{S_T0}, v{V_QW6}
    v_mov_b32 v{t+8}, 0
    v_mov_b32 v{t+9}, 0
    v_mov_b32 v{t+10}, 0
    v_mov_b32 v{t+11}, 0
    ds_write_b128 v{V_LDSW}, {vr(t+8,4)} offset:{LDS_QT+1024}
    ''')
    a(f'''
    ; x part: 3072(h>>2)+512(h&3) + 256(n>>3)+64q+32u+4(n&7) ; mem part: 3072(h>>2)+2048+512((h>>1)&1)+16(h&1) + 256(n>>3)+64q+32u+4((n>>1)&3)
    s_lshr_b32 s{S_T0}, s{S_ROLE}, 2
    s_mul_i32 s{S_T0}, s{S_T0}, 3072
    s_lshl_b32 s{S_T1}, s{S_PAR}, 5
    s_add_u32 s{S_T0}, s{S_T0}, s{S_T1}
    v_lshrrev_b32 v{t+3}, 3, v{t+2}
    v_lshlrev_b32 v{t+3}, 8, v{t+3}
    v_lshl_add_u32 v{t+3}, v{t+1}, 6, v{t+3}
    v_add_u32 v{t+3}, s{S_T0}, v{t+3}
    v_and_b32 v{t+4}, 7, v{t+2}
    v_lshl_add_u32 v{V_PSX}, v{t+4}, 2, v{t+3}
    s_and_b32 s{S_T1}, s{S_ROLE}, 3
    s_lshl_b32 s{S_T1}, s{S_T1}, 9
    v_add_u32 v{V_PSX}, s{S_T1}, v{V_PSX}
    v_bfe_u32 v{t+4}, v{t+2}, 1, 2
    v_lshl_add_u32 v{V_PSM}, v{t+4}, 2, v{t+3}
    s_and_b32 s{S_T1}, s{S_ROLE}, 2
    s_lshl_b32 s{S_T1}, s{S_T1}, 8
    s_and_b32 s{S_T2}, s{S_ROLE}, 1
    s_lshl_b32 s{S_T2}, s{S_T2}, 4
    s_add_u32 s{S_T1}, s{S_T1}, s{S_T2}
    s_add_u32 s{S_T1}, s{S_T1}, 2048
    v_add_u32 v{V_PSM}, s{S_T1}, v{V_PSM}
    s_mov_b32 s{S_XOFF}, {WS_XF-32768}
    v_lshlrev_b32 v{V_EW}, 7, v{t}
    s_lshl_b32 s{S_T0}, s{S_ROLE}, 1
    s_add_u32 s{S_T0}, s{S_T0}, s{S_PAR}
    s_lshl_b32 s{S_T0}, s{S_T0}, 1
    s_add_u32 s{S_T0}, s{S_T0}, {F_EP}
    v_add_u32 v{V_EW}, s{S_T0}, v{V_EW}
    v_mov_b32 v{t+3}, 0x7f000000
    v_cmp_gt_u32 vcc, {OPT['rp']}, v{t}
    v_cndmask_b32 v{V_EW}, v{t+3}, v{V_EW}, vcc
    v_min_u32 v{t+3}, 55, v{t}
    s_and_b32 s{S_T0}, s{S_ROLE}, {OPT['rm']//2-1}
    s_lshl_b32 s{S_T0}, s{S_T0}, 7
    s_add_u32 s{S_T0}, s{S_T0}, {F_EM}
    v_lshl_add_u32 v{V_ER}, v{t+3}, 1, s{S_T0}
    ''')
    a(f'v_mov_b32 v{t+12}, -1\ns_waitcnt vmcnt(24)')
    ini=[]
    for k in range(4):
        ini+=[f's_mov_b32 s{S_T0}, {WS_PR+16384*k}']+[f'buffer_store_dword v{t+12}, v{r}, {sr(S_WS,4)}, s{S_T0} offen' for r in (V_PSX,V_PSM)]
    pub(a,ini)
    for k in range(4):
        a(f's_mov_b32 s{S_T0}, {WS_PR+16384*k}')
        for r in (V_PSX,V_PSM): a(f'buffer_load_dword v{t+13}, v{r}, {sr(S_WS,4)}, s{S_T0} offen sc1')
    team_barrier(a,NTEAM,t+8)
    a(f'''
    s_mov_b32 s{S_STEP}, 0
    s_lshl_b32 s{S_PF}, s{S_ROLE}, 11
    s_lshl_b32 s{S_T0}, s{S_PAR}, 10
    s_add_u32 s{S_PF}, s{S_PF}, s{S_T0}
    s_add_u32 s{S_PF}, s{S_PF}, {WS_XF+2*32768}
    ''')
    if a.diag: calib(a)
    st.init(8)
    LOOP=a.newlabel('Aloop'); NOSL=a.newlabel('Anosl')
    a(f's_branch {NOSL}')
    a.label(LOOP)
    if OPT['asleep']: a(f's_sleep {OPT["asleep"]}')
    a.label(NOSL)
    a(f'''
    s_and_b32 s{S_T0}, s{S_STEP}, 3
    s_lshl_b32 s{S_MCUR}, s{S_T0}, 13
    s_add_u32 s{S_MCUR}, s{S_MCUR}, {WS_MEMR}
    s_add_u32 s{S_M2}, s{S_MCUR}, 4096
    s_lshl_b32 s{S_PCUR}, s{S_T0}, 14
    s_add_u32 s{S_PCUR}, s{S_PCUR}, {WS_PR}
    s_add_u32 s{S_T0}, s{S_STEP}, 3
    s_and_b32 s{S_T0}, s{S_T0}, 3
    s_lshl_b32 s{S_RST}, s{S_T0}, 14
    s_add_u32 s{S_RST}, s{S_RST}, {WS_PR}
    s_add_u32 s{S_XOFF}, s{S_XOFF}, {32768*OPT['xadv']}
    ''')
    for r in range(ACC,SACC+12,2): a(f'v_mov_b64 {vr(r,2)}, 0')
    ml=[f'buffer_load_dwordx4 {vr(MEMA+4*k,4)}, v{V_LIN}, {sr(S_WS,4)}, s{S_MCUR if k<4 else S_M2} offen offset:{1024*(k%4)} sc1' for k in range(7)]
    a(f's_add_u32 s{S_T1}, s{S_STEP}, 1\ns_cmp_lg_u32 s{S_SLOW}, 0\ns_cselect_b32 s{S_T1}, 0, s{S_T1}')
    flag_poll(a, lambda r: f'buffer_load_ushort v{r}, v{V_ER}, {sr(S_WS,4)}, 0 offen sc1', [QA+1,QA+2,QA+3,QA+4], S_T1, 1)
    st.abs(8)
    for k in range(4):
        a(ml[k])
        if k<3: a(f's_nop {OPT["agap"]}')
    def mm(tile,ks): a(f'{SMF} {vr(ACC+4*tile,4)}, {vr(MEMA+4*ks,4)}, {frag_reg(tile*7+ks)}, v{V_IDX}')
    G0=a.newlabel('Ago'); RDO=a.newlabel('Aredo')
    a.outl.append(redo_block(RDO,G0,ml,range(MEMA,MEMA+28),CT,range(ACC,ACC+28,2),1))
    def chk(k):
        r=MEMA+4*k
        if k==0: return [f'v_max3_u32 v{CT}, v{r}, v{r+1}, v{r+2}', f'v_max_u32 v{CT}, v{CT}, v{r+3}']
        return [f'v_max3_u32 v{CT}, v{CT}, v{r}, v{r+1}', f'v_max3_u32 v{CT}, v{CT}, v{r+2}, v{r+3}']
    a.label(G0)
    xl=xload(0)+xload(1)
    vplan={0:('m4',ml[4]),4:('m5',ml[5]),8:('m6',ml[6])}
    for k in range(8): vplan[OPT['x0']+OPT['xsp']*k]=(f'x{k//4}',xl[k])
    a.vq=['m0','m1','m2','m3']
    def vissue(g):
        if g in vplan: a.vm(vplan[g][1],vplan[g][0])
    for rnd in range(3):
        a.wait_vm(f'm{rnd}')
        if rnd==0: st.abs(0)
        for tile in range(7):
            mm(tile,rnd)
            vissue(7*rnd+tile)
            if tile in (2,3): a(chk(rnd)[tile-2])
    st.abs(1)
    def post(tp):
        e=ACC+8*tp; o_=e+4
        vq=V_QW if tp<2 else V_QW2
        return [f'v_add_f32 v{e}, v{e}, v{e+1}', f'v_add_f32 v{e+2}, v{e+2}, v{e+3}'], \
               [f'v_add_f32 v{o_}, v{o_}, v{o_+1}', f'v_add_f32 v{o_+2}, v{o_+2}, v{o_+3}',
                f'v_cvt_pk_bf16_f32 v{e+1}, v{e}, v{o_}', f'v_cvt_pk_bf16_f32 v{e+3}, v{e+2}, v{o_+2}',
                f'ds_write_b32 v{vq}, v{e+1} offset:{LDS_QT+512*tp}', f'ds_write_b32 v{vq}, v{e+3} offset:{LDS_QT+512*tp+32}']
    seq=[(tl,ks) for ks in (3,4,5,6) for tl in (0,1)]+[(tl,ks) for tl in range(2,7) for ks in (3,4,5,6)]
    c6={2*(k-3)+i:[chk(k)[i]] for k in (3,4,5,6) for i in range(2)}
    c6[8]=[f'v_cmp_eq_u32 vcc, -1, v{CT}']; c6[10]=[f's_cbranch_vccnz {RDO}']
    run=a
    def gap(idx,ready):
        av=[x for x in ready if x[0]<=idx]
        if not av: return
        if av[0][1].startswith('ds_'):
            a(av[0][1]); ready.remove(av[0])
            nx=[x for x in av[1:] if not x[1].startswith('ds_')]
            if nx: a(nx[0][1]); ready.remove(nx[0])
        else:
            a(av[0][1]); ready.remove(av[0])
            if OPT['two'] and len(av)>OPT['two'] and not av[1][1].startswith('ds_'):
                a(av[1][1]); ready.remove(av[1])
    ready=[]
    TL=[a.newlabel('Atail') for _ in range(4)]; FIN=a.newlabel('Afin')
    SPLIT=20
    def body(lo,hi,ready):
        for idx in range(lo,hi):
            tl,ks=seq[idx]
            a.wait_vm(f'm{ks}')
            mm(tl,ks)
            vissue(21+idx)
            for op in c6.get(idx,[]): run(op)
            if idx==SPLIT-4: a(f's_cmp_eq_u32 s{S_WAVE}, 3')
            gap(idx,ready)
            if ks==6 and tl<6:
                ready+=[(idx+3,o) for o in post(tl>>1)[tl&1]]
                if tl==3: ready.append((idx+3,f'ds_read_b128 {vr(QA,4)}, v{V_LDSW} offset:{LDS_QT}'))
    body(0,SPLIT,ready)
    a(f's_cbranch_scc1 {TL[3]}\ns_cmp_eq_u32 s{S_WAVE}, 2\ns_cbranch_scc1 {TL[2]}\ns_cmp_eq_u32 s{S_WAVE}, 1\ns_cbranch_scc1 {TL[1]}')
    hist0=list(a.hist); vq0=list(a.vq)
    for w in range(4):
        ph,par=w>>1,w&1
        a.label(TL[w]); a.hist=list(hist0[:len(hist0)-5+{0:5,1:5,2:3,3:1}[w]])
        rd=list(ready); a.vq=list(vq0)
        body(SPLIT,28,rd)
        st.abs(2)
        L6=ACC+24
        pend=[o for _,o in rd]
        if any('ds_read' in o for o in pend):
            while any('ds_read' in o for o in pend): a(pend.pop(0))
        last=[f'v_add_f32 v{L6}, v{L6}, v{L6+1}', f'v_add_f32 v{L6+2}, v{L6+2}, v{L6+3}', f'v_cvt_pk_bf16_f32 v{L6}, v{L6}, v{L6+2}',
              f'ds_write_b16 v{V_QW6}, v{L6} offset:{LDS_QT+1024}', f'ds_write_b16_d16_hi v{V_QW6}, v{L6} offset:{LDS_QT+1024+32}',
              f'ds_read_b128 {vr(QA+4,4)}, v{V_LDSW} offset:{LDS_QT+1024}']
        for o in pend+last: a(o)
        a(f's_waitcnt lgkmcnt({sum(1 for o in pend+last if o.startswith("ds_"))})')
        a.wait_vm('x0')
        a(f'{SMF} {vr(SACC,4)}, {vr(QA,4)}, {vr(XB,8)}, v{V_IDX}')
        a(f'{SMF} {vr(SACC+4,4)}, {vr(QA,4)}, {vr(XB+16,8)}, v{V_IDX}')
        a(f'{SMF} {vr(SACC+8,4)}, {vr(QA,4)}, {vr(MEMA+8*ph,8)}, v{V_IDX}')
        a('s_waitcnt lgkmcnt(0)')
        a(f'{SMF} {vr(SACC+8,4)}, {vr(QA+4,4)}, {vr(MEMA+16+4*ph,8)}, v{V_IDX}')
        a.wait_vm('x1')
        a(f'{SMF} {vr(SACC,4)}, {vr(QA+4,4)}, {vr(XB+8,8)}, v{V_IDX}')
        a(f'{SMF} {vr(SACC+4,4)}, {vr(QA+4,4)}, {vr(XB+24,8)}, v{V_IDX}')
        st.abs(3)
        E=ACC
        qp='[0,0,2,2]' if par==0 else '[1,1,3,3]'
        a(f'v_add_f32 v{E+3}, v{SACC+8}, v{SACC+9}\nv_add_f32 v{E+7}, v{SACC+10}, v{SACC+11}')
        a(f'v_add_f32 v{E}, v{SACC}, v{SACC+1}\nv_add_f32 v{E+4}, v{SACC+2}, v{SACC+3}')
        a(f'v_mov_b32_dpp v{E+2}, v{E+3} quad_perm:{qp} row_mask:0xf bank_mask:0xf')
        a(f'v_mov_b32_dpp v{E+6}, v{E+7} quad_perm:{qp} row_mask:0xf bank_mask:0xf')
        a(f'v_add_f32 v{E+1}, v{SACC+4}, v{SACC+5}\nv_add_f32 v{E+5}, v{SACC+6}, v{SACC+7}')
        for u in range(2):
            if u!=w: a(f'ds_write_b128 v{V_LDSW}, {vr(E+4*u,4)} offset:{LDS_SP+1024*u}')
        a('s_waitcnt lgkmcnt(0)')
        st.abs(4)
        a('s_barrier')
        if w<2:
            u=w; X=E+4*u; R=E+8
            for k,ww in enumerate([x for x in range(4) if x!=u]):
                a(f'ds_read_b128 {vr(R+4*k,4)}, v{V_LIN} offset:{LDS_SP+2048*ww+1024*u}')
            ew=f'buffer_store_short v{QA}, v{V_EW}, {sr(S_WS,4)}, 0 offen'
            a(f's_add_u32 s{S_T0}, s{S_STEP}, 1\nv_mov_b32 v{QA}, s{S_T0}')
            if st.on==2: ew='s_memtime s[82:83]\n'+ew
            if OPT['apos']==0: a(ew)
            a(f's_cmp_lg_u32 s{S_SLOW}, 0')
            a('s_waitcnt lgkmcnt(2)')
            for k in range(3): a(f'v_add_f32 v{X+k}, v{X+k}, v{R+k}')
            if OPT['apos']==1: a(ew)
            a('s_waitcnt lgkmcnt(0)')
            for k in range(3): a(f'v_add_f32 v{R+4+k}, v{R+4+k}, v{R+8+k}')
            for k in range(3): a(f'v_add_f32 v{X+k}, v{X+k}, v{R+4+k}')
            st.abs(5)
            M=X+3
            a(f'v_max3_f32 v{M}, v{X}, v{X+1}, v{X+2}')
            for i_,sh in enumerate((1,2,4,8)):
                if OPT['apos']==2+i_: a(ew)
                a(f'v_max_f32_dpp v{M}, v{M}, v{M} row_ror:{sh} row_mask:0xf bank_mask:0xf')
            if OPT['apos']==6: a(ew)
            for k in range(3): a(f'v_sub_f32 v{X+k}, v{X+k}, v{M}')
            for k in range(3): a(f'v_exp_f32 v{X+k}, v{X+k}')
            a(f'v_add_f32 v{M}, v{X}, v{X+1}')
            a(f'v_fmac_f32 v{M}, 0.5, v{X+2}')
            if OPT['apos']==7: a(ew)
            for sh in (1,2,4,8): a(f'v_add_f32_dpp v{M}, v{M}, v{M} row_ror:{sh} row_mask:0xf bank_mask:0xf')
            a(f'v_rcp_f32 v{M}, v{M}')
            for k in range(3): a(f'v_mul_f32 v{X+k}, v{X+k}, v{M}')
            a(f'v_cvt_pk_bf16_f32 v{X}, |v{X}|, |v{X+1}|\nv_cvt_pk_bf16_f32 v{X+2}, |v{X+2}|, |v{X+2}|')
            st.abs(6)
            pub(a,[f'buffer_store_dword v{X}, v{V_PSX}, {sr(S_WS,4)}, s{S_PCUR} offen',
                   f'buffer_store_dword v{X+2}, v{V_PSM}, {sr(S_WS,4)}, s{S_PCUR} offen',
                   f'v_mov_b32 v{M}, -1',
                   f'buffer_store_dword v{M}, v{V_PSX}, {sr(S_WS,4)}, s{S_RST} offen',
                   f'buffer_store_dword v{M}, v{V_PSM}, {sr(S_WS,4)}, s{S_RST} offen'], cmp=False)
        else:
            if OPT['pf']: a(f'buffer_load_dword v{V_PFD}, v{V_LIN}, {sr(S_WS,4)}, s{S_PF} offen sc1')
            a(f's_sleep {OPT["a2sleep"]}')
        if w<3: a(f's_branch {FIN}')
    a.label(FIN)
    st.abs(7)
    st.endstep(ACC+24)
    a(f'''
    s_add_u32 s{S_PF}, s{S_PF}, 32768
    s_add_u32 s{S_STEP}, s{S_STEP}, 1
    s_cmp_lg_u32 s{S_ERR}, 0
    s_cbranch_scc1 {end}
    s_cmp_lt_u32 s{S_STEP}, {NSTEP}
    s_cbranch_scc1 {LOOP}
    s_branch {end}
    ''')
    emit_outl(a)
MEMA=0; VP=28; MBOP=60; FACC=84; PP=92; MBP=104; STG=132
B_IDX,B_M4,B_LDSW,B_LIN,B_VG,B_PX,B_PM,B_MST,B_WL,B_FW,B_INC,B_HIST,TMP=range(164,177)
B_THR=B_LDSW
B_EW,B_ER,B_EV,B_EM,FR=112,113,114,115,124
LDS_MEM=0; LDS_FP=8192; LDS_W=16384
bfr=lambda f: frag_reg(f,32,192)
stg=lambda n: [(f'ds_read_b128 {vr(STG+16*(n&1)+4*k,4)}, v{B_WL} offset:{(n%8)*4096+k*1024}',f's{n}') for k in range(4)]

def b_setup(a):
    t=0
    lane_consts(a,t)
    common_addr(a,t,B_IDX,B_LDSW,B_LIN)
    a(f'''
    v_lshlrev_b32 v{B_VG}, 9, v{t+1}
    v_lshl_add_u32 v{B_VG}, v{t+2}, 4, v{B_VG}
    s_lshl_b32 s{S_T0}, s{S_WAVE}, 15
    v_add_u32 v{B_WL}, s{S_T0}, v{B_LIN}
    v_add_u32 v{B_WL}, {LDS_W}, v{B_WL}
    ''')

def b_weights(a, team):
    a(f'''
    v_lshrrev_b32 v3, 3, v0
    v_lshlrev_b32 v3, 7, v3
    v_and_b32 v4, 7, v0
    v_lshl_add_u32 v3, v4, 2, v3
    s_lshl_b32 s{S_T0}, s{S_WAVE}, 9
    s_add_u32 s{S_T0}, s{S_T0}, {F_W+16*128}
    ''')
    a(f'''
    s_mov_b32 s{S_RST}, s{S_T0}
    s_lshl_b32 s{S_T0}, s{S_WAVE}, 2
    s_mul_i32 s{S_T0}, s{S_T0}, {MAT}
    s_mul_i32 s{S_T1}, s{S_ROLE}, 28672
    s_add_u32 s{S_T1}, s{S_T1}, s{S_T0}
    s_add_u32 s{S_T1}, s{S_T1}, {WS_B}
    s_lshl_b32 s{S_T2}, s{S_WAVE}, 15
    s_add_u32 s{S_T2}, s{S_T2}, {LDS_W}
    ''')
    rt(a,1)
    for stage in (1,2):
        wait_flags(a,3,f's{S_RST}',32,stage,sleep=1,t=8)
        if stage==1: rt(a,2)
        elif team: census(a,8)
        for hd in range(4):
            if hd==3: a('s_waitcnt vmcnt(40)')
            for dt in range(14):
                if (dt in STAGE1)!=(stage==1): continue
                ks,hf=dt>>1,dt&1
                a(f's_add_u32 s{S_XOFF}, s{S_T1}, {hd*MAT+dt*2048}')
                for tt in range(2):
                    tile=2*hd+tt; imm=tt*256
                    if ks<5:
                        a(f'buffer_load_dwordx4 {frag_half(tile*5+ks,hf,32,192)}, v{B_VG}, {sr(S_WS,4)}, s{S_XOFF} offen offset:{imm} sc1')
                    else:
                        a(f's_add_u32 m0, s{S_T2}, {tile*4096+(2*(ks-5)+hf)*1024-imm}')
                        a(f'buffer_load_dwordx4 v{B_VG}, {sr(S_WS,4)}, s{S_XOFF} offen offset:{imm} sc1 lds')

def b_gemm(a, ACCS, post, hook):
    seq=[(tl,ks) for ks in range(7) for tl in (0,1)]+[(tl,ks) for tl in range(2,8) for ks in range(7)]
    a.dq=[f'm{k}' for k in range(7)]
    fill=[]; rd=[]
    for i,(tile,ks) in enumerate(seq):
        a.wait_ds(f'm{ks}')
        if ks==5: a.wait_ds(f's{tile}')
        src = bfr(tile*5+ks) if ks<5 else vr(STG+16*(tile&1)+8*(ks-5),8)
        a(f'{SMF} {vr(ACCS[tile],4)}, {vr(MEMA+4*ks,4)}, {src}, v{B_IDX}')
        if not hook(i,'mem') and rd: a.ds(*rd.pop(0))
        if not hook(i,'valu') and fill and fill[0][0]<=i: a(fill.pop(0)[1])
        hook(i,'salu')
        if ks==6:
            fill+=[(i+3,o) for o in post(tile)]
            rd+=stg(tile+2)
    for o in rd: a.ds(*o)
    for _,f in fill: a(f)
    a.dq=[]

def role_B(a, stamps=False, end='L_end'):
    st=Stamps(a,stamps)
    rt(a,0)
    a(f's_sub_u32 s{S_ROLE}, s{S_ROLE}, 16')
    srd(a,S_M0,P_MEM0,7168)
    t=0
    b_setup(a)
    b_weights(a,True)
    a(f'''
    s_mul_i32 s{S_T0}, s{S_WAVE}, 3072
    v_add_u32 v{B_PX}, s{S_T0}, v{B_LIN}
    ; mem store: 512j + 256(n>>3) + 32*(2q+u) + 4(n&7), u = wave
    s_lshl_b32 s{S_T0}, s{S_ROLE}, 9
    s_lshl_b32 s{S_T1}, s{S_WAVE}, 5
    s_add_u32 s{S_T0}, s{S_T0}, s{S_T1}
    v_lshlrev_b32 v{B_MST}, 6, v{t+1}
    v_lshrrev_b32 v{t+3}, 3, v{t+2}
    v_lshl_add_u32 v{B_MST}, v{t+3}, 8, v{B_MST}
    v_and_b32 v{t+3}, 7, v{t+2}
    v_lshl_add_u32 v{B_MST}, v{t+3}, 2, v{B_MST}
    v_add_u32 v{B_MST}, s{S_T0}, v{B_MST}
    v_lshrrev_b32 v{B_FW}, 1, v{B_LDSW}
    s_and_b32 s{S_T0}, s{S_WAVE}, 1
    s_lshl_b32 s{S_T0}, s{S_T0}, 12
    v_add_u32 v{B_M4}, s{S_T0}, v{B_LIN}
    v_lshlrev_b32 v{B_EW}, 7, v{t}
    s_lshl_b32 s{S_T0}, s{S_ROLE}, 2
    s_add_u32 s{S_T0}, s{S_T0}, s{S_WAVE}
    s_lshl_b32 s{S_T1}, s{S_T0}, 1
    s_add_u32 s{S_T1}, s{S_T1}, {F_EM}
    v_add_u32 v{B_EW}, s{S_T1}, v{B_EW}
    v_mov_b32 v{t+3}, 0x7f000000
    v_cmp_gt_u32 vcc, {OPT['rm']}, v{t}
    v_cndmask_b32 v{B_EW}, v{t+3}, v{B_EW}, vcc
    v_and_b32 v{t+3}, 7, v{t}
    s_lshl_b32 s{S_T1}, s{S_WAVE}, 4
    v_lshl_add_u32 v{t+3}, v{t+3}, 1, s{S_T1}
    v_cmp_gt_u32 vcc, 32, v{t}
    v_cndmask_b32 v{t+3}, 64, v{t+3}, vcc
    s_and_b32 s{S_T1}, s{S_ROLE}, {OPT['rp']-1}
    s_lshl_b32 s{S_T1}, s{S_T1}, 7
    s_add_u32 s{S_T1}, s{S_T1}, {F_EP}
    v_add_u32 v{B_ER}, s{S_T1}, v{t+3}
    s_xor_b32 s{S_T1}, s{S_SLOW}, 1
    v_mov_b32 v{t+3}, s{S_T1}
    v_cndmask_b32 v{B_INC}, 1, v{t+3}, vcc
    v_cndmask_b32 v{B_THR}, -1, 0, vcc
    v_cmp_gt_u32 vcc, 48, v{t}
    v_add_u32 v{t+3}, 2, v{B_ER}
    v_cndmask_b32 v{B_ER}, v{t+3}, v{B_ER}, vcc
    v_cndmask_b32 v{B_THR}, 1, v{B_THR}, vcc
    v_min_u32 v{t+3}, 55, v{t}
    s_and_b32 s{S_T0}, s{S_ROLE}, {OPT['rm']//2-1}
    s_lshl_b32 s{S_T0}, s{S_T0}, 7
    s_add_u32 s{S_T0}, s{S_T0}, {F_EM+OPT['rm']//2*128}
    v_lshl_add_u32 v{B_EM}, v{t+3}, 1, s{S_T0}
    ''')
    K=a.newlabel('Bi')
    a(f's_cmp_ge_u32 s{S_WAVE}, 2\ns_cbranch_scc1 {K}')
    a(f'''
    v_lshl_add_u32 v{t+3}, v{t+1}, 1, s{S_WAVE}
    v_mul_u32_u24 v{t+3}, 896, v{t+3}
    v_lshl_add_u32 v{t+3}, v{t+2}, 2, v{t+3}
    s_lshl_b32 s{S_T0}, s{S_ROLE}, 6
    buffer_load_dword v{t+4}, v{t+3}, {sr(S_M0,4)}, s{S_T0} offen
    v_mov_b32 v{t+5}, -1
    s_mov_b32 s{S_T0}, {WS_MEMR}
    s_mov_b32 s{S_T1}, {WS_MEMR+8192}
    s_mov_b32 s{S_T2}, {WS_MEMR+2*8192}
    s_mov_b32 s{S_T3}, {WS_MEMR+3*8192}
    s_waitcnt vmcnt(0)
    v_min_u32 v{B_HIST}, -2, v{t+4}
    ''')
    pub(a,[f'buffer_store_dword v{B_HIST if k==S_T0 else t+5}, v{B_MST}, {sr(S_WS,4)}, s{k} offen' for k in (S_T0,S_T1,S_T2,S_T3)])
    for k in (S_T0,S_T1,S_T2,S_T3): a(f'buffer_load_dword v{t+6}, v{B_MST}, {sr(S_WS,4)}, s{k} offen sc1')
    a.label(K)
    ACCS=[76,80,128,116,120,188,104,108]
    S_V2=S_XOFF; S_THM=S_T4
    V_FR,V_SENT=TMP+4,TMP+5
    a(f'''
    s_mov_b32 s{S_STEP}, 0
    s_mul_i32 s{S_VOFF}, s{S_ROLE}, 32768
    s_lshl_b32 s{S_T0}, s{S_WAVE}, 13
    s_add_u32 s{S_VOFF}, s{S_VOFF}, s{S_T0}
    s_add_u32 s{S_VOFF}, s{S_VOFF}, {WS_V}
    s_mov_b32 s{S_VRDY}, 0
    s_mov_b32 s{S_MCUR}, {WS_MEMR}
    s_xor_b32 s{S_THM}, s{S_SLOW}, 1
    s_add_u32 s{S_V2}, s{S_VOFF}, 4096
    v_lshrrev_b32 v{V_FR}, 1, v{B_LIN}
    v_mov_b32 v{V_SENT}, -1
    v_mov_b32 v{B_EV}, 1
    s_and_b32 s{S_T0}, s{S_WAVE}, 1
    s_lshl_b32 m0, s{S_T0}, 12
    s_mov_b32 s{S_SPIN}, 0
    ''')
    team_barrier(a,NTEAM,t+8)
    pfl=lambda r: f'buffer_load_ushort v{r}, v{B_ER}, {sr(S_WS,4)}, 0 offen sc1'
    a(f'v_max_i32 v{TMP}, 0, v{B_THR}')
    flag_poll(a, pfl, [FR], f'v{TMP}', 4)
    a(f'buffer_store_short v{B_EV}, v{B_EW}, {sr(S_WS,4)}, 0 offen')
    if a.diag: calib(a)
    st.init(8)
    for o,_ in stg(0)+stg(1): a(o)
    LOOP=a.newlabel('Bloop'); L=a.newlabel('mpoll'); MOK=a.newlabel('mok'); H01=a.newlabel('Bh01'); FIN=a.newlabel('Bfin')
    def house():
        for r in ACCS+[FACC,FACC+4]: a(f'v_mov_b64 {vr(r,2)}, 0\nv_mov_b64 {vr(r+2,2)}, 0')
    FIN=end
    a(f's_cmp_ge_u32 s{S_WAVE}, 2\ns_cbranch_scc1 {LOOP}')
    a.label(H01)
    a(f's_cmp_eq_u32 s{S_STEP}, {NSTEP}\ns_cbranch_scc1 {FIN}')
    house()
    a(f's_waitcnt lgkmcnt(0)\ns_branch {MOK}')
    a.label(LOOP)
    a(f's_cmp_eq_u32 s{S_STEP}, {NSTEP}\ns_cbranch_scc1 {FIN}')
    fl=lambda r: f'buffer_load_ushort v{r}, v{B_EM}, {sr(S_WS,4)}, 0 offen sc1'
    flag_poll(a, fl, [FR,FR+1,FR+2,FR+3], S_THM, 2)
    if OPT['bsleep']: a(f's_nop {OPT["bsleep"]}')
    mlo=[f'buffer_load_dwordx4 v{B_M4}, {sr(S_WS,4)}, s{S_MCUR} offen offset:{1024*k} sc1 lds' for k in range(4)]
    for x in mlo: a(x)
    st.abs(11)
    house()
    a('s_waitcnt vmcnt(0) lgkmcnt(0)')
    a.label(MOK)
    mrd=[f'ds_read_b128 {vr(MEMA+4*ks,4)}, v{B_LIN} offset:{LDS_MEM+1024*ks}' for ks in range(7)]
    mck=[f'v_max3_u32 v{TMP}, v{MEMA}, v{MEMA+1}, v{MEMA+2}', f'v_max_u32 v{TMP}, v{TMP}, v{MEMA+3}']+[f'v_max3_u32 v{TMP}, v{TMP}, v{MEMA+r}, v{MEMA+r+1}' for r in range(4,28,2)]+[f'v_cmp_eq_u32 vcc, -1, v{TMP}']
    a.outl.append(('raw',[f'{L}:','s_waitcnt lgkmcnt(0)','s_barrier',f's_cmp_lt_u32 s{S_WAVE}, 2',f's_cbranch_scc1 {L}_w']+mlo+['s_waitcnt vmcnt(0)',f'{L}_w:','s_barrier']+mrd+['s_waitcnt lgkmcnt(0)']+mck+
        [f's_cbranch_vccz {L}_ok',f's_add_u32 s{S_SPIN}, s{S_SPIN}, 1',f's_cmp_lt_u32 s{S_SPIN}, {SPIN}',f's_cbranch_scc1 {L}',f's_mov_b32 s{S_ERR}, 2',f's_branch {end}',f'{L}_ok:']+
        (['s_add_u32 s54, s54, 1'] if OPT['cnt'] else [])+[o for o,_ in stg(0)+stg(1)]+[f'v_mov_b64 {vr(r+k,2)}, 0' for r in ACCS[:3] for k in (0,2)]+['s_waitcnt lgkmcnt(0)',f's_branch {MOK}']))
    st.abs(0)
    a('s_barrier')
    for x in mrd: a(x)
    vl=[]
    if OPT['vload']:
        for aa in (1,0):
            for tt in range(2):
                for hb in range(2):
                    vl.append(f'buffer_load_dwordx4 {vr(VP+16*aa+8*tt+4*hb,4)}, v{B_VG}, {sr(S_WS,4)}, s{S_V2 if aa else S_VOFF} offen offset:{hb*2048+tt*256} '+('sc1','sc1 nt','nt')[OPT['vnt']])
    for _ in range(min(OPT['nearly'],len(vl))): a(vl.pop(0))
    def post(tile):
        hd,tt=tile>>1,tile&1; acc=ACCS[tile]
        b=MBOP+8*tt+4*(hd>>1)+(hd&1)
        return [f'v_cvt_pk_bf16_f32 v{b}, v{acc}, v{acc+1}', f'v_cvt_pk_bf16_f32 v{b+2}, v{acc+2}, v{acc+3}']
    book=f'''s_add_u32 s{S_VOFF}, s{S_VOFF}, {SEGV}
    s_add_u32 s{S_V2}, s{S_V2}, {SEGV}
    s_and_b32 s{S_T0}, s{S_STEP}, 3
    s_lshl_b32 s{S_PCUR}, s{S_T0}, 14
    s_add_u32 s{S_PCUR}, s{S_PCUR}, {WS_PR}
    s_add_u32 s{S_STEP}, s{S_STEP}, 1
    s_add_u32 s{S_RST}, s{S_MCUR}, 0x6000
    s_and_b32 s{S_RST}, s{S_RST}, 0x6000
    s_add_u32 s{S_RST}, s{S_RST}, {WS_MEMR}
    s_add_u32 s{S_MCUR}, s{S_MCUR}, 0x2000
    s_and_b32 s{S_MCUR}, s{S_MCUR}, 0x6000
    s_add_u32 s{S_MCUR}, s{S_MCUR}, {WS_MEMR}
    s_xor_b32 s{S_T0}, s{S_SLOW}, 1
    s_add_u32 s{S_THM}, s{S_THM}, s{S_T0}'''.split('\n')
    def hook(i,kind):
        if kind=='mem':
            for k,n in ((0,5),(14,7),(35,12),(55,13)):
                if i==k: st.abs(n)
            if vl and i%OPT['vsp']==0: a(vl.pop(0)); return True
            if i in (46,49,52,55): a(pfl(FR+(i-46)//3)); return i!=49
        if kind=='valu':
            if i<15: a(mck[i]); return True
            if i==16: a(f's_cbranch_vccnz {L}')
            if i==54: a(f'v_add_u32 v{B_EV}, 1, v{B_EV}'); return True
            if i==47: a(f'v_add_u32 v{B_THR}, v{B_THR}, v{B_INC}'); return True
        if kind=='salu' and i>=28 and book and (i%7) in (0,1,4,5,6): a(book.pop(0).strip())
        return False
    b_gemm(a,ACCS,post,hook)
    assert not book and not vl
    st.abs(2)
    st.endstep(TMP+6, -2)
    if st.on==2: a('s_waitcnt vmcnt(4)')
    st.abs(10)
    pl=[f'buffer_load_dwordx4 {vr(PP+4*k,4)}, v{B_PX}, {sr(S_WS,4)}, s{S_PCUR} offen offset:{1024*k} sc1' for k in range(3)]
    flag_poll(a, pfl, [FR,FR+1,FR+2,FR+3], f'v{B_THR}', 3, pre=True)
    for k in range(3):
        a(pl[k])
        if k==0: st.abs(9)
        if k<2 and OPT['pgap']: a(f's_nop {OPT["pgap"]}')
    G0=a.newlabel('Bgo'); RDO=a.newlabel('Bredo')
    a.outl.append(redo_block(RDO,G0,pl,range(PP,PP+12),TMP,range(FACC,FACC+8,2),3))
    fsrc=lambda k,tt: vr(VP+16*k+8*tt,8) if k<2 else vr(MBOP+8*tt,8)
    ew=f'buffer_store_short v{B_EV}, v{B_EW}, {sr(S_WS,4)}, 0 offen'
    if st.on==2: ew='s_memtime s[66:67]\n'+ew
    a.label(G0)
    for k in range(3):
        r=PP+4*k
        a(f's_waitcnt vmcnt({2-k})')
        if k==0: st.abs(3)
        a(f'{SMF} {vr(FACC,4)}, {vr(r,4)}, {fsrc(k,0)}, v{B_IDX}')
        a(f'v_max3_u32 v{TMP}, v{r}, v{r+1}, v{r+2}' if k==0 else f'v_max3_u32 v{TMP}, v{TMP}, v{r}, v{r+1}')
        a(f'{SMF} {vr(FACC+4,4)}, {vr(r,4)}, {fsrc(k,1)}, v{B_IDX}')
        a(f'v_max_u32 v{TMP}, v{TMP}, v{r+3}' if k==0 else f'v_max3_u32 v{TMP}, v{TMP}, v{r+2}, v{r+3}')
    a(f'v_cmp_eq_u32 vcc, -1, v{TMP}\ns_cbranch_vccnz {RDO}')
    st.abs(8)
    if OPT['bpos']==0: a(ew)
    a(f'v_add_f32 v{TMP}, v{FACC}, v{FACC+1}')
    a(f'v_add_f32 v{TMP+2}, v{FACC+2}, v{FACC+3}')
    a(f'v_add_f32 v{TMP+1}, v{FACC+4}, v{FACC+5}')
    a(f'v_add_f32 v{TMP+3}, v{FACC+6}, v{FACC+7}')
    a(f'ds_write_b64 v{B_FW}, {vr(TMP,2)} offset:{LDS_FP}')
    a(f'ds_write_b64 v{B_FW}, {vr(TMP+2,2)} offset:{LDS_FP+512}')
    if OPT['bpos']==1: a(ew)
    U1=a.newlabel('Bu1'); W23=a.newlabel('Bw23')
    a(f's_cmp_ge_u32 s{S_WAVE}, 2\ns_cbranch_scc1 {W23}\ns_cmp_eq_u32 s{S_WAVE}, 1\ns_cbranch_scc1 {U1}')
    def sync():
        a('s_waitcnt lgkmcnt(0)')
        if OPT['bpos']==2: a(ew)
        st.abs(4)
        a('s_barrier')
    for u in range(2):
        if u==1: a.label(U1)
        a(f's_cmp_lg_u32 s{S_SLOW}, 0')
        sync()
        X=TMP+2*u
        for k,w in enumerate([w for w in range(4) if w!=u]):
            a(f'ds_read_b64 {vr(TMP+6+2*k,2)}, v{TMP+4} offset:{LDS_FP+1024*w+512*u}')
        a('s_waitcnt lgkmcnt(2)')
        a(f'v_add_f32 v{X}, v{X}, v{TMP+6}\nv_add_f32 v{X+1}, v{X+1}, v{TMP+7}')
        a('s_waitcnt lgkmcnt(0)')
        a(f'v_add_f32 v{TMP+8}, v{TMP+8}, v{TMP+10}\nv_add_f32 v{TMP+9}, v{TMP+9}, v{TMP+11}')
        a(f'v_add_f32 v{X}, v{X}, v{TMP+8}\nv_add_f32 v{X+1}, v{X+1}, v{TMP+9}')
        a(f'v_cvt_pk_bf16_f32 v{X}, v{X}, v{X+1}')
        a(f'v_min_u32 v{B_HIST}, -2, v{X}')
        st.abs(6)
        pub(a,[f'buffer_store_dword v{B_HIST}, v{B_MST}, {sr(S_WS,4)}, s{S_MCUR} offen',
               f'buffer_store_dword v{TMP+5}, v{B_MST}, {sr(S_WS,4)}, s{S_RST} offen'], cmp=False)
        a(f's_branch {H01}')
    a.label(W23)
    sync()
    a(f's_branch {LOOP}')
    emit_outl(a)

def role_F(a, end='L_next'):
    a.comment('==== follower: column tile j = S_ROLE ====')
    b_setup(a)
    b_weights(a,False)
    ACCS=[76,80,128,116,120,188,92,96]
    a(f'''
    s_mov_b32 s{S_STEP}, 1
    s_mov_b32 s{S_HOFF}, {WS_MEMH}
    s_lshl_b32 s{S_MBO}, s{S_ROLE}, 13
    s_lshl_b32 s{S_T0}, s{S_WAVE}, 11
    s_add_u32 s{S_MBO}, s{S_MBO}, s{S_T0}
    s_add_u32 s{S_MBO}, s{S_MBO}, {WS_MBH}
    s_mov_b32 m0, s{S_T0}
    s_lshl_b32 s{S_PF}, s{S_ROLE}, 7
    s_lshl_b32 s{S_T0}, s{S_WAVE}, 2
    s_add_u32 s{S_PF}, s{S_PF}, s{S_T0}
    s_add_u32 s{S_PF}, s{S_PF}, {F_B}
    v_mov_b32 v{TMP+1}, 0
    v_mov_b32 v{TMP+2}, 0
    s_mov_b32 s{S_VRDY}, 0
    s_waitcnt vmcnt(0)
    ''')
    for o,_ in stg(0)+stg(1): a(o)
    LOOP=a.newlabel('Floop')
    a.label(LOOP)
    for r in ACCS: a(f'v_mov_b64 {vr(r,2)}, 0\nv_mov_b64 {vr(r+2,2)}, 0')
    fst=f's_mov_b64 exec, 1\nbuffer_store_dword v{TMP+2}, v{TMP+1}, {sr(S_WS,4)}, s{S_PF} offen sc1\ns_mov_b64 exec, -1'
    KN=a.newlabel('Fkn'); NF=a.newlabel('Fnf')
    a(f's_mov_b32 s{S_T5}, 1\ns_cmp_ge_u32 s{S_VRDY}, s{S_STEP}\ns_cbranch_scc1 {KN}')
    a(f's_mov_b32 s{S_T5}, 0\ns_waitcnt vmcnt(0)')
    a(fst)
    wait_prog(a,S_STEP,t=TMP,vz=TMP+1,known=S_VRDY)
    a(f's_cmp_lg_u32 s{S_ERR}, 0\ns_cbranch_scc1 L_end')
    a.label(KN)
    a('s_barrier')
    for k in range(2): a(f'buffer_load_dwordx4 v{B_LDSW}, {sr(S_WS,4)}, s{S_HOFF} offen offset:{1024*k} sc1 lds')
    a(f's_waitcnt vmcnt(0) lgkmcnt(0)\ns_barrier\ns_cmp_eq_u32 s{S_T5}, 0\ns_cbranch_scc1 {NF}')
    a(fst)
    a.label(NF)
    for ks in range(7): a(f'ds_read_b128 {vr(MEMA+4*ks,4)}, v{B_LIN} offset:{LDS_MEM+1024*ks}')
    def post(tile):
        hd,tt=tile>>1,tile&1; acc=ACCS[tile]
        return [f'v_add_f32 v{acc}, v{acc}, v{acc+1}', f'v_add_f32 v{acc+2}, v{acc+2}, v{acc+3}', f'v_cvt_pk_bf16_f32 v{MBP+4*tt+hd}, v{acc}, v{acc+2}']
    b_gemm(a,ACCS,post,lambda i,k: False)
    for tt in range(2):
        b=MBP+4*tt
        a(f'v_permlane32_swap_b32 v{b}, v{b+2}\nv_permlane32_swap_b32 v{b+1}, v{b+3}')
    for tt in range(2):
        b=MBP+4*tt
        a(f'v_permlane16_swap_b32 v{b}, v{b+1}\nv_permlane16_swap_b32 v{b+2}, v{b+3}')
    for tt in range(2):
        a(f'buffer_store_dwordx4 {vr(MBP+4*tt,4)}, v{B_VG}, {sr(S_WS,4)}, s{S_MBO} offen offset:{256*tt} sc1')
    a(f'''
    v_mov_b32 v{TMP+2}, s{S_STEP}
    s_add_u32 s{S_HOFF}, s{S_HOFF}, 8192
    s_add_u32 s{S_MBO}, s{S_MBO}, {SEGMB}
    s_add_u32 s{S_STEP}, s{S_STEP}, 1
    s_cmp_le_u32 s{S_STEP}, 64
    s_cbranch_scc1 {LOOP}
    s_waitcnt vmcnt(0)
    ''')
    a(fst)
    a('s_branch L_end')

def role_R(a, end='L_end'):
    a.comment('==== relay: copies every mem_s to the history buffer, then announces s+1 on 16 lines ====')
    t=VT
    L=a.newlabel('relay'); P=a.newlabel('relayp'); OK=a.newlabel('relayok')
    a(f's_cmp_ge_u32 s{S_WAVE}, 2\ns_cbranch_scc1 {end}')
    census(a,t)
    FW=a.newlabel('fwd'); RL=a.newlabel('rly')
    a(f'''
    v_lshlrev_b32 v{t+1}, 5, v{V_L4}
    v_mov_b32 v{t+2}, 0x7f000000
    v_cmp_gt_u32 vcc, {128*OPT['rp']}, v{t+1}
    v_cndmask_b32 v{t+3}, v{t+2}, v{t+1}, vcc
    s_cmp_eq_u32 s{S_WAVE}, 0
    s_cbranch_scc1 {RL}
    v_cmp_gt_u32 vcc, 128, v{V_L4}
    v_mov_b32 v{t+4}, {F_M+32-F_V}
    v_cndmask_b32 v{t+4}, v{t+4}, v{V_L4}, vcc
    s_mov_b32 s{S_T1}, {F_V}
    s_mov_b32 s{S_T2}, {F_EP+66}
    s_mov_b32 s{S_STEP}, 4
    {FW}:
    ''')
    wait_flags(a,t+4,f's{S_T1}',64,1,sleep=4)
    a(f'v_mov_b32 v{t+5}, s{S_STEP}')
    pub(a,[f'buffer_store_short v{t+5}, v{t+3}, {sr(S_WS,4)}, s{S_T2} offen'])
    a(f'''
    s_add_u32 s{S_T1}, s{S_T1}, 128
    s_add_u32 s{S_STEP}, s{S_STEP}, 4
    s_cmp_lg_u32 s{S_ERR}, 0
    s_cbranch_scc1 {end}
    s_cmp_le_u32 s{S_STEP}, 64
    s_cbranch_scc1 {FW}
    s_branch {end}
    {RL}:
    ''')
    team_wait(a,end,t+8)
    a(f'''
    v_cmp_gt_u32 vcc, {128*16}, v{t+1}
    v_cndmask_b32 v{t+1}, v{t+2}, v{t+1}, vcc
    s_mov_b32 s{S_STEP}, 0
    s_mov_b32 s{S_HOFF}, {WS_MEMH}
    s_mov_b32 s{S_T2}, {F_EP+64}
    s_mov_b32 s{S_T3}, {F_R}
    {L}:
    s_and_b32 s{S_T0}, s{S_STEP}, 3
    s_lshl_b32 s{S_T0}, s{S_T0}, 13
    s_add_u32 s{S_T0}, s{S_T0}, {WS_MEMR}
    s_add_u32 s{S_T1}, s{S_T0}, 4096
    s_add_u32 s{S_STEP}, s{S_STEP}, 1
    v_mov_b32 v{t+4}, s{S_STEP}
    s_mov_b32 s{S_SPIN}, 0
    {P}:
    ''')
    for k in range(7): a(f'buffer_load_dwordx4 {vr(4*k,4)}, v{W_LIN}, {sr(S_WS,4)}, s{S_T0 if k<4 else S_T1} offen offset:{1024*(k%4)} sc1')
    a('s_waitcnt vmcnt(0)')
    poll_check(a, range(28), t+5)
    a(f'''
    s_cbranch_vccz {OK}
    s_add_u32 s{S_SPIN}, s{S_SPIN}, 1
    s_cmp_lt_u32 s{S_SPIN}, {SPIN}
    s_cbranch_scc1 {P}
    s_mov_b32 s{S_ERR}, 5
    s_branch {end}
    {OK}:
    s_add_u32 s{S_T1}, s{S_HOFF}, 4096
    ''')
    for k in range(7): a(f'buffer_store_dwordx4 {vr(4*k,4)}, v{W_LIN}, {sr(S_WS,4)}, s{S_HOFF if k<4 else S_T1} offen offset:{1024*(k%4)} sc1')
    pub(a,[f'buffer_store_short v{t+4}, v{t+3}, {sr(S_WS,4)}, s{S_T2} offen'])
    a(f'''
    s_add_u32 s{S_HOFF}, s{S_HOFF}, 8192
    s_waitcnt vmcnt(1)
    buffer_store_dword v{t+4}, v{t+1}, {sr(S_WS,4)}, s{S_T3} offen sc1
    s_cmp_lt_u32 s{S_STEP}, 64
    s_cbranch_scc1 {L}
    s_branch {end}
    ''')
    emit_outl(a)

def role_W(a, end='L_end'):
    a.comment('==== cache warmer: touches the x fragments a few segments ahead of the team ====')
    t=VT
    L=a.newlabel('warm'); N=a.newlabel('warmn')
    a(f's_mov_b32 s{S_T0}, {F_TEAM}')
    wait_flags(a,V_ZERO,f's{S_T0}',1,1,sleep=4)
    a(f'''
    v_lshlrev_b32 v{t+1}, 5, v{V_L4}
    s_lshl_b32 s{S_T1}, s{S_WAVE}, 13
    s_add_u32 s{S_T1}, s{S_T1}, {WS_XF}
    s_mov_b32 s{S_T0}, {F_EP+64}
    s_mov_b32 s{S_STEP}, 0
    s_mov_b32 s{S_SPIN}, 0
    {L}:
    s_lshr_b32 s{S_T3}, s{S_STEP}, 2
    s_lshl_b32 s{S_T3}, s{S_T3}, 7
    s_add_u32 s{S_T3}, s{S_T3}, {F_M+32}
    buffer_load_ushort v{t}, v{V_ZERO}, {sr(S_WS,4)}, s{S_T0} offen sc1
    buffer_load_dword v{t+3}, v{V_ZERO}, {sr(S_WS,4)}, s{S_T3} offen sc1
    s_waitcnt vmcnt(0)
    v_readfirstlane_b32 s{S_T2}, v{t}
    v_readfirstlane_b32 s{S_T3}, v{t+3}
    s_cmp_eq_u32 s{S_T3}, 0
    s_cbranch_scc1 {N}
    s_add_u32 s{S_T2}, s{S_T2}, {OPT['ahead']}
    s_cmp_gt_u32 s{S_STEP}, s{S_T2}
    s_cbranch_scc1 {N}
    buffer_load_dword v{t+2}, v{t+1}, {sr(S_WS,4)}, s{S_T1} offen sc1
    s_add_u32 s{S_T1}, s{S_T1}, 32768
    s_add_u32 s{S_STEP}, s{S_STEP}, 1
    s_mov_b32 s{S_SPIN}, 0
    s_cmp_lt_u32 s{S_STEP}, {NSTEP}
    s_cbranch_scc1 {L}
    s_branch {end}
    {N}:
    s_sleep 8
    s_add_u32 s{S_SPIN}, s{S_SPIN}, 1
    s_cmp_lt_u32 s{S_SPIN}, {SPINS}
    s_cbranch_scc1 {L}
    s_branch {end}
    ''')
```

```python
from asmb import *
from layout import *
import math, struct
def f32(x): return '0x%08x'%struct.unpack('<I',struct.pack('<f',x))[0]
LOG2E=1.4426950408889634
OPTW=dict(touch=1,nt=2,cpf=0,twait=1,dsp=4,nh=1,nv=4,nq=3,nm=8)

V_LIN,V_LIN2,V_DMA,V_XS,V_XR0,V_XR1,V_L4,V_ZERO,V_TR,V_TR2,V_TQ,V_TQ2,V_RM1,V_RM2,V_HH16,V_RANK=range(192,208)
VT=208
ACC=112; SAC=144; EX=160
AW=112; AMEM=144
LDS_XST=28672; LDS_TAB=143360; LDS_BC=163824

def wait_flags(a, vaddr, soff, nl, thresh, width=1, sleep=4, err=9, t=VT+40):
    L=a.newlabel('wf'); D=a.newlabel('wfd')
    if nl<32: a(f's_mov_b64 exec, {hex((1<<nl)-1)}')
    elif nl==32: a('s_mov_b32 exec_hi, 0')
    elif nl<64: a(f's_mov_b32 exec_hi, {hex((1<<(nl-32))-1)}')
    a(f's_mov_b32 s{S_SPIN}, 0')
    a.label(L)
    if width==1:
        a(f'buffer_load_dword v{t}, v{vaddr}, {sr(S_WS,4)}, {soff} offen sc1\ns_waitcnt vmcnt(0)')
    else:
        a(f'buffer_load_dwordx4 {vr(t,4)}, v{vaddr}, {sr(S_WS,4)}, {soff} offen sc1\ns_waitcnt vmcnt(0)')
        a(f'v_min3_u32 v{t}, v{t}, v{t+1}, v{t+2}\nv_min_u32 v{t}, v{t}, v{t+3}')
    a(f'v_cmp_gt_u32 vcc, {thresh}, v{t}')
    a(f's_cbranch_vccz {D}')
    a(f's_sleep {sleep}')
    a(f's_add_u32 s{S_SPIN}, s{S_SPIN}, 1\ns_cmp_lt_u32 s{S_SPIN}, {SPINS}\ns_cbranch_scc1 {L}')
    a(f's_mov_b32 s{S_ERR}, {err}')
    a.label(D)
    a('s_mov_b64 exec, -1')
    a.vq=[]

def wait_prog(a, thresh, t=VT+40, vz=V_ZERO, known=None):
    L=a.newlabel('wp'); D=a.newlabel('wpd'); S=a.newlabel('wps')
    a(f'''
    s_and_b32 s{S_T0}, s{S_SLOT}, 15
    s_lshl_b32 s{S_T0}, s{S_T0}, 7
    s_add_u32 s{S_T0}, s{S_T0}, {F_R}
    s_mov_b32 s{S_SPIN}, 0
    s_mov_b64 exec, 1
    {L}:
    buffer_load_dword v{t}, v{vz}, {sr(S_WS,4)}, s{S_T0} offen sc1
    s_waitcnt vmcnt(0)
    v_readfirstlane_b32 s{S_T4}, v{t}
    s_cmp_ge_u32 s{S_T4}, s{thresh}
    s_cbranch_scc1 {D}
    s_add_u32 s{S_T4}, s{S_T4}, 2
    s_cmp_gt_u32 s{S_T4}, s{thresh}
    s_cbranch_scc1 {S}
    s_sleep 24
    {S}:
    s_sleep 2
    s_add_u32 s{S_SPIN}, s{S_SPIN}, 1
    s_cmp_lt_u32 s{S_SPIN}, {SPINS}
    s_cbranch_scc1 {L}
    s_mov_b32 s{S_ERR}, 10
    {D}:
    s_mov_b64 exec, -1
    ''')
    if known: a(f's_mov_b32 s{known}, s{S_T4}')
    a.vq=[]

def set_flag(a, soff, val='1', n=1):
    t=VT+40
    a(f'v_mov_b32 v{t}, {val}\ns_mov_b64 exec, {(1<<n)-1}')
    a(f'buffer_store_dword v{t}, v{V_L4}, {sr(S_WS,4)}, {soff} offen sc1')
    a('s_mov_b64 exec, -1')

def wg_flag(a, soff, n=1):
    K=a.newlabel('sf')
    a.drain_vm(); a('s_barrier')
    a(f's_cmp_lg_u32 s{S_WAVE}, 0\ns_cbranch_scc1 {K}')
    set_flag(a,soff,n=n)
    a.label(K)

def work_consts(a):
    t=VT
    a(f'''
    v_mbcnt_lo_u32_b32 v{t}, -1, 0
    v_mbcnt_hi_u32_b32 v{t}, -1, v{t}
    v_lshlrev_b32 v{V_LIN}, 4, v{t}
    v_add_u32 v{V_LIN2}, 57344, v{V_LIN}
    s_mul_i32 s{S_T0}, s{S_WAVE}, 7168
    v_add_u32 v{V_DMA}, s{S_T0}, v{V_LIN}
    v_lshlrev_b32 v{V_L4}, 2, v{t}
    v_mov_b32 v{V_ZERO}, 0
    v_lshrrev_b32 v{t+1}, 4, v{t}
    v_xor_b32 v{t+1}, v{t+1}, v{t}
    v_and_b32 v{t+1}, 3, v{t+1}
    v_lshlrev_b32 v{t+1}, 4, v{t+1}
    v_lshrrev_b32 v{t+2}, 2, v{t}
    v_mul_u32_u24 v{V_XS}, 896, v{t+2}
    v_add_u32 v{V_XS}, v{V_XS}, v{t+1}
    v_lshrrev_b32 v{t+3}, 5, v{t}
    v_bfe_u32 v{t+4}, v{t}, 2, 2
    v_xor_b32 v{t+4}, v{t+4}, v{t+3}
    v_lshlrev_b32 v{t+4}, 4, v{t+4}
    v_and_b32 v{t+5}, 31, v{t}
    v_lshl_add_u32 v{V_XR0}, v{t+5}, 6, v{t+4}
    v_xor_b32 v{V_XR1}, 32, v{V_XR0}
    v_lshlrev_b32 v{V_HH16}, 4, v{t+3}
    v_bfe_u32 v{t+4}, v{t}, 2, 2
    v_lshlrev_b32 v{t+4}, 6, v{t+4}
    v_and_b32 v{t+5}, 3, v{t}
    v_lshl_add_u32 v{t+4}, v{t+5}, 3, v{t+4}
    v_bfe_u32 v{t+5}, v{t}, 4, 1
    v_lshl_add_u32 v{t+4}, v{t+5}, 5, v{t+4}
    v_lshl_add_u32 v{V_TR}, v{t+3}, 9, v{t+4}
    v_add_u32 v{V_TR2}, 57344, v{V_TR}
    v_lshl_add_u32 v{V_TQ}, v{t+3}, 8, v{t+4}
    v_add_u32 v{V_TQ2}, 57344, v{V_TQ}
    s_mul_i32 s{S_T0}, s{S_WAVE}, 112
    v_add_u32 v{t+2}, s{S_T0}, v{t+2}
    v_and_b32 v{t+5}, 3, v{t}
    v_lshlrev_b32 v{t+5}, 4, v{t+5}
    v_mul_u32_u24 v{V_RM1}, 3584, v{t+2}
    v_add_u32 v{V_RM1}, v{V_RM1}, v{t+5}
    v_mul_u32_u24 v{V_RM2}, 896, v{t+2}
    v_add_u32 v{V_RM2}, v{V_RM2}, v{t+5}
    ''')

def prep(a):
    t=VT
    BF=0; AF=64
    PA=128
    V_RS,V_ST,V_BR0,V_BR1,V_AR0,V_AR1,V_AR2,V_AR3=t+8,t+9,t+10,t+11,t+12,t+13,t+14,t+15
    NT=' nt' if OPTW['nt']&1 else ''
    NT2=' nt' if OPTW['nt']&2 else ''
    TW='\ns_waitcnt vmcnt(0)\ns_barrier' if OPTW['twait'] else ''
    a(f'''
    s_and_b32 s{S_T0}, s2, 7
    s_lshl_b32 s{S_T0}, s{S_T0}, 2
    s_lshr_b32 s{S_T1}, s2, 6
    s_add_u32 s{S_G}, s{S_T0}, s{S_T1}
    s_bfe_u32 s{S_SEG}, s2, 0x30003
    s_and_b32 s{S_H}, s{S_G}, 15
    s_and_b32 s{S_T0}, s{S_SEG}, 3
    s_lshl_b32 s{S_T2}, s{S_T0}, 2
    s_min_u32 s{S_T2}, s{S_T2}, 10
    s_add_u32 s{S_T2}, s{S_T2}, s{S_WAVE}
    s_lshr_b32 s{S_T3}, s{S_SEG}, 2
    s_mul_i32 s{S_T3}, s{S_T3}, 7
    v_lshrrev_b32 v{t}, 6, v{V_LIN}
    v_lshlrev_b32 v{V_RS}, 13, v{t}
    v_and_b32 v{t+1}, 48, v{V_XS}
    v_mul_u32_u24 v{t+2}, 896, v{t}
    v_sub_u32 v{t+1}, v{V_XS}, v{t+2}
    v_add_u32 v{V_RS}, v{V_RS}, v{t+1}
    s_lshl_b32 s{S_T4}, s{S_WAVE}, 14
    s_add_u32 s{S_T4}, s{S_T4}, {6*16384}
    v_add_u32 v{V_AR2}, 65536, v{V_XR0}
    v_add_u32 v{V_AR3}, 65536, v{V_XR1}
    ''')
    LB=a.newlabel('prepB'); LJ=a.newlabel('prepJ'); LB2=a.newlabel('prepB2'); LJ2=a.newlabel('prepJ2')
    def dtile_dma(dt, slot):
        for rh in range(2):
            a(f's_add_u32 s{S_T0}, s{S_B0}, {(dt*32+16*rh)*8192}')
            for c in range(2):
                a(f's_add_u32 m0, s{S_B1}, {slot*16384+(2*c+rh)*1024-64*c}')
                a.vm(f'buffer_load_dwordx4 v{V_RS}, {sr(S_R1,4)}, s{S_T0} offen offset:{64*c}{NT} lds', f'd{dt}')
    a(f'''
    s_mul_i32 s{S_T0}, s{S_SEG}, 224
    s_mul_i32 s{S_T1}, s{S_WAVE}, 56
    s_add_u32 s{S_T0}, s{S_T0}, s{S_T1}
    v_lshrrev_b32 v{t+16}, 4, v{V_LIN}
    v_min_u32 v{t+16}, 55, v{t+16}
    v_add_u32 v{t+16}, s{S_T0}, v{t+16}
    v_lshlrev_b32 v{t+17}, 7, v{t+16}
    v_lshrrev_b32 v{t+16}, 2, v{t+16}
    v_lshlrev_b32 v{t+16}, 13, v{t+16}
    v_and_b32 v{t+18}, 0x180, v{t+17}
    v_add_u32 v{t+16}, v{t+16}, v{t+18}
    s_lshl_b32 s{S_B0}, s{S_H}, 9
    s_mul_i32 s{S_B1}, s{S_H}, 229376
    ''')
    a(f's_cmp_ge_u32 s{S_G}, 16\ns_cbranch_scc1 {LB}')
    srd(a,S_R1,P_WQ,3670016); srd(a,S_R2,P_WK,3670016)
    if OPTW['touch']:
        a(f'buffer_load_dword v{t+19}, v{t+16}, {sr(S_R2,4)}, s{S_B0} offen{NT2}\nbuffer_load_dword v{t+19}, v{t+16}, {sr(S_R1,4)}, s{S_B0} offen{NT2}'+TW)
        rt(a,4)
    a(f'''
    s_mov_b32 s{S_T5}, {f32(LOG2E/16)}
    v_mov_b32 v{V_ST}, v{V_LIN}
    s_lshl_b32 s{S_T0}, s{S_T2}, 18
    s_lshl_b32 s{S_T1}, s{S_H}, 9
    s_add_u32 s{S_T0}, s{S_T0}, s{S_T1}
    s_add_u32 s{S_T1}, s{S_T0}, {16*8192}
    ''')
    for ch in range(8):
        for rh in range(2):
            a(f's_add_u32 m0, s{S_T4}, {(2*ch+rh)*1024-64*ch}')
            a(f'buffer_load_dwordx4 v{V_RS}, {sr(S_R2,4)}, s{S_T1 if rh else S_T0} offen offset:{64*ch}{NT} lds')
    a(f's_mul_i32 s{S_T1}, s{S_H}, {MAT}\ns_add_u32 s{S_VOFF}, s{S_T1}, {WS_A}')
    a(f's_branch {LJ}')
    a.label(LB)
    srd(a,S_R1,P_WV,3670016); srd(a,S_R2,P_WO,3670016)
    if OPTW['touch']:
        a(f'buffer_load_dword v{t+19}, v{t+17}, {sr(S_R2,4)}, s{S_B1} offen{NT2}\nbuffer_load_dword v{t+19}, v{t+16}, {sr(S_R1,4)}, s{S_B0} offen{NT2}'+TW)
        rt(a,4)
    a(f'''
    s_mov_b32 s{S_T5}, 1.0
    v_bfe_u32 v{t}, v{V_LIN}, 5, 4
    v_bfe_u32 v{t+1}, v{V_LIN}, 4, 1
    v_lshl_add_u32 v{t}, v{t+1}, 4, v{t}
    v_and_b32 v{t+1}, 512, v{V_LIN}
    v_lshl_add_u32 v{V_ST}, v{t}, 4, v{t+1}
    v_lshrrev_b32 v{t}, 6, v{V_LIN}
    v_mul_u32_u24 v{t}, 896, v{t}
    v_and_b32 v{t+1}, 48, v{V_LIN}
    v_add_u32 v{t}, v{t}, v{t+1}
    s_mul_i32 s{S_T0}, s{S_H}, 229376
    s_lshl_b32 s{S_T1}, s{S_T2}, 6
    s_add_u32 s{S_T0}, s{S_T0}, s{S_T1}
    ''')
    for i in range(16):
        a(f's_add_u32 m0, s{S_T4}, {i*1024}')
        a(f'buffer_load_dwordx4 v{t}, {sr(S_R2,4)}, s{S_T0} offen{NT} lds')
        a(f's_add_u32 s{S_T0}, s{S_T0}, {16*896}')
    a(f's_mul_i32 s{S_T1}, s{S_H}, {MAT}\ns_add_u32 s{S_VOFF}, s{S_T1}, {WS_B}')
    a.label(LJ)
    a.vq=['b']
    a(f'''
    s_lshl_b32 s{S_B0}, s{S_T3}, 18
    s_lshl_b32 s{S_T0}, s{S_H}, 9
    s_add_u32 s{S_B0}, s{S_B0}, s{S_T0}
    s_lshl_b32 s{S_T0}, s{S_WAVE}, 7
    s_add_u32 s{S_B0}, s{S_B0}, s{S_T0}
    s_lshl_b32 s{S_B1}, s{S_WAVE}, 12
    s_mul_i32 s{S_T0}, s{S_T2}, 28672
    s_add_u32 s{S_VOFF}, s{S_VOFF}, s{S_T0}
    s_lshl_b32 s{S_T0}, s{S_T3}, 11
    s_add_u32 s{S_VOFF}, s{S_VOFF}, s{S_T0}
    v_add_u32 v{V_BR0}, s{S_T4}, v{V_XR0}
    v_add_u32 v{V_BR1}, s{S_T4}, v{V_XR1}
    ''')
    for dt in range(6): dtile_dma(dt,dt)
    a.wait_vm('b')
    a(f's_cmp_ge_u32 s{S_G}, 16\ns_cbranch_scc1 {LB2}')
    for k in range(16):
        a(f'ds_read_b128 {vr(BF+4*k,4)}, v{V_BR1 if k&1 else V_BR0} offset:{2048*(k>>1)}')
    a(f's_branch {LJ2}')
    a.label(LB2)
    a(f'v_add_u32 v{V_BR0}, s{S_T4}, v{V_TR}')
    for k in range(16):
        a(f'ds_read_b64_tr_b16 {vr(BF+4*k,2)}, v{V_BR0} offset:{1024*k}')
        a(f'ds_read_b64_tr_b16 {vr(BF+4*k+2,2)}, v{V_BR0} offset:{1024*k+256}')
    a.label(LJ2)
    a.drain_ds()
    if a.diag: a('s_memrealtime s[44:45]\ns_waitcnt lgkmcnt(0)')
    a.wait_vm('d0')
    a('s_barrier')
    K=a.newlabel('ini')
    a(f's_or_b32 s{S_T0}, s2, s{S_WAVE}\ns_cmp_lg_u32 s{S_T0}, 0\ns_cbranch_scc1 {K}')
    a(f'v_mov_b32 v{t}, 1\ns_mov_b64 exec, 1')
    a(f'buffer_store_dword v{t}, v{V_ZERO}, {sr(S_DBG,4)}, 0 offen offset:{D_INIT} sc1')
    a('s_mov_b64 exec, -1')
    a.label(K)
    dtile_dma(6,6)
    def epi(dt):
        acc=PA+16*(dt&1); o=[]
        for r in range(16): o.append(f'v_mul_f32 v{acc+r}, s{S_T5}, v{acc+r}')
        for p in range(2):
            for d,(x,y) in enumerate(((0,1),(4,5),(2,3),(6,7))):
                o.append(f'v_cvt_pk_bf16_f32 v{EX+4*p+d}, v{acc+8*p+x}, v{acc+8*p+y}')
        o.append(f's_add_u32 s{S_T0}, s{S_VOFF}, {dt*2048}')
        for p in range(2):
            o.append(('vm',f'buffer_store_dwordx4 {vr(EX+4*p,4)}, v{V_ST}, {sr(S_WS,4)}, s{S_T0} offen offset:{1024*p} sc1',f'st{dt}'))
        return o
    fill=[]
    for dt in range(7):
        if dt==5: a.wait_vm('st2')
        if dt>0:
            a.wait_vm(f'd{dt}'); a('s_barrier')
        if dt==2: a.vm(f'buffer_load_dword v{t+19}, v{V_ZERO}, {sr(S_DBG,4)}, 0 offen offset:{D_INIT} sc1','ini')
        if dt==5:
            K=a.newlabel('pf'); L=a.newlabel('pfl'); D=a.newlabel('pfd')
            a(f's_cmp_lg_u32 s{S_WAVE}, 0\ns_cbranch_scc1 {K}\ns_mov_b32 s{S_SPIN}, 0')
            a.label(L)
            a(f'v_cmp_eq_u32 vcc, 0, v{t+19}\ns_cbranch_vccz {D}')
            a(f'buffer_load_dword v{t+19}, v{V_ZERO}, {sr(S_DBG,4)}, 0 offen offset:{D_INIT} sc1\ns_waitcnt vmcnt(0)')
            a(f's_add_u32 s{S_SPIN}, s{S_SPIN}, 1\ns_cmp_lt_u32 s{S_SPIN}, {SPINS}\ns_cbranch_scc1 {L}')
            a('s_branch L_exit')
            a.label(D)
            a(f's_lshl_b32 s{S_RST}, s{S_G}, 7\ns_lshl_b32 s{S_T1}, s{S_SEG}, 2\ns_add_u32 s{S_RST}, s{S_RST}, s{S_T1}\ns_add_u32 s{S_RST}, s{S_RST}, {F_W}')
            set_flag(a,f's{S_RST}')
            a(f'''
            v_mov_b32 v{V_RANK}, 1
            s_lshl_b32 s{S_T0}, s{S_XCC}, 7
            s_add_u32 s{S_T0}, s{S_T0}, {F_X}
            s_mov_b64 exec, 1
            buffer_atomic_add v{V_RANK}, v{V_ZERO}, {sr(S_WS,4)}, s{S_T0} offen sc0
            s_mov_b64 exec, -1
            ''')
            a.label(K)
        base=dt*16384
        for k in range(16):
            off=base+2048*(k>>1)
            reg=(V_XR1 if k&1 else V_XR0) if off<65536 else (V_AR3 if k&1 else V_AR2)
            a.ds(f'ds_read_b128 {vr(AF+4*k,4)}, v{reg} offset:{off%65536}', f'a{k}')
        acc=PA+16*(dt&1)
        for k in range(16):
            a.wait_ds(f'a{k}')
            a(f'v_mfma_f32_32x32x16_bf16 {vr(acc,16)}, {vr(AF+4*k,4)}, {vr(BF+4*k,4)}, {vr(acc,16) if k else 0}')
            for _ in range(3):
                if fill: a.auto(fill.pop(0))
        assert not fill
        fill=epi(dt)
    for f in fill: a.auto(f)
    if a.diag: a('s_memrealtime s[46:47]\ns_waitcnt lgkmcnt(0)')
    K=a.newlabel('pf')
    a.drain_vm(); a('s_barrier')
    a(f's_cmp_lg_u32 s{S_WAVE}, 0\ns_cbranch_scc1 {K}')
    set_flag(a,f's{S_RST}','2')
    a.label(K)

def dma_piece(t, sbase):
    o=[]; buf=(t%4)*28672
    for grp in range(2):
        o.append(f's_add_u32 s{S_T0}, s{sbase}, {t*28672+4096*grp}')
        o.append(f's_add_u32 m0, s{S_XL}, {buf+4096*grp}')
        for i in range(4 if grp==0 else 3):
            o.append(('vm',f'buffer_load_dwordx4 v{V_DMA}, {sr(S_WS,4)}, s{S_T0} offen offset:{1024*i} sc1 lds',f'w{t}'))
    return o
def dma_rows(t, tloc, srdreg, vreg, sbase, stride):
    o=[]; buf=(t%4)*28672
    for i in range(7):
        o.append(f's_add_u32 s{S_T0}, s{sbase}, {64*tloc+i*16*stride}')
        o.append(f's_add_u32 m0, s{S_XL}, {buf+1024*i}')
        o.append(('vm',f'buffer_load_dwordx4 v{vreg}, {sr(srdreg,4)}, s{S_T0} offen lds',f'w{t}'))
    return o
def rd_piece(t,k,dst):
    off=(t%4)*28672+1024*k
    return [f'ds_read_b128 {ar(dst,4)}, v{V_LIN if off<57344 else V_LIN2} offset:{off%57344}']
def rd_tr(t,k,dst,va,vb,second):
    off=(t%4)*28672+1024*k
    v=va if off<57344 else vb
    return [f'ds_read_b64_tr_b16 {ar(dst,2)}, v{v} offset:{off%57344}', f'ds_read_b64_tr_b16 {ar(dst+2,2)}, v{v} offset:{off%57344+second}']

def gemm(a, nt, dma, rd, mf, epi, pre=None, depth=7, finish_by=None):
    for t in (1,2):
        for o in dma(t): a.auto(o)
    if pre:
        for o in pre(0): a.auto(o)
    a.wait_vm('w0'); a('s_barrier')
    N=28*nt
    def read(g):
        if g<N:
            for o in rd(g//28,g%28,AW+4*(g%8)): a.ds(o,f'r{g}')
    for g in range(depth): read(g)
    fill=list(pre(1)) if pre else []
    dq=[]; g0=0
    for t in range(nt):
        acc=ACC+16*(t&1)
        lim = finish_by(t) if finish_by else 27
        for k in range(28):
            g=28*t+k
            if k==28-depth-1 and t+1<nt:
                assert not dq
                a.wait_vm(f'w{t+1}'); a('s_barrier')
                if t+3<nt: dq=dma(t+3); g0=g
            if k==lim:
                while fill: a.auto(fill.pop(0))
            if k==0: a.wait_ds(f'pre{t}')
            a.wait_ds(f'r{g}')
            a(mf(t,k,ar(AW+4*(g%8),4),vr(acc,16)))
            read(g+depth)
            if dq and (g-g0)%OPTW['dsp']==0:
                while dq:
                    o=dq.pop(0); a.auto(o)
                    if isinstance(o,tuple): break
            if k>=2 and fill:
                n=math.ceil(len(fill)/max(1,lim-k))
                for _ in range(n):
                    if fill: a.auto(fill.pop(0))
        while fill: a.auto(fill.pop(0))
        fill=list(epi(t,acc))
        if pre and t+2<nt: fill+=list(pre(t+2))
    while fill: a.auto(fill.pop(0))

def load_x(a, natural, xf=False):
    a(f'''
    s_mul_i32 s{S_T1}, s{S_SEG}, 28672
    s_add_u32 s{S_T2}, s{S_T1}, 14336
    s_mul_i32 s{S_T3}, s{S_WAVE}, 28672
    s_add_u32 s{S_T3}, s{S_T3}, {LDS_XST}
    v_add_u32 v{VT}, s{S_T3}, v{V_XR0}
    v_add_u32 v{VT+1}, s{S_T3}, v{V_XR1}
    ''')
    for ch in range(14):
        for rh in range(2):
            a(f's_add_u32 m0, s{S_T3}, {(2*ch+rh)*1024-64*ch}')
            a.vm(f'buffer_load_dwordx4 v{V_XS}, {sr(S_X,4)}, s{S_T2 if rh else S_T1} offen offset:{64*ch} lds',f'x{ch}')
    for ch in range(14):
        if natural is None: break
        a.wait_vm(f'x{ch}')
        for kl in range(2):
            a.ds(f'ds_read_b128 {vr(8*ch+4*kl,4)}, v{VT+kl} offset:{2048*ch}',f'xr{2*ch+kl}')
    if natural is None: a.drain_vm()
    elif natural:
        a.drain_ds()
    else:
        for kb in range(28):
            r=4*kb
            a.wait_ds(f'xr{kb}')
            a(f'v_permlane32_swap_b32 v{r}, v{r+2}\nv_permlane32_swap_b32 v{r+1}, v{r+3}')
        for kb in range(28):
            r=4*kb
            for d,s in enumerate((0,2,1,3)): a(f'v_accvgpr_write_b32 a{r+d}, v{r+s}')
    if xf:
        t=VT+2
        a(f'''
        v_bfe_u32 v{t}, v{V_LIN}, 4, 1
        v_bfe_u32 v{t+1}, v{V_LIN}, 5, 1
        v_lshl_add_u32 v{t}, v{t}, 1, v{t+1}
        v_bfe_u32 v{t+1}, v{V_LIN}, 8, 1
        v_lshlrev_b32 v{t+1}, 1, v{t+1}
        v_xor_b32 v{t+1}, v{t+1}, v{t}
        v_lshlrev_b32 v{t+1}, 4, v{t+1}
        v_lshl_add_u32 v{t+1}, v{t}, 8, v{t+1}
        v_bfe_u32 v{t}, v{V_LIN}, 6, 1
        v_lshl_add_u32 v{t+1}, v{t}, 7, v{t+1}
        v_bfe_u32 v{t}, v{V_LIN}, 7, 1
        v_lshl_add_u32 v{t+1}, v{t}, 10, v{t+1}
        v_bfe_u32 v{t}, v{V_LIN}, 9, 1
        v_lshl_add_u32 v{t+1}, v{t}, 11, v{t+1}
        v_add_u32 v{t}, s{S_T3}, v{t+1}
        v_xor_b32 v{t+1}, 16, v{t}
        s_lshl_b32 s{S_T2}, s{S_SEG}, 15
        s_add_u32 s{S_T2}, s{S_T2}, {WS_XF}
        ''')
        for half in range(2):
            for i in range(16*half,16*half+16):
                cw,kt,p=i>>3,(i>>2)&1,i&3
                P=(2*(cw>>1)+p) if p<2 else (4+(cw>>1)+(p&1))
                a(f'ds_read_b128 {vr(4*(i&15)+64*half,4) if half==0 else ar(144+4*(i&15),4)}, v{t+(cw&1)} offset:{4096*P+64*kt}')
        a('s_waitcnt lgkmcnt(0)')
        for i in range(32):
            if i%4==0: a(f's_add_u32 s{S_T1}, s{S_T2}, {1024*i}')
            a(f'buffer_store_dwordx4 {vr(4*i,4) if i<16 else ar(144+4*(i&15),4)}, v{V_LIN}, {sr(S_WS,4)}, s{S_T1} offen offset:{1024*(i%4)} sc1')
        return
    a('s_barrier')

def unit_head(a, mat0, wsbase, half=False):
    a(f'''
    s_lshl_b32 s{S_SEG}, s{S_G}, 2
    s_add_u32 s{S_SEG}, s{S_SEG}, s{S_WAVE}
    s_lshl_b32 s{S_T5}, s{S_H}, 7
    s_add_u32 s{S_T5}, s{S_T5}, {F_W+128*mat0}
    s_mul_i32 s{S_B0}, s{S_H}, {MAT}
    s_add_u32 s{S_B0}, s{S_B0}, {wsbase}
    s_mul_i32 s{S_XL}, s{S_WAVE}, 7168
    ''')
    if half: a(f's_mul_i32 s{S_T0}, s{S_MBO}, {7*28672}\ns_add_u32 s{S_B0}, s{S_B0}, s{S_T0}')
    load_x(a,False)
    if mat0: rt1(a,1)
    wait_flags(a,V_L4,f's{S_T5}',8,2,sleep=1)
    if mat0: rt1(a,2)
    for o in dma_piece(0,S_B0): a.auto(o)

def rt1(a,i):
    if a.diag:
        K=a.newlabel('rt1')
        a(f's_cmp_lg_u32 s{S_STEP}, 0\ns_cbranch_scc1 {K}')
        rt(a,i)
        if i==2: a('s_memtime s[78:79]\ns_waitcnt lgkmcnt(0)')
        if i==3: a(f's_mov_b32 s{S_STEP}, 1\ns_mov_b32 s77, s78\ns_memtime s[78:79]\ns_waitcnt lgkmcnt(0)\ns_sub_u32 s78, s78, s77')
        a.label(K)

def unit_V(a, half=False):
    a.comment('==== V unit ====')
    rt1(a,0)
    nt=7 if half else 14
    if half: a(f's_mov_b32 s{S_MBO}, s{S_T5}')
    unit_head(a,16,WS_B,half)
    a(f'''
    s_mul_i32 s{S_B1}, s{S_SEG}, {SEGV}
    s_lshl_b32 s{S_T1}, s{S_H}, 11
    s_add_u32 s{S_B1}, s{S_B1}, s{S_T1}
    s_add_u32 s{S_B1}, s{S_B1}, {WS_V}
    ''')
    if half: a(f's_mul_i32 s{S_T1}, s{S_MBO}, {7*32768}\ns_add_u32 s{S_B1}, s{S_B1}, s{S_T1}')
    def epi(t,acc):
        o=[f'v_cvt_pk_bf16_f32 v{EX+d}, v{acc+2*d}, v{acc+2*d+1}' for d in range(8)]
        o.append(f's_add_u32 s{S_T1}, s{S_B1}, {t*32768}')
        o+=[f'buffer_store_dwordx4 {vr(EX+4*p,4)}, v{V_LIN}, {sr(S_WS,4)}, s{S_T1} offen offset:{1024*p} sc1' for p in range(2)]
        return o
    gemm(a,nt,lambda t:dma_piece(t,S_B0),rd_piece,
         lambda t,k,w,acc:f'v_mfma_f32_32x32x16_bf16 {acc}, {ar(4*k,4)}, {w}, {acc if k else 0}', epi)
    a(f's_lshl_b32 s{S_T0}, s{S_G}, 7\ns_lshl_b32 s{S_T1}, s{S_H}, 3\ns_add_u32 s{S_T0}, s{S_T0}, s{S_T1}\ns_add_u32 s{S_T0}, s{S_T0}, {F_V}')
    if half: a(f's_lshl_b32 s{S_T1}, s{S_MBO}, 2\ns_add_u32 s{S_T0}, s{S_T0}, s{S_T1}')
    wg_flag(a,f's{S_T0}',1 if half else 2)
    rt1(a,3)

def unit_X(a):
    a.comment('==== X unit: x fragments for the team ====')
    a(f's_lshl_b32 s{S_SEG}, s{S_G}, 2\ns_add_u32 s{S_SEG}, s{S_SEG}, s{S_WAVE}')
    load_x(a,None,True)
    a(f's_lshl_b32 s{S_T0}, s{S_G}, 7\ns_add_u32 s{S_T0}, s{S_T0}, {F_M+32}')
    wg_flag(a,f's{S_T0}')

def unit_Q(a):
    a.comment('==== Q unit ====')
    unit_head(a,0,WS_A)
    def epi(t,acc):
        o=[]
        for p in range(2):
            for d,(x,y) in enumerate(((0,1),(4,5),(2,3),(6,7))):
                o.append(f'v_cvt_pk_bf16_f32 v{8*t+4*p+d}, v{acc+8*p+x}, v{acc+8*p+y}')
        for p in range(2):
            kb=2*t+p
            o.append(f'v_mfma_f32_32x32x16_bf16 {vr(SAC,16)}, {ar(4*kb,4)}, {vr(4*kb,4)}, {vr(SAC,16) if kb else 0}')
        return o
    gemm(a,14,lambda t:dma_piece(t,S_B0),rd_piece,
         lambda t,k,w,acc:f'v_mfma_f32_32x32x16_bf16 {acc}, {w}, {ar(4*k,4)}, {acc if k else 0}', epi)
    t=VT
    a(f'''
    v_bfe_u32 v{t}, v{V_LIN}, 4, 5
    v_lshrrev_b32 v{t+1}, 2, v{V_HH16}
    v_sub_u32 v{t}, v{t}, v{t+1}
    v_mov_b32 v{t+1}, {f32(-1e9*LOG2E)}
    ''')
    for r in range(16):
        a(f'v_cmp_le_i32 vcc, {8*(r>>2)+(r&3)}, v{t}')
        a(f'v_cndmask_b32 v{SAC+r}, v{t+1}, v{SAC+r}, vcc')
    a(f'v_max3_f32 v{t+2}, v{SAC}, v{SAC+1}, v{SAC+2}')
    for r in range(3,15,2): a(f'v_max3_f32 v{t+2}, v{t+2}, v{SAC+r}, v{SAC+r+1}')
    a(f'v_max_f32 v{t+2}, v{t+2}, v{SAC+15}')
    a(f'''
    v_and_b32 v{t+3}, 0x1f0, v{V_LIN}
    v_lshl_add_u32 v{t+4}, v{t+3}, 1, v{V_HH16}
    v_lshrrev_b32 v{t+5}, 1, v{V_HH16}
    v_add_u32 v{t+5}, v{t+5}, v{t+3}
    s_add_u32 s{S_T1}, s{S_SEG}, 1
    ''')
    wait_prog(a,S_T1)
    a(f's_lshl_b32 s{S_T0}, s{S_SEG}, 13\ns_add_u32 s{S_T0}, s{S_T0}, {WS_MEMH}\ns_add_u32 s{S_T1}, s{S_T0}, 4096')
    MF=t+16
    for i in range(7):
        a.vm(f'buffer_load_dwordx4 {vr(MF+4*i,4)}, v{t+4}, {sr(S_WS,4)}, s{S_T0 if i<4 else S_T1} offen offset:{1024*(i%4)} sc1',f'm{i}')
    accs=[ACC,ACC+16,EX,EX+16]
    def fix(i):
        r=MF+4*i
        a.wait_vm(f'm{i}')
        a(f'v_permlane32_swap_b32 v{r}, v{r+2}\nv_permlane32_swap_b32 v{r+1}, v{r+3}\nv_swap_b32 v{r+1}, v{r+2}')
    fix(0)
    for i in range(7):
        for j in range(4):
            a(f'v_mfma_f32_32x32x16_bf16 {vr(accs[j],16)}, {vr(MF+4*i,4)}, {vr(4*(4*i+j),4)}, {vr(accs[j],16) if i else 0}')
            if j==1 and i<6: fix(i+1)
    a(f'''
    s_mul_i32 s{S_T0}, s{S_SEG}, {SEGP}
    s_lshr_b32 s{S_T1}, s{S_H}, 2
    s_mul_i32 s{S_T1}, s{S_T1}, 10240
    s_add_u32 s{S_T0}, s{S_T0}, s{S_T1}
    s_add_u32 s{S_T0}, s{S_T0}, {WS_PX}
    s_and_b32 s{S_T2}, s{S_H}, 3
    s_lshl_b32 s{S_T1}, s{S_T2}, 9
    s_add_u32 s{S_T1}, s{S_T1}, s{S_T0}
    s_add_u32 s{S_T1}, s{S_T1}, 8192
    s_lshl_b32 s{S_T2}, s{S_T2}, 11
    s_add_u32 s{S_T0}, s{S_T0}, s{S_T2}
    ''')
    M=t+8
    for r in range(4):
        a(f'v_add_f32 v{M+r}, v{accs[0]+r}, v{accs[1]+4+r}')
    for r in range(4):
        a(f'v_add_f32 v{M+4+r}, v{accs[2]+8+r}, v{accs[3]+12+r}')
    for r in range(4):
        a(f'v_add_f32 v{M+r}, v{M+r}, v{M+4+r}')
    a(f'v_max3_f32 v{t+2}, v{t+2}, v{M}, v{M+1}\nv_max3_f32 v{t+2}, v{t+2}, v{M+2}, v{M+3}')
    a(f'v_mov_b32 v{t+6}, v{t+2}\nv_permlane32_swap_b32 v{t+2}, v{t+6}\nv_max_f32 v{t+2}, v{t+2}, v{t+6}')
    vals=[SAC+r for r in range(16)]+[M+r for r in range(4)]
    for v in vals: a(f'v_sub_f32 v{v}, v{v}, v{t+2}')
    for v in vals: a(f'v_exp_f32 v{v}, v{v}')
    a(f'v_add_f32 v{t+6}, v{vals[0]}, v{vals[1]}\nv_add_f32 v{t+7}, v{vals[2]}, v{vals[3]}')
    for k in range(4,20,2):
        a(f'v_add_f32 v{t+6}, v{t+6}, v{vals[k]}\nv_add_f32 v{t+7}, v{t+7}, v{vals[k+1]}')
    a(f'v_add_f32 v{t+6}, v{t+6}, v{t+7}\nv_mov_b32 v{t+7}, v{t+6}\nv_permlane32_swap_b32 v{t+6}, v{t+7}\nv_add_f32 v{t+6}, v{t+6}, v{t+7}')
    a(f'v_rcp_f32 v{t+6}, v{t+6}')
    for v in vals: a(f'v_mul_f32 v{v}, v{v}, v{t+6}')
    for d in range(10): a(f'v_cvt_pk_bf16_f32 v{ACC+d}, v{vals[2*d]}, v{vals[2*d+1]}')
    a(f'buffer_store_dwordx4 {vr(ACC,4)}, v{V_LIN}, {sr(S_WS,4)}, s{S_T0} offen sc1')
    a(f'buffer_store_dwordx4 {vr(ACC+4,4)}, v{V_LIN}, {sr(S_WS,4)}, s{S_T0} offen offset:1024 sc1')
    a(f'buffer_store_dwordx2 {vr(ACC+8,2)}, v{t+5}, {sr(S_WS,4)}, s{S_T1} offen sc1')
    a(f's_lshl_b32 s{S_T0}, s{S_SEG}, 7\ns_lshl_b32 s{S_T1}, s{S_H}, 2\ns_add_u32 s{S_T0}, s{S_T0}, s{S_T1}\ns_add_u32 s{S_T0}, s{S_T0}, {F_P}')
    a.drain_vm()
    set_flag(a,f's{S_T0}')

def unit_M(a):
    a.comment('==== MLP unit ====')
    t=VT
    T1=LDS_TAB; T2=LDS_TAB+2048; TG=LDS_TAB+4096
    srd(a,S_R1,P_W1,448*1792*2)
    a(f'''
    s_lshl_b32 s{S_SEG}, s{S_G}, 2
    s_add_u32 s{S_SEG}, s{S_SEG}, s{S_WAVE}
    s_mul_i32 s{S_XL}, s{S_WAVE}, 7168
    s_mul_i32 s{S_B0}, s{S_H}, 896
    s_mul_i32 s{S_B1}, s{S_H}, {448*896}
    ''')
    d1=lambda tt: dma_rows(tt,tt,S_R1,V_RM1,S_B0,3584)
    d2=lambda tt: dma_rows(tt,tt-14,S_R2,V_RM2,S_B1,896)
    for o in d1(0): a.auto(o)
    a(f's_lshl_b32 s{S_T0}, s{S_WAVE}, 8\nv_add_u32 v{t+2}, s{S_T0}, v{V_L4}')
    srd(a,S_R2,P_B1,3584)
    a.vm(f'buffer_load_dword v{t+3}, v{t+2}, {sr(S_R2,4)}, s{S_B0} offen','tb')
    srd(a,S_R2,P_B2,896)
    a(f's_lshl_b32 s{S_T0}, s{S_H}, 12')
    a.vm(f'buffer_load_dword v{t+4}, v{t+2}, {sr(S_R2,4)}, s{S_T0} offen','tb')
    srd(a,S_R2,P_GATE,896)
    a.vm(f'buffer_load_dword v{t+5}, v{t+2}, {sr(S_R2,4)}, 0 offen','tb')
    a.wait_vm('tb')
    srd(a,S_R2,P_W2,448*1792*2)
    a(f'''
    v_lshlrev_b32 v{t+6}, 16, v{t+3}
    v_and_b32 v{t+7}, 0xffff0000, v{t+3}
    v_lshlrev_b32 v{t+8}, 16, v{t+4}
    v_and_b32 v{t+9}, 0xffff0000, v{t+4}
    v_lshlrev_b32 v{t+10}, 1, v{t+2}
    v_add_u32 v{t+10}, {LDS_TAB}, v{t+10}
    v_add_u32 v{t+11}, {TG}, v{t+2}
    ds_write_b64 v{t+10}, {vr(t+6,2)}
    ds_write_b64 v{t+10}, {vr(t+8,2)} offset:2048
    ds_write_b32 v{t+11}, v{t+5}
    v_add_u32 v{t+12}, {LDS_TAB}, v{V_HH16}
    ''')
    V_TAB=t+12
    load_x(a,True)
    K=a.newlabel('nog')
    a(f's_cmp_lg_u32 s{S_H}, 0\ns_cbranch_scc1 {K}')
    a(f'v_mov_b32 v{t+2}, 0\nv_mov_b32 v{t+3}, 0')
    for kb0 in range(0,28,7):
        for kb in range(kb0,kb0+7): a.ds(f'ds_read_b128 {vr(ACC+4*(kb-kb0),4)}, v{V_TAB} offset:{4096+32*kb}',f'g{kb}')
        for kb in range(kb0,kb0+7):
            a.wait_ds(f'g{kb}')
            for d in range(4): a(f'v_dot2_f32_bf16 v{t+2+(d&1)}, v{4*kb+d}, v{ACC+4*(kb-kb0)+d}, v{t+2+(d&1)}')
        a('s_nop 2')
    a(f'''
    v_add_f32 v{t+2}, v{t+2}, v{t+3}
    v_mov_b32 v{t+3}, v{t+2}
    v_permlane32_swap_b32 v{t+2}, v{t+3}
    v_add_f32 v{t+2}, v{t+2}, v{t+3}
    v_mul_f32 v{t+2}, {f32(-LOG2E)}, v{t+2}
    v_exp_f32 v{t+2}, v{t+2}
    v_add_f32 v{t+2}, 1.0, v{t+2}
    v_rcp_f32 v{t+2}, v{t+2}
    v_and_b32 v{t+3}, 127, v{V_L4}
    s_lshl_b32 s{S_T0}, s{S_SEG}, 7
    s_add_u32 s{S_T0}, s{S_T0}, {WS_G}
    buffer_store_dword v{t+2}, v{t+3}, {sr(S_WS,4)}, s{S_T0} offen sc1
    ''')
    a.label(K)
    a(f'v_mov_b32 v{t+2}, 0\nv_mov_b32 v{t+3}, 0\nv_mov_b32 v{t+4}, 0x3f803f80')
    for r in range(112): a(f'v_dot2_f32_bf16 v{t+2+(r&1)}, v{r}, v{t+4}, v{t+2+(r&1)}')
    a(f'''
    s_nop 2
    v_add_f32 v{t+2}, v{t+2}, v{t+3}
    v_mov_b32 v{t+3}, v{t+2}
    v_permlane32_swap_b32 v{t+2}, v{t+3}
    v_add_f32 v{t+2}, v{t+2}, v{t+3}
    v_mul_f32 v{t+2}, {f32(1/448)}, v{t+2}
    v_mov_b32 v{t+3}, 0
    v_mov_b32 v{t+4}, 0
    s_mov_b32 s{S_T0}, 0xffff0000
    ''')
    for r in range(112):
        a(f'v_lshlrev_b32 v{t+5}, 16, v{r}\nv_and_b32 v{t+6}, s{S_T0}, v{r}')
        a(f'v_sub_f32 v{t+5}, v{t+5}, v{t+2}\nv_sub_f32 v{t+6}, v{t+6}, v{t+2}')
        a(f'v_fmac_f32 v{t+3}, v{t+5}, v{t+5}\nv_fmac_f32 v{t+4}, v{t+6}, v{t+6}')
    a(f'''
    v_add_f32 v{t+3}, v{t+3}, v{t+4}
    v_mov_b32 v{t+4}, v{t+3}
    v_permlane32_swap_b32 v{t+3}, v{t+4}
    v_add_f32 v{t+3}, v{t+3}, v{t+4}
    v_mov_b32 v{t+4}, {f32(1e-5)}
    v_fmac_f32 v{t+4}, {f32(1/448)}, v{t+3}
    v_rsq_f32 v{t+3}, v{t+4}
    ''')
    for r in range(112):
        a(f'v_lshlrev_b32 v{t+5}, 16, v{r}\nv_and_b32 v{t+6}, s{S_T0}, v{r}')
        a(f'v_sub_f32 v{t+5}, v{t+5}, v{t+2}\nv_sub_f32 v{t+6}, v{t+6}, v{t+2}')
        a(f'v_mul_f32 v{t+5}, v{t+5}, v{t+3}\nv_mul_f32 v{t+6}, v{t+6}, v{t+3}')
        a(f'v_cvt_pk_bf16_f32 v{t+5}, v{t+5}, v{t+6}\nv_accvgpr_write_b32 a{r}, v{t+5}')
    kk=2*math.sqrt(2/math.pi)*LOG2E
    a(f'''
    s_mov_b32 s{S_T4}, {f32(-kk*0.044715)}
    v_mov_b32 v{t+2}, {f32(-kk)}
    v_and_b32 v{t+3}, 0x1f0, v{V_LIN}
    v_lshl_add_u32 v{t+3}, v{t+3}, 1, v{V_HH16}
    s_mul_i32 s{S_T5}, s{S_H}, {64*SEGM}
    s_mul_i32 s{S_T1}, s{S_SEG}, {SEGM}
    s_add_u32 s{S_T5}, s{S_T5}, s{S_T1}
    s_add_u32 s{S_T5}, s{S_T5}, {WS_MLP}
    ''')
    def pre(tt):
        acc=ACC+16*(tt&1); base=(0 if tt<14 else 2048)+128*(tt%14)
        return [('ds',f'ds_read_b128 {vr(acc+4*q,4)}, v{V_TAB} offset:{base+32*q}',f'pre{tt}') for q in range(4)]
    def epi(tt,acc):
        o=[]
        if tt<14:
            for h in range(2):
                R=range(8*h,8*h+8); x=lambda r: SAC+(r&7)
                o+=[f'v_mul_f32 v{x(r)}, v{acc+r}, v{acc+r}' for r in R]
                o+=[f'v_fma_f32 v{x(r)}, v{x(r)}, s{S_T4}, v{t+2}' for r in R]
                o+=[f'v_mul_f32 v{x(r)}, v{x(r)}, v{acc+r}' for r in R]
                o+=[f'v_exp_f32 v{x(r)}, v{x(r)}' for r in R]
                o+=[f'v_add_f32 v{x(r)}, 1.0, v{x(r)}' for r in R]
                o+=[f'v_rcp_f32 v{x(r)}, v{x(r)}' for r in R]
                o+=[f'v_mul_f32 v{x(r)}, v{x(r)}, v{acc+r}' for r in R]
                o+=[f'v_cvt_pk_bf16_f32 v{8*tt+4*h+d}, v{SAC+2*d}, v{SAC+2*d+1}' for d in range(4)]
        else:
            o.append(f's_add_u32 s{S_T1}, s{S_T5}, {(tt-14)*4096}')
            o+=[f'buffer_store_dwordx4 {vr(acc+4*q,4)}, v{t+3}, {sr(S_WS,4)}, s{S_T1} offen offset:{1024*q} sc1' for q in range(4)]
            o.append('s_nop 1')
        return o
    gemm(a,28,lambda tt: d1(tt) if tt<14 else d2(tt),
         lambda tt,k,dst: rd_tr(tt,k,dst,V_TR,V_TR2,256) if tt<14 else rd_tr(tt,k,dst,V_TQ,V_TQ2,512),
         lambda tt,k,w,acc: f'v_mfma_f32_32x32x16_bf16 {acc}, {w}, {ar(4*k,4) if tt<14 else vr(4*k,4)}, {acc}',
         epi, pre=pre, depth=5, finish_by=lambda tt: 26)
    a(f's_lshl_b32 s{S_T0}, s{S_G}, 7\ns_lshl_b32 s{S_T1}, s{S_H}, 2\ns_add_u32 s{S_T0}, s{S_T0}, s{S_T1}\ns_add_u32 s{S_T0}, s{S_T0}, {F_M}')
    wg_flag(a,f's{S_T0}')

def unit_F(a):
    a.comment('==== final unit ====')
    t=VT
    VV=0; PX=64; PM=96; MB=104; FA=120; ML=152; GG=184
    a(f'''
    s_lshr_b32 s{S_G}, s{S_SEG}, 2
    s_lshl_b32 s{S_T0}, s{S_G}, 7
    s_lshl_b32 s{S_T5}, s{S_WAVE}, 4
    s_add_u32 s{S_T1}, s{S_T0}, s{S_T5}
    s_add_u32 s{S_T1}, s{S_T1}, s{S_T5}
    s_add_u32 s{S_T1}, s{S_T1}, {F_V}
    s_add_u32 s{S_T2}, s{S_T0}, {F_M}
    ''')
    wait_flags(a,V_L4,f's{S_T1}',8,1)
    a(f'''
    s_mul_i32 s{S_B0}, s{S_SEG}, {SEGV}
    s_lshl_b32 s{S_T0}, s{S_H}, 16
    s_add_u32 s{S_B0}, s{S_B0}, s{S_T0}
    s_lshl_b32 s{S_T0}, s{S_WAVE}, 13
    s_add_u32 s{S_B0}, s{S_B0}, s{S_T0}
    s_add_u32 s{S_B0}, s{S_B0}, {WS_V}
    ''')
    for n in range(2):
        for g in range(2):
            a(f's_add_u32 s{S_T0}, s{S_B0}, {n*32768+g*4096}')
            for i in range(4):
                a(f'buffer_load_dwordx4 {vr(VV+32*n+16*g+4*i,4)}, v{V_LIN}, {sr(S_WS,4)}, s{S_T0} offen offset:{1024*i} sc1')
    wait_flags(a,V_L4,f's{S_T2}',4,1)
    a(f'''
    v_and_b32 v{t}, 0x1f0, v{V_LIN}
    v_lshlrev_b32 v{t}, 1, v{t}
    v_lshl_add_u32 v{t}, v{V_HH16}, 6, v{t}
    s_mul_i32 s{S_T0}, s{S_SEG}, {SEGM}
    s_lshl_b32 s{S_T1}, s{S_H}, 13
    s_add_u32 s{S_T0}, s{S_T0}, s{S_T1}
    s_lshl_b32 s{S_T1}, s{S_WAVE}, 11
    s_add_u32 s{S_T0}, s{S_T0}, s{S_T1}
    s_add_u32 s{S_T0}, s{S_T0}, {WS_MLP}
    ''')
    for c in range(4):
        a(f'buffer_load_dwordx4 {vr(ML+8*c,4)}, v{t}, {sr(S_WS,4)}, s{S_T0} offen sc1')
        a(f'buffer_load_dwordx4 {vr(ML+8*c+4,4)}, v{t}, {sr(S_WS,4)}, s{S_T0} offen offset:16 sc1')
        if c<3: a(f's_add_u32 s{S_T0}, s{S_T0}, {64*SEGM}')
    a(f'''
    v_and_b32 v{t+1}, 127, v{V_L4}
    s_lshl_b32 s{S_T0}, s{S_SEG}, 7
    s_add_u32 s{S_T1}, s{S_T0}, {WS_G}
    buffer_load_dword v{GG}, v{t+1}, {sr(S_WS,4)}, s{S_T1} offen sc1
    s_add_u32 s{S_T1}, s{S_T0}, s{S_T5}
    s_add_u32 s{S_T1}, s{S_T1}, {F_P}
    ''')
    a(f's_add_u32 s{S_T3}, s{S_SEG}, 1')
    wait_prog(a,S_T3)
    a(f'''
    v_lshlrev_b32 v{t+1}, 3, v{V_LIN}
    s_lshl_b32 s{S_T2}, s{S_H}, 8
    s_lshl_b32 s{S_T0}, s{S_WAVE}, 2
    s_add_u32 s{S_T2}, s{S_T2}, s{S_T0}
    s_add_u32 s{S_T2}, s{S_T2}, {F_B}
    ''')
    wait_flags(a,t+1,f's{S_T2}',2,f's{S_T3}',sleep=2)
    a(f'''
    s_mul_i32 s{S_T0}, s{S_SEG}, {SEGMB}
    s_lshl_b32 s{S_T2}, s{S_H}, 14
    s_add_u32 s{S_T0}, s{S_T0}, s{S_T2}
    s_lshl_b32 s{S_T2}, s{S_WAVE}, 11
    s_add_u32 s{S_T0}, s{S_T0}, s{S_T2}
    s_add_u32 s{S_T0}, s{S_T0}, {WS_MBH}
    s_add_u32 s{S_T2}, s{S_T0}, 8192
    ''')
    for n in range(2):
        for k in range(2):
            a(f'buffer_load_dwordx4 {vr(MB+8*n+4*k,4)}, v{V_LIN}, {sr(S_WS,4)}, s{S_T2 if n else S_T0} offen offset:{1024*k} sc1')
    for r in range(8):
        a(f'v_add_f32 v{ML+r}, v{ML+r}, v{ML+8+r}\nv_add_f32 v{ML+16+r}, v{ML+16+r}, v{ML+24+r}')
    for r in range(8): a(f'v_add_f32 v{ML+r}, v{ML+r}, v{ML+16+r}')
    a(f'v_sub_f32 v{GG+1}, 1.0, v{GG}')
    for r in range(8): a(f'v_mul_f32 v{ML+r}, v{ML+r}, v{GG+1}')
    wait_flags(a,V_L4,f's{S_T1}',4,1,sleep=4)
    a(f'''
    s_mul_i32 s{S_T0}, s{S_SEG}, {SEGP}
    s_mul_i32 s{S_T1}, s{S_WAVE}, 10240
    s_add_u32 s{S_T0}, s{S_T0}, s{S_T1}
    s_add_u32 s{S_T0}, s{S_T0}, {WS_PX}
    ''')
    for i in range(10):
        if i in (4,8): a(f's_add_u32 s{S_T0}, s{S_T0}, 4096')
        a.vm(f'buffer_load_dwordx4 {vr(PX+4*i,4)}, v{V_LIN}, {sr(S_WS,4)}, s{S_T0} offen offset:{1024*(i%4)} sc1',f'p{i}')
    srd(a,S_R1,P_OUT,2048*448*2)
    a(f'''
    v_bfe_u32 v{t}, v{V_LIN}, 4, 5
    v_mul_u32_u24 v{t}, 896, v{t}
    v_add_u32 v{t}, v{t}, v{V_HH16}
    s_mul_i32 s{S_T0}, s{S_SEG}, 28672
    s_lshl_b32 s{S_T1}, s{S_H}, 7
    s_add_u32 s{S_T0}, s{S_T0}, s{S_T1}
    s_lshl_b32 s{S_T1}, s{S_WAVE}, 5
    s_add_u32 s{S_T0}, s{S_T0}, s{S_T1}
    s_lshl_b32 s{S_T1}, s{S_WAVE}, 13
    v_add_u32 v{t+1}, s{S_T1}, v{V_LIN}
    s_lshr_b32 s{S_T1}, s{S_WAVE}, 1
    s_lshl_b32 s{S_T1}, s{S_T1}, 12
    s_and_b32 s{S_T2}, s{S_WAVE}, 1
    s_lshl_b32 s{S_T2}, s{S_T2}, 10
    s_add_u32 s{S_T1}, s{S_T1}, s{S_T2}
    v_add_u32 v{t+2}, s{S_T1}, v{V_LIN}
    ''')
    for i in range(10):
        a.wait_vm(f'p{i}')
        for n in range(2):
            A = vr(VV+32*n+4*i,4) if i<8 else vr(MB+8*n+4*(i-8),4)
            a(f'v_mfma_f32_32x32x16_bf16 {vr(FA+16*n,16)}, {A}, {vr(PX+4*i,4)}, {vr(FA+16*n,16) if i else 0}')
    for n in range(2):
        for q in range(4):
            a(f'ds_write_b128 v{t+1}, {vr(FA+16*n+4*q,4)} offset:{4096*n+1024*q}')
    a('s_waitcnt lgkmcnt(0)\ns_barrier')
    for w in range(4):
        a(f'ds_read_b128 {vr(VV+8*w,4)}, v{t+2} offset:{8192*w}')
        a(f'ds_read_b128 {vr(VV+8*w+4,4)}, v{t+2} offset:{8192*w+2048}')
    a('s_waitcnt lgkmcnt(0)')
    for r in range(8):
        a(f'v_add_f32 v{VV+r}, v{VV+r}, v{VV+8+r}\nv_add_f32 v{VV+16+r}, v{VV+16+r}, v{VV+24+r}')
    for r in range(8): a(f'v_add_f32 v{VV+r}, v{VV+r}, v{VV+16+r}')
    for r in range(4):
        a(f'v_fma_f32 v{ML+2*r}, v{VV+r}, v{GG}, v{ML+2*r}\nv_fma_f32 v{ML+2*r+1}, v{VV+4+r}, v{GG}, v{ML+2*r+1}')
    for d in range(4): a(f'v_cvt_pk_bf16_f32 v{ML+8+d}, v{ML+2*d}, v{ML+2*d+1}')
    a(f'buffer_store_dwordx4 {vr(ML+8,4)}, v{t}, {sr(S_R1,4)}, s{S_T0} offen')
    a.vq=[]; a.dq=[]
```

```python
import sys
from asmb import *
from layout import *
import team, work
from work import *
KN='gated_mix__memory_aug_recurrent_mem_tr__mixer_channel_mlp__prompt'
HDR=open('cdna_kernels/'+KN+'.s.ref').read().split('; Override launch geometry')[0]

def make_table():
    O=work.OPTW
    V=lambda G,h:(0<<12)|(G<<4)|h
    Q=lambda G,h:(1<<12)|(G<<4)|h
    M=lambda G,c:(2<<12)|(G<<4)|c
    F=lambda s,c:(3<<12)|(s<<4)|c
    nv,nq,nm=O['nv'],O['nq'],O['nm']
    H=lambda G,h,k:((4+k)<<12)|(G<<4)|h
    X=lambda G:(6<<12)|(G<<4)
    nhf=O['nh']
    heads=[x for h in range(16) for x in [H(G,h,k) for G in range(nhf) for k in range(2)]+[V(G,h) for G in range(nhf,nv)]+[Q(G,h) for G in range(nq)]]
    rest=[]
    for G in range(16):
        if G+nv-1<16 and G>=1: rest+=[V(G+nv-1,h) for h in range(16)]
        if G+nm-1<16 and G>=1: rest+=[M(G+nm-1,c) for c in range(4)]
        if G>=nq: rest+=[Q(G,h) for h in range(16)]
        rest+=[F(4*G+i,c) for i in range(4) for c in range(7)]
    fill=[M(G,c) for c in range(4) for G in range(nm)]+[X(G) for G in range(16)]
    nfill=210-len(heads)
    while len(fill)<nfill: fill.append(rest.pop(0))
    assert len(fill)==nfill
    first=[]; hi=fi=0
    for d in range(7):
        nh=round(len(heads)*(d+1)/7)-hi
        first+=heads[hi:hi+nh]; hi+=nh
        fl=[fill[k] for k in range(len(fill))][fi:fi+30-nh]; fi+=30-nh
        first+=fl
    T=first+rest
    assert len(first)==210 and len(set(T))==len(T)==256+256+64+448+16+16*nhf
    return T

def build(name=KN+'_kernel', stamps=0, force_slow=False, diag=False):
    a=Asm(); a.diag=diag; a.force_slow=force_slow
    TABLE=make_table()
    a.raw(HDR+f'''; Generated by a hand-written generator. One persistent launch, one 256-thread workgroup per CU.
; @launch grid=(256,1,1) block=(256,1,1) lds=163840
.amdgcn_target "amdgcn-amd-amdhsa--gfx950"
.text
.globl {name}
.p2align 8
.type {name},@function
{name}:''')
    t=VT
    a(f'''
    s_cmp_ge_u32 s2, 256
    s_cbranch_scc1 L_exit
    s_load_dwordx16 s[64:79], s[0:1], 0
    s_load_dwordx16 s[80:95], s[0:1], 64
    s_getreg_b32 s{S_XCC}, hwreg(HW_REG_XCC_ID, 0, 4)
    v_lshrrev_b32 v1, 6, v0
    v_readfirstlane_b32 s{S_WAVE}, v1
    s_mov_b32 s{S_ERR}, 0
    s_mov_b32 s{S_SLOW}, 0
    s_mov_b32 s{S_STEP}, 0
    ''')
    if diag: a('s_memrealtime s[40:41]')
    if work.OPTW['cpf']:
        a(f'''
        s_getpc_b64 s[4:5]
        s_and_b32 s4, s4, 0xffffff00
        s_mov_b32 s6, L_codeend-{name}
        s_mov_b32 s7, 0x20000
        s_lshr_b32 s{S_T0}, s2, 3
        v_and_b32 v2, 63, v0
        v_lshlrev_b32 v2, 5, v2
        v_add_u32 v2, s{S_T0}, v2
        v_lshlrev_b32 v2, 7, v2
        s_cmp_lg_u32 s{S_WAVE}, 3
        s_cbranch_scc1 L_nocpf
        buffer_load_dword v255, v2, s[4:7], 0 offen
        L_nocpf:
        ''')
    if force_slow==2: a(f's_mul_i32 s{S_XCC}, s2, 11\ns_lshr_b32 s{S_XCC}, s{S_XCC}, 8')
    elif force_slow: a(f's_lshr_b32 s{S_XCC}, s2, 5')
    work_consts(a)
    a('s_waitcnt lgkmcnt(0)')
    srd(a,S_X,P_X,1835008); srd(a,S_DBG,P_DBG,256); srd(a,S_WS,P_WS,0x10000000)
    srd(a,S_R1,P_X,1835008); srd(a,S_R2,P_X,1835008)
    a(f'''
    s_cmp_lg_u32 s2, 0
    s_cbranch_scc1 L_nozero
    v_mov_b32 v0, 0
    v_mov_b32 v1, 0
    v_mov_b32 v2, 0
    v_mov_b32 v3, 0
    s_mul_i32 s{S_T0}, s{S_WAVE}, 7168
    s_add_u32 s{S_T0}, s{S_T0}, {WS_FLAG}
    s_add_u32 s{S_T1}, s{S_T0}, 4096
    ''')
    for i in range(7):
        a(f'buffer_store_dwordx4 v[0:3], v{V_LIN}, {sr(S_WS,4)}, s{S_T0 if i<4 else S_T1} offen offset:{1024*(i%4)} sc1')
    a.label('L_nozero')
    a(f'''
    s_cmp_lg_u32 s{S_WAVE}, 2
    s_cbranch_scc1 L_noxt
    s_mul_i32 s{S_T0}, s2, 7168
    v_lshlrev_b32 v{t}, 3, v{V_LIN}
    buffer_load_dword v255, v{t}, {sr(S_X,4)}, s{S_T0} offen
    L_noxt:
    ''')
    prep(a)
    if diag: a('s_memrealtime s[42:43]')
    a(f'''
    v_mov_b32 v{t+1}, {LDS_BC}
    s_cmp_lg_u32 s{S_WAVE}, 0
    s_cbranch_scc1 L_slotw
    v_readfirstlane_b32 s{S_T0}, v{V_RANK}
    s_lshl_b32 s{S_SLOT}, s{S_XCC}, 5
    s_add_u32 s{S_SLOT}, s{S_SLOT}, s{S_T0}
    s_cmp_ge_u32 s{S_XCC}, 8
    s_cbranch_scc1 L_ovf
    s_cmp_lt_u32 s{S_T0}, 32
    s_cbranch_scc1 L_slotok
    L_ovf:
    v_mov_b32 v{t}, 1
    s_mov_b64 exec, 1
    s_mov_b32 s{S_T1}, {F_OVF}
    buffer_atomic_add v{t}, v{V_ZERO}, {sr(S_WS,4)}, s{S_T1} offen sc0
    s_waitcnt vmcnt(0)
    s_mov_b64 exec, -1
    v_readfirstlane_b32 s{S_T4}, v{t}
    s_mov_b32 s{S_SPIN}, 0
    v_lshlrev_b32 v{t+2}, 3, v{V_LIN}
    v_and_b32 v{t+2}, 0x780, v{t+2}
    s_mov_b32 s{S_T3}, {F_X}
    L_cl:
    buffer_load_dword v{t}, v{t+2}, {sr(S_WS,4)}, s{S_T3} offen sc1
    s_waitcnt vmcnt(0)
    v_readlane_b32 s{S_T1}, v{t}, 0
    ''')
    for i in range(1,16):
        a(f'v_readlane_b32 s{S_T0}, v{t}, {i}\ns_add_u32 s{S_T1}, s{S_T1}, s{S_T0}')
    a(f'''
    s_cmp_ge_u32 s{S_T1}, 256
    s_cbranch_scc1 L_all
    s_sleep 4
    s_add_u32 s{S_SPIN}, s{S_SPIN}, 1
    s_cmp_lt_u32 s{S_SPIN}, {SPINS}
    s_cbranch_scc1 L_cl
    s_mov_b32 s{S_SLOT}, 0xffff
    s_branch L_slotok
    L_all:
    ''')
    for i in range(8):
        a(f'''
        v_readlane_b32 s{S_T0}, v{t}, {i}
        s_min_u32 s{S_T0}, s{S_T0}, 32
        s_add_u32 s{S_T4}, s{S_T4}, s{S_T0}
        s_add_u32 s{S_SLOT}, s{S_T4}, {32*i}
        s_cmp_lt_u32 s{S_T4}, 32
        s_cbranch_scc1 L_slotok
        s_sub_u32 s{S_T4}, s{S_T4}, 32
        ''')
    a(f'''
    s_mov_b32 s{S_SLOT}, 0xffff
    L_slotok:
    ''')
    a(f'''
    v_mov_b32 v{t}, s{S_SLOT}
    ds_write_b32 v{t+1}, v{t}
    s_waitcnt lgkmcnt(0)
    L_slotw:
    s_barrier
    ds_read_b32 v{t}, v{t+1}
    s_waitcnt lgkmcnt(0)
    v_readfirstlane_b32 s{S_T0}, v{t}
    s_barrier
    s_mov_b32 s{S_SLOT}, s{S_T0}
    s_mov_b32 s{S_ROLE}, s{S_SLOT}
    s_cmp_ge_u32 s{S_SLOT}, 256
    s_cbranch_scc1 L_exit
    s_cmp_ge_u32 s{S_SLOT}, 32
    s_cbranch_scc1 L_worker
    s_cmp_eq_u32 s{S_SLOT}, 31
    s_cbranch_scc1 L_roleW
    s_cmp_eq_u32 s{S_SLOT}, 30
    s_cbranch_scc1 L_roleR
    s_cmp_ge_u32 s{S_SLOT}, 16
    s_cbranch_scc1 L_roleB
    ''')
    team.role_A(a,stamps)
    a.label('L_roleB')
    team.role_B(a,stamps)
    a.label('L_roleR')
    team.role_R(a)
    a.label('L_roleW')
    team.role_W(a)
    a.label('L_roleF')
    team.role_F(a)
    a.label('L_worker')
    a(f'''
    ; ranks 0,1 of dies 1..7 follow the team; the others start with a V unit: u = 30*(die-1) + rank-2
    s_lshr_b32 s{S_T1}, s{S_SLOT}, 5
    s_sub_u32 s{S_T1}, s{S_T1}, 1
    s_and_b32 s{S_T0}, s{S_SLOT}, 31
    s_lshl_b32 s{S_ROLE}, s{S_T1}, 1
    s_add_u32 s{S_ROLE}, s{S_ROLE}, s{S_T0}
    s_cmp_lt_u32 s{S_T0}, 2
    s_cbranch_scc1 L_roleF
    s_mul_i32 s{S_T1}, s{S_T1}, 30
    s_add_u32 s{S_T0}, s{S_T0}, s{S_T1}
    s_sub_u32 s{S_T0}, s{S_T0}, 2
    s_branch L_item
    ''')
    a.label('L_uV'); unit_V(a)
    a.label('L_next')
    a(f'''
    s_cmp_lg_u32 s{S_ERR}, 0
    s_cbranch_scc1 L_end
    v_mov_b32 v{t+1}, {LDS_BC}
    s_cmp_lg_u32 s{S_WAVE}, 0
    s_cbranch_scc1 L_popw
    v_mov_b32 v{t}, 1
    s_mov_b64 exec, 1
    s_mov_b32 s{S_T1}, {F_Q}
    buffer_atomic_add v{t}, v{V_ZERO}, {sr(S_WS,4)}, s{S_T1} offen sc0
    s_waitcnt vmcnt(0)
    ds_write_b32 v{t+1}, v{t}
    s_waitcnt lgkmcnt(0)
    s_mov_b64 exec, -1
    L_popw:
    s_barrier
    ds_read_b32 v{t}, v{t+1}
    s_waitcnt lgkmcnt(0)
    v_readfirstlane_b32 s{S_T0}, v{t}
    s_barrier
    s_add_u32 s{S_T0}, s{S_T0}, 210
    L_item:
    s_cmp_ge_u32 s{S_T0}, {len(TABLE)}
    s_cbranch_scc1 L_end
    s_getpc_b64 s[{S_T2}:{S_T3}]
    L_pc:
    s_add_u32 s{S_T2}, s{S_T2}, L_table-L_pc
    s_addc_u32 s{S_T3}, s{S_T3}, 0
    s_lshl_b32 s{S_T0}, s{S_T0}, 2
    s_load_dword s{S_T0}, s[{S_T2}:{S_T3}], s{S_T0}
    s_waitcnt lgkmcnt(0)
    s_and_b32 s{S_H}, s{S_T0}, 15
    s_bfe_u32 s{S_G}, s{S_T0}, 0x60004
    s_mov_b32 s{S_SEG}, s{S_G}
    s_lshr_b32 s{S_T0}, s{S_T0}, 12
    s_cmp_eq_u32 s{S_T0}, 0
    s_cbranch_scc1 L_uV
    s_cmp_eq_u32 s{S_T0}, 1
    s_cbranch_scc1 L_uQ
    s_cmp_eq_u32 s{S_T0}, 2
    s_cbranch_scc1 L_uM
    s_cmp_eq_u32 s{S_T0}, 6
    s_cbranch_scc1 L_uX
    s_sub_u32 s{S_T5}, s{S_T0}, 4
    s_cmp_ge_u32 s{S_T0}, 4
    s_cbranch_scc1 L_uH
    ''')
    unit_F(a); a('s_branch L_next')
    a.label('L_uH'); unit_V(a,True); a('s_branch L_next')
    a.label('L_uX'); unit_X(a); a('s_branch L_next')
    a.label('L_uQ'); unit_Q(a); a('s_branch L_next')
    a.label('L_uM'); unit_M(a); a('s_branch L_next')
    a.label('L_end')
    if stamps==2:
        a(f'''
        s_cmp_ge_u32 s{S_SLOT}, 30
        s_cbranch_scc1 L_nost
        s_mov_b64 exec, -1
        v_mbcnt_lo_u32_b32 v0, -1, 0
        v_mbcnt_hi_u32_b32 v0, -1, v0
        v_lshlrev_b32 v0, 4, v0
        s_lshl_b32 s44, s{S_WAVE}, 12
        s_add_u32 s45, s44, 147456
        v_add_u32 v1, s45, v0
        s_lshl_b32 s45, s{S_SLOT}, 14
        s_add_u32 s44, s44, s45
        s_add_u32 s44, s44, {WS_TS+0x100000}
        ''')
        for i in range(4):
            a(f'ds_read_b128 v[4:7], v1 offset:{1024*i}\ns_waitcnt lgkmcnt(0)\nbuffer_store_dwordx4 v[4:7], v0, {sr(S_WS,4)}, s44 offen offset:{1024*i}\ns_waitcnt vmcnt(0)')
        a.label('L_nost')
    if diag:
        a(f'''
        s_memtime s[6:7]
        s_memrealtime s[4:5]
        s_waitcnt lgkmcnt(0) vmcnt(0)
        s_sub_u32 s6, s6, s2
        s_lshl_b32 s{S_T0}, s{S_SLOT}, 2
        s_add_u32 s{S_T0}, s{S_T0}, s{S_WAVE}
        s_lshl_b32 s{S_T0}, s{S_T0}, 7
        s_add_u32 s{S_T0}, s{S_T0}, {WS_TS}
        v_mov_b32 v0, 0
        s_mov_b64 exec, 1
        ''')
        for i,sg in enumerate([6,S_ERR,S_STEP,S_SLOW]+list(range(44,56))+[40,42,4,0,2,76,78]):
            a(f'v_mov_b32 v1, s{sg}\nbuffer_store_dword v1, v0, {sr(S_WS,4)}, s{S_T0} offen offset:{4*i}')
        if diag==2:
            a(f'v_mov_b32 v1, s4\nbuffer_atomic_umax v1, v0, {sr(S_DBG,4)}, 0 offen offset:60')
            a(f'v_mov_b32 v1, s42\nbuffer_atomic_umax v1, v0, {sr(S_DBG,4)}, 0 offen offset:56')
            a(f's_or_b32 s{S_T0}, s{S_SLOT}, s{S_WAVE}\ns_cmp_lg_u32 s{S_T0}, 0\ns_cbranch_scc1 L_exit')
            for i,sg in enumerate([40,44,52,54,0,4]):
                a(f'v_mov_b32 v1, s{sg}\nbuffer_store_dword v1, v0, {sr(S_DBG,4)}, 0 offen offset:{32+4*i}')
        a('s_waitcnt vmcnt(0)')
    a.label('L_exit')
    a('s_endpgm')
    a.label('L_codeend')
    a.raw('.p2align 2\n.type L_table,@object\nL_table:\n'+'\n'.join('.long '+','.join(str(x) for x in TABLE[i:i+16]) for i in range(0,len(TABLE),16))+'\n.size L_table, %d'%(4*len(TABLE)))
    a.raw(f'''.section .rodata,"a"
.p2align 6
.amdhsa_kernel {name}
  .amdhsa_next_free_vgpr 512
  .amdhsa_next_free_sgpr 102
  .amdhsa_accum_offset 256
  .amdhsa_group_segment_fixed_size 0
  .amdhsa_kernarg_size 128
  .amdhsa_user_sgpr_count 2
  .amdhsa_user_sgpr_kernarg_segment_ptr 1
  .amdhsa_system_sgpr_workgroup_id_x 1
.end_amdhsa_kernel''')
    return a.text()

if __name__=='__main__':
    if len(sys.argv)==1:
        open('cdna_kernels/'+KN+'.s','w').write(build())
        open('full_diag.s','w').write(build('bench_kernel',diag=True))
        open('full_slow.s','w').write(build('bench_kernel',diag=True,force_slow=True))
        open('full_slow2.s','w').write(build('bench_kernel',diag=True,force_slow=2))
    for arg in sys.argv[1:]:
        nm,_,kv=arg.partition(':')
        base=dict(team.OPT); basew=dict(work.OPTW); st=0; prod=False
        for e in filter(None,kv.split(',')):
            k,v=e.split('=')
            if k=='st': st=int(v)
            elif k=='prod': prod=int(v)
            elif k in work.OPTW: work.OPTW[k]=int(v)
            else: team.OPT[k]=int(v)
        if prod: open(f'exp/{nm}.s','w').write(build(diag=prod-1))
        else: open(f'exp/{nm}.s','w').write(build('bench_kernel',stamps=st,diag=True))
        team.OPT.clear(); team.OPT.update(base); work.OPTW.update(basew)
```

```python
from asmb import *
from layout import *
from work import wait_flags, wait_prog, until_valid, V_L4, V_ZERO, VT, OPTW, LASTSEG, V_LIN as W_LIN
OPT = dict(vload=1, xdma=1, hist=1, full=1, tag=1, tnop=0, vearly=4, xsleep=4, nfl=4, w3del=0, fast=0, adel=36, mdel=0, bdel=0, two=3, wb=0, vnt=0, x0=12, xsp=4, vpf=0, ahead=3, pf=0, xadv=1, rp=4, rm=8, nearly=2, hfirst=0, vsp=2, fgap=9, apos=6, bpos=2, cnt=0, asleep=9, a2sleep=5, a3sleep=2, bsleep=12, pgap=10, agap=12)
S_M0=S_R1

def frag_reg(f, nacc=32, vbase=120):
    return ar(8*f,8) if f<nacc else vr(vbase+8*(f-nacc),8)
def frag_half(f, hf, nacc=32, vbase=120):
    return ar(8*f+4*hf,4) if f<nacc else vr(vbase+8*(f-nacc)+4*hf,4)

class Stamps:
    def __init__(self, a, on): self.a=a; self.on=on; self.n=0
    def init(self, n):
        if OPT['cnt']: self.a('s_mov_b32 s53, 0\ns_mov_b32 s54, 0\ns_mov_b32 s55, 0')
        if not self.on: return
        for i in range(12): self.a(f's_mov_b32 s{44+i}, 0')
        if self.on==1: self.a('s_memtime s[40:41]\ns_waitcnt lgkmcnt(0)\ns_mov_b32 s42, s40')
    def mark(self, i):
        if self.on==1:
            self.a(f's_memtime s[40:41]\ns_waitcnt lgkmcnt(0)\ns_sub_u32 s43, s40, s42\ns_mov_b32 s42, s40\ns_add_u32 s{44+i}, s{44+i}, s43')
    def abs(self, i):
        if self.on==2: self.a(f's_memtime s[{64+2*i}:{65+2*i}]')
    def endstep(self, t, d=0):
        if self.on==2:
            a=self.a
            SK=a.newlabel('nost')
            if d: a(f's_and_b32 s44, s{S_STEP}, 3\ns_cbranch_scc1 {SK}')
            a('s_waitcnt lgkmcnt(0)')
            for i in range(14): a(f'v_writelane_b32 v{t}, s{64+2*i}, {i}')
            a(f'''
            v_mbcnt_lo_u32_b32 v{t+1}, -1, 0
            v_lshlrev_b32 v{t+1}, 2, v{t+1}
            s_lshl_b32 s44, s{S_WAVE}, 6
            s_add_u32 s44, s44, s{S_STEP}
            s_lshl_b32 s44, s44, 6
            s_add_u32 s44, s44, 147456
            v_add_u32 v{t+1}, s44, v{t+1}
            s_mov_b64 exec, 0x3fff
            ds_write_b32 v{t+1}, v{t}
            s_mov_b64 exec, -1
            ''')
            a.label(SK)

def poll_check(a, regs, tmp):
    r=list(regs)
    a(f'v_max3_u32 v{tmp}, v{r[0]}, v{r[1]}, v{r[2]}')
    a(f'v_max3_u32 v{tmp+1}, v{r[3]}, v{r[4]}, v{r[5]}')
    rest=r[6:]
    k=0
    while len(rest)>=2:
        a(f'v_max3_u32 v{tmp+k}, v{tmp+k}, v{rest[0]}, v{rest[1]}'); rest=rest[2:]; k^=1
    a(f'v_max_u32 v{tmp}, v{tmp}, v{tmp+1}')
    a(f'v_cmp_eq_u32 vcc, -1, v{tmp}')


def calib(a):
    L=a.newlabel('cal')
    a('s_memrealtime s[6:7]\ns_waitcnt lgkmcnt(0)')
    a.label(L)
    a(f's_memrealtime s[0:1]\ns_memtime s[2:3]\ns_waitcnt lgkmcnt(0)\ns_cmp_eq_u32 s0, s6\ns_cbranch_scc1 {L}')

def chk4(a, r, tmp):
    a(f'v_max3_u32 v{tmp}, v{r}, v{r+1}, v{r+2}\nv_max_u32 v{tmp}, v{tmp}, v{r+3}\nv_cmp_eq_u32 vcc, -1, v{tmp}')

def repoll(a, load, r, tmp, err):
    L=a.newlabel('rp'); R=a.newlabel('rpr')
    a(f's_cbranch_vccnz {L}')
    a.label(R)
    a.outl.append(('raw',[f'{L}:', load, 's_waitcnt vmcnt(0)',
        f'v_max3_u32 v{tmp}, v{r}, v{r+1}, v{r+2}', f'v_max_u32 v{tmp}, v{tmp}, v{r+3}', f'v_cmp_eq_u32 vcc, -1, v{tmp}',
        f's_cbranch_vccz {R}', f's_add_u32 s{S_SPIN}, s{S_SPIN}, 1', f's_cmp_lt_u32 s{S_SPIN}, {SPIN}', f's_cbranch_scc1 {L}',
        f's_mov_b32 s{S_ERR}, {err}', f's_branch {R}']))

def ring_poll(a, loads, regs, tmp, gap, err):
    n=len(loads); L=a.newlabel('poll'); T=[a.newlabel('first') for _ in range(n)]
    a(f's_mov_b32 s{S_SPIN}, 0')
    for k in range(n):
        a(loads[k])
        if k<n-1 and gap: a(f's_nop {gap}')
    a.label(L)
    for k in range(n):
        a(f's_waitcnt vmcnt({n-1})')
        chk4(a,regs[k],tmp)
        a(f's_cbranch_vccz {T[k]}')
        a(loads[k])
    a(f's_add_u32 s{S_SPIN}, s{S_SPIN}, 1\ns_cmp_lt_u32 s{S_SPIN}, {SPIN}\ns_cbranch_scc1 {L}')
    a(f's_mov_b32 s{S_ERR}, {err}\ns_waitcnt vmcnt(0)')
    return T

def flag_poll(a, load, regs, thr, err, pre=False):
    n=len(regs); L=a.newlabel('fp'); D=a.newlabel('fpd')
    a(f's_mov_b32 s{S_SPIN}, 0')
    if OPT['fast'] and n>1: a('s_mov_b32 s98, 1')
    for k,r in enumerate(regs):
        if pre: break
        a(load(r))
        if k<n-1: a(f's_nop {OPT["fgap"]}')
    a.label(L)
    th=thr if isinstance(thr,str) else f's{thr}'
    for k,r in enumerate(regs):
        if OPT['fast'] and n>1:
            cur,prv=((96,98),(98,96))[k&1]
            a(f's_waitcnt vmcnt({n-1})\nv_cmp_gt_u32 s[{cur}:{cur+1}], {th}, v{r}')
            a(load(r))
            a(f's_cmp_eq_u64 s[{prv}:{prv+1}], 0\ns_cbranch_scc1 {D}')
        else:
            a(f's_waitcnt vmcnt({n-1})\nv_cmp_gt_u32 vcc, {th}, v{r}')
            a(load(r))
            a(f's_cbranch_vccz {D}')
    a(f's_add_u32 s{S_SPIN}, s{S_SPIN}, 1\ns_cmp_lt_u32 s{S_SPIN}, {SPIN}\ns_cbranch_scc1 {L}')
    a(f's_mov_b32 s{S_ERR}, {err}\ns_branch L_end')
    a.label(D)

def redo_block(L, back, loads, regs, tmp, zero, err):
    r=list(regs); o=[f'{L}:']+loads+['s_waitcnt vmcnt(0)', f'v_max3_u32 v{tmp}, v{r[0]}, v{r[1]}, v{r[2]}']
    r=r[3:]
    while len(r)>=2: o.append(f'v_max3_u32 v{tmp}, v{tmp}, v{r[0]}, v{r[1]}'); r=r[2:]
    o+=[f'v_max_u32 v{tmp}, v{tmp}, v{r[0]}', f'v_cmp_eq_u32 vcc, -1, v{tmp}', f's_cbranch_vccz {L}_ok',
        f's_add_u32 s{S_SPIN}, s{S_SPIN}, 1', f's_cmp_lt_u32 s{S_SPIN}, {SPIN}', f's_cbranch_scc1 {L}', f's_mov_b32 s{S_ERR}, {err}', 's_branch L_end',
        f'{L}_ok:']+(['s_add_u32 s55, s55, 1'] if OPT['cnt'] else [])+[f'v_mov_b64 {vr(z,2)}, 0' for z in zero]+['s_nop 1', f's_branch {back}']
    return ('raw',o)

def pub(a, stores, cmp=True):
    L=a.newlabel('slow'); R=a.newlabel('slowr')
    if cmp: a(f's_cmp_lg_u32 s{S_SLOW}, 0')
    a(f's_cbranch_scc1 {L}')
    for x in stores: a(x)
    a.label(R)
    a.outl.append((L,R,[x+' sc1' if x.startswith('buffer_store') else x for x in stores]))

def emit_outl(a):
    for e in a.outl:
        if e[0]=='raw':
            a('\n'.join(e[1])); continue
        L,R,st=e
        a.label(L)
        for x in st: a(x)
        a(f's_branch {R}')
    a.outl=[]

def lane_consts(a, t):
    a(f'v_mbcnt_lo_u32_b32 v{t}, -1, 0\nv_mbcnt_hi_u32_b32 v{t}, -1, v{t}')
    a(f'v_lshrrev_b32 v{t+1}, 4, v{t}\nv_and_b32 v{t+2}, 15, v{t}')

def common_addr(a, t, V_IDX, V_LDSW, V_LIN):
    a(f'''
    v_and_b32 v{t+3}, 1, v{t}
    v_mov_b32 v{V_IDX}, 0x4444
    v_mov_b32 v{t+4}, 0xeeee
    v_cmp_eq_u32 vcc, 1, v{t+3}
    v_cndmask_b32 v{V_IDX}, v{V_IDX}, v{t+4}, vcc
    v_lshlrev_b32 v{V_LIN}, 4, v{t}
    s_lshl_b32 s{S_T0}, s{S_WAVE}, 11
    v_add_u32 v{V_LDSW}, s{S_T0}, v{V_LIN}
    ''')

def team_barrier(a, nteam, tmp):
    L=a.newlabel('tb'); D=a.newlabel('tbd'); K=a.newlabel('tbs')
    a('s_waitcnt vmcnt(0)')
    rt(a,3)
    a('s_barrier')
    a(f's_cmp_lg_u32 s{S_WAVE}, 3\ns_cbranch_scc1 {K}')
    a(f'v_mov_b32 v{tmp}, 1\nv_mov_b32 v{tmp+1}, 0')
    a('s_mov_b64 exec, 1')
    a(f's_lshl_b32 s{S_T0}, s{S_SLOT}, 2\ns_add_u32 s{S_T0}, s{S_T0}, {F_TEAM}')
    pub(a,[f'buffer_store_dword v{tmp}, v{tmp+1}, {sr(S_WS,4)}, s{S_T0} offen'])
    a('s_mov_b64 exec, -1')
    a.label(K)
    a(f's_cmp_eq_u32 s{S_SLOW}, 0\ns_cbranch_scc1 {D}')
    team_wait(a,'L_end',tmp)
    a.label(D)

def team_wait(a, end, t):
    B0=a.newlabel('tw')
    a(f'''
    v_mbcnt_lo_u32_b32 v{t+1}, -1, 0
    v_min_u32 v{t+1}, {NTEAM-1}, v{t+1}
    v_lshlrev_b32 v{t+1}, 2, v{t+1}
    s_mov_b32 s{S_SPIN}, 0
    s_mov_b32 s{S_T0}, {F_TEAM}
    {B0}:
    buffer_load_dword v{t}, v{t+1}, {sr(S_WS,4)}, s{S_T0} offen sc1
    s_waitcnt vmcnt(0)
    v_cmp_eq_u32 vcc, 0, v{t}
    s_cbranch_vccz {B0}_d
    s_sleep 2
    s_add_u32 s{S_SPIN}, s{S_SPIN}, 1
    s_cmp_lt_u32 s{S_SPIN}, {SPIN}
    s_cbranch_scc1 {B0}
    s_mov_b32 s{S_ERR}, 6
    s_branch {end}
    {B0}_d:
    ''')

def census(a, t):
    L=a.newlabel('cen'); D=a.newlabel('cend')
    a(f'''
    v_mbcnt_lo_u32_b32 v{t+1}, -1, 0
    v_and_b32 v{t+1}, 15, v{t+1}
    v_lshlrev_b32 v{t+1}, 4, v{t+1}
    s_mov_b32 s{S_SPIN}, 0
    {L}:
    buffer_load_dword v{t}, v{t+1}, {sr(S_DBG,4)}, 0 offen sc1
    s_waitcnt vmcnt(0)
    v_readlane_b32 s{S_PF}, v{t}, 0
    s_mov_b32 s{S_SLOW}, {1 if a.force_slow else 0}
    s_cmp_ge_u32 s{S_PF}, 31
    s_cbranch_scc1 {D}
    s_mov_b32 s{S_SLOW}, 1
    ''')
    for i in range(1,16): a(f'v_readlane_b32 s{S_T0}, v{t}, {i}\ns_add_u32 s{S_PF}, s{S_PF}, s{S_T0}')
    a(f'''
    s_cmp_ge_u32 s{S_PF}, 256
    s_cbranch_scc1 {D}
    s_sleep 2
    s_add_u32 s{S_SPIN}, s{S_SPIN}, 1
    s_cmp_lt_u32 s{S_SPIN}, {SPINS}
    s_cbranch_scc1 {L}
    s_mov_b32 s{S_ERR}, 7
    s_branch L_end
    {D}:
    ''')

def stage_of(dt): return 1 if dt%7<OPTW['st1'] else 2 if dt%7<OPTW['st2'] else 3
SMF='v_smfmac_f32_16x16x64_bf16'
def role_A(a, stamps=False, end='L_end'):
    st=Stamps(a,stamps)
    MEMA=0; XB=28; ACC=60; SACC=88; QA=100
    V_IDX,V_LIN,V_LDSW,V_XG,V_XR,V_QW,V_QW2,V_QW6,V_PSX,V_PSM,V_EW,V_ER=range(108,120)
    V_PFD=QA+6; V_EV=QA+7
    CT=QA
    LDS_QT=0; LDS_SP=8192; LDS_X=16384
    S_PH=S_T4; S_PAR=S_T5; S_INC=S_MNXT; S_THR=S_MBO; S_M2=S_VRDY
    rt(a,0)
    t=0
    lane_consts(a,t)
    common_addr(a,t,V_IDX,V_LDSW,V_LIN)
    a(f's_lshr_b32 s{S_PH}, s{S_WAVE}, 1\ns_and_b32 s{S_PAR}, s{S_WAVE}, 1')
    a(f's_lshl_b32 s{S_T0}, s{S_WAVE}, 13\nv_add_u32 v{V_XG}, s{S_T0}, v{V_LIN}\nv_add_u32 v{V_XR}, 4096, v{V_XG}')
    def xload(ks):
        return [f'buffer_load_dwordx4 {vr(XB+16*kt+8*ks+4*hf,4)}, v{V_XR if kt else V_XG}, {sr(S_WS,4)}, s{S_XOFF} offen offset:{2048*ks+1024*hf} sc1' for kt in range(2) for hf in range(2)]
    a(f'''
    v_lshlrev_b32 v{t+3}, 9, v{t+1}
    v_lshrrev_b32 v{t+4}, 3, v{t+2}
    v_mul_u32_u24 v{t+5}, 28672, v{t+4}
    v_add_u32 v{t+5}, v{t+5}, v{t+3}
    v_and_b32 v{t+6}, 7, v{t+2}
    v_lshl_add_u32 v{t+5}, v{t+6}, 4, v{t+5}
    v_lshl_add_u32 v{t+7}, v{t+4}, 8, v{t+3}
    v_lshl_add_u32 v{t+7}, v{t+6}, 4, v{t+7}
    s_mul_i32 s{S_T0}, s{S_ROLE}, {MAT}
    s_lshl_b32 s{S_T1}, s{S_PAR}, 7
    s_add_u32 s{S_T0}, s{S_T0}, s{S_T1}
    s_add_u32 s{S_T0}, s{S_T0}, {WS_A}
    s_mul_i32 s{S_T1}, s{S_PH}, {4*28672}
    s_add_u32 s{S_T1}, s{S_T1}, s{S_T0}
    s_mul_i32 s{S_T2}, s{S_PH}, 28672
    s_add_u32 s{S_T2}, s{S_T2}, s{S_T0}
    ''')
    a(f's_lshl_b32 s{S_RST}, s{S_ROLE}, 7\ns_add_u32 s{S_RST}, s{S_RST}, {F_W}\nv_lshlrev_b32 v{t+8}, 2, v{t}')
    rt(a,1)
    for stage in (1,2,3):
        wait_flags(a,t+8,f's{S_RST}',7,stage,sleep=1,t=t+10)
        if stage==1: rt(a,2)
        n=0
        for tp in range(4):
            for dt in range(14):
                if stage_of(dt)!=stage: continue
                ks,hf=dt>>1,dt&1
                if tp<3: a(f's_add_u32 s{S_XOFF}, s{S_T1}, {(2*tp if tp<2 else 8)*28672+dt*2048}')
                else: a(f's_add_u32 s{S_XOFF}, s{S_T2}, {10*28672+dt*2048}')
                for e in range(2 if tp<3 else 1):
                    a(f'buffer_load_dwordx4 {frag_half((2*tp+e)*7+ks,hf)}, v{t+5 if tp<3 else t+7}, {sr(S_WS,4)}, s{S_XOFF} offen offset:{e*256} sc1')
    a(f'''
    s_lshl_b32 s{S_T0}, s{S_WAVE}, 11
    v_lshlrev_b32 v{t+5}, 6, v{t+1}
    v_add_u32 v{t+5}, s{S_T0}, v{t+5}
    v_lshrrev_b32 v{t+3}, 3, v{t+2}
    v_lshl_add_u32 v{V_QW}, v{t+3}, 8, v{t+5}
    v_and_b32 v{t+3}, 1, v{t+2}
    v_lshl_add_u32 v{V_QW}, v{t+3}, 4, v{V_QW}
    v_bfe_u32 v{t+4}, v{t+2}, 1, 2
    v_lshl_add_u32 v{V_QW}, v{t+4}, 2, v{V_QW}
    s_lshl_b32 s{S_T0}, s{S_PH}, 9
    v_add_u32 v{V_QW2}, s{S_T0}, v{V_QW}
    v_lshl_add_u32 v{V_QW6}, v{t+3}, 4, v{t+5}
    v_lshl_add_u32 v{V_QW6}, v{t+4}, 2, v{V_QW6}
    v_lshrrev_b32 v{t+4}, 3, v{t+2}
    v_lshl_add_u32 v{V_QW6}, v{t+4}, 1, v{V_QW6}
    s_lshl_b32 s{S_T0}, s{S_PH}, 8
    s_sub_u32 s{S_T0}, 512, s{S_T0}
    v_add_u32 v{V_QW6}, s{S_T0}, v{V_QW6}
    v_mov_b32 v{t+8}, 0
    v_mov_b32 v{t+9}, 0
    v_mov_b32 v{t+10}, 0
    v_mov_b32 v{t+11}, 0
    ds_write_b128 v{V_LDSW}, {vr(t+8,4)} offset:{LDS_QT+1024}
    v_mov_b32 v{t+15}, -1
    ds_write_b128 v{V_LDSW}, {vr(t+12,4)} offset:{LDS_SP}
    ds_write_b128 v{V_LDSW}, {vr(t+12,4)} offset:{LDS_SP+1024}
    s_waitcnt lgkmcnt(0)
    ''')
    a(f'''
    ; x part: 3072(h>>2)+512(h&3) + 256(n>>3)+64q+32u+4(n&7) ; mem part: 3072(h>>2)+2048+512((h>>1)&1)+16(h&1) + 256(n>>3)+64q+32u+4((n>>1)&3)
    s_lshr_b32 s{S_T0}, s{S_ROLE}, 2
    s_mul_i32 s{S_T0}, s{S_T0}, 3072
    s_lshl_b32 s{S_T1}, s{S_PAR}, 5
    s_add_u32 s{S_T0}, s{S_T0}, s{S_T1}
    v_lshrrev_b32 v{t+3}, 3, v{t+2}
    v_lshlrev_b32 v{t+3}, 8, v{t+3}
    v_lshl_add_u32 v{t+3}, v{t+1}, 6, v{t+3}
    v_add_u32 v{t+3}, s{S_T0}, v{t+3}
    v_and_b32 v{t+4}, 7, v{t+2}
    v_lshl_add_u32 v{V_PSX}, v{t+4}, 2, v{t+3}
    s_and_b32 s{S_T1}, s{S_ROLE}, 3
    s_lshl_b32 s{S_T1}, s{S_T1}, 9
    v_add_u32 v{V_PSX}, s{S_T1}, v{V_PSX}
    v_bfe_u32 v{t+4}, v{t+2}, 1, 2
    v_lshl_add_u32 v{V_PSM}, v{t+4}, 2, v{t+3}
    s_and_b32 s{S_T1}, s{S_ROLE}, 2
    s_lshl_b32 s{S_T1}, s{S_T1}, 8
    s_and_b32 s{S_T2}, s{S_ROLE}, 1
    s_lshl_b32 s{S_T2}, s{S_T2}, 4
    s_add_u32 s{S_T1}, s{S_T1}, s{S_T2}
    s_add_u32 s{S_T1}, s{S_T1}, 2048
    v_add_u32 v{V_PSM}, s{S_T1}, v{V_PSM}
    s_mov_b32 s{S_XOFF}, {WS_XF-32768}
    v_lshlrev_b32 v{V_EW}, 7, v{t}
    s_lshl_b32 s{S_T0}, s{S_ROLE}, 1
    s_add_u32 s{S_T0}, s{S_T0}, {F_EP}
    v_add_u32 v{V_EW}, s{S_T0}, v{V_EW}
    v_mov_b32 v{t+3}, 0x7f000000
    v_cmp_gt_u32 vcc, {OPT['rp']}, v{t}
    v_cndmask_b32 v{V_EW}, v{t+3}, v{V_EW}, vcc
    v_min_u32 v{t+3}, 13, v{t}
    s_and_b32 s{S_T0}, s{S_ROLE}, {OPT['rm']//2-1}
    s_lshl_b32 s{S_T0}, s{S_T0}, 7
    s_add_u32 s{S_T0}, s{S_T0}, {F_EM}
    v_lshl_add_u32 v{V_ER}, v{t+3}, 1, s{S_T0}
    ''')
    a(f'v_mov_b32 v{t+12}, -1\ns_waitcnt vmcnt(24)')
    ini=[]
    for k in range(4):
        ini+=[f's_mov_b32 s{S_T0}, {WS_PR+16384*k}']+[f'buffer_store_dword v{t+12}, v{r}, {sr(S_WS,4)}, s{S_T0} offen' for r in (V_PSX,V_PSM)]
    pub(a,ini)
    for k in range(4):
        a(f's_mov_b32 s{S_T0}, {WS_PR+16384*k}')
        for r in (V_PSX,V_PSM): a(f'buffer_load_dword v{t+13}, v{r}, {sr(S_WS,4)}, s{S_T0} offen sc1')
    team_barrier(a,NTEAM,t+8)
    a(f'''
    s_mov_b32 s{S_STEP}, 0
    s_lshl_b32 s{S_PF}, s{S_ROLE}, 11
    s_lshl_b32 s{S_T0}, s{S_PAR}, 10
    s_add_u32 s{S_PF}, s{S_PF}, s{S_T0}
    s_add_u32 s{S_PF}, s{S_PF}, {WS_XF+2*32768}
    ''')
    if a.diag: calib(a)
    st.init(8)
    a(f'''
    s_mov_b32 s{S_MCUR}, {WS_MEMR}
    s_mov_b32 s{S_M2}, {WS_MEMR+4096}
    s_mov_b32 s{S_PCUR}, {WS_PR}
    s_mov_b32 s{S_RST}, {WS_PR+3*16384}
    s_mov_b32 s{S_XOFF}, {WS_XF}
    s_xor_b32 s{S_INC}, s{S_SLOW}, 1
    s_mov_b32 s{S_THR}, s{S_INC}
    ''')
    a(f's_mov_b32 s{S_T0}, {F_EP+66}\nv_mov_b32 v{QA}, 0')
    flag_poll(a, lambda r: f'buffer_load_ushort v{r}, v{QA}, {sr(S_WS,4)}, s{S_T0} offen sc1', [QA+1], '1', 1)
    for l_ in xload(0): a(l_)
    EN=[a.newlabel('Aent') for _ in range(4)]
    for w in (1,2,3): a(f's_cmp_eq_u32 s{S_WAVE}, {w}\ns_cbranch_scc1 {EN[w]}')
    a(f's_branch {EN[0]}')
    ml=[f'buffer_load_dwordx4 {vr(MEMA+4*k,4)}, v{V_LIN}, {sr(S_WS,4)}, s{S_MCUR if k<4 else S_M2} offen offset:{1024*(k%4)} sc1' for k in range(7)]
    def chk(k,first):
        r=MEMA+4*k
        if first: return [f'v_max3_u32 v{CT}, v{r}, v{r+1}, v{r+2}', f'v_max_u32 v{CT}, v{CT}, v{r+3}']
        return [f'v_max3_u32 v{CT}, v{CT}, v{r}, v{r+1}', f'v_max3_u32 v{CT}, v{CT}, v{r+2}, v{r+3}']
    CMP=f'v_cmp_eq_u32 vcc, -1, v{CT}'
    def post(tl):
        tp=tl>>1; e=ACC+8*tp; o_=e+4
        vq=V_QW if tp<2 else V_QW2
        if not tl&1: return [f'v_add_f32 v{e}, v{e}, v{e+1}', f'v_add_f32 v{e+2}, v{e+2}, v{e+3}']
        return [f'v_add_f32 v{o_}, v{o_}, v{o_+1}', f'v_cvt_pk_bf16_f32 v{e+1}, v{e}, v{o_}', f'ds_write_b32 v{vq}, v{e+1} offset:{LDS_QT+512*tp}',
                f'v_add_f32 v{o_+2}, v{o_+2}, v{o_+3}', f'v_cvt_pk_bf16_f32 v{e+3}, v{e+2}, v{o_+2}', f'ds_write_b32 v{vq}, v{e+3} offset:{LDS_QT+512*tp+32}']
    seq=[(tl,ks) for ks in range(3) for tl in range(7)]+[(tl,ks) for ks in (3,4,5,6) for tl in (0,1)]+[(tl,ks) for tl in range(2,7) for ks in (3,4,5,6)]
    for w in range(4):
        ph,par=w>>1,w&1
        LOOP=a.newlabel('Aloop'); G0=a.newlabel('Ago'); RDO=a.newlabel('Aredo')
        a.raw('.p2align 6')
        a.label(LOOP)
        sl=OPT['xsleep']+(OPT['a2sleep'] if w==2 else OPT['a3sleep'] if w==3 else 0)
        if sl: a(f's_sleep {sl}')
        for l_ in xload(0): a(l_)
        if w==3: a(f's_sleep {OPT["asleep"]-OPT["xsleep"]}')
        a.label(EN[w])
        for r in range(ACC,SACC+12,2): a(f'v_mov_b64 {vr(r,2)}, 0')
        if w==3: flag_poll(a, lambda r: f'buffer_load_ushort v{r}, v{V_ER}, {sr(S_WS,4)}, 0 offen sc1', [QA+k for k in range(OPT['nfl'])], S_THR, 1)
        if w==3 and OPT['mdel']: a(f's_nop {OPT["mdel"]-1}')
        a('s_barrier')
        for k in range(4):
            a(ml[k])
            if k==0: st.abs(8)
            if k<3: a(f's_nop {OPT["agap"]}')
        a.outl.append(redo_block(RDO,G0,ml,range(MEMA,MEMA+28),CT,range(ACC,ACC+28,2),1))
        a.label(G0)
        xl=xload(1)
        mem={0:('m4',ml[4]),4:('m5',ml[5]),8:('m6',ml[6])}
        for k in range(4): mem[OPT['x0']+OPT['xsp']*k]=('x1',xl[k])
        val={}; sal={}
        for k,g in ((0,0),(1,7)):
            val[g],val[g+1]=chk(k,True); val[g+2]=CMP; sal[g+5]=f's_cbranch_vccnz {RDO}'
        val[14],val[15]=chk(2,True)
        for k in (3,4,5,6): val[21+2*(k-3)],val[22+2*(k-3)]=chk(k,False)
        val[29]=CMP; sal[32]=f's_cbranch_vccnz {RDO}'
        if OPT['tag']: late=[f'v_mov_b32 v{ACC+3+4*u}, s{S_STEP}' for u in range(2) if u!=w]
        else: late=[]
        a.vq=['m0','m1','m2','m3']
        q=[]
        a.wait_vm('m0')
        st.abs(0)
        for g,(tl,ks) in enumerate(seq):
            a(f'{SMF} {vr(ACC+4*tl,4)}, {vr(MEMA+4*ks,4)}, {frag_reg(tl*7+ks)}, v{V_IDX}')
            if g==21: st.abs(1)
            if g in sal: a(sal[g])
            usedmem=False
            if g in mem: a.vm(mem[g][1],mem[g][0]); usedmem=True
            if g+1<len(seq): a.wait_vm(f'm{seq[g+1][1]}')
            if not usedmem and q and q[0][0]<=g and q[0][1].startswith('ds_'): a(q.pop(0)[1])
            if g in val: a(val[g])
            elif q and q[0][0]<=g and not q[0][1].startswith('ds_'): a(q.pop(0)[1])
            elif late and g>=40: a(late.pop(0))
            if ks==6 and tl<6:
                q+=[(g+3,o) for o in post(tl)]
                if tl==3: q.append((g+3,f'ds_read_b128 {vr(QA,4)}, v{V_LDSW} offset:{LDS_QT}'))
        st.abs(2)
        L6=ACC+24
        assert not late
        pend=[o for _,o in q]
        assert not any('ds_read' in o for o in pend)
        pend=[o for o in pend if not o.startswith('ds_')]+[o for o in pend if o.startswith('ds_')]
        last=[f'v_add_f32 v{L6}, v{L6}, v{L6+1}', f'v_add_f32 v{L6+2}, v{L6+2}, v{L6+3}', f'v_cvt_pk_bf16_f32 v{L6}, v{L6}, v{L6+2}',
              f'ds_write_b16 v{V_QW6}, v{L6} offset:{LDS_QT+1024}', f'ds_write_b16_d16_hi v{V_QW6}, v{L6} offset:{LDS_QT+1024+32}',
              f'ds_read_b128 {vr(QA+4,4)}, v{V_LDSW} offset:{LDS_QT+1024}']
        for o in pend+last: a(o)
        a(f's_waitcnt vmcnt(0) lgkmcnt({sum(1 for o in pend+last if o.startswith("ds_"))})'); a.vq=[]
        a(f'{SMF} {vr(SACC,4)}, {vr(QA,4)}, {vr(XB,8)}, v{V_IDX}')
        a(f'{SMF} {vr(SACC+4,4)}, {vr(QA,4)}, {vr(XB+16,8)}, v{V_IDX}')
        a(f'{SMF} {vr(SACC+8,4)}, {vr(QA,4)}, {vr(MEMA+8*ph,8)}, v{V_IDX}')
        a('s_waitcnt lgkmcnt(0)')
        a(f'{SMF} {vr(SACC+8,4)}, {vr(QA+4,4)}, {vr(MEMA+16+4*ph,8)}, v{V_IDX}')
        a(f'{SMF} {vr(SACC,4)}, {vr(QA+4,4)}, {vr(XB+8,8)}, v{V_IDX}')
        a(f'{SMF} {vr(SACC+4,4)}, {vr(QA+4,4)}, {vr(XB+24,8)}, v{V_IDX}')
        st.abs(3)
        E=ACC
        qp='[0,0,2,2]' if par==0 else '[1,1,3,3]'
        a(f'v_add_f32 v{E+8}, v{SACC+8}, v{SACC+9}\nv_add_f32 v{E+9}, v{SACC+10}, v{SACC+11}')
        a(f'v_add_f32 v{E}, v{SACC}, v{SACC+1}\nv_add_f32 v{E+4}, v{SACC+2}, v{SACC+3}')
        a(f'v_mov_b32_dpp v{E+2}, v{E+8} quad_perm:{qp} row_mask:0xf bank_mask:0xf')
        a(f'v_mov_b32_dpp v{E+6}, v{E+9} quad_perm:{qp} row_mask:0xf bank_mask:0xf')
        for u in ((1,0) if w==0 else (0,1)):
            a(f'v_add_f32 v{E+1+4*u}, v{SACC+4+2*u}, v{SACC+5+2*u}')
            if u!=w: a(f'ds_write_b128 v{V_LDSW}, {vr(E+4*u,4)} offset:{LDS_SP+1024*u}')
        ew=f'buffer_store_short v{XB}, v{V_EW}, {sr(S_WS,4)}, 0 offen'
        if st.on==2: ew='s_memtime s[82:83]\n'+ew
        if not OPT['tag']: a('s_waitcnt lgkmcnt(0)')
        elif OPT['tnop']: a(f's_nop {OPT["tnop"]-1}')
        a('s_barrier')
        if w<2:
            u=w; Y=E+4*u; R=E+12; X=E+24; RR=a.newlabel('Arr')
            a.label(RR)
            for k,ww in enumerate([x for x in range(4) if x!=u]):
                a(f'ds_read_b128 {vr(R+4*k,4)}, v{V_LIN} offset:{LDS_SP+2048*ww+1024*u}')
            a(f'v_mov_b32 v{XB+1}, -1\ns_cmp_lg_u32 s{S_SLOW}, 0')
            a('s_waitcnt lgkmcnt(2)')
            for k in range(3): a(f'v_add_f32 v{X+k}, v{Y+k}, v{R+k}')
            a('s_waitcnt lgkmcnt(0)')
            if OPT['tag']: a(f'v_min3_i32 v{R+3}, v{R+3}, v{R+7}, v{R+11}\nv_cmp_ne_u32 vcc, s{S_STEP}, v{R+3}')
            for k in range(3): a(f'v_add_f32 v{R+4+k}, v{R+4+k}, v{R+8+k}')
            for k in range(3): a(f'v_add_f32 v{X+k}, v{X+k}, v{R+4+k}')
            st.abs(5)
            M=X+3
            a(f'v_max3_f32 v{M}, v{X}, v{X+1}, v{X+2}')
            if OPT['tag']:
                if OPT['cnt']:
                    a(f's_cbranch_vccnz {RR}_c'); a.outl.append(('raw',[f'{RR}_c:','s_add_u32 s54, s54, 1',f's_branch {RR}']))
                else: a(f's_cbranch_vccnz {RR}')
            for i_,sh in enumerate((1,2,4,8)):
                a(f'v_max_f32_dpp v{M}, v{M}, v{M} row_ror:{sh} row_mask:0xf bank_mask:0xf')
            for k in range(3): a(f'v_sub_f32 v{X+k}, v{X+k}, v{M}')
            for k in range(3): a(f'v_exp_f32 v{X+k}, v{X+k}')
            a(f'v_add_f32 v{M}, v{X}, v{X+1}')
            a(f'v_fmac_f32 v{M}, 0.5, v{X+2}')
            for sh in (1,2,4,8): a(f'v_add_f32_dpp v{M}, v{M}, v{M} row_ror:{sh} row_mask:0xf bank_mask:0xf')
            a(f'v_rcp_f32 v{M}, v{M}')
            for k in range(3): a(f'v_mul_f32 v{X+k}, v{X+k}, v{M}')
            a(f'v_cvt_pk_bf16_f32 v{X}, |v{X}|, |v{X+1}|\nv_cvt_pk_bf16_f32 v{X+2}, |v{X+2}|, |v{X+2}|')
            st.abs(6)
            pub(a,[f'buffer_store_dword v{X}, v{V_PSX}, {sr(S_WS,4)}, s{S_PCUR} offen',
                   f'buffer_store_dword v{X+2}, v{V_PSM}, {sr(S_WS,4)}, s{S_PCUR} offen',
                   f'buffer_store_dword v{XB+1}, v{V_PSX}, {sr(S_WS,4)}, s{S_RST} offen',
                   f'buffer_store_dword v{XB+1}, v{V_PSM}, {sr(S_WS,4)}, s{S_RST} offen'], cmp=False)
        if w==3:
            a(f's_add_u32 s{S_T0}, s{S_STEP}, 1\nv_mov_b32 v{XB}, s{S_T0}')
            d=OPT['adel']
            while d>0: a(f's_nop {min(d,16)-1}'); d-=16
            a(ew)
        st.endstep(ACC+8)
        if a.diag and not st.on:
            K8=a.newlabel('s8')
            a(f's_cmp_lg_u32 s{S_STEP}, 7\ns_cbranch_scc1 {K8}\ns_memtime s[90:91]')
            a.label(K8)
        a(f'''
        s_mov_b32 s{S_RST}, s{S_PCUR}
        s_add_u32 s{S_PCUR}, s{S_PCUR}, 0x4000
        s_and_b32 s{S_PCUR}, s{S_PCUR}, 0xc000
        s_add_u32 s{S_PCUR}, s{S_PCUR}, {WS_PR}
        s_add_u32 s{S_MCUR}, s{S_MCUR}, 0x2000
        s_and_b32 s{S_MCUR}, s{S_MCUR}, 0x6000
        s_add_u32 s{S_MCUR}, s{S_MCUR}, {WS_MEMR}
        s_add_u32 s{S_M2}, s{S_MCUR}, 4096
        s_add_u32 s{S_XOFF}, s{S_XOFF}, 32768
        s_add_u32 s{S_THR}, s{S_THR}, s{S_INC}
        s_add_u32 s{S_STEP}, s{S_STEP}, 1
        s_cmp_lt_u32 s{S_STEP}, {NSTEP}
        s_cbranch_scc1 {LOOP}
        s_branch {end}
        ''')
    emit_outl(a)

MEMA=0; VP=28; MBOP=60; FACC=84; PP=92; MBP=104; STG=132
B_IDX,B_M4,B_LDSW,B_LIN,B_VG,B_PX,B_PM,B_MST,B_WL,B_FW,B_INC,B_HIST,TMP=range(164,177)
B_THR=B_LDSW
B_EW,B_ER,B_EV,B_EM,FR=112,113,114,115,124
LDS_MEM=0; LDS_FP=8192; LDS_W=16384
bfr=lambda f: frag_reg(f,32,192)
stg=lambda n: [(f'ds_read_b128 {vr(STG+16*(n&1)+4*k,4)}, v{B_WL} offset:{(n%8)*4096+k*1024}',f's{n}') for k in range(4)]

def b_setup(a):
    t=0
    lane_consts(a,t)
    common_addr(a,t,B_IDX,B_LDSW,B_LIN)
    a(f'''
    v_lshlrev_b32 v{B_VG}, 9, v{t+1}
    v_lshl_add_u32 v{B_VG}, v{t+2}, 4, v{B_VG}
    s_lshl_b32 s{S_T0}, s{S_WAVE}, 15
    v_add_u32 v{B_WL}, s{S_T0}, v{B_LIN}
    v_add_u32 v{B_WL}, {LDS_W}, v{B_WL}
    ''')

def b_weights(a, team):
    a(f'''
    v_lshrrev_b32 v3, 3, v0
    v_lshlrev_b32 v3, 7, v3
    v_and_b32 v4, 7, v0
    v_min_u32 v4, 6, v4
    v_lshl_add_u32 v3, v4, 2, v3
    s_lshl_b32 s{S_T0}, s{S_WAVE}, 9
    s_add_u32 s{S_T0}, s{S_T0}, {F_W+16*128}
    ''')
    a(f'''
    s_mov_b32 s{S_RST}, s{S_T0}
    s_lshl_b32 s{S_T0}, s{S_WAVE}, 2
    s_mul_i32 s{S_T0}, s{S_T0}, {MAT}
    s_mul_i32 s{S_T1}, s{S_ROLE}, 28672
    s_add_u32 s{S_T1}, s{S_T1}, s{S_T0}
    s_add_u32 s{S_T1}, s{S_T1}, {WS_B}
    s_lshl_b32 s{S_T2}, s{S_WAVE}, 15
    s_add_u32 s{S_T2}, s{S_T2}, {LDS_W}
    ''')
    rt(a,1)
    for stage in (1,2,3):
        wait_flags(a,3,f's{S_RST}',32,stage,sleep=1,t=8)
        if stage==1: rt(a,2)
        for hd in range(4):
            if hd==3: a('s_waitcnt vmcnt(40)')
            for dt in range(14):
                if stage_of(dt)!=stage: continue
                ks,hf=dt>>1,dt&1
                a(f's_add_u32 s{S_XOFF}, s{S_T1}, {hd*MAT+dt*2048}')
                for tt in range(2):
                    tile=2*hd+tt; imm=tt*256
                    if ks<5:
                        a(f'buffer_load_dwordx4 {frag_half(tile*5+ks,hf,32,192)}, v{B_VG}, {sr(S_WS,4)}, s{S_XOFF} offen offset:{imm} sc1')
                    else:
                        a(f's_add_u32 m0, s{S_T2}, {tile*4096+(2*(ks-5)+hf)*1024-imm}')
                        a(f'buffer_load_dwordx4 v{B_VG}, {sr(S_WS,4)}, s{S_XOFF} offen offset:{imm} sc1 lds')

def b_gemm(a, ACCS, post, hook):
    seq=[(tl,ks) for ks in range(7) for tl in (0,1)]+[(tl,ks) for tl in range(2,8) for ks in range(7)]
    a.dq=[f'm{k}' for k in range(7)]
    fill=[]; rd=[]
    for i,(tile,ks) in enumerate(seq):
        a.wait_ds(f'm{ks}')
        if ks==5: a.wait_ds(f's{tile}')
        src = bfr(tile*5+ks) if ks<5 else vr(STG+16*(tile&1)+8*(ks-5),8)
        a(f'{SMF} {vr(ACCS[tile],4)}, {vr(MEMA+4*ks,4)}, {src}, v{B_IDX}')
        hook(i,'salu')
        if not hook(i,'mem') and rd: a.ds(*rd.pop(0))
        if i+1<len(seq):
            a.wait_ds(f'm{seq[i+1][1]}')
            if seq[i+1][1]==5: a.wait_ds(f's{seq[i+1][0]}')
        if not hook(i,'valu') and fill and fill[0][0]<=i: a(fill.pop(0)[1])
        if ks==6:
            fill+=[(i+3,o) for o in post(tile)]
            rd+=stg(tile+2)
    for o in rd: a.ds(*o)
    for _,f in fill: a(f)
    a.dq=[]

def role_B(a, stamps=False, end='L_end'):
    st=Stamps(a,stamps)
    rt(a,0)
    a(f's_sub_u32 s{S_ROLE}, s{S_ROLE}, 16')
    srd(a,S_M0,P_MEM0,7168)
    t=0
    b_setup(a)
    b_weights(a,True)
    a(f'''
    s_mul_i32 s{S_T0}, s{S_WAVE}, 3072
    v_add_u32 v{B_PX}, s{S_T0}, v{B_LIN}
    ; mem store: 512j + 256(n>>3) + 32*(2q+u) + 4(n&7), u = wave
    s_lshl_b32 s{S_T0}, s{S_ROLE}, 9
    s_lshl_b32 s{S_T1}, s{S_WAVE}, 5
    s_add_u32 s{S_T0}, s{S_T0}, s{S_T1}
    v_lshlrev_b32 v{B_MST}, 6, v{t+1}
    v_lshrrev_b32 v{t+3}, 3, v{t+2}
    v_lshl_add_u32 v{B_MST}, v{t+3}, 8, v{B_MST}
    v_and_b32 v{t+3}, 7, v{t+2}
    v_lshl_add_u32 v{B_MST}, v{t+3}, 2, v{B_MST}
    v_add_u32 v{B_MST}, s{S_T0}, v{B_MST}
    v_lshrrev_b32 v{B_FW}, 1, v{B_LDSW}
    v_mov_b32 v{t+4}, 0
    ds_write_b64 v{B_FW}, {vr(t+4,2)} offset:{LDS_FP}
    ds_write_b64 v{B_FW}, {vr(t+4,2)} offset:{LDS_FP+512}
    s_waitcnt lgkmcnt(0)
    v_add_u32 v{B_M4}, 4096, v{B_LIN}
    v_lshlrev_b32 v{B_EW}, 7, v{t}
    s_lshl_b32 s{S_T1}, s{S_ROLE}, 1
    s_add_u32 s{S_T1}, s{S_T1}, {F_EM}
    v_add_u32 v{B_EW}, s{S_T1}, v{B_EW}
    v_mov_b32 v{t+3}, 0x7f000000
    v_cmp_gt_u32 vcc, {OPT['rm']}, v{t}
    v_cndmask_b32 v{B_EW}, v{t+3}, v{B_EW}, vcc
    v_and_b32 v{t+3}, 15, v{t}
    v_lshlrev_b32 v{t+3}, 1, v{t+3}
    v_cmp_gt_u32 vcc, 32, v{t}
    v_cndmask_b32 v{t+3}, 64, v{t+3}, vcc
    s_and_b32 s{S_T1}, s{S_ROLE}, {OPT['rp']-1}
    s_lshl_b32 s{S_T1}, s{S_T1}, 7
    s_add_u32 s{S_T1}, s{S_T1}, {F_EP}
    v_add_u32 v{B_ER}, s{S_T1}, v{t+3}
    s_xor_b32 s{S_T1}, s{S_SLOW}, 1
    v_mov_b32 v{t+3}, s{S_T1}
    v_cndmask_b32 v{B_INC}, 1, v{t+3}, vcc
    v_cndmask_b32 v{B_THR}, -1, 0, vcc
    v_cmp_gt_u32 vcc, 48, v{t}
    v_add_u32 v{t+3}, 2, v{B_ER}
    v_cndmask_b32 v{B_ER}, v{t+3}, v{B_ER}, vcc
    v_cndmask_b32 v{B_THR}, 1, v{B_THR}, vcc
    v_min_u32 v{t+3}, 13, v{t}
    s_and_b32 s{S_T0}, s{S_ROLE}, {OPT['rm']//2-1}
    s_lshl_b32 s{S_T0}, s{S_T0}, 7
    s_add_u32 s{S_T0}, s{S_T0}, {F_EM+OPT['rm']//2*128}
    v_lshl_add_u32 v{B_EM}, v{t+3}, 1, s{S_T0}
    ''')
    K=a.newlabel('Bi')
    a(f's_cmp_ge_u32 s{S_WAVE}, 2\ns_cbranch_scc1 {K}')
    a(f'''
    v_lshl_add_u32 v{t+3}, v{t+1}, 1, s{S_WAVE}
    v_mul_u32_u24 v{t+3}, 896, v{t+3}
    v_lshl_add_u32 v{t+3}, v{t+2}, 2, v{t+3}
    s_lshl_b32 s{S_T0}, s{S_ROLE}, 6
    buffer_load_dword v{t+4}, v{t+3}, {sr(S_M0,4)}, s{S_T0} offen
    v_mov_b32 v{t+5}, -1
    s_mov_b32 s{S_T0}, {WS_MEMR}
    s_mov_b32 s{S_T1}, {WS_MEMR+8192}
    s_mov_b32 s{S_T2}, {WS_MEMR+2*8192}
    s_mov_b32 s{S_T3}, {WS_MEMR+3*8192}
    s_waitcnt vmcnt(0)
    v_min_u32 v{B_HIST}, -2, v{t+4}
    ''')
    pub(a,[f'buffer_store_dword v{B_HIST if k==S_T0 else t+5}, v{B_MST}, {sr(S_WS,4)}, s{k} offen' for k in (S_T0,S_T1,S_T2,S_T3)])
    for k in (S_T0,S_T1,S_T2,S_T3): a(f'buffer_load_dword v{t+6}, v{B_MST}, {sr(S_WS,4)}, s{k} offen sc1')
    a.label(K)
    ACCS=[76,80,128,116,120,188,104,108]
    S_V2=S_XOFF; S_THM=S_T4; S_PAR=S_T5; S_PAR3=S_MBO
    V_FR,V_SENT=TMP+4,TMP+5
    FRS=[FR,FR+1,FR+2,FR+3,TMP+8,TMP+9,TMP+10,TMP+11][:OPT['nfl']]
    a(f'''
    s_mov_b32 s{S_STEP}, 0
    s_mul_i32 s{S_VOFF}, s{S_ROLE}, 32768
    s_lshl_b32 s{S_T0}, s{S_WAVE}, 13
    s_add_u32 s{S_VOFF}, s{S_VOFF}, s{S_T0}
    s_add_u32 s{S_VOFF}, s{S_VOFF}, {WS_V}
    s_mov_b32 s{S_VRDY}, 0
    s_mov_b32 s{S_MCUR}, {WS_MEMR}
    s_xor_b32 s{S_THM}, s{S_SLOW}, 1
    s_add_u32 s{S_V2}, s{S_VOFF}, 4096
    v_lshrrev_b32 v{V_FR}, 1, v{B_LIN}
    s_mov_b32 s{S_PAR}, 0
    s_mov_b32 s{S_PAR3}, 0
    v_mov_b32 v{V_SENT}, -1
    v_mov_b32 v{B_EV}, 1
    s_mov_b32 s{S_SPIN}, 0
    ''')
    team_barrier(a,NTEAM,t+8)
    pfl=lambda r: f'buffer_load_ushort v{r}, v{B_ER}, {sr(S_WS,4)}, 0 offen sc1'
    a(f'v_max_i32 v{TMP}, 0, v{B_THR}')
    flag_poll(a, pfl, [FR], f'v{TMP}', 4)
    a(f'buffer_store_short v{B_EV}, v{B_EW}, {sr(S_WS,4)}, 0 offen')
    if a.diag: calib(a)
    st.init(8)
    for o,_ in stg(0)+stg(1): a(o)
    LOOP=a.newlabel('Bloop'); L=a.newlabel('mpoll'); MOK=a.newlabel('mok'); H01=a.newlabel('Bh01'); FIN=a.newlabel('Bfin')
    def house():
        for r in ACCS+[FACC,FACC+4]: a(f'v_mov_b64 {vr(r,2)}, 0\nv_mov_b64 {vr(r+2,2)}, 0')
    a(f's_cmp_eq_u32 s{S_WAVE}, 3\ns_cbranch_scc1 {LOOP}')
    a.label(H01)
    a(f's_cmp_eq_u32 s{S_STEP}, {NSTEP}\ns_cbranch_scc1 {FIN}')
    vl=[]
    if OPT['vload']:
        for aa in (1,0):
            for tt in range(2):
                for hb in range(2):
                    vl.append(f'buffer_load_dwordx4 {vr(VP+16*aa+8*tt+4*hb,4)}, v{B_VG}, {sr(S_WS,4)}, s{S_V2 if aa else S_VOFF} offen offset:{hb*2048+tt*256} '+('sc1','sc1 nt','nt')[OPT['vnt']])
    ve=[vl.pop(0) for _ in range(min(OPT['vearly'],len(vl)))]
    house()
    a('s_barrier')
    for x in ve: a(x)
    a(f's_waitcnt lgkmcnt(0)\ns_branch {MOK}')
    a.label(LOOP)
    a(f's_cmp_eq_u32 s{S_STEP}, {NSTEP}\ns_cbranch_scc1 {FIN}')
    fl=lambda r: f'buffer_load_ushort v{r}, v{B_EM}, {sr(S_WS,4)}, 0 offen sc1'
    flag_poll(a, fl, FRS[:4], S_THM, 2)
    if OPT['bsleep']: a(f's_nop {OPT["bsleep"]}')
    mlo=['s_mov_b32 m0, 0']+[f'buffer_load_dwordx4 v{B_LIN}, {sr(S_WS,4)}, s{S_MCUR} offen offset:{1024*k} sc1 lds' for k in range(4)]+['s_mov_b32 m0, 4096']+[f'buffer_load_dwordx4 v{B_M4}, {sr(S_WS,4)}, s{S_MCUR} offen offset:{1024*k} sc1 lds' for k in range(3)]
    for x in mlo: a(x)
    st.abs(11)
    a('s_barrier')
    for x in ve: a(x)
    house()
    a(f's_waitcnt vmcnt({len(ve)}) lgkmcnt(0)')
    a.label(MOK)
    mrd=[f'ds_read_b128 {vr(MEMA+4*ks,4)}, v{B_LIN} offset:{LDS_MEM+1024*ks}' for ks in range(7)]
    mck=[f'v_max3_u32 v{TMP}, v{MEMA}, v{MEMA+1}, v{MEMA+2}', f'v_max_u32 v{TMP}, v{TMP}, v{MEMA+3}']+[f'v_max3_u32 v{TMP}, v{TMP}, v{MEMA+r}, v{MEMA+r+1}' for r in range(4,28,2)]+[f'v_cmp_eq_u32 vcc, -1, v{TMP}']
    a.outl.append(('raw',[f'{L}:','s_waitcnt lgkmcnt(0)','s_barrier',f's_cmp_lg_u32 s{S_WAVE}, 3',f's_cbranch_scc1 {L}_w']+mlo+['s_waitcnt vmcnt(0)',f'{L}_w:','s_barrier']+mrd+['s_waitcnt lgkmcnt(0)']+mck+
        [f's_cbranch_vccz {L}_ok',f's_add_u32 s{S_SPIN}, s{S_SPIN}, 1',f's_cmp_lt_u32 s{S_SPIN}, {SPIN}',f's_cbranch_scc1 {L}',f's_mov_b32 s{S_ERR}, 2',f's_branch {end}',f'{L}_ok:']+
        (['s_add_u32 s54, s54, 1'] if OPT['cnt'] else [])+[o for o,_ in stg(0)+stg(1)]+[f'v_mov_b64 {vr(r+k,2)}, 0' for r in ACCS[:3] for k in (0,2)]+['s_waitcnt lgkmcnt(0)',f's_branch {MOK}']))
    st.abs(0)
    a('s_barrier')
    for x in mrd: a(x)
    for _ in range(min(OPT['nearly'],len(vl))): a(vl.pop(0))
    def post(tile):
        hd,tt=tile>>1,tile&1; acc=ACCS[tile]
        b=MBOP+8*tt+4*(hd>>1)+(hd&1)
        return [f'v_cvt_pk_bf16_f32 v{b}, v{acc}, v{acc+1}', f'v_cvt_pk_bf16_f32 v{b+2}, v{acc+2}, v{acc+3}']
    book=f'''s_add_u32 s{S_VOFF}, s{S_VOFF}, {SEGV}
    s_add_u32 s{S_V2}, s{S_V2}, {SEGV}
    s_xor_b32 s{S_PAR}, s{S_PAR}, 1
    s_xor_b32 s{S_PAR3}, s{S_PAR3}, 3
    s_and_b32 s{S_T0}, s{S_STEP}, 3
    s_lshl_b32 s{S_PCUR}, s{S_T0}, 14
    s_add_u32 s{S_PCUR}, s{S_PCUR}, {WS_PR}
    s_add_u32 s{S_STEP}, s{S_STEP}, 1
    s_add_u32 s{S_RST}, s{S_MCUR}, 0x6000
    s_and_b32 s{S_RST}, s{S_RST}, 0x6000
    s_add_u32 s{S_RST}, s{S_RST}, {WS_MEMR}
    s_add_u32 s{S_MCUR}, s{S_MCUR}, 0x2000
    s_and_b32 s{S_MCUR}, s{S_MCUR}, 0x6000
    s_add_u32 s{S_MCUR}, s{S_MCUR}, {WS_MEMR}
    s_xor_b32 s{S_T0}, s{S_SLOW}, 1
    s_add_u32 s{S_THM}, s{S_THM}, s{S_T0}'''.split('\n')
    PRE=[55-2*k for k in range(OPT['nfl'])][::-1]
    def hook(i,kind):
        if kind=='mem':
            for k,n in ((0,5),(14,7),(35,12),(55,13)):
                if i==k: st.abs(n)
            if vl and i%OPT['vsp']==0: a(vl.pop(0)); return True
        if kind=='valu':
            if i<15: a(mck[i]); return True
            if i==54: a(f'v_add_u32 v{B_EV}, 1, v{B_EV}'); return True
            if i==47: a(f'v_add_u32 v{B_THR}, v{B_THR}, v{B_INC}'); return True
        if kind=='salu' and i==17: a(f's_cbranch_vccnz {L}')
        if kind=='salu' and i>=28 and book: a(book.pop(0).strip())
        return False
    b_gemm(a,ACCS,post,hook)
    assert not book and not vl
    st.abs(2)
    st.endstep(TMP+6, -2)
    if st.on==2: a('s_waitcnt vmcnt(0)')
    st.abs(10)
    pl=[f'buffer_load_dwordx4 {vr(PP+4*k,4)}, v{B_PX}, {sr(S_WS,4)}, s{S_PCUR} offen offset:{1024*k} sc1' for k in range(3)]
    fsrc=lambda k,tt: vr(VP+16*k+8*tt,8) if k<2 else vr(MBOP+8*tt,8)
    ew=f'buffer_store_short v{B_EV}, v{B_EW}, {sr(S_WS,4)}, 0 offen'
    if st.on==2: ew='s_memtime s[66:67]\n'+ew
    TL=[a.newlabel('Btail') for _ in range(4)]
    for v in (1,2,3): a(f's_cmp_eq_u32 s{S_WAVE}, {v}\ns_cbranch_scc1 {TL[v]}')
    for v in range(4):
        RDO=a.newlabel('Bredo'); G0=a.newlabel('Bgo')
        a.outl.append(redo_block(RDO,G0,pl,range(PP,PP+12),TMP,range(FACC,FACC+8,2),3))
        a.label(TL[v])
        if v==3: flag_poll(a, pfl, FRS, f'v{B_THR}', 3)
        a('s_barrier')
        if v==3 and OPT['w3del']: a(f's_nop {OPT["w3del"]-1}')
        for k in range(3):
            a(pl[k])
            if k==0: st.abs(9)
            if k<2 and OPT['pgap']: a(f's_nop {OPT["pgap"]}')
        a.label(G0)
        a(f's_cmp_lg_u32 s{S_SLOW}, 0')
        for k in range(3):
            r=PP+4*k
            a(f's_waitcnt vmcnt({2-k})')
            if k==0: st.abs(3)
            if k==2 and OPT['bpos']==-1 and v==3: a(ew)
            a(f'{SMF} {vr(FACC,4)}, {vr(r,4)}, {fsrc(k,0)}, v{B_IDX}')
            a(f'v_max3_u32 v{TMP}, v{r}, v{r+1}, v{r+2}' if k==0 else f'v_max3_u32 v{TMP}, v{TMP}, v{r}, v{r+1}')
            a(f'{SMF} {vr(FACC+4,4)}, {vr(r,4)}, {fsrc(k,1)}, v{B_IDX}')
            a(f'v_max_u32 v{TMP}, v{TMP}, v{r+3}' if k==0 else f'v_max3_u32 v{TMP}, v{TMP}, v{r+2}, v{r+3}')
        a(f'v_cmp_eq_u32 vcc, -1, v{TMP}')
        st.abs(8)
        EXR=MEMA
        us=[u for u in range(2) if u!=v]
        for u in us+([v] if v<2 else []): a(f'v_add_f32 v{EXR+2*u}, v{FACC+2*u}, v{FACC+2*u+1}')
        for u in us: a(f'v_and_or_b32 v{EXR+2*u}, v{EXR+2*u}, -4, s{S_PAR}')
        a(f's_cbranch_vccnz {RDO}')
        if OPT['bpos']==0 and v==3: a(ew)
        for u in us:
            a(f'v_add_f32 v{EXR+2*u+1}, v{FACC+4+2*u}, v{FACC+5+2*u}')
            a(f'ds_write_b64 v{B_FW}, {vr(EXR+2*u,2)} offset:{LDS_FP+512*u}')
        if OPT['bpos']==1 and v==3: a(ew)
        if OPT['tnop']: a(f's_nop {OPT["tnop"]-1}')
        a('s_barrier')
        if v>=2:
            if OPT['bpos']==2 and v==3: a(ew)
            a(f's_branch {LOOP if v==3 else H01}')
            continue
        RR=a.newlabel('Brr'); R=EXR+4; X=EXR+2*v
        a.label(RR)
        for k,w in enumerate([w for w in range(4) if w!=v]):
            a(f'ds_read_b64 {vr(R+2*k,2)}, v{V_FR} offset:{LDS_FP+1024*w+512*v}')
        a(f'v_add_f32 v{X+1}, v{FACC+4+2*v}, v{FACC+5+2*v}')
        a('s_waitcnt lgkmcnt(2)')
        a(f'v_add_f32 v{R+6}, v{X}, v{R}\nv_add_f32 v{R+7}, v{X+1}, v{R+1}')
        a('s_waitcnt lgkmcnt(0)')
        a(f'v_add3_u32 v{R+8}, v{R}, v{R+2}, v{R+4}\nv_and_b32 v{R+8}, 3, v{R+8}\nv_cmp_ne_u32 vcc, s{S_PAR3}, v{R+8}')
        a(f'v_add_f32 v{R+2}, v{R+2}, v{R+4}\nv_add_f32 v{R+3}, v{R+3}, v{R+5}')
        a(f'v_add_f32 v{R+6}, v{R+6}, v{R+2}\nv_add_f32 v{R+7}, v{R+7}, v{R+3}')
        a(f'v_cvt_pk_bf16_f32 v{R+6}, v{R+6}, v{R+7}')
        a(f'v_min_u32 v{B_HIST}, -2, v{R+6}')
        if OPT['cnt']:
            a(f's_cbranch_vccnz {RR}_c'); a.outl.append(('raw',[f'{RR}_c:','s_add_u32 s53, s53, 1',f's_cmp_lg_u32 s{S_SLOW}, 0',f's_branch {RR}']))
        else: a(f's_cbranch_vccnz {RR}')
        st.abs(6)
        pub(a,[f'buffer_store_dword v{B_HIST}, v{B_MST}, {sr(S_WS,4)}, s{S_MCUR} offen',
               f'buffer_store_dword v{V_SENT}, v{B_MST}, {sr(S_WS,4)}, s{S_RST} offen'], cmp=False)
        a(f's_branch {H01}')
    a.label(FIN)
    a(f'''
    s_cmp_ge_u32 s{S_WAVE}, 2
    s_cbranch_scc1 {end}
    s_mov_b32 s{S_T0}, {WS_MEMH+NSTEP*8192}
    buffer_store_dword v{B_HIST}, v{B_MST}, {sr(S_WS,4)}, s{S_T0} offen sc1
    s_branch {end}
    ''')
    emit_outl(a)

def role_F(a, end='L_next'):
    a.comment('==== follower: column tile j = S_ROLE ====')
    b_setup(a)
    b_weights(a,False)
    ACCS=[76,80,128,116,120,188,92,96]
    a(f'''
    s_mov_b32 s{S_STEP}, 1
    s_mov_b32 s{S_HOFF}, {WS_MEMH}
    s_lshl_b32 s{S_MBO}, s{S_ROLE}, 13
    s_lshl_b32 s{S_T0}, s{S_WAVE}, 11
    s_add_u32 s{S_MBO}, s{S_MBO}, s{S_T0}
    s_add_u32 s{S_MBO}, s{S_MBO}, {WS_MBH}
    s_min_u32 s{S_T0}, s{S_T0}, 5120
    v_add_u32 v{B_M4}, s{S_T0}, v{B_LIN}
    s_lshl_b32 s{S_PF}, s{S_ROLE}, 7
    s_lshl_b32 s{S_T0}, s{S_WAVE}, 2
    s_add_u32 s{S_PF}, s{S_PF}, s{S_T0}
    s_add_u32 s{S_PF}, s{S_PF}, {F_B}
    v_mov_b32 v{TMP+1}, 0
    v_mov_b32 v{TMP+2}, 0
    s_mov_b32 s{S_VRDY}, 0
    s_waitcnt vmcnt(0)
    ''')
    for o,_ in stg(0)+stg(1): a(o)
    LOOP=a.newlabel('Floop'); GET=a.newlabel('Fget'); KN=a.newlabel('Fkn'); NP=a.newlabel('Fnp')
    fst=f's_mov_b64 exec, 1\nbuffer_store_dword v{TMP+2}, v{TMP+1}, {sr(S_WS,4)}, s{S_PF} offen sc1\ns_mov_b64 exec, -1'
    ld=[f'buffer_load_dwordx4 {vr(VP+4*k,4)}, v{B_M4}, {sr(S_WS,4)}, s{S_HOFF} offen offset:{1024*k} sc1' for k in range(2)]
    need=f's_sub_u32 s{S_T3}, s{S_STEP}, 1\ns_cmp_gt_u32 s{S_STEP}, {LASTSEG}\ns_cselect_b32 s{S_T3}, s{S_T3}, s{S_STEP}\ns_cmp_ge_u32 s{S_VRDY}, s{S_T3}'
    a(f's_and_b32 s{S_RST}, s{S_SLOT}, 15\ns_lshl_b32 s{S_RST}, s{S_RST}, 7\ns_add_u32 s{S_RST}, s{S_RST}, {F_R}')
    a.label(GET)
    a(need+f'\ns_cbranch_scc1 {KN}')
    a(f's_sub_u32 s{S_T0}, s{S_STEP}, 1\nv_mov_b32 v{TMP+2}, s{S_T0}\ns_waitcnt vmcnt(0)')
    a(fst)
    wait_prog(a,S_T3,t=TMP,vz=TMP+1,known=S_VRDY)
    a.label(KN)
    until_valid(a,ld,range(VP,VP+8),TMP)
    a(f's_cmp_lg_u32 s{S_ERR}, 0\ns_cbranch_scc1 L_end')
    a.label(LOOP)
    a('s_barrier')
    for k in range(2): a(f'ds_write_b128 v{B_M4}, {vr(VP+4*k,4)} offset:{LDS_MEM+1024*k}')
    for r in ACCS: a(f'v_mov_b64 {vr(r,2)}, 0\nv_mov_b64 {vr(r+2,2)}, 0')
    a('s_waitcnt lgkmcnt(0)\ns_barrier')
    for ks in range(7): a(f'ds_read_b128 {vr(MEMA+4*ks,4)}, v{B_LIN} offset:{LDS_MEM+1024*ks}')
    a(f's_add_u32 s{S_STEP}, s{S_STEP}, 1\ns_add_u32 s{S_HOFF}, s{S_HOFF}, 8192\nv_mov_b32 v{VP}, -1')
    a(need+f'\ns_cbranch_scc0 {NP}')
    for x in ld: a(x)
    a.label(NP)
    a(f'buffer_load_dword v{TMP+3}, v{TMP+1}, {sr(S_WS,4)}, s{S_RST} offen sc1')
    def post(tile):
        hd,tt=tile>>1,tile&1; acc=ACCS[tile]
        return [f'v_add_f32 v{acc}, v{acc}, v{acc+1}', f'v_add_f32 v{acc+2}, v{acc+2}, v{acc+3}', f'v_cvt_pk_bf16_f32 v{acc}, v{acc}, v{acc+2}', f'v_min_u32 v{MBP+4*tt+hd}, -2, v{acc}']
    b_gemm(a,ACCS,post,lambda i,k: False)
    for tt in range(2):
        b=MBP+4*tt
        a(f'v_permlane32_swap_b32 v{b}, v{b+2}\nv_permlane32_swap_b32 v{b+1}, v{b+3}')
    for tt in range(2):
        b=MBP+4*tt
        a(f'v_permlane16_swap_b32 v{b}, v{b+1}\nv_permlane16_swap_b32 v{b+2}, v{b+3}')
    for tt in range(2):
        a(f'buffer_store_dwordx4 {vr(MBP+4*tt,4)}, v{B_VG}, {sr(S_WS,4)}, s{S_MBO} offen offset:{256*tt} sc1')
    a(f'''
    s_cmp_gt_u32 s{S_STEP}, 64
    s_cbranch_scc1 L_end
    s_add_u32 s{S_MBO}, s{S_MBO}, {SEGMB}
    s_sub_u32 s{S_T0}, s{S_STEP}, 2
    v_mov_b32 v{TMP+2}, s{S_T0}
    s_waitcnt vmcnt(2)
    ''')
    a(fst)
    a(f'v_readfirstlane_b32 s{S_VRDY}, v{TMP+3}')
    poll_check(a, range(VP,VP+8), TMP+4)
    a(f's_cbranch_vccz {LOOP}\ns_branch {GET}')

def role_R(a, end='L_end'):
    a.comment('==== relay: copies every mem_s to the history buffer, then announces s+1 on 16 lines ====')
    t=VT
    L=a.newlabel('relay'); P=a.newlabel('relayp'); OK=a.newlabel('relayok')
    a(f's_cmp_ge_u32 s{S_WAVE}, 2\ns_cbranch_scc1 {end}')
    FW=a.newlabel('fwd'); RL=a.newlabel('rly')
    a(f'''
    v_lshlrev_b32 v{t+1}, 5, v{V_L4}
    v_mov_b32 v{t+2}, 0x7f000000
    v_cmp_gt_u32 vcc, {128*OPT['rp']}, v{t+1}
    v_cndmask_b32 v{t+3}, v{t+2}, v{t+1}, vcc
    s_cmp_eq_u32 s{S_WAVE}, 0
    s_cbranch_scc1 {RL}
    s_mov_b32 s{S_T1}, {F_M+32}
    ''')
    wait_flags(a,t+1,f's{S_T1}',16,1,sleep=4)
    a(f'''
    s_mov_b32 s{S_T1}, {F_V}
    s_mov_b32 s{S_T2}, {F_EP+66}
    s_mov_b32 s{S_STEP}, 4
    {FW}:
    ''')
    wait_flags(a,V_L4,f's{S_T1}',16,'0x01010101',sleep=2)
    a(f's_cmp_lg_u32 s{S_ERR}, 0\ns_cbranch_scc1 {end}')
    a(f'v_mov_b32 v{t+5}, s{S_STEP}')
    pub(a,[f'buffer_store_short v{t+5}, v{t+3}, {sr(S_WS,4)}, s{S_T2} offen'])
    a(f'''
    s_add_u32 s{S_T1}, s{S_T1}, 128
    s_add_u32 s{S_STEP}, s{S_STEP}, 4
    s_cmp_lg_u32 s{S_ERR}, 0
    s_cbranch_scc1 {end}
    s_cmp_le_u32 s{S_STEP}, 64
    s_cbranch_scc1 {FW}
    s_branch {end}
    {RL}:
    ''')
    team_wait(a,end,t+8)
    a(f'''
    v_cmp_gt_u32 vcc, {128*16}, v{t+1}
    v_cndmask_b32 v{t+1}, v{t+2}, v{t+1}, vcc
    s_mov_b32 s{S_STEP}, 0
    s_mov_b32 s{S_HOFF}, {WS_MEMH}
    s_mov_b32 s{S_T2}, {F_EP+64}
    s_mov_b32 s{S_T3}, {F_R}
    {L}:
    s_and_b32 s{S_T0}, s{S_STEP}, 3
    s_lshl_b32 s{S_T0}, s{S_T0}, 13
    s_add_u32 s{S_T0}, s{S_T0}, {WS_MEMR}
    s_add_u32 s{S_T1}, s{S_T0}, 4096
    s_add_u32 s{S_STEP}, s{S_STEP}, 1
    v_mov_b32 v{t+4}, s{S_STEP}
    s_mov_b32 s{S_SPIN}, 0
    {P}:
    ''')
    for k in range(7): a(f'buffer_load_dwordx4 {vr(4*k,4)}, v{W_LIN}, {sr(S_WS,4)}, s{S_T0 if k<4 else S_T1} offen offset:{1024*(k%4)} sc1')
    a('s_waitcnt vmcnt(0)')
    poll_check(a, range(28), t+5)
    a(f'''
    s_cbranch_vccz {OK}
    s_add_u32 s{S_SPIN}, s{S_SPIN}, 1
    s_cmp_lt_u32 s{S_SPIN}, {SPIN}
    s_cbranch_scc1 {P}
    s_mov_b32 s{S_ERR}, 5
    s_branch {end}
    {OK}:
    s_add_u32 s{S_T1}, s{S_HOFF}, 4096
    ''')
    for k in range(7): a(f'buffer_store_dwordx4 {vr(4*k,4)}, v{W_LIN}, {sr(S_WS,4)}, s{S_HOFF if k<4 else S_T1} offen offset:{1024*(k%4)} sc1')
    pub(a,[f'buffer_store_short v{t+4}, v{t+3}, {sr(S_WS,4)}, s{S_T2} offen'])
    a(f'''
    s_add_u32 s{S_HOFF}, s{S_HOFF}, 8192
    s_waitcnt vmcnt(1)
    buffer_store_dword v{t+4}, v{t+1}, {sr(S_WS,4)}, s{S_T3} offen sc1
    s_cmp_lt_u32 s{S_STEP}, 64
    s_cbranch_scc1 {L}
    s_branch {end}
    ''')
    emit_outl(a)

def role_W(a, end='L_end'):
    a.comment('==== cache warmer: touches the x fragments a few segments ahead of the team ====')
    t=VT
    L=a.newlabel('warm'); N=a.newlabel('warmn')
    a(f's_mov_b32 s{S_T0}, {F_TEAM}')
    wait_flags(a,V_ZERO,f's{S_T0}',1,1,sleep=4)
    a(f'''
    v_lshlrev_b32 v{t+1}, 5, v{V_L4}
    s_lshl_b32 s{S_T1}, s{S_WAVE}, 13
    s_add_u32 s{S_T1}, s{S_T1}, {WS_XF}
    s_mov_b32 s{S_T0}, {F_EP+64}
    s_mov_b32 s{S_STEP}, 0
    s_mov_b32 s{S_SPIN}, 0
    {L}:
    s_lshr_b32 s{S_T3}, s{S_STEP}, 2
    s_lshl_b32 s{S_T3}, s{S_T3}, 7
    s_add_u32 s{S_T3}, s{S_T3}, {F_M+32}
    buffer_load_ushort v{t}, v{V_ZERO}, {sr(S_WS,4)}, s{S_T0} offen sc1
    buffer_load_dword v{t+3}, v{V_ZERO}, {sr(S_WS,4)}, s{S_T3} offen sc1
    s_waitcnt vmcnt(0)
    v_readfirstlane_b32 s{S_T2}, v{t}
    v_readfirstlane_b32 s{S_T3}, v{t+3}
    s_cmp_eq_u32 s{S_T3}, 0
    s_cbranch_scc1 {N}
    s_add_u32 s{S_T2}, s{S_T2}, {OPT['ahead']}
    s_cmp_gt_u32 s{S_STEP}, s{S_T2}
    s_cbranch_scc1 {N}
    buffer_load_dword v{t+2}, v{t+1}, {sr(S_WS,4)}, s{S_T1} offen sc1
    s_add_u32 s{S_T1}, s{S_T1}, 32768
    s_add_u32 s{S_STEP}, s{S_STEP}, 1
    s_mov_b32 s{S_SPIN}, 0
    s_cmp_lt_u32 s{S_STEP}, {NSTEP}
    s_cbranch_scc1 {L}
    s_branch {end}
    {N}:
    s_sleep 8
    s_add_u32 s{S_SPIN}, s{S_SPIN}, 1
    s_cmp_lt_u32 s{S_SPIN}, {SPINS}
    s_cbranch_scc1 {L}
    s_branch {end}
    ''')
```

```python
from asmb import *
from layout import *
import math, struct
def f32(x): return '0x%08x'%struct.unpack('<I',struct.pack('<f',x))[0]
LOG2E=1.4426950408889634
OPTW=dict(touch=1,nt=2,cpf=0,pprof=0,tw=0,lag=2,xt=-1,st1=1,st2=3,dsp=4,nh=1,nv=4,nq=3,nm=8)

V_LIN,V_LIN2,V_DMA,V_XS,V_XR0,V_XR1,V_L4,V_ZERO,V_TR,V_TR2,V_TQ,V_TQ2,V_RM1,V_RM2,V_HH16,V_RANK=range(192,208)
VT=208
ACC=112; SAC=144; EX=160
AW=112; AMEM=144
LDS_XST=28672; LDS_TAB=143360; LDS_BC=163824

def wait_flags(a, vaddr, soff, nl, thresh, width=1, sleep=4, err=9, t=VT+40):
    L=a.newlabel('wf'); D=a.newlabel('wfd')
    if nl<32: a(f's_mov_b64 exec, {hex((1<<nl)-1)}')
    elif nl==32: a('s_mov_b32 exec_hi, 0')
    elif nl<64: a(f's_mov_b32 exec_hi, {hex((1<<(nl-32))-1)}')
    a(f's_mov_b32 s{S_SPIN}, 0')
    a.label(L)
    if width==1:
        a(f'buffer_load_dword v{t}, v{vaddr}, {sr(S_WS,4)}, {soff} offen sc1\ns_waitcnt vmcnt(0)')
    else:
        a(f'buffer_load_dwordx4 {vr(t,4)}, v{vaddr}, {sr(S_WS,4)}, {soff} offen sc1\ns_waitcnt vmcnt(0)')
        a(f'v_min3_u32 v{t}, v{t}, v{t+1}, v{t+2}\nv_min_u32 v{t}, v{t}, v{t+3}')
    a(f'v_cmp_gt_u32 vcc, {thresh}, v{t}')
    a(f's_cbranch_vccz {D}')
    a(f's_sleep {sleep}')
    a(f's_add_u32 s{S_SPIN}, s{S_SPIN}, 1\ns_cmp_lt_u32 s{S_SPIN}, {SPINS}\ns_cbranch_scc1 {L}')
    a(f's_mov_b32 s{S_ERR}, {err}')
    a.label(D)
    a('s_mov_b64 exec, -1')
    a.vq=[]

def wait_prog(a, thresh, t=VT+40, vz=V_ZERO, known=None):
    L=a.newlabel('wp'); D=a.newlabel('wpd'); S=a.newlabel('wps')
    a(f'''
    s_and_b32 s{S_T0}, s{S_SLOT}, 15
    s_lshl_b32 s{S_T0}, s{S_T0}, 7
    s_add_u32 s{S_T0}, s{S_T0}, {F_R}
    s_mov_b32 s{S_SPIN}, 0
    s_mov_b64 exec, 1
    {L}:
    buffer_load_dword v{t}, v{vz}, {sr(S_WS,4)}, s{S_T0} offen sc1
    s_waitcnt vmcnt(0)
    v_readfirstlane_b32 s{S_T4}, v{t}
    s_cmp_ge_u32 s{S_T4}, s{thresh}
    s_cbranch_scc1 {D}
    s_add_u32 s{S_T4}, s{S_T4}, 2
    s_cmp_gt_u32 s{S_T4}, s{thresh}
    s_cbranch_scc1 {S}
    s_sleep 24
    {S}:
    s_sleep 2
    s_add_u32 s{S_SPIN}, s{S_SPIN}, 1
    s_cmp_lt_u32 s{S_SPIN}, {SPINS}
    s_cbranch_scc1 {L}
    s_mov_b32 s{S_ERR}, 10
    {D}:
    s_mov_b64 exec, -1
    ''')
    if known: a(f's_mov_b32 s{known}, s{S_T4}')
    a.vq=[]

LASTSEG=60
def relax(a, dst, seg):
    a(f's_add_u32 s{dst}, s{seg}, 1\ns_cmp_ge_u32 s{seg}, {LASTSEG}\ns_cselect_b32 s{dst}, s{seg}, s{dst}')

def until_valid(a, loads, regs, tmp, err=11):
    L=a.newlabel('uv'); D=a.newlabel('uvd')
    a(f's_mov_b32 s{S_SPIN}, 0')
    a.label(L)
    for x in loads: a(x)
    r=list(regs); n=len(loads); per=len(r)//n
    for i in range(n):
        a(f's_waitcnt vmcnt({n-1-i})')
        q=r[per*i:per*i+per]
        a(f'v_max3_u32 v{tmp}, v{q[0]}, v{q[1]}, v{q[2] if i==0 else tmp}')
        a(f'v_max_u32 v{tmp}, v{tmp}, v{q[3]}' if i==0 else f'v_max3_u32 v{tmp}, v{q[2]}, v{q[3]}, v{tmp}')
    a(f'v_cmp_eq_u32 vcc, -1, v{tmp}\ns_cbranch_vccz {D}')
    a(f's_add_u32 s{S_SPIN}, s{S_SPIN}, 1\ns_cmp_lt_u32 s{S_SPIN}, {SPINS}\ns_cbranch_scc1 {L}\ns_mov_b32 s{S_ERR}, {err}')
    a.label(D)
    a.vq=[]

def set_flag(a, soff, val='1', kind='dword'):
    t=VT+40
    a(f'v_mov_b32 v{t}, {val}\ns_mov_b64 exec, 1')
    a(f'buffer_store_{kind} v{t}, v{V_ZERO}, {sr(S_WS,4)}, {soff} offen sc1')
    a('s_mov_b64 exec, -1')

def wg_flag(a, soff, val='1', kind='dword'):
    K=a.newlabel('sf')
    a.drain_vm(); a('s_barrier')
    a(f's_cmp_lg_u32 s{S_WAVE}, 0\ns_cbranch_scc1 {K}')
    set_flag(a,soff,val,kind)
    a.label(K)

def work_consts(a):
    t=VT
    a(f'''
    v_mbcnt_lo_u32_b32 v{t}, -1, 0
    v_mbcnt_hi_u32_b32 v{t}, -1, v{t}
    v_lshlrev_b32 v{V_LIN}, 4, v{t}
    v_add_u32 v{V_LIN2}, 57344, v{V_LIN}
    s_mul_i32 s{S_T0}, s{S_WAVE}, 7168
    v_add_u32 v{V_DMA}, s{S_T0}, v{V_LIN}
    v_lshlrev_b32 v{V_L4}, 2, v{t}
    v_mov_b32 v{V_ZERO}, 0
    v_lshrrev_b32 v{t+1}, 4, v{t}
    v_xor_b32 v{t+1}, v{t+1}, v{t}
    v_and_b32 v{t+1}, 3, v{t+1}
    v_lshlrev_b32 v{t+1}, 4, v{t+1}
    v_lshrrev_b32 v{t+2}, 2, v{t}
    v_mul_u32_u24 v{V_XS}, 896, v{t+2}
    v_add_u32 v{V_XS}, v{V_XS}, v{t+1}
    v_lshrrev_b32 v{t+3}, 5, v{t}
    v_bfe_u32 v{t+4}, v{t}, 2, 2
    v_xor_b32 v{t+4}, v{t+4}, v{t+3}
    v_lshlrev_b32 v{t+4}, 4, v{t+4}
    v_and_b32 v{t+5}, 31, v{t}
    v_lshl_add_u32 v{V_XR0}, v{t+5}, 6, v{t+4}
    v_xor_b32 v{V_XR1}, 32, v{V_XR0}
    v_lshlrev_b32 v{V_HH16}, 4, v{t+3}
    v_bfe_u32 v{t+4}, v{t}, 2, 2
    v_lshlrev_b32 v{t+4}, 6, v{t+4}
    v_and_b32 v{t+5}, 3, v{t}
    v_lshl_add_u32 v{t+4}, v{t+5}, 3, v{t+4}
    v_bfe_u32 v{t+5}, v{t}, 4, 1
    v_lshl_add_u32 v{t+4}, v{t+5}, 5, v{t+4}
    v_lshl_add_u32 v{V_TR}, v{t+3}, 9, v{t+4}
    v_add_u32 v{V_TR2}, 57344, v{V_TR}
    v_lshl_add_u32 v{V_TQ}, v{t+3}, 8, v{t+4}
    v_add_u32 v{V_TQ2}, 57344, v{V_TQ}
    s_mul_i32 s{S_T0}, s{S_WAVE}, 112
    v_add_u32 v{t+2}, s{S_T0}, v{t+2}
    v_and_b32 v{t+5}, 3, v{t}
    v_lshlrev_b32 v{t+5}, 4, v{t+5}
    v_mul_u32_u24 v{V_RM1}, 3584, v{t+2}
    v_add_u32 v{V_RM1}, v{V_RM1}, v{t+5}
    v_mul_u32_u24 v{V_RM2}, 896, v{t+2}
    v_add_u32 v{V_RM2}, v{V_RM2}, v{t+5}
    ''')

def unit_of(a, sW):
    LB=a.newlabel('uoB'); LJ=a.newlabel('uoJ')
    assert all((u*9363)>>16==u//7 for u in range(256))
    a(f'''
    s_mul_i32 s{S_G}, s{sW}, 9363
    s_lshr_b32 s{S_G}, s{S_G}, 16
    s_mul_i32 s{S_SEG}, s{S_G}, 7
    s_sub_u32 s{S_SEG}, s{sW}, s{S_SEG}
    s_and_b32 s{S_H}, s{S_G}, 15
    s_cmp_ge_u32 s{S_G}, 16
    s_cselect_b32 s{S_R1}, s{P_WV}, s{P_WQ}
    s_cselect_b32 s{S_R1+1}, s{P_WV+1}, s{P_WQ+1}
    s_cselect_b32 s{S_R2}, s{P_WO}, s{P_WK}
    s_cselect_b32 s{S_R2+1}, s{P_WO+1}, s{P_WK+1}
    s_mov_b32 s{S_R1+2}, 3670016
    s_mov_b32 s{S_R2+2}, 3670016
    s_mov_b32 s{S_R1+3}, 0x20000
    s_mov_b32 s{S_R2+3}, 0x20000
    ''')

def first_touch(a):
    t=VT; K=a.newlabel('ft'); L=a.newlabel('ftl')
    a(f'''
    s_sub_u32 s{S_T0}, s{S_XCC}, 1
    s_cmp_ge_u32 s{S_T0}, 7
    s_cbranch_scc1 {K}
    s_lshl_b32 s{S_T0}, s{S_T0}, 5
    s_lshr_b32 s{S_T1}, s2, 3
    s_add_u32 s{S_T1}, s{S_T1}, s{S_T0}
    ''')
    unit_of(a,S_T1)
    a(f'''
    v_lshrrev_b32 v{t}, 2, v0
    v_lshlrev_b32 v{t}, 13, v{t}
    v_and_b32 v{t+1}, 3, v0
    v_lshl_add_u32 v{t}, v{t+1}, 7, v{t}
    v_mul_u32_u24 v{t+1}, 896, v0
    s_lshl_b32 s{S_B0}, s{S_H}, 9
    s_lshl_b32 s{S_T2}, s{S_SEG}, 19
    s_add_u32 s{S_T2}, s{S_T2}, s{S_B0}
    s_mul_i32 s{S_T3}, s{S_H}, 229376
    s_lshl_b32 s{S_T4}, s{S_SEG}, 7
    s_add_u32 s{S_T3}, s{S_T3}, s{S_T4}
    s_cmp_ge_u32 s{S_G}, 16
    s_cselect_b32 s{S_T2}, s{S_T3}, s{S_T2}
    s_cselect_b64 vcc, -1, 0
    v_cndmask_b32 v{t+1}, v{t}, v{t+1}, vcc
    buffer_load_dword v255, v{t+1}, {sr(S_R2,4)}, s{S_T2} offen nt
    s_mul_i32 s{S_T2}, s{S_G}, 7
    s_add_u32 s{S_T3}, s{S_T2}, 7
    s_max_u32 s{S_T2}, s{S_T2}, s{S_T0}
    s_add_u32 s{S_T0}, s{S_T0}, 32
    s_min_u32 s{S_T3}, s{S_T3}, s{S_T0}
    s_sub_u32 s{S_T3}, s{S_T3}, s{S_T2}
    s_lshl_b32 s{S_T2}, s{S_SEG}, 19
    s_add_u32 s{S_T2}, s{S_T2}, s{S_B0}
    s_cmp_lt_u32 s{S_T3}, 7
    s_cbranch_scc1 {L}
    buffer_load_dword v255, v{t}, {sr(S_R1,4)}, s{S_T2} offen nt
    s_branch {K}
    {L}:
    buffer_load_dword v255, v{t}, {sr(S_R1,4)}, s{S_T2} offen
    {K}:
    ''')

def wait_init(a, v, have=False):
    L=a.newlabel('wi'); D=a.newlabel('wid')
    a(f's_mov_b32 s{S_SPIN}, 0')
    if not have: a(f'v_mov_b32 v{v}, 0')
    a.label(L)
    a(f'v_cmp_eq_u32 vcc, 0, v{v}\ns_cbranch_vccz {D}')
    a(f'buffer_load_dword v{v}, v{V_ZERO}, {sr(S_DBG,4)}, 0 offen offset:{D_INIT} sc1\ns_waitcnt vmcnt(0)')
    a(f's_add_u32 s{S_SPIN}, s{S_SPIN}, 1\ns_cmp_lt_u32 s{S_SPIN}, {SPINS}\ns_cbranch_scc1 {L}')
    a('s_branch L_exit')
    a.label(D)

def prep(a):
    t=VT
    BF=0; AF=64; PA=128
    V_RS,V_ST,V_RS1,V_FB=t+8,t+9,t+10,t+11
    V_AR=[t+12+k for k in range(4)]
    def radr(sbase, c=0):
        a(f's_add_u32 s{S_T1}, s{sbase}, {c}\nv_add_u32 v{V_AR[0]}, s{S_T1}, v{V_FB}')
        for kl in (1,2,3): a(f'v_xor_b32 v{V_AR[kl]}, {32*kl}, v{V_AR[0]}')
    pp(a,2)
    a(f's_sub_u32 s{S_T0}, s{S_SLOT}, 32')
    unit_of(a,S_T0)
    a(f'''
    s_and_b32 s{S_T2}, s{S_WAVE}, 1
    s_lshr_b32 s{S_T3}, s{S_WAVE}, 1
    v_lshrrev_b32 v{t}, 7, v{V_LIN}
    v_lshlrev_b32 v{V_RS}, 13, v{t}
    v_lshrrev_b32 v{t+1}, 4, v{V_LIN}
    v_and_b32 v{t+1}, 0x30, v{t+1}
    v_xor_b32 v{t+1}, v{t+1}, v{V_LIN}
    v_and_b32 v{t+1}, 0x70, v{t+1}
    v_add_u32 v{V_RS}, v{V_RS}, v{t+1}
    v_xor_b32 v{V_RS1}, 64, v{V_RS}
    v_bfe_u32 v{t}, v{V_LIN}, 5, 3
    v_lshlrev_b32 v{t}, 4, v{t}
    v_xor_b32 v{t}, v{t}, v{V_HH16}
    v_and_b32 v{t+1}, 0x1f0, v{V_LIN}
    v_lshl_add_u32 v{V_FB}, v{t+1}, 3, v{t}
    v_lshrrev_b32 v{t+2}, 6, v{V_LIN}
    v_mul_u32_u24 v{t+2}, 896, v{t+2}
    s_lshl_b32 s{S_T4}, s{S_T2}, 14
    s_add_u32 s{S_T4}, s{S_T4}, {4*32768}
    s_lshl_b32 s{S_T5}, s{S_T3}, 13
    s_add_u32 s{S_T5}, s{S_T5}, s{S_T4}
    s_lshl_b32 s{S_MBO}, s{S_SEG}, 1
    s_add_u32 s{S_MBO}, s{S_MBO}, s{S_T2}
    ''')
    LB=a.newlabel('prepB'); LJ=a.newlabel('prepJ'); LB2=a.newlabel('prepB2'); LJ2=a.newlabel('prepJ2')
    if OPTW['tw']: a('s_waitcnt vmcnt(0)')
    pp(a,13)
    a(f's_cmp_ge_u32 s{S_G}, 16\ns_cbranch_scc1 {LB}')
    a(f'''
    s_lshl_b32 s{S_T0}, s{S_MBO}, 18
    s_lshl_b32 s{S_T1}, s{S_H}, 9
    s_add_u32 s{S_T0}, s{S_T0}, s{S_T1}
    s_lshl_b32 s{S_T1}, s{S_T3}, 8
    s_add_u32 s{S_T0}, s{S_T0}, s{S_T1}
    ''')
    for R in range(4):
        a(f's_add_u32 s{S_T1}, s{S_T0}, {8*R*8192}')
        for c in range(2):
            a(f's_add_u32 m0, s{S_T5}, {c*4096+R*1024-128*c}')
            a(f'buffer_load_dwordx4 v{V_RS1 if R&1 else V_RS}, {sr(S_R2,4)}, s{S_T1} offen offset:{128*c} lds')
    a(f'''
    s_mov_b32 s{S_PF}, {f32(LOG2E/16)}
    s_mov_b32 s{S_VOFF}, {WS_A}
    v_bfe_u32 v{t}, v{V_LIN}, 5, 2
    v_bfe_u32 v{t+1}, v{V_LIN}, 4, 1
    v_lshl_add_u32 v{t}, v{t+1}, 4, v{t}
    v_bfe_u32 v{t+1}, v{V_LIN}, 7, 1
    v_lshl_add_u32 v{t}, v{t+1}, 3, v{t}
    v_bfe_u32 v{t+1}, v{V_LIN}, 8, 1
    v_lshl_add_u32 v{t}, v{t+1}, 2, v{t}
    s_branch {LJ}
    {LB}:
    v_and_b32 v{t+1}, 48, v{V_LIN}
    v_add_u32 v{t+2}, v{t+2}, v{t+1}
    s_mul_i32 s{S_T0}, s{S_H}, 229376
    s_lshl_b32 s{S_T1}, s{S_MBO}, 6
    s_add_u32 s{S_T0}, s{S_T0}, s{S_T1}
    s_mul_i32 s{S_T1}, s{S_T3}, {128*896}
    s_add_u32 s{S_T0}, s{S_T0}, s{S_T1}
    ''')
    for i in range(8):
        a(f's_add_u32 m0, s{S_T5}, {i*1024}')
        a(f'buffer_load_dwordx4 v{t+2}, {sr(S_R2,4)}, s{S_T0} offen lds')
        a(f's_add_u32 s{S_T0}, s{S_T0}, {16*896}')
    a(f'''
    s_mov_b32 s{S_PF}, 1.0
    s_mov_b32 s{S_VOFF}, {WS_B}
    v_bfe_u32 v{t}, v{V_LIN}, 5, 4
    v_bfe_u32 v{t+1}, v{V_LIN}, 4, 1
    v_lshl_add_u32 v{t}, v{t+1}, 4, v{t}
    {LJ}:
    ''')
    a.vq=['b']
    a(f'''
    s_mul_i32 s{S_B0}, s{S_T3}, {7*32*8192}
    s_lshl_b32 s{S_T0}, s{S_H}, 9
    s_add_u32 s{S_B0}, s{S_B0}, s{S_T0}
    s_lshl_b32 s{S_T0}, s{S_T2}, 8
    s_add_u32 s{S_B0}, s{S_B0}, s{S_T0}
    s_lshl_b32 s{S_B1}, s{S_WAVE}, 13
    ''')
    def step_dma(j):
        o=[]
        for R in range(4):
            o.append(f's_add_u32 s{S_T0}, s{S_B0}, {(j*32+8*R)*8192}')
            for c in range(2):
                o.append(f's_add_u32 m0, s{S_B1}, {(j%4)*32768+c*4096+R*1024-128*c}')
                o.append(('vm',f'buffer_load_dwordx4 v{V_RS1 if R&1 else V_RS}, {sr(S_R1,4)}, s{S_T0} offen offset:{128*c} lds', f'd{j}'))
        return o
    for j in range(2):
        for o in step_dma(j): a.auto(o)
    a(f'''
    v_and_b32 v{t+1}, 512, v{V_LIN}
    v_lshl_add_u32 v{V_ST}, v{t}, 4, v{t+1}
    s_mul_i32 s{S_T1}, s{S_H}, {MAT}
    s_add_u32 s{S_VOFF}, s{S_VOFF}, s{S_T1}
    s_mul_i32 s{S_T0}, s{S_MBO}, 28672
    s_add_u32 s{S_VOFF}, s{S_VOFF}, s{S_T0}
    s_mul_i32 s{S_T0}, s{S_T3}, {7*2048}
    s_add_u32 s{S_VOFF}, s{S_VOFF}, s{S_T0}
    s_lshl_b32 s{S_T5}, s{S_T3}, 14
    s_lshl_b32 s{S_RST}, s{S_G}, 7
    s_lshl_b32 s{S_T1}, s{S_SEG}, 2
    s_add_u32 s{S_RST}, s{S_RST}, s{S_T1}
    s_add_u32 s{S_RST}, s{S_RST}, {F_W}
    ''')
    radr(S_T4)
    pp(a,3)
    a.wait_vm('b'); pp(a,4); a('s_barrier')
    a(f's_cmp_ge_u32 s{S_G}, 16\ns_cbranch_scc1 {LB2}')
    for k in range(16):
        a(f'ds_read_b128 {vr(BF+4*k,4)}, v{V_AR[k&3]} offset:{4096*(k>>2)}')
    a(f's_branch {LJ2}')
    a.label(LB2)
    a(f'v_add_u32 v{V_AR[0]}, s{S_T4}, v{V_TR}')
    for k in range(16):
        a(f'ds_read_b64_tr_b16 {vr(BF+4*k,2)}, v{V_AR[0]} offset:{1024*k}')
        a(f'ds_read_b64_tr_b16 {vr(BF+4*k+2,2)}, v{V_AR[0]} offset:{1024*k+256}')
    a.label(LJ2)
    a.drain_ds()
    if a.diag: a('s_memrealtime s[44:45]\ns_waitcnt lgkmcnt(0)')
    def epi(dt):
        acc=PA+16*(dt&1); o=[]
        for r in range(16): o.append(f'v_mul_f32 v{acc+r}, s{S_PF}, v{acc+r}')
        for p in range(2):
            for d,(x,y) in enumerate(((0,1),(4,5),(2,3),(6,7))):
                o.append(f'v_cvt_pk_bf16_f32 v{EX+4*p+d}, v{acc+8*p+x}, v{acc+8*p+y}')
        o.append(f's_add_u32 s{S_T1}, s{S_VOFF}, {dt*2048}')
        for p in range(2):
            o.append(('vm',f'buffer_store_dwordx4 {vr(EX+4*p,4)}, v{V_ST}, {sr(S_WS,4)}, s{S_T1} offen offset:{1024*p} sc1',f'st{dt}'))
        return o
    D=6
    V_A2=[t+20+k for k in range(4)]
    def radr2(j):
        R=V_AR if j%2==0 else V_A2
        return [f's_add_u32 s{S_T1}, s{S_T5}, {(j%4)*32768}', f'v_add_u32 v{R[0]}, s{S_T1}, v{V_FB}']+[f'v_xor_b32 v{R[kl]}, {32*kl}, v{R[0]}' for kl in (1,2,3)]
    def read(g):
        if g<112:
            j,k=g>>4,g&15; R=V_AR if j%2==0 else V_A2
            a.ds(f'ds_read_b128 {vr(AF+4*(g%8),4)}, v{R[k&3]} offset:{4096*(k>>2)}', f'a{g}')
    for o in radr2(0): a(o)
    a.wait_vm('d0'); a('s_barrier')
    pp(a,5)
    for g in range(D): read(g)
    fill=radr2(1); dq=step_dma(2)
    for dt in range(7):
        acc=PA+16*(dt&1)
        for k in range(16):
            g=16*dt+k
            if k==16-D-1 and dt<6:
                lag=OPTW['lag']
                stage={OPTW['st1']+lag:1, OPTW['st2']+lag:2}.get(dt)
                if stage: a.wait_vm(f'st{dt-lag-1}')
                a.wait_vm(f'd{dt+1}'); a('s_barrier')
                if stage:
                    K=a.newlabel('pf')
                    a(f's_cmp_lg_u32 s{S_WAVE}, 0\ns_cbranch_scc1 {K}')
                    if stage==1: wait_init(a,t+19,True)
                    set_flag(a,f's{S_RST}',str(stage))
                    a.label(K)
                if dt+3<7: dq+=step_dma(dt+3)
                if dt==OPTW['xt']:
                    a(f's_sub_u32 s{S_T2}, s{S_SLOT}, 32\ns_lshl_b32 s{S_T2}, s{S_T2}, 2\ns_add_u32 s{S_T2}, s{S_T2}, s{S_WAVE}\ns_lshl_b32 s{S_T2}, s{S_T2}, 11\nv_lshlrev_b32 v{t+24}, 1, v{V_LIN}')
                    a.vm(f'buffer_load_dword v255, v{t+24}, {sr(S_X,4)}, s{S_T2} offen')
                if dt==0: a.vm(f'buffer_load_dword v{t+19}, v{V_ZERO}, {sr(S_DBG,4)}, 0 offen offset:{D_INIT} sc1','ini')
            a.wait_ds(f'a{g}')
            a(f'v_mfma_f32_32x32x16_bf16 {vr(acc,16)}, {vr(AF+4*(g%8),4)}, {vr(BF+4*k,4)}, {vr(acc,16) if k else 0}')
            read(g+D)
            if k%2==0 or dt==0:
                while dq:
                    o=dq.pop(0); a.auto(o)
                    if isinstance(o,tuple): break
            if k>=2 or dt==0:
                for _ in range(3):
                    if fill: a.auto(fill.pop(0))
        assert not fill
        pp(a,6+dt)
        fill=(radr2(dt+2) if dt+2<7 else [])+epi(dt)
    assert not dq
    for f in fill: a.auto(f)
    if a.diag: a('s_memrealtime s[46:47]\ns_waitcnt lgkmcnt(0)')
    K=a.newlabel('pf')
    pp(a,19)
    a.drain_vm(); pp(a,20); a('s_barrier')
    a(f's_cmp_lg_u32 s{S_WAVE}, 0\ns_cbranch_scc1 {K}')
    set_flag(a,f's{S_RST}','3')
    a.label(K)
    if getattr(a,'pprof',0):
        a(f's_lshl_b32 s{S_T0}, s{S_SLOT}, 2\ns_add_u32 s{S_T0}, s{S_T0}, s{S_WAVE}\ns_lshl_b32 s{S_T0}, s{S_T0}, 8\ns_add_u32 s{S_T0}, s{S_T0}, {WS_TS+0x200000}')
        a(f'buffer_store_dword v254, v{V_L4}, {sr(S_WS,4)}, s{S_T0} offen')

def dma_piece(t, sbase):
    o=[]; buf=(t%4)*28672
    for grp in range(2):
        o.append(f's_add_u32 s{S_T0}, s{sbase}, {t*28672+4096*grp}')
        o.append(f's_add_u32 m0, s{S_XL}, {buf+4096*grp}')
        for i in range(4 if grp==0 else 3):
            o.append(('vm',f'buffer_load_dwordx4 v{V_DMA}, {sr(S_WS,4)}, s{S_T0} offen offset:{1024*i} sc1 lds',f'w{t}'))
    return o
def dma_rows(t, tloc, srdreg, vreg, sbase, stride):
    o=[]; buf=(t%4)*28672
    for i in range(7):
        o.append(f's_add_u32 s{S_T0}, s{sbase}, {64*tloc+i*16*stride}')
        o.append(f's_add_u32 m0, s{S_XL}, {buf+1024*i}')
        o.append(('vm',f'buffer_load_dwordx4 v{vreg}, {sr(srdreg,4)}, s{S_T0} offen lds',f'w{t}'))
    return o
def rd_piece(t,k,dst):
    off=(t%4)*28672+1024*k
    return [f'ds_read_b128 {ar(dst,4)}, v{V_LIN if off<57344 else V_LIN2} offset:{off%57344}']
def rd_tr(t,k,dst,va,vb,second):
    off=(t%4)*28672+1024*k
    v=va if off<57344 else vb
    return [f'ds_read_b64_tr_b16 {ar(dst,2)}, v{v} offset:{off%57344}', f'ds_read_b64_tr_b16 {ar(dst+2,2)}, v{v} offset:{off%57344+second}']

def gemm(a, nt, dma, rd, mf, epi, pre=None, depth=7, finish_by=None):
    for t in (1,2):
        for o in dma(t): a.auto(o)
    if pre:
        for o in pre(0): a.auto(o)
    a.wait_vm('w0'); a('s_barrier')
    N=28*nt
    def read(g):
        if g<N:
            for o in rd(g//28,g%28,AW+4*(g%8)): a.ds(o,f'r{g}')
    for g in range(depth): read(g)
    fill=list(pre(1)) if pre else []
    dq=[]; g0=0
    for t in range(nt):
        acc=ACC+16*(t&1)
        lim = finish_by(t) if finish_by else 27
        for k in range(28):
            g=28*t+k
            if k==28-depth-1 and t+1<nt:
                assert not dq
                a.wait_vm(f'w{t+1}'); a('s_barrier')
                if t+3<nt: dq=dma(t+3); g0=g
            if k==lim:
                while fill: a.auto(fill.pop(0))
            if k==0: a.wait_ds(f'pre{t}')
            a.wait_ds(f'r{g}')
            a(mf(t,k,ar(AW+4*(g%8),4),vr(acc,16)))
            read(g+depth)
            if dq and (g-g0)%OPTW['dsp']==0:
                while dq:
                    o=dq.pop(0); a.auto(o)
                    if isinstance(o,tuple): break
            if k>=2 and fill:
                n=math.ceil(len(fill)/max(1,lim-k))
                for _ in range(n):
                    if fill: a.auto(fill.pop(0))
        while fill: a.auto(fill.pop(0))
        fill=list(epi(t,acc))
        if pre and t+2<nt: fill+=list(pre(t+2))
    while fill: a.auto(fill.pop(0))

def load_x(a, natural, xf=False):
    a(f'''
    s_mul_i32 s{S_T1}, s{S_SEG}, 28672
    s_add_u32 s{S_T2}, s{S_T1}, 14336
    s_mul_i32 s{S_T3}, s{S_WAVE}, 28672
    s_add_u32 s{S_T3}, s{S_T3}, {LDS_XST}
    v_add_u32 v{VT}, s{S_T3}, v{V_XR0}
    v_add_u32 v{VT+1}, s{S_T3}, v{V_XR1}
    ''')
    for ch in range(14):
        for rh in range(2):
            a(f's_add_u32 m0, s{S_T3}, {(2*ch+rh)*1024-64*ch}')
            a.vm(f'buffer_load_dwordx4 v{V_XS}, {sr(S_X,4)}, s{S_T2 if rh else S_T1} offen offset:{64*ch} lds',f'x{ch}')
    for ch in range(14):
        if natural is None: break
        a.wait_vm(f'x{ch}')
        for kl in range(2):
            a.ds(f'ds_read_b128 {vr(8*ch+4*kl,4)}, v{VT+kl} offset:{2048*ch}',f'xr{2*ch+kl}')
    if natural is None: a.drain_vm()
    elif natural:
        a.drain_ds()
    else:
        for kb in range(28):
            r=4*kb
            a.wait_ds(f'xr{kb}')
            a(f'v_permlane32_swap_b32 v{r}, v{r+2}\nv_permlane32_swap_b32 v{r+1}, v{r+3}')
        for kb in range(28):
            r=4*kb
            for d,s in enumerate((0,2,1,3)): a(f'v_accvgpr_write_b32 a{r+d}, v{r+s}')
    if xf:
        t=VT+2
        a(f'''
        v_bfe_u32 v{t}, v{V_LIN}, 4, 1
        v_bfe_u32 v{t+1}, v{V_LIN}, 5, 1
        v_lshl_add_u32 v{t}, v{t}, 1, v{t+1}
        v_bfe_u32 v{t+1}, v{V_LIN}, 8, 1
        v_lshlrev_b32 v{t+1}, 1, v{t+1}
        v_xor_b32 v{t+1}, v{t+1}, v{t}
        v_lshlrev_b32 v{t+1}, 4, v{t+1}
        v_lshl_add_u32 v{t+1}, v{t}, 8, v{t+1}
        v_bfe_u32 v{t}, v{V_LIN}, 6, 1
        v_lshl_add_u32 v{t+1}, v{t}, 7, v{t+1}
        v_bfe_u32 v{t}, v{V_LIN}, 7, 1
        v_lshl_add_u32 v{t+1}, v{t}, 10, v{t+1}
        v_bfe_u32 v{t}, v{V_LIN}, 9, 1
        v_lshl_add_u32 v{t+1}, v{t}, 11, v{t+1}
        v_add_u32 v{t}, s{S_T3}, v{t+1}
        v_xor_b32 v{t+1}, 16, v{t}
        s_lshl_b32 s{S_T2}, s{S_SEG}, 15
        s_add_u32 s{S_T2}, s{S_T2}, {WS_XF}
        ''')
        for half in range(2):
            for i in range(16*half,16*half+16):
                cw,kt,p=i>>3,(i>>2)&1,i&3
                P=(2*(cw>>1)+p) if p<2 else (4+(cw>>1)+(p&1))
                a(f'ds_read_b128 {vr(4*(i&15)+64*half,4) if half==0 else ar(144+4*(i&15),4)}, v{t+(cw&1)} offset:{4096*P+64*kt}')
        a('s_waitcnt lgkmcnt(0)')
        for i in range(32):
            if i%4==0: a(f's_add_u32 s{S_T1}, s{S_T2}, {1024*i}')
            a(f'buffer_store_dwordx4 {vr(4*i,4) if i<16 else ar(144+4*(i&15),4)}, v{V_LIN}, {sr(S_WS,4)}, s{S_T1} offen offset:{1024*(i%4)} sc1')
        return
    a('s_barrier')

def unit_head(a, mat0, wsbase, half=False):
    a(f'''
    s_lshl_b32 s{S_SEG}, s{S_G}, 2
    s_add_u32 s{S_SEG}, s{S_SEG}, s{S_WAVE}
    s_lshl_b32 s{S_T5}, s{S_H}, 7
    s_add_u32 s{S_T5}, s{S_T5}, {F_W+128*mat0}
    s_mul_i32 s{S_B0}, s{S_H}, {MAT}
    s_add_u32 s{S_B0}, s{S_B0}, {wsbase}
    s_mul_i32 s{S_XL}, s{S_WAVE}, 7168
    ''')
    if half: a(f's_mul_i32 s{S_T0}, s{S_MBO}, 28672\ns_add_u32 s{S_B0}, s{S_B0}, s{S_T0}')
    load_x(a,False)
    if mat0: rt1(a,1)
    wait_flags(a,V_L4,f's{S_T5}',7,3,sleep=1)
    if mat0: rt1(a,2)
    for o in dma_piece(0,S_B0): a.auto(o)

def rt1(a,i):
    if a.diag:
        K=a.newlabel('rt1')
        a(f's_cmp_lg_u32 s{S_STEP}, 0\ns_cbranch_scc1 {K}')
        rt(a,i)
        if i==2: a('s_memtime s[78:79]\ns_waitcnt lgkmcnt(0)')
        if i==3: a(f's_mov_b32 s{S_STEP}, 1\ns_mov_b32 s77, s78\ns_memtime s[78:79]\ns_waitcnt lgkmcnt(0)\ns_sub_u32 s78, s78, s77')
        a.label(K)

def unit_V(a, half=False):
    a.comment('==== V unit ====')
    rt1(a,0)
    nt=4 if half else 14
    if half: a(f's_mov_b32 s{S_VRDY}, s{S_T5}\ns_lshl_b32 s{S_MBO}, s{S_T5}, 2\ns_min_u32 s{S_MBO}, s{S_MBO}, 10')
    unit_head(a,16,WS_B,half)
    a(f'''
    s_mul_i32 s{S_B1}, s{S_SEG}, {SEGV}
    s_lshl_b32 s{S_T1}, s{S_H}, 11
    s_add_u32 s{S_B1}, s{S_B1}, s{S_T1}
    s_add_u32 s{S_B1}, s{S_B1}, {WS_V}
    ''')
    if half: a(f's_mul_i32 s{S_T1}, s{S_MBO}, 32768\ns_add_u32 s{S_B1}, s{S_B1}, s{S_T1}')
    def epi(t,acc):
        o=[f'v_cvt_pk_bf16_f32 v{EX+d}, v{acc+2*d}, v{acc+2*d+1}' for d in range(8)]
        o.append(f's_add_u32 s{S_T1}, s{S_B1}, {t*32768}')
        o+=[f'buffer_store_dwordx4 {vr(EX+4*p,4)}, v{V_LIN}, {sr(S_WS,4)}, s{S_T1} offen offset:{1024*p} sc1' for p in range(2)]
        return o
    gemm(a,nt,lambda t:dma_piece(t,S_B0),rd_piece,
         lambda t,k,w,acc:f'v_mfma_f32_32x32x16_bf16 {acc}, {ar(4*k,4)}, {w}, {acc if k else 0}', epi)
    a(f's_lshl_b32 s{S_T0}, s{S_G}, 7\ns_lshl_b32 s{S_T1}, s{S_H}, 2\ns_add_u32 s{S_T0}, s{S_T0}, s{S_T1}\ns_add_u32 s{S_T0}, s{S_T0}, {F_V}')
    if half: a(f's_add_u32 s{S_T0}, s{S_T0}, s{S_VRDY}')
    wg_flag(a,f's{S_T0}','0x01010101','byte' if half else 'dword')
    rt1(a,3)

def unit_X(a):
    a.comment('==== X unit: x fragments for the team ====')
    a(f's_lshl_b32 s{S_SEG}, s{S_G}, 2\ns_add_u32 s{S_SEG}, s{S_SEG}, s{S_WAVE}')
    for r in range(4): a(f'v_mov_b32 v{ACC+r}, -1')
    for base,n in ((WS_MEMH+LASTSEG*8192,32),(WS_PX+LASTSEG*SEGP,160),(WS_MBH+LASTSEG*SEGMB,448)):
        for k in range((n+63)//64):
            a(f's_add_u32 s{S_T0}, s{S_SEG}, {64*k}\ns_min_u32 s{S_T0}, s{S_T0}, {n-1}\ns_lshl_b32 s{S_T0}, s{S_T0}, 10\ns_add_u32 s{S_T0}, s{S_T0}, {base}')
            a(f'buffer_store_dwordx4 {vr(ACC,4)}, v{V_LIN}, {sr(S_WS,4)}, s{S_T0} offen sc1')
    load_x(a,None,True)
    a(f's_lshl_b32 s{S_T0}, s{S_G}, 7\ns_add_u32 s{S_T0}, s{S_T0}, {F_M+32}')
    wg_flag(a,f's{S_T0}')

def unit_Q(a):
    a.comment('==== Q unit ====')
    unit_head(a,0,WS_A)
    def epi(t,acc):
        o=[]
        for c2 in range(2):
            for d in range(4):
                r=4*(d&1)+2*c2+(d>>1)
                o.append(f'v_cvt_pk_bf16_f32 v{8*t+4*c2+d}, v{acc+r}, v{acc+8+r}')
        o+=[f'v_permlane32_swap_b32 v{8*t+d}, v{8*t+4+d}' for d in range(4)]
        for p in range(2):
            kb=2*t+p
            o.append(f'v_mfma_f32_32x32x16_bf16 {vr(SAC,16)}, {ar(4*kb,4)}, {vr(4*kb,4)}, {vr(SAC,16) if kb else 0}')
        return o
    gemm(a,14,lambda t:dma_piece(t,S_B0),rd_piece,
         lambda t,k,w,acc:f'v_mfma_f32_32x32x16_bf16 {acc}, {w}, {ar(4*k,4)}, {acc if k else 0}', epi)
    t=VT
    a(f'''
    v_bfe_u32 v{t}, v{V_LIN}, 4, 5
    v_lshrrev_b32 v{t+1}, 2, v{V_HH16}
    v_sub_u32 v{t}, v{t}, v{t+1}
    v_mov_b32 v{t+1}, {f32(-1e9*LOG2E)}
    ''')
    for r in range(16):
        a(f'v_cmp_le_i32 vcc, {8*(r>>2)+(r&3)}, v{t}')
        a(f'v_cndmask_b32 v{SAC+r}, v{t+1}, v{SAC+r}, vcc')
    a(f'v_max3_f32 v{t+2}, v{SAC}, v{SAC+1}, v{SAC+2}')
    for r in range(3,15,2): a(f'v_max3_f32 v{t+2}, v{t+2}, v{SAC+r}, v{SAC+r+1}')
    a(f'v_max_f32 v{t+2}, v{t+2}, v{SAC+15}')
    a(f'''
    v_and_b32 v{t+3}, 0x1f0, v{V_LIN}
    v_lshl_add_u32 v{t+4}, v{t+3}, 1, v{V_HH16}
    v_lshrrev_b32 v{t+5}, 1, v{V_HH16}
    v_add_u32 v{t+5}, v{t+5}, v{t+3}
    ''')
    relax(a,S_T1,S_SEG)
    wait_prog(a,S_T1)
    a(f's_lshl_b32 s{S_T0}, s{S_SEG}, 13\ns_add_u32 s{S_T0}, s{S_T0}, {WS_MEMH}\ns_add_u32 s{S_T1}, s{S_T0}, 4096')
    MF=t+16
    rt(a,0)
    until_valid(a,[f'buffer_load_dwordx4 {vr(MF+4*i,4)}, v{t+4}, {sr(S_WS,4)}, s{S_T0 if i<4 else S_T1} offen offset:{1024*(i%4)} sc1' for i in range(7)],range(MF,MF+28),t+6)
    rt(a,1)
    accs=[ACC,ACC+16,EX,EX+16]
    def fix(i):
        r=MF+4*i
        a.wait_vm(f'm{i}')
        a(f'v_permlane32_swap_b32 v{r}, v{r+2}\nv_permlane32_swap_b32 v{r+1}, v{r+3}\nv_swap_b32 v{r+1}, v{r+2}')
    fix(0)
    for i in range(7):
        for j in range(4):
            a(f'v_mfma_f32_32x32x16_bf16 {vr(accs[j],16)}, {vr(MF+4*i,4)}, {vr(4*(4*i+j),4)}, {vr(accs[j],16) if i else 0}')
            if j==1 and i<6: fix(i+1)
    a(f'''
    s_mul_i32 s{S_T0}, s{S_SEG}, {SEGP}
    s_lshr_b32 s{S_T1}, s{S_H}, 2
    s_mul_i32 s{S_T1}, s{S_T1}, 10240
    s_add_u32 s{S_T0}, s{S_T0}, s{S_T1}
    s_add_u32 s{S_T0}, s{S_T0}, {WS_PX}
    s_and_b32 s{S_T2}, s{S_H}, 3
    s_lshl_b32 s{S_T1}, s{S_T2}, 9
    s_add_u32 s{S_T1}, s{S_T1}, s{S_T0}
    s_add_u32 s{S_T1}, s{S_T1}, 8192
    s_lshl_b32 s{S_T2}, s{S_T2}, 11
    s_add_u32 s{S_T0}, s{S_T0}, s{S_T2}
    ''')
    M=t+8
    for r in range(4):
        a(f'v_add_f32 v{M+r}, v{accs[0]+r}, v{accs[1]+4+r}')
    for r in range(4):
        a(f'v_add_f32 v{M+4+r}, v{accs[2]+8+r}, v{accs[3]+12+r}')
    for r in range(4):
        a(f'v_add_f32 v{M+r}, v{M+r}, v{M+4+r}')
    a(f'v_max3_f32 v{t+2}, v{t+2}, v{M}, v{M+1}\nv_max3_f32 v{t+2}, v{t+2}, v{M+2}, v{M+3}')
    a(f'v_mov_b32 v{t+6}, v{t+2}\nv_permlane32_swap_b32 v{t+2}, v{t+6}\nv_max_f32 v{t+2}, v{t+2}, v{t+6}')
    vals=[SAC+r for r in range(16)]+[M+r for r in range(4)]
    for v in vals: a(f'v_sub_f32 v{v}, v{v}, v{t+2}')
    for v in vals: a(f'v_exp_f32 v{v}, v{v}')
    a(f'v_add_f32 v{t+6}, v{vals[0]}, v{vals[1]}\nv_add_f32 v{t+7}, v{vals[2]}, v{vals[3]}')
    for k in range(4,20,2):
        a(f'v_add_f32 v{t+6}, v{t+6}, v{vals[k]}\nv_add_f32 v{t+7}, v{t+7}, v{vals[k+1]}')
    a(f'v_add_f32 v{t+6}, v{t+6}, v{t+7}\nv_mov_b32 v{t+7}, v{t+6}\nv_permlane32_swap_b32 v{t+6}, v{t+7}\nv_add_f32 v{t+6}, v{t+6}, v{t+7}')
    a(f'v_rcp_f32 v{t+6}, v{t+6}')
    for v in vals: a(f'v_mul_f32 v{v}, v{v}, v{t+6}')
    for d in range(10): a(f'v_cvt_pk_bf16_f32 v{ACC+d}, |v{vals[2*d]}|, |v{vals[2*d+1]}|')
    rt(a,2)
    a(f'buffer_store_dwordx4 {vr(ACC,4)}, v{V_LIN}, {sr(S_WS,4)}, s{S_T0} offen sc1')
    a(f'buffer_store_dwordx4 {vr(ACC+4,4)}, v{V_LIN}, {sr(S_WS,4)}, s{S_T0} offen offset:1024 sc1')
    a(f'buffer_store_dwordx2 {vr(ACC+8,2)}, v{t+5}, {sr(S_WS,4)}, s{S_T1} offen sc1')
    a(f's_lshl_b32 s{S_T0}, s{S_SEG}, 7\ns_lshl_b32 s{S_T1}, s{S_H}, 2\ns_add_u32 s{S_T0}, s{S_T0}, s{S_T1}\ns_add_u32 s{S_T0}, s{S_T0}, {F_P}')
    a.drain_vm()
    set_flag(a,f's{S_T0}')

def unit_M(a):
    a.comment('==== MLP unit ====')
    t=VT
    T1=LDS_TAB; T2=LDS_TAB+2048; TG=LDS_TAB+4096
    srd(a,S_R1,P_W1,448*1792*2)
    a(f'''
    s_lshl_b32 s{S_SEG}, s{S_G}, 2
    s_add_u32 s{S_SEG}, s{S_SEG}, s{S_WAVE}
    s_mul_i32 s{S_XL}, s{S_WAVE}, 7168
    s_mul_i32 s{S_B0}, s{S_H}, 896
    s_mul_i32 s{S_B1}, s{S_H}, {448*896}
    ''')
    d1=lambda tt: dma_rows(tt,tt,S_R1,V_RM1,S_B0,3584)
    d2=lambda tt: dma_rows(tt,tt-14,S_R2,V_RM2,S_B1,896)
    for o in d1(0): a.auto(o)
    a(f's_lshl_b32 s{S_T0}, s{S_WAVE}, 8\nv_add_u32 v{t+2}, s{S_T0}, v{V_L4}')
    srd(a,S_R2,P_B1,3584)
    a.vm(f'buffer_load_dword v{t+3}, v{t+2}, {sr(S_R2,4)}, s{S_B0} offen','tb')
    srd(a,S_R2,P_B2,896)
    a(f's_lshl_b32 s{S_T0}, s{S_H}, 12')
    a.vm(f'buffer_load_dword v{t+4}, v{t+2}, {sr(S_R2,4)}, s{S_T0} offen','tb')
    srd(a,S_R2,P_GATE,896)
    a.vm(f'buffer_load_dword v{t+5}, v{t+2}, {sr(S_R2,4)}, 0 offen','tb')
    a.wait_vm('tb')
    srd(a,S_R2,P_W2,448*1792*2)
    a(f'''
    v_lshlrev_b32 v{t+6}, 16, v{t+3}
    v_and_b32 v{t+7}, 0xffff0000, v{t+3}
    v_lshlrev_b32 v{t+8}, 16, v{t+4}
    v_and_b32 v{t+9}, 0xffff0000, v{t+4}
    v_lshlrev_b32 v{t+10}, 1, v{t+2}
    v_add_u32 v{t+10}, {LDS_TAB}, v{t+10}
    v_add_u32 v{t+11}, {TG}, v{t+2}
    ds_write_b64 v{t+10}, {vr(t+6,2)}
    ds_write_b64 v{t+10}, {vr(t+8,2)} offset:2048
    ds_write_b32 v{t+11}, v{t+5}
    v_add_u32 v{t+12}, {LDS_TAB}, v{V_HH16}
    ''')
    V_TAB=t+12
    load_x(a,True)
    K=a.newlabel('nog')
    a(f's_cmp_lg_u32 s{S_H}, 0\ns_cbranch_scc1 {K}')
    a(f'v_mov_b32 v{t+2}, 0\nv_mov_b32 v{t+3}, 0')
    for kb0 in range(0,28,7):
        for kb in range(kb0,kb0+7): a.ds(f'ds_read_b128 {vr(ACC+4*(kb-kb0),4)}, v{V_TAB} offset:{4096+32*kb}',f'g{kb}')
        for kb in range(kb0,kb0+7):
            a.wait_ds(f'g{kb}')
            for d in range(4): a(f'v_dot2_f32_bf16 v{t+2+(d&1)}, v{4*kb+d}, v{ACC+4*(kb-kb0)+d}, v{t+2+(d&1)}')
        a('s_nop 2')
    a(f'''
    v_add_f32 v{t+2}, v{t+2}, v{t+3}
    v_mov_b32 v{t+3}, v{t+2}
    v_permlane32_swap_b32 v{t+2}, v{t+3}
    v_add_f32 v{t+2}, v{t+2}, v{t+3}
    v_mul_f32 v{t+2}, {f32(-LOG2E)}, v{t+2}
    v_exp_f32 v{t+2}, v{t+2}
    v_add_f32 v{t+2}, 1.0, v{t+2}
    v_rcp_f32 v{t+2}, v{t+2}
    v_and_b32 v{t+3}, 127, v{V_L4}
    s_lshl_b32 s{S_T0}, s{S_SEG}, 7
    s_add_u32 s{S_T0}, s{S_T0}, {WS_G}
    buffer_store_dword v{t+2}, v{t+3}, {sr(S_WS,4)}, s{S_T0} offen sc1
    ''')
    a.label(K)
    a(f'v_mov_b32 v{t+2}, 0\nv_mov_b32 v{t+3}, 0\nv_mov_b32 v{t+4}, 0x3f803f80')
    for r in range(112): a(f'v_dot2_f32_bf16 v{t+2+(r&1)}, v{r}, v{t+4}, v{t+2+(r&1)}')
    a(f'''
    s_nop 2
    v_add_f32 v{t+2}, v{t+2}, v{t+3}
    v_mov_b32 v{t+3}, v{t+2}
    v_permlane32_swap_b32 v{t+2}, v{t+3}
    v_add_f32 v{t+2}, v{t+2}, v{t+3}
    v_mul_f32 v{t+2}, {f32(1/448)}, v{t+2}
    v_mov_b32 v{t+3}, 0
    v_mov_b32 v{t+4}, 0
    s_mov_b32 s{S_T0}, 0xffff0000
    ''')
    for r in range(112):
        a(f'v_lshlrev_b32 v{t+5}, 16, v{r}\nv_and_b32 v{t+6}, s{S_T0}, v{r}')
        a(f'v_sub_f32 v{t+5}, v{t+5}, v{t+2}\nv_sub_f32 v{t+6}, v{t+6}, v{t+2}')
        a(f'v_fmac_f32 v{t+3}, v{t+5}, v{t+5}\nv_fmac_f32 v{t+4}, v{t+6}, v{t+6}')
    a(f'''
    v_add_f32 v{t+3}, v{t+3}, v{t+4}
    v_mov_b32 v{t+4}, v{t+3}
    v_permlane32_swap_b32 v{t+3}, v{t+4}
    v_add_f32 v{t+3}, v{t+3}, v{t+4}
    v_mov_b32 v{t+4}, {f32(1e-5)}
    v_fmac_f32 v{t+4}, {f32(1/448)}, v{t+3}
    v_rsq_f32 v{t+3}, v{t+4}
    ''')
    for r in range(112):
        a(f'v_lshlrev_b32 v{t+5}, 16, v{r}\nv_and_b32 v{t+6}, s{S_T0}, v{r}')
        a(f'v_sub_f32 v{t+5}, v{t+5}, v{t+2}\nv_sub_f32 v{t+6}, v{t+6}, v{t+2}')
        a(f'v_mul_f32 v{t+5}, v{t+5}, v{t+3}\nv_mul_f32 v{t+6}, v{t+6}, v{t+3}')
        a(f'v_cvt_pk_bf16_f32 v{t+5}, v{t+5}, v{t+6}\nv_accvgpr_write_b32 a{r}, v{t+5}')
    kk=2*math.sqrt(2/math.pi)*LOG2E
    a(f'''
    s_mov_b32 s{S_T4}, {f32(-kk*0.044715)}
    v_mov_b32 v{t+2}, {f32(-kk)}
    v_and_b32 v{t+3}, 0x1f0, v{V_LIN}
    v_lshl_add_u32 v{t+3}, v{t+3}, 1, v{V_HH16}
    s_mul_i32 s{S_T5}, s{S_H}, {64*SEGM}
    s_mul_i32 s{S_T1}, s{S_SEG}, {SEGM}
    s_add_u32 s{S_T5}, s{S_T5}, s{S_T1}
    s_add_u32 s{S_T5}, s{S_T5}, {WS_MLP}
    ''')
    def pre(tt):
        acc=ACC+16*(tt&1); base=(0 if tt<14 else 2048)+128*(tt%14)
        return [('ds',f'ds_read_b128 {vr(acc+4*q,4)}, v{V_TAB} offset:{base+32*q}',f'pre{tt}') for q in range(4)]
    def epi(tt,acc):
        o=[]
        if tt<14:
            for h in range(2):
                R=range(8*h,8*h+8); x=lambda r: SAC+(r&7)
                o+=[f'v_mul_f32 v{x(r)}, v{acc+r}, v{acc+r}' for r in R]
                o+=[f'v_fma_f32 v{x(r)}, v{x(r)}, s{S_T4}, v{t+2}' for r in R]
                o+=[f'v_mul_f32 v{x(r)}, v{x(r)}, v{acc+r}' for r in R]
                o+=[f'v_exp_f32 v{x(r)}, v{x(r)}' for r in R]
                o+=[f'v_add_f32 v{x(r)}, 1.0, v{x(r)}' for r in R]
                o+=[f'v_rcp_f32 v{x(r)}, v{x(r)}' for r in R]
                o+=[f'v_mul_f32 v{x(r)}, v{x(r)}, v{acc+r}' for r in R]
                o+=[f'v_cvt_pk_bf16_f32 v{8*tt+4*h+d}, v{SAC+2*d}, v{SAC+2*d+1}' for d in range(4)]
        else:
            o.append(f's_add_u32 s{S_T1}, s{S_T5}, {(tt-14)*4096}')
            o+=[f'buffer_store_dwordx4 {vr(acc+4*q,4)}, v{t+3}, {sr(S_WS,4)}, s{S_T1} offen offset:{1024*q} sc1' for q in range(4)]
            o.append('s_nop 1')
        return o
    gemm(a,28,lambda tt: d1(tt) if tt<14 else d2(tt),
         lambda tt,k,dst: rd_tr(tt,k,dst,V_TR,V_TR2,256) if tt<14 else rd_tr(tt,k,dst,V_TQ,V_TQ2,512),
         lambda tt,k,w,acc: f'v_mfma_f32_32x32x16_bf16 {acc}, {w}, {ar(4*k,4) if tt<14 else vr(4*k,4)}, {acc}',
         epi, pre=pre, depth=5, finish_by=lambda tt: 26)
    a(f's_lshl_b32 s{S_T0}, s{S_G}, 7\ns_lshl_b32 s{S_T1}, s{S_H}, 2\ns_add_u32 s{S_T0}, s{S_T0}, s{S_T1}\ns_add_u32 s{S_T0}, s{S_T0}, {F_M}')
    wg_flag(a,f's{S_T0}')

def unit_F(a):
    a.comment('==== final unit ====')
    t=VT
    VV=0; PX=64; PM=96; MB=104; FA=120; ML=152; GG=184
    a(f'''
    s_lshr_b32 s{S_G}, s{S_SEG}, 2
    s_lshl_b32 s{S_T0}, s{S_G}, 7
    s_lshl_b32 s{S_T5}, s{S_WAVE}, 4
    s_add_u32 s{S_T1}, s{S_T0}, s{S_T5}
    s_add_u32 s{S_T1}, s{S_T1}, {F_V}
    s_add_u32 s{S_T2}, s{S_T0}, {F_M}
    ''')
    wait_flags(a,V_L4,f's{S_T1}',4,'0x01010101')
    a(f'''
    s_mul_i32 s{S_B0}, s{S_SEG}, {SEGV}
    s_lshl_b32 s{S_T0}, s{S_H}, 16
    s_add_u32 s{S_B0}, s{S_B0}, s{S_T0}
    s_lshl_b32 s{S_T0}, s{S_WAVE}, 13
    s_add_u32 s{S_B0}, s{S_B0}, s{S_T0}
    s_add_u32 s{S_B0}, s{S_B0}, {WS_V}
    ''')
    for n in range(2):
        for g in range(2):
            a(f's_add_u32 s{S_T0}, s{S_B0}, {n*32768+g*4096}')
            for i in range(4):
                a(f'buffer_load_dwordx4 {vr(VV+32*n+16*g+4*i,4)}, v{V_LIN}, {sr(S_WS,4)}, s{S_T0} offen offset:{1024*i} sc1')
    wait_flags(a,V_L4,f's{S_T2}',4,1)
    a(f'''
    v_and_b32 v{t}, 0x1f0, v{V_LIN}
    v_lshlrev_b32 v{t}, 1, v{t}
    v_lshl_add_u32 v{t}, v{V_HH16}, 6, v{t}
    s_mul_i32 s{S_T0}, s{S_SEG}, {SEGM}
    s_lshl_b32 s{S_T1}, s{S_H}, 13
    s_add_u32 s{S_T0}, s{S_T0}, s{S_T1}
    s_lshl_b32 s{S_T1}, s{S_WAVE}, 11
    s_add_u32 s{S_T0}, s{S_T0}, s{S_T1}
    s_add_u32 s{S_T0}, s{S_T0}, {WS_MLP}
    ''')
    for c in range(4):
        a(f'buffer_load_dwordx4 {vr(ML+8*c,4)}, v{t}, {sr(S_WS,4)}, s{S_T0} offen sc1')
        a(f'buffer_load_dwordx4 {vr(ML+8*c+4,4)}, v{t}, {sr(S_WS,4)}, s{S_T0} offen offset:16 sc1')
        if c<3: a(f's_add_u32 s{S_T0}, s{S_T0}, {64*SEGM}')
    a(f'''
    v_and_b32 v{t+1}, 127, v{V_L4}
    s_lshl_b32 s{S_T0}, s{S_SEG}, 7
    s_add_u32 s{S_T1}, s{S_T0}, {WS_G}
    buffer_load_dword v{GG}, v{t+1}, {sr(S_WS,4)}, s{S_T1} offen sc1
    s_add_u32 s{S_T1}, s{S_T0}, s{S_T5}
    s_add_u32 s{S_T1}, s{S_T1}, {F_P}
    ''')
    relax(a,S_T3,S_SEG)
    wait_prog(a,S_T3)
    for r in range(8):
        a(f'v_add_f32 v{ML+r}, v{ML+r}, v{ML+8+r}\nv_add_f32 v{ML+16+r}, v{ML+16+r}, v{ML+24+r}')
    for r in range(8): a(f'v_add_f32 v{ML+r}, v{ML+r}, v{ML+16+r}')
    a(f'v_sub_f32 v{GG+1}, 1.0, v{GG}')
    for r in range(8): a(f'v_mul_f32 v{ML+r}, v{ML+r}, v{GG+1}')
    NW=a.newlabel('nowait')
    a(f'''
    s_cmp_ge_u32 s{S_SEG}, {LASTSEG}
    s_cbranch_scc1 {NW}
    v_lshlrev_b32 v{t+1}, 3, v{V_LIN}
    s_lshl_b32 s{S_T2}, s{S_H}, 8
    s_lshl_b32 s{S_T0}, s{S_WAVE}, 2
    s_add_u32 s{S_T2}, s{S_T2}, s{S_T0}
    s_add_u32 s{S_T2}, s{S_T2}, {F_B}
    ''')
    wait_flags(a,t+1,f's{S_T2}',2,f's{S_T3}',sleep=4)
    wait_flags(a,V_L4,f's{S_T1}',4,1,sleep=4)
    a.label(NW)
    srd(a,S_R1,P_OUT,2048*448*2)
    a(f'''
    v_bfe_u32 v{t}, v{V_LIN}, 4, 5
    v_mul_u32_u24 v{t}, 896, v{t}
    v_add_u32 v{t}, v{t}, v{V_HH16}
    s_mul_i32 s{S_T0}, s{S_SEG}, 28672
    s_lshl_b32 s{S_T1}, s{S_H}, 7
    s_add_u32 s{S_T0}, s{S_T0}, s{S_T1}
    s_lshl_b32 s{S_T1}, s{S_WAVE}, 5
    s_add_u32 s{S_T0}, s{S_T0}, s{S_T1}
    s_lshl_b32 s{S_T1}, s{S_WAVE}, 13
    v_add_u32 v{t+1}, s{S_T1}, v{V_LIN}
    s_lshr_b32 s{S_T1}, s{S_WAVE}, 1
    s_lshl_b32 s{S_T1}, s{S_T1}, 12
    s_and_b32 s{S_T2}, s{S_WAVE}, 1
    s_lshl_b32 s{S_T2}, s{S_T2}, 10
    s_add_u32 s{S_T1}, s{S_T1}, s{S_T2}
    v_add_u32 v{t+2}, s{S_T1}, v{V_LIN}
    ''')
    a(f'''
    s_mul_i32 s{S_T2}, s{S_SEG}, {SEGP}
    s_mul_i32 s{S_T1}, s{S_WAVE}, 10240
    s_add_u32 s{S_T2}, s{S_T2}, s{S_T1}
    s_add_u32 s{S_T2}, s{S_T2}, {WS_PX}
    s_add_u32 s{S_T3}, s{S_T2}, 4096
    s_add_u32 s{S_T4}, s{S_T2}, 8192
    s_mul_i32 s{S_B0}, s{S_SEG}, {SEGMB}
    s_lshl_b32 s{S_T1}, s{S_H}, 14
    s_add_u32 s{S_B0}, s{S_B0}, s{S_T1}
    s_lshl_b32 s{S_T1}, s{S_WAVE}, 11
    s_add_u32 s{S_B0}, s{S_B0}, s{S_T1}
    s_add_u32 s{S_B0}, s{S_B0}, {WS_MBH}
    s_add_u32 s{S_B1}, s{S_B0}, 8192
    ''')
    pld=[f'buffer_load_dwordx4 {vr(PX+4*i,4)}, v{V_LIN}, {sr(S_WS,4)}, s{(S_T2,S_T3,S_T4)[i>>2]} offen offset:{1024*(i%4)} sc1' for i in range(10)]
    mld=[f'buffer_load_dwordx4 {vr(MB+8*n+4*k,4)}, v{V_LIN}, {sr(S_WS,4)}, s{S_B1 if n else S_B0} offen offset:{1024*k} sc1' for n in range(2) for k in range(2)]
    rt(a,0)
    until_valid(a,pld[8:],range(PM,PM+8),t+3)
    rt(a,1)
    AG=a.newlabel('again')
    a(f's_mov_b32 s{S_SPIN}, 0')
    a.label(AG)
    for i,x in enumerate(pld[:8]): a.vm(x,f'p{i}')
    for i,x in enumerate(mld): a.vm(x,f'b{i}')
    for i in range(8):
        r=PX+4*i
        a.wait_vm(f'p{i}')
        for n in range(2):
            a(f'v_mfma_f32_32x32x16_bf16 {vr(FA+16*n,16)}, {vr(VV+32*n+4*i,4)}, {vr(r,4)}, {vr(FA+16*n,16) if i else 0}')
            if n==0:
                a(f'v_max3_u32 v{t+3}, v{r}, v{r+1}, v{r+2 if i==0 else t+3}')
                a(f'v_max_u32 v{t+3}, v{t+3}, v{r+3}' if i==0 else f'v_max3_u32 v{t+3}, v{r+2}, v{r+3}, v{t+3}')
    a(f'v_cmp_eq_u32 vcc, -1, v{t+3}\ns_cbranch_vccz {AG}_d')
    a(f's_add_u32 s{S_SPIN}, s{S_SPIN}, 1\ns_cmp_lt_u32 s{S_SPIN}, {SPINS}\ns_cbranch_scc1 {AG}\ns_mov_b32 s{S_ERR}, 12')
    a.label(AG+'_d')
    a.drain_vm()
    rt(a,2)
    a(f'v_max3_u32 v{t+3}, v{MB}, v{MB+1}, v{MB+15}')
    for r in range(MB+2,MB+14,2): a(f'v_max3_u32 v{t+3}, v{r}, v{r+1}, v{t+3}')
    a(f'v_max_u32 v{t+3}, v{MB+14}, v{t+3}\nv_cmp_eq_u32 vcc, -1, v{t+3}\ns_cbranch_vccz {AG}_m')
    until_valid(a,mld,range(MB,MB+16),t+3)
    a.label(AG+'_m')
    rt(a,3)
    for i in range(2):
        for n in range(2):
            a(f'v_mfma_f32_32x32x16_bf16 {vr(FA+16*n,16)}, {vr(MB+8*n+4*i,4)}, {vr(PM+4*i,4)}, {vr(FA+16*n,16)}')
    for n in range(2):
        for q in range(4):
            a(f'ds_write_b128 v{t+1}, {vr(FA+16*n+4*q,4)} offset:{4096*n+1024*q}')
    a('s_waitcnt lgkmcnt(0)\ns_barrier')
    for w in range(4):
        a(f'ds_read_b128 {vr(VV+8*w,4)}, v{t+2} offset:{8192*w}')
        a(f'ds_read_b128 {vr(VV+8*w+4,4)}, v{t+2} offset:{8192*w+2048}')
    a('s_waitcnt lgkmcnt(0)')
    for r in range(8):
        a(f'v_add_f32 v{VV+r}, v{VV+r}, v{VV+8+r}\nv_add_f32 v{VV+16+r}, v{VV+16+r}, v{VV+24+r}')
    for r in range(8): a(f'v_add_f32 v{VV+r}, v{VV+r}, v{VV+16+r}')
    for r in range(4):
        a(f'v_fma_f32 v{ML+2*r}, v{VV+r}, v{GG}, v{ML+2*r}\nv_fma_f32 v{ML+2*r+1}, v{VV+4+r}, v{GG}, v{ML+2*r+1}')
    for d in range(4): a(f'v_cvt_pk_bf16_f32 v{ML+8+d}, v{ML+2*d}, v{ML+2*d+1}')
    a(f'buffer_store_dwordx4 {vr(ML+8,4)}, v{t}, {sr(S_R1,4)}, s{S_T0} offen')
    a.vq=[]; a.dq=[]
```

```python
import sys
from asmb import *
from layout import *
import team, work
from work import *
KN='gated_mix__memory_aug_recurrent_mem_tr__mixer_channel_mlp__prompt'
HDR=open('cdna_kernels/'+KN+'.s.ref').read().split('; Override launch geometry')[0]

def make_table():
    O=work.OPTW
    V=lambda G,h:(0<<12)|(G<<4)|h
    Q=lambda G,h:(1<<12)|(G<<4)|h
    M=lambda G,c:(2<<12)|(G<<4)|c
    F=lambda s,c:(3<<12)|(s<<4)|c
    nv,nq,nm=O['nv'],O['nq'],O['nm']
    H=lambda G,h,k:((4+k)<<12)|(G<<4)|h
    X=lambda G:(8<<12)|(G<<4)
    nhf=O['nh']
    heads=[x for h in range(16) for x in [H(G,h,k) for G in range(nhf) for k in range(4)]+[V(G,h) for G in range(nhf,nv)]+[Q(G,h) for G in range(nq)]]
    rest=[]
    for G in range(16):
        if G+nv-1<16 and G>=1: rest+=[V(G+nv-1,h) for h in range(16)]
        if G+nm-1<16 and G>=1: rest+=[M(G+nm-1,c) for c in range(4)]
        if G>=nq: rest+=[Q(G,h) for h in range(16)]
        rest+=[F(4*G+i,c) for i in range(4) for c in range(7)]
    fill=[M(G,c) for c in range(4) for G in range(nm)]+[X(G) for G in range(16)]
    nfill=210-len(heads)
    while len(fill)<nfill: fill.append(rest.pop(0))
    assert len(fill)==nfill
    first=[]; hi=fi=0
    for d in range(7):
        nh=round(len(heads)*(d+1)/7)-hi
        first+=heads[hi:hi+nh]; hi+=nh
        fl=[fill[k] for k in range(len(fill))][fi:fi+30-nh]; fi+=30-nh
        first+=fl
    T=first+rest[:-44]+[x|0x400 for x in rest[-44:]]
    assert len(first)==210 and len(set(T))==len(T)==256+256+64+448+16+48*nhf
    return T

def build(name=KN+'_kernel', stamps=0, force_slow=False, diag=False):
    a=Asm(); a.diag=diag; a.force_slow=force_slow; a.pprof=work.OPTW['pprof']
    TABLE=make_table()
    a.raw(HDR+f'''; Generated by a hand-written generator. One persistent launch, one 256-thread workgroup per CU.
; @launch grid=(256,1,1) block=(256,1,1) lds=163840
.amdgcn_target "amdgcn-amd-amdhsa--gfx950"
.text
.globl {name}
.p2align 8
.type {name},@function
{name}:''')
    t=VT
    a(f'''
    s_cmp_ge_u32 s2, 256
    s_cbranch_scc1 L_exit
    s_load_dwordx16 s[64:79], s[0:1], 0
    s_load_dwordx16 s[80:95], s[0:1], 64
    s_getreg_b32 s{S_XCC}, hwreg(HW_REG_XCC_ID, 0, 4)
    v_lshrrev_b32 v1, 6, v0
    v_readfirstlane_b32 s{S_WAVE}, v1
    s_mov_b32 s{S_ERR}, 0
    s_mov_b32 s{S_SLOW}, 0
    s_mov_b32 s{S_STEP}, 0
    ''')
    if diag: a('s_memrealtime s[40:41]')
    if work.OPTW['cpf']:
        a(f'''
        s_getpc_b64 s[4:5]
        s_and_b32 s4, s4, 0xffffff00
        s_mov_b32 s6, L_codeend-{name}
        s_mov_b32 s7, 0x20000
        s_lshr_b32 s{S_T0}, s2, 3
        v_and_b32 v2, 63, v0
        v_lshlrev_b32 v2, 5, v2
        v_add_u32 v2, s{S_T0}, v2
        v_lshlrev_b32 v2, 7, v2
        s_cmp_lg_u32 s{S_WAVE}, 3
        s_cbranch_scc1 L_nocpf
        buffer_load_dword v255, v2, s[4:7], 0 offen
        L_nocpf:
        ''')
    if force_slow==2: a(f's_mul_i32 s{S_XCC}, s2, 11\ns_lshr_b32 s{S_XCC}, s{S_XCC}, 8')
    elif force_slow: a(f's_lshr_b32 s{S_XCC}, s2, 5')
    a(f'v_mov_b32 v{V_ZERO}, 0\nv_mov_b32 v{V_RANK}, 1\ns_waitcnt lgkmcnt(0)')
    pp(a,0)
    srd(a,S_DBG,P_DBG,256)
    a(f'''
    s_cmp_lg_u32 s{S_WAVE}, 0
    s_cbranch_scc1 L_norank
    s_lshl_b32 s{S_T0}, s{S_XCC}, 4
    s_mov_b64 exec, 1
    buffer_atomic_add v{V_RANK}, v{V_ZERO}, {sr(S_DBG,4)}, s{S_T0} offen sc0
    s_mov_b64 exec, -1
    L_norank:
    ''')
    srd(a,S_R1,P_X,1835008); srd(a,S_R2,P_X,1835008)
    first_touch(a)
    srd(a,S_X,P_X,1835008); srd(a,S_WS,P_WS,0x10000000)
    work_consts(a)
    a(f'''
    v_mov_b32 v{t+1}, {LDS_BC}
    s_cmp_lg_u32 s{S_WAVE}, 0
    s_cbranch_scc1 L_slotw
    s_waitcnt vmcnt(2)
    s_sub_u32 s{S_T0}, s{S_XCC}, 1
    s_cmp_lt_u32 s{S_T0}, 7
    s_cbranch_scc1 L_rkok
    s_waitcnt vmcnt(0)
    L_rkok:
    v_readfirstlane_b32 s{S_T0}, v{V_RANK}
    s_lshl_b32 s{S_SLOT}, s{S_XCC}, 5
    s_add_u32 s{S_SLOT}, s{S_SLOT}, s{S_T0}
    s_cmp_ge_u32 s{S_XCC}, 8
    s_cbranch_scc1 L_ovf
    s_cmp_lt_u32 s{S_T0}, 32
    s_cbranch_scc1 L_slotok
    L_ovf:
    v_mov_b32 v{t}, 1
    s_mov_b64 exec, 1
    buffer_atomic_add v{t}, v{V_ZERO}, {sr(S_DBG,4)}, 0 offen offset:{D_OVF} sc0
    s_waitcnt vmcnt(0)
    s_mov_b64 exec, -1
    v_readfirstlane_b32 s{S_T4}, v{t}
    s_mov_b32 s{S_SPIN}, 0
    L_cl:
    buffer_load_dword v{t}, v{V_LIN}, {sr(S_DBG,4)}, 0 offen sc1
    s_waitcnt vmcnt(0)
    v_readlane_b32 s{S_T1}, v{t}, 0
    ''')
    for i in range(1,16):
        a(f'v_readlane_b32 s{S_T0}, v{t}, {i}\ns_add_u32 s{S_T1}, s{S_T1}, s{S_T0}')
    a(f'''
    s_cmp_ge_u32 s{S_T1}, 256
    s_cbranch_scc1 L_all
    s_sleep 4
    s_add_u32 s{S_SPIN}, s{S_SPIN}, 1
    s_cmp_lt_u32 s{S_SPIN}, {SPINS}
    s_cbranch_scc1 L_cl
    s_mov_b32 s{S_SLOT}, 0xffff
    s_branch L_slotok
    L_all:
    ''')
    for i in range(8):
        a(f'''
        v_readlane_b32 s{S_T0}, v{t}, {i}
        s_min_u32 s{S_T0}, s{S_T0}, 32
        s_add_u32 s{S_T4}, s{S_T4}, s{S_T0}
        s_add_u32 s{S_SLOT}, s{S_T4}, {32*i}
        s_cmp_lt_u32 s{S_T4}, 32
        s_cbranch_scc1 L_slotok
        s_sub_u32 s{S_T4}, s{S_T4}, 32
        ''')
    a(f'''
    s_mov_b32 s{S_SLOT}, 0xffff
    L_slotok:
    ''')
    a(f'''
    v_mov_b32 v{t}, s{S_SLOT}
    ds_write_b32 v{t+1}, v{t}
    s_waitcnt lgkmcnt(0)
    L_slotw:
    s_barrier
    ds_read_b32 v{t}, v{t+1}
    s_waitcnt lgkmcnt(0)
    v_readfirstlane_b32 s{S_T0}, v{t}
    s_barrier
    s_mov_b32 s{S_SLOT}, s{S_T0}
    ''')
    pp(a,1)
    rt(a,4)
    a(f'''
    s_mov_b32 s{S_ROLE}, s{S_SLOT}
    s_cmp_ge_u32 s{S_SLOT}, 256
    s_cbranch_scc1 L_exit
    s_cmp_ge_u32 s{S_SLOT}, 32
    s_cbranch_scc1 L_worker
    ''')
    if diag: a('s_memrealtime s[42:43]\ns_memrealtime s[44:45]\ns_memrealtime s[46:47]')
    a(f'''
    s_cmp_lg_u32 s{S_SLOT}, 31
    s_cbranch_scc1 L_nozero
    v_mov_b32 v0, 0
    v_mov_b32 v1, 0
    v_mov_b32 v2, 0
    v_mov_b32 v3, 0
    s_mul_i32 s{S_T0}, s{S_WAVE}, 7168
    s_add_u32 s{S_T0}, s{S_T0}, {WS_FLAG}
    s_add_u32 s{S_T1}, s{S_T0}, 4096
    ''')
    for i in range(7):
        a(f'buffer_store_dwordx4 v[0:3], v{V_LIN}, {sr(S_WS,4)}, s{S_T0 if i<4 else S_T1} offen offset:{1024*(i%4)} sc1')
    a(f'''
    s_waitcnt vmcnt(0)
    s_barrier
    v_mov_b32 v{t}, 1
    buffer_store_dword v{t}, v{V_ZERO}, {sr(S_DBG,4)}, 0 offen offset:{D_INIT} sc1
    L_nozero:
    ''')
    wait_init(a,t)
    team.census(a,t)
    a(f'''
    s_lshl_b32 s{S_T0}, s{S_SLOT}, 2
    s_add_u32 s{S_T0}, s{S_T0}, s{S_WAVE}
    s_mul_i32 s{S_T0}, s{S_T0}, 14336
    s_add_u32 s{S_T1}, s{S_T0}, 8192
    v_lshlrev_b32 v{t}, 3, v{V_LIN}
    buffer_load_dword v{t+1}, v{t}, {sr(S_X,4)}, s{S_T0} offen
    buffer_load_dword v{t+1}, v{t}, {sr(S_X,4)}, s{S_T1} offen
    s_waitcnt vmcnt(0)
    ''')
    a(f'''
    s_cmp_eq_u32 s{S_SLOT}, 31
    s_cbranch_scc1 L_roleW
    s_cmp_eq_u32 s{S_SLOT}, 30
    s_cbranch_scc1 L_roleR
    s_cmp_ge_u32 s{S_SLOT}, 16
    s_cbranch_scc1 L_roleB
    ''')
    team.role_A(a,stamps)
    a.label('L_roleB')
    team.role_B(a,stamps)
    a.label('L_roleR')
    team.role_R(a)
    a.label('L_roleW')
    team.role_W(a)
    a.label('L_roleF')
    team.role_F(a)
    a.label('L_worker')
    prep(a)
    if diag: a('s_memrealtime s[42:43]')
    a(f'''
    ; ranks 0,1 of dies 1..7 follow the team; the others start with a V unit: u = 30*(die-1) + rank-2
    s_lshr_b32 s{S_T1}, s{S_SLOT}, 5
    s_sub_u32 s{S_T1}, s{S_T1}, 1
    s_and_b32 s{S_T0}, s{S_SLOT}, 31
    s_lshl_b32 s{S_ROLE}, s{S_T1}, 1
    s_add_u32 s{S_ROLE}, s{S_ROLE}, s{S_T0}
    s_cmp_lt_u32 s{S_T0}, 2
    s_cbranch_scc1 L_roleF
    s_mul_i32 s{S_T1}, s{S_T1}, 30
    s_add_u32 s{S_T0}, s{S_T0}, s{S_T1}
    s_sub_u32 s{S_T0}, s{S_T0}, 2
    s_branch L_item
    ''')
    a.label('L_uV'); unit_V(a)
    a.label('L_next')
    a(f'''
    s_or_b32 s{S_T0}, s{S_ERR}, s{S_MNXT}
    s_cbranch_scc1 L_end
    v_mov_b32 v{t+1}, {LDS_BC}
    s_cmp_lg_u32 s{S_WAVE}, 0
    s_cbranch_scc1 L_popw
    v_mov_b32 v{t}, 1
    s_mov_b64 exec, 1
    s_mov_b32 s{S_T1}, {F_Q}
    buffer_atomic_add v{t}, v{V_ZERO}, {sr(S_WS,4)}, s{S_T1} offen sc0
    s_waitcnt vmcnt(0)
    ds_write_b32 v{t+1}, v{t}
    s_waitcnt lgkmcnt(0)
    s_mov_b64 exec, -1
    L_popw:
    s_barrier
    ds_read_b32 v{t}, v{t+1}
    s_waitcnt lgkmcnt(0)
    v_readfirstlane_b32 s{S_T0}, v{t}
    s_barrier
    s_add_u32 s{S_T0}, s{S_T0}, 210
    L_item:
    s_cmp_ge_u32 s{S_T0}, {len(TABLE)}
    s_cbranch_scc1 L_end
    s_getpc_b64 s[{S_T2}:{S_T3}]
    L_pc:
    s_add_u32 s{S_T2}, s{S_T2}, L_table-L_pc
    s_addc_u32 s{S_T3}, s{S_T3}, 0
    s_lshl_b32 s{S_T0}, s{S_T0}, 2
    s_load_dword s{S_T0}, s[{S_T2}:{S_T3}], s{S_T0}
    s_waitcnt lgkmcnt(0)
    s_and_b32 s{S_H}, s{S_T0}, 15
    s_bfe_u32 s{S_G}, s{S_T0}, 0x60004
    s_mov_b32 s{S_SEG}, s{S_G}
    s_and_b32 s{S_MNXT}, s{S_T0}, 0x400
    s_mov_b32 s{S_HOFF}, s{S_T0}
    s_lshr_b32 s{S_T0}, s{S_T0}, 12
    s_cmp_eq_u32 s{S_T0}, 0
    s_cbranch_scc1 L_uV
    s_cmp_eq_u32 s{S_T0}, 1
    s_cbranch_scc1 L_uQ
    s_cmp_eq_u32 s{S_T0}, 2
    s_cbranch_scc1 L_uM
    s_cmp_eq_u32 s{S_T0}, 8
    s_cbranch_scc1 L_uX
    s_sub_u32 s{S_T5}, s{S_T0}, 4
    s_cmp_ge_u32 s{S_T0}, 4
    s_cbranch_scc1 L_uH
    ''')
    unit_F(a); a('s_branch L_next')
    a.label('L_uH'); unit_V(a,True); a('s_branch L_next')
    a.label('L_uX'); unit_X(a); a('s_branch L_next')
    a.label('L_uQ'); unit_Q(a); a('s_branch L_next')
    a.label('L_uM'); unit_M(a); a('s_branch L_next')
    a.label('L_end')
    if diag:
        a('''
        s_memrealtime s[4:5]
        s_waitcnt lgkmcnt(0)
        s_mov_b32 s3, s4
        L_cal:
        s_memrealtime s[4:5]
        s_memtime s[6:7]
        s_waitcnt lgkmcnt(0)
        s_cmp_eq_u32 s3, s4
        s_cbranch_scc1 L_cal
        s_mov_b32 s7, s6
        s_waitcnt vmcnt(0)
        ''')
    if stamps==2:
        a(f'''
        s_cmp_ge_u32 s{S_SLOT}, 30
        s_cbranch_scc1 L_nost
        s_mov_b64 exec, -1
        v_mbcnt_lo_u32_b32 v0, -1, 0
        v_mbcnt_hi_u32_b32 v0, -1, v0
        v_lshlrev_b32 v0, 4, v0
        s_lshl_b32 s44, s{S_WAVE}, 12
        s_add_u32 s45, s44, 147456
        v_add_u32 v1, s45, v0
        s_lshl_b32 s45, s{S_SLOT}, 14
        s_add_u32 s44, s44, s45
        s_add_u32 s44, s44, {WS_TS+0x100000}
        ''')
        for i in range(4):
            a(f'ds_read_b128 v[4:7], v1 offset:{1024*i}\ns_waitcnt lgkmcnt(0)\nbuffer_store_dwordx4 v[4:7], v0, {sr(S_WS,4)}, s44 offen offset:{1024*i}\ns_waitcnt vmcnt(0)')
        a.label('L_nost')
    if diag:
        a(f'''
        s_sub_u32 s6, s7, s2
        s_lshl_b32 s{S_T0}, s{S_SLOT}, 2
        s_add_u32 s{S_T0}, s{S_T0}, s{S_WAVE}
        s_lshl_b32 s{S_T0}, s{S_T0}, 7
        s_add_u32 s{S_T0}, s{S_T0}, {WS_TS}
        v_mov_b32 v0, 0
        s_mov_b64 exec, 1
        ''')
        for i,sg in enumerate([6,S_ERR,S_STEP,S_SLOW]+list(range(44,56))+[40,42,4,0,2,76,78,7,90,S_HOFF]):
            a(f'v_mov_b32 v1, s{sg}\nbuffer_store_dword v1, v0, {sr(S_WS,4)}, s{S_T0} offen offset:{4*i}')
        if diag==2:
            a(f'v_mov_b32 v1, s4\nbuffer_atomic_umax v1, v0, {sr(S_DBG,4)}, 0 offen offset:60')
            a(f'v_mov_b32 v1, s42\nbuffer_atomic_umax v1, v0, {sr(S_DBG,4)}, 0 offen offset:56')
            a(f's_or_b32 s{S_T0}, s{S_SLOT}, s{S_WAVE}\ns_cmp_lg_u32 s{S_T0}, 0\ns_cbranch_scc1 L_exit')
            for i,sg in enumerate([40,44,52,54,0,4]):
                a(f'v_mov_b32 v1, s{sg}\nbuffer_store_dword v1, v0, {sr(S_DBG,4)}, 0 offen offset:{32+4*i}')
        a('s_waitcnt vmcnt(0)')
    a.label('L_exit')
    a('s_endpgm')
    a.label('L_codeend')
    a.raw('.p2align 2\n.type L_table,@object\nL_table:\n'+'\n'.join('.long '+','.join(str(x) for x in TABLE[i:i+16]) for i in range(0,len(TABLE),16))+'\n.size L_table, %d'%(4*len(TABLE)))
    a.raw(f'''.section .rodata,"a"
.p2align 6
.amdhsa_kernel {name}
  .amdhsa_next_free_vgpr 512
  .amdhsa_next_free_sgpr 102
  .amdhsa_accum_offset 256
  .amdhsa_group_segment_fixed_size 0
  .amdhsa_kernarg_size 128
  .amdhsa_user_sgpr_count 2
  .amdhsa_user_sgpr_kernarg_segment_ptr 1
  .amdhsa_system_sgpr_workgroup_id_x 1
.end_amdhsa_kernel''')
    return a.text()

if __name__=='__main__':
    if len(sys.argv)==1:
        open('cdna_kernels/'+KN+'.s','w').write(build())
        open('full_diag.s','w').write(build('bench_kernel',diag=True))
        open('full_slow.s','w').write(build('bench_kernel',diag=True,force_slow=True))
        open('full_slow2.s','w').write(build('bench_kernel',diag=True,force_slow=2))
    for arg in sys.argv[1:]:
        nm,_,kv=arg.partition(':')
        base=dict(team.OPT); basew=dict(work.OPTW); st=0; prod=False
        for e in filter(None,kv.split(',')):
            k,v=e.split('=')
            if k=='st': st=int(v)
            elif k=='prod': prod=int(v)
            elif k in work.OPTW: work.OPTW[k]=int(v)
            else: team.OPT[k]=int(v)
        if prod: open(f'exp/{nm}.s','w').write(build(diag=prod-1))
        else: open(f'exp/{nm}.s','w').write(build('bench_kernel',stamps=st,diag=True))
        team.OPT.clear(); team.OPT.update(base); work.OPTW.update(basew)
```

```python
from asmb import *
from layout import *
from work import wait_flags, wait_prog, until_valid, V_L4, V_ZERO, VT, OPTW, LASTSEG, V_LIN as W_LIN
OPT = dict(vload=1, xdma=1, hist=1, full=1, tag=1, tnop=0, vearly=4, xsleep=4, nfl=4, rot=2, early=1, solo=0, w2=0, lite=0, pw=1, emall=0, w3del=0, fast=0, adel=38, mdel=0, bdel=0, two=3, wb=0, vnt=0, x0=12, xsp=4, vpf=0, ahead=3, pf=0, xadv=1, rp=8, rm=8, nearly=2, hfirst=0, vsp=2, fgap=9, apos=6, bpos=2, cnt=0, asleep=9, a2sleep=5, a3sleep=2, bsleep=12, pgap=4, agap=12)
S_M0=S_R1

def frag_reg(f, nacc=32, vbase=120):
    return ar(8*f,8) if f<nacc else vr(vbase+8*(f-nacc),8)
def frag_half(f, hf, nacc=32, vbase=120):
    return ar(8*f+4*hf,4) if f<nacc else vr(vbase+8*(f-nacc)+4*hf,4)

class Stamps:
    def __init__(self, a, on): self.a=a; self.on=on; self.n=0
    def init(self, n):
        if OPT['cnt']: self.a('s_mov_b32 s53, 0\ns_mov_b32 s54, 0\ns_mov_b32 s55, 0')
        if not self.on: return
        for i in range(12): self.a(f's_mov_b32 s{44+i}, 0')
        if self.on==1: self.a('s_memtime s[40:41]\ns_waitcnt lgkmcnt(0)\ns_mov_b32 s42, s40')
    def mark(self, i):
        if self.on==1:
            self.a(f's_memtime s[40:41]\ns_waitcnt lgkmcnt(0)\ns_sub_u32 s43, s40, s42\ns_mov_b32 s42, s40\ns_add_u32 s{44+i}, s{44+i}, s43')
    def abs(self, i):
        if self.on==2 and (not OPT['lite'] or i in self.keep): self.a(f's_memtime s[{64+2*i}:{65+2*i}]')
    def endstep(self, t, d=0):
        if self.on==2:
            a=self.a
            SK=a.newlabel('nost')
            if d: a(f's_and_b32 s44, s{S_STEP}, 3\ns_cbranch_scc1 {SK}')
            a('s_waitcnt lgkmcnt(0)')
            for i in range(14): a(f'v_writelane_b32 v{t}, s{64+2*i}, {i}')
            a(f'''
            v_mbcnt_lo_u32_b32 v{t+1}, -1, 0
            v_lshlrev_b32 v{t+1}, 2, v{t+1}
            s_lshl_b32 s44, s{S_WAVE}, 6
            s_add_u32 s44, s44, s{S_STEP}
            s_lshl_b32 s44, s44, 6
            s_add_u32 s44, s44, 147456
            v_add_u32 v{t+1}, s44, v{t+1}
            s_mov_b64 exec, 0x3fff
            ds_write_b32 v{t+1}, v{t}
            s_mov_b64 exec, -1
            ''')
            a.label(SK)

def poll_check(a, regs, tmp):
    r=list(regs)
    a(f'v_max3_u32 v{tmp}, v{r[0]}, v{r[1]}, v{r[2]}')
    a(f'v_max3_u32 v{tmp+1}, v{r[3]}, v{r[4]}, v{r[5]}')
    rest=r[6:]
    k=0
    while len(rest)>=2:
        a(f'v_max3_u32 v{tmp+k}, v{tmp+k}, v{rest[0]}, v{rest[1]}'); rest=rest[2:]; k^=1
    a(f'v_max_u32 v{tmp}, v{tmp}, v{tmp+1}')
    a(f'v_cmp_eq_u32 vcc, -1, v{tmp}')


def calib(a):
    L=a.newlabel('cal')
    a('s_memrealtime s[2:3]\ns_waitcnt lgkmcnt(0)\ns_mov_b32 s92, s2')
    a.label(L)
    a(f's_memrealtime s[0:1]\ns_memtime s[2:3]\ns_waitcnt lgkmcnt(0)\ns_cmp_eq_u32 s0, s92\ns_cbranch_scc1 {L}')

def chk4(a, r, tmp):
    a(f'v_max3_u32 v{tmp}, v{r}, v{r+1}, v{r+2}\nv_max_u32 v{tmp}, v{tmp}, v{r+3}\nv_cmp_eq_u32 vcc, -1, v{tmp}')

def repoll(a, load, r, tmp, err):
    L=a.newlabel('rp'); R=a.newlabel('rpr')
    a(f's_cbranch_vccnz {L}')
    a.label(R)
    a.outl.append(('raw',[f'{L}:', load, 's_waitcnt vmcnt(0)',
        f'v_max3_u32 v{tmp}, v{r}, v{r+1}, v{r+2}', f'v_max_u32 v{tmp}, v{tmp}, v{r+3}', f'v_cmp_eq_u32 vcc, -1, v{tmp}',
        f's_cbranch_vccz {R}', f's_add_u32 s{S_SPIN}, s{S_SPIN}, 1', f's_cmp_lt_u32 s{S_SPIN}, {SPIN}', f's_cbranch_scc1 {L}',
        f's_mov_b32 s{S_ERR}, {err}', f's_branch {R}']))

def ring_poll(a, loads, regs, tmp, gap, err):
    n=len(loads); L=a.newlabel('poll'); T=[a.newlabel('first') for _ in range(n)]
    a(f's_mov_b32 s{S_SPIN}, 0')
    for k in range(n):
        a(loads[k])
        if k<n-1 and gap: a(f's_nop {gap}')
    a.label(L)
    for k in range(n):
        a(f's_waitcnt vmcnt({n-1})')
        chk4(a,regs[k],tmp)
        a(f's_cbranch_vccz {T[k]}')
        a(loads[k])
    a(f's_add_u32 s{S_SPIN}, s{S_SPIN}, 1\ns_cmp_lt_u32 s{S_SPIN}, {SPIN}\ns_cbranch_scc1 {L}')
    a(f's_mov_b32 s{S_ERR}, {err}\ns_waitcnt vmcnt(0)')
    return T

def flag_poll(a, load, regs, thr, err, pre=False):
    n=len(regs); L=a.newlabel('fp'); D=a.newlabel('fpd')
    a(f's_mov_b32 s{S_SPIN}, 0')
    if OPT['fast'] and n>1: a('s_mov_b32 s98, 1')
    for k,r in enumerate(regs):
        if pre: break
        a(load(r))
        if k<n-1: a(f's_nop {OPT["fgap"]}')
    a.label(L)
    th=thr if isinstance(thr,str) else f's{thr}'
    for k,r in enumerate(regs):
        if OPT['fast'] and n>1:
            cur,prv=((96,98),(98,96))[k&1]
            a(f's_waitcnt vmcnt({n-1})\nv_cmp_gt_u32 s[{cur}:{cur+1}], {th}, v{r}')
            a(load(r))
            a(f's_cmp_eq_u64 s[{prv}:{prv+1}], 0\ns_cbranch_scc1 {D}')
        else:
            a(f's_waitcnt vmcnt({n-1})\nv_cmp_gt_u32 vcc, {th}, v{r}')
            a(load(r))
            a(f's_cbranch_vccz {D}')
    a(f's_add_u32 s{S_SPIN}, s{S_SPIN}, 1\ns_cmp_lt_u32 s{S_SPIN}, {SPIN}\ns_cbranch_scc1 {L}')
    a(f's_mov_b32 s{S_ERR}, {err}\ns_branch L_end')
    a.label(D)

def redo_block(L, back, loads, regs, tmp, zero, err):
    r=list(regs); o=[f'{L}:']+loads+['s_waitcnt vmcnt(0)', f'v_max3_u32 v{tmp}, v{r[0]}, v{r[1]}, v{r[2]}']
    r=r[3:]
    while len(r)>=2: o.append(f'v_max3_u32 v{tmp}, v{tmp}, v{r[0]}, v{r[1]}'); r=r[2:]
    o+=[f'v_max_u32 v{tmp}, v{tmp}, v{r[0]}', f'v_cmp_eq_u32 vcc, -1, v{tmp}', f's_cbranch_vccz {L}_ok',
        f's_add_u32 s{S_SPIN}, s{S_SPIN}, 1', f's_cmp_lt_u32 s{S_SPIN}, {SPIN}', f's_cbranch_scc1 {L}', f's_mov_b32 s{S_ERR}, {err}', 's_branch L_end',
        f'{L}_ok:']+(['s_add_u32 s55, s55, 1'] if OPT['cnt'] else [])+[f'v_mov_b64 {vr(z,2)}, 0' for z in zero]+['s_nop 1', f's_branch {back}']
    return ('raw',o)

def pub(a, stores, cmp=True):
    L=a.newlabel('slow'); R=a.newlabel('slowr')
    if cmp: a(f's_cmp_lg_u32 s{S_SLOW}, 0')
    a(f's_cbranch_scc1 {L}')
    for x in stores: a(x)
    a.label(R)
    a.outl.append((L,R,[x+' sc1' if x.startswith('buffer_store') else x for x in stores]))

def fast_srd(a):
    srd(a,S_R2,P_WS,0x10000000)
    a(f's_cmp_lg_u32 s{S_SLOW}, 0\ns_cselect_b32 s{S_R2+2}, 0, s{S_R2+2}')

def pub2(a, stores):
    L=a.newlabel('slow'); R=a.newlabel('slowr')
    for x in stores: a(x.replace(sr(S_WS,4),sr(S_R2,4)))
    a(f's_cmp_lg_u32 s{S_SLOW}, 0\ns_cbranch_scc1 {L}')
    a.label(R)
    a.outl.append((L,R,[x+' sc1' for x in stores]))

def emit_outl(a):
    for e in a.outl:
        if e[0]=='raw':
            a('\n'.join(e[1])); continue
        L,R,st=e
        a.label(L)
        for x in st: a(x)
        a(f's_branch {R}')
    a.outl=[]

def lane_consts(a, t):
    a(f'v_mbcnt_lo_u32_b32 v{t}, -1, 0\nv_mbcnt_hi_u32_b32 v{t}, -1, v{t}')
    a(f'v_lshrrev_b32 v{t+1}, 4, v{t}\nv_and_b32 v{t+2}, 15, v{t}')

def common_addr(a, t, V_IDX, V_LDSW, V_LIN):
    a(f'''
    v_and_b32 v{t+3}, 1, v{t}
    v_mov_b32 v{V_IDX}, 0x4444
    v_mov_b32 v{t+4}, 0xeeee
    v_cmp_eq_u32 vcc, 1, v{t+3}
    v_cndmask_b32 v{V_IDX}, v{V_IDX}, v{t+4}, vcc
    v_lshlrev_b32 v{V_LIN}, 4, v{t}
    s_lshl_b32 s{S_T0}, s{S_WAVE}, 11
    v_add_u32 v{V_LDSW}, s{S_T0}, v{V_LIN}
    ''')

def team_barrier(a, nteam, tmp):
    L=a.newlabel('tb'); D=a.newlabel('tbd'); K=a.newlabel('tbs')
    a('s_waitcnt vmcnt(0)')
    rt(a,3)
    a('s_barrier')
    a(f's_cmp_lg_u32 s{S_WAVE}, 3\ns_cbranch_scc1 {K}')
    a(f'v_mov_b32 v{tmp}, 1\nv_mov_b32 v{tmp+1}, 0')
    a('s_mov_b64 exec, 1')
    a(f's_lshl_b32 s{S_T0}, s{S_SLOT}, 2\ns_add_u32 s{S_T0}, s{S_T0}, {F_TEAM}')
    pub(a,[f'buffer_store_dword v{tmp}, v{tmp+1}, {sr(S_WS,4)}, s{S_T0} offen'])
    a('s_mov_b64 exec, -1')
    a.label(K)
    a(f's_cmp_eq_u32 s{S_SLOW}, 0\ns_cbranch_scc1 {D}')
    team_wait(a,'L_end',tmp)
    a.label(D)

def team_wait(a, end, t):
    B0=a.newlabel('tw')
    a(f'''
    v_mbcnt_lo_u32_b32 v{t+1}, -1, 0
    v_min_u32 v{t+1}, {NTEAM-1}, v{t+1}
    v_lshlrev_b32 v{t+1}, 2, v{t+1}
    s_mov_b32 s{S_SPIN}, 0
    s_mov_b32 s{S_T0}, {F_TEAM}
    {B0}:
    buffer_load_dword v{t}, v{t+1}, {sr(S_WS,4)}, s{S_T0} offen sc1
    s_waitcnt vmcnt(0)
    v_cmp_eq_u32 vcc, 0, v{t}
    s_cbranch_vccz {B0}_d
    s_sleep 2
    s_add_u32 s{S_SPIN}, s{S_SPIN}, 1
    s_cmp_lt_u32 s{S_SPIN}, {SPIN}
    s_cbranch_scc1 {B0}
    s_mov_b32 s{S_ERR}, 6
    s_branch {end}
    {B0}_d:
    ''')

def census(a, t):
    L=a.newlabel('cen'); D=a.newlabel('cend')
    a(f'''
    v_mbcnt_lo_u32_b32 v{t+1}, -1, 0
    v_and_b32 v{t+1}, 15, v{t+1}
    v_lshlrev_b32 v{t+1}, 4, v{t+1}
    s_mov_b32 s{S_SPIN}, 0
    {L}:
    buffer_load_dword v{t}, v{t+1}, {sr(S_DBG,4)}, 0 offen sc1
    s_waitcnt vmcnt(0)
    v_readlane_b32 s{S_PF}, v{t}, 0
    s_mov_b32 s{S_SLOW}, {1 if a.force_slow else 0}
    s_cmp_ge_u32 s{S_PF}, 32
    s_cbranch_scc1 {D}
    s_mov_b32 s{S_SLOW}, 1
    ''')
    for i in range(1,16): a(f'v_readlane_b32 s{S_T0}, v{t}, {i}\ns_add_u32 s{S_PF}, s{S_PF}, s{S_T0}')
    a(f'''
    s_cmp_ge_u32 s{S_PF}, 256
    s_cbranch_scc1 {D}
    s_sleep 2
    s_add_u32 s{S_SPIN}, s{S_SPIN}, 1
    s_cmp_lt_u32 s{S_SPIN}, {SPINS}
    s_cbranch_scc1 {L}
    s_mov_b32 s{S_ERR}, 7
    s_branch L_end
    {D}:
    ''')

def stage_of(dt): return 1 if dt%7<OPTW['st1'] else 2 if dt%7<OPTW['st2'] else 3
SMF='v_smfmac_f32_16x16x64_bf16'
def role_A(a, stamps=False, end='L_end'):
    st=Stamps(a,stamps); st.keep=(8,0,1,6)
    MEMA=0; XB=28; ACC=60; SACC=88; QA=100
    V_IDX,V_LIN,V_LDSW,V_XG,V_XR,V_QW,V_QW2,V_QW6,V_PSX,V_PSM,V_EW,V_ER=range(108,120)
    V_PFD=QA+6; V_EV=QA+7
    CT=QA
    LDS_QT=0; LDS_SP=8192; LDS_X=16384
    S_PH=S_T4; S_PAR=S_T5; S_TAG=S_HOFF; S_TAG4=S_VOFF; S_INC=S_MNXT; S_THR=S_MBO; S_M2=S_VRDY
    fast_srd(a)
    rt(a,0)
    t=0
    lane_consts(a,t)
    common_addr(a,t,V_IDX,V_LDSW,V_LIN)
    a(f's_lshr_b32 s{S_PH}, s{S_WAVE}, 1\ns_and_b32 s{S_PAR}, s{S_WAVE}, 1')
    a(f's_lshl_b32 s{S_T0}, s{S_WAVE}, 13\nv_add_u32 v{V_XG}, s{S_T0}, v{V_LIN}\nv_add_u32 v{V_XR}, 4096, v{V_XG}')
    def xload(ks):
        return [f'buffer_load_dwordx4 {vr(XB+16*kt+8*ks+4*hf,4)}, v{V_XR if kt else V_XG}, {sr(S_WS,4)}, s{S_XOFF} offen offset:{2048*ks+1024*hf} sc1' for kt in range(2) for hf in range(2)]
    a(f'''
    v_lshlrev_b32 v{t+3}, 9, v{t+1}
    v_lshrrev_b32 v{t+4}, 3, v{t+2}
    v_mul_u32_u24 v{t+5}, 28672, v{t+4}
    v_add_u32 v{t+5}, v{t+5}, v{t+3}
    v_and_b32 v{t+6}, 7, v{t+2}
    v_lshl_add_u32 v{t+5}, v{t+6}, 4, v{t+5}
    v_lshl_add_u32 v{t+7}, v{t+4}, 8, v{t+3}
    v_lshl_add_u32 v{t+7}, v{t+6}, 4, v{t+7}
    s_mul_i32 s{S_T0}, s{S_ROLE}, {MAT}
    s_lshl_b32 s{S_T1}, s{S_PAR}, 7
    s_add_u32 s{S_T0}, s{S_T0}, s{S_T1}
    s_add_u32 s{S_T0}, s{S_T0}, {WS_A}
    s_mul_i32 s{S_T1}, s{S_PH}, {4*28672}
    s_add_u32 s{S_T1}, s{S_T1}, s{S_T0}
    s_mul_i32 s{S_T2}, s{S_PH}, 28672
    s_add_u32 s{S_T2}, s{S_T2}, s{S_T0}
    ''')
    a(f's_lshl_b32 s{S_RST}, s{S_ROLE}, 7\ns_add_u32 s{S_RST}, s{S_RST}, {F_W}\nv_lshlrev_b32 v{t+8}, 2, v{t}')
    rt(a,1)
    for stage in (1,2,3):
        wait_flags(a,t+8,f's{S_RST}',7,stage,sleep=1,t=t+10)
        if stage==1: rt(a,2)
        n=0
        for tp in range(4):
            for dt in range(14):
                if stage_of(dt)!=stage: continue
                ks,hf=dt>>1,dt&1
                if tp<3: a(f's_add_u32 s{S_XOFF}, s{S_T1}, {(2*tp if tp<2 else 8)*28672+dt*2048}')
                else: a(f's_add_u32 s{S_XOFF}, s{S_T2}, {10*28672+dt*2048}')
                for e in range(2 if tp<3 else 1):
                    a(f'buffer_load_dwordx4 {frag_half((2*tp+e)*7+ks,hf)}, v{t+5 if tp<3 else t+7}, {sr(S_WS,4)}, s{S_XOFF} offen offset:{e*256} sc1')
    a(f'''
    s_lshl_b32 s{S_T0}, s{S_WAVE}, 11
    v_lshlrev_b32 v{t+5}, 6, v{t+1}
    v_add_u32 v{t+5}, s{S_T0}, v{t+5}
    v_lshrrev_b32 v{t+3}, 3, v{t+2}
    v_lshl_add_u32 v{V_QW}, v{t+3}, 8, v{t+5}
    v_and_b32 v{t+3}, 1, v{t+2}
    v_lshl_add_u32 v{V_QW}, v{t+3}, 4, v{V_QW}
    v_bfe_u32 v{t+4}, v{t+2}, 1, 2
    v_lshl_add_u32 v{V_QW}, v{t+4}, 2, v{V_QW}
    s_lshl_b32 s{S_T0}, s{S_PH}, 9
    v_add_u32 v{V_QW2}, s{S_T0}, v{V_QW}
    v_lshl_add_u32 v{V_QW6}, v{t+3}, 4, v{t+5}
    v_lshl_add_u32 v{V_QW6}, v{t+4}, 2, v{V_QW6}
    v_lshrrev_b32 v{t+4}, 3, v{t+2}
    v_lshl_add_u32 v{V_QW6}, v{t+4}, 1, v{V_QW6}
    s_lshl_b32 s{S_T0}, s{S_PH}, 8
    s_sub_u32 s{S_T0}, 512, s{S_T0}
    v_add_u32 v{V_QW6}, s{S_T0}, v{V_QW6}
    v_mov_b32 v{t+8}, 0
    v_mov_b32 v{t+9}, 0
    v_mov_b32 v{t+10}, 0
    v_mov_b32 v{t+11}, 0
    ds_write_b128 v{V_LDSW}, {vr(t+8,4)} offset:{LDS_QT+1024}
    v_mov_b32 v{t+15}, -1.0
    ds_write_b128 v{V_LDSW}, {vr(t+12,4)} offset:{LDS_SP}
    ds_write_b128 v{V_LDSW}, {vr(t+12,4)} offset:{LDS_SP+1024}
    s_waitcnt lgkmcnt(0)
    ''')
    a(f'''
    ; x part: 3072(h>>2)+512(h&3) + 256(n>>3)+64q+32u+4(n&7) ; mem part: 3072(h>>2)+2048+512((h>>1)&1)+16(h&1) + 256(n>>3)+64q+32u+4((n>>1)&3)
    s_lshr_b32 s{S_T0}, s{S_ROLE}, 2
    s_mul_i32 s{S_T0}, s{S_T0}, 3072
    s_lshl_b32 s{S_T1}, s{S_PAR}, 5
    s_add_u32 s{S_T0}, s{S_T0}, s{S_T1}
    v_lshrrev_b32 v{t+3}, 3, v{t+2}
    v_lshlrev_b32 v{t+3}, 8, v{t+3}
    v_lshl_add_u32 v{t+3}, v{t+1}, 6, v{t+3}
    v_add_u32 v{t+3}, s{S_T0}, v{t+3}
    v_and_b32 v{t+4}, 7, v{t+2}
    v_lshl_add_u32 v{V_PSX}, v{t+4}, 2, v{t+3}
    s_and_b32 s{S_T1}, s{S_ROLE}, 3
    s_lshl_b32 s{S_T1}, s{S_T1}, 9
    v_add_u32 v{V_PSX}, s{S_T1}, v{V_PSX}
    v_bfe_u32 v{t+4}, v{t+2}, 1, 2
    v_lshl_add_u32 v{V_PSM}, v{t+4}, 2, v{t+3}
    s_and_b32 s{S_T1}, s{S_ROLE}, 2
    s_lshl_b32 s{S_T1}, s{S_T1}, 8
    s_and_b32 s{S_T2}, s{S_ROLE}, 1
    s_lshl_b32 s{S_T2}, s{S_T2}, 4
    s_add_u32 s{S_T1}, s{S_T1}, s{S_T2}
    s_add_u32 s{S_T1}, s{S_T1}, 2048
    v_add_u32 v{V_PSM}, s{S_T1}, v{V_PSM}
    s_mov_b32 s{S_XOFF}, {WS_XF-32768}
    v_lshlrev_b32 v{V_EW}, 7, v{t}
    s_lshl_b32 s{S_T0}, s{S_ROLE}, 1
    s_add_u32 s{S_T0}, s{S_T0}, {F_EP}
    v_add_u32 v{V_EW}, s{S_T0}, v{V_EW}
    v_mov_b32 v{t+3}, 0x7f000000
    v_cmp_gt_u32 vcc, {OPT['rp']}, v{t}
    v_cndmask_b32 v{V_EW}, v{t+3}, v{V_EW}, vcc
    v_min_u32 v{t+3}, {55 if OPT['emall'] else 13}, v{t}
    s_and_b32 s{S_T0}, s{S_ROLE}, {OPT['rm']//2-1}
    s_lshl_b32 s{S_T0}, s{S_T0}, 7
    s_add_u32 s{S_T0}, s{S_T0}, {F_EM}
    v_lshl_add_u32 v{V_ER}, v{t+3}, 1, s{S_T0}
    ''')
    a(f'v_mov_b32 v{t+12}, -1\ns_waitcnt vmcnt(24)')
    ini=[]
    for k in range(4):
        ini+=[f's_mov_b32 s{S_T0}, {WS_PR+16384*k}']+[f'buffer_store_dword v{t+12}, v{r}, {sr(S_WS,4)}, s{S_T0} offen' for r in (V_PSX,V_PSM)]
    pub(a,ini)
    for k in range(4):
        a(f's_mov_b32 s{S_T0}, {WS_PR+16384*k}')
        for r in (V_PSX,V_PSM): a(f'buffer_load_dword v{t+13}, v{r}, {sr(S_WS,4)}, s{S_T0} offen sc1')
    team_barrier(a,NTEAM,t+8)
    a(f'''
    s_mov_b32 s{S_STEP}, 0
    s_lshl_b32 s{S_PF}, s{S_ROLE}, 11
    s_lshl_b32 s{S_T0}, s{S_PAR}, 10
    s_add_u32 s{S_PF}, s{S_PF}, s{S_T0}
    s_add_u32 s{S_PF}, s{S_PF}, {WS_XF+2*32768}
    ''')
    if a.diag: calib(a)
    st.init(8)
    a(f'''
    s_mov_b32 s{S_MCUR}, {WS_MEMR}
    s_mov_b32 s{S_M2}, {WS_MEMR+4096}
    s_mov_b32 s{S_PCUR}, {WS_PR}
    s_mov_b32 s{S_RST}, {WS_PR+3*16384}
    s_mov_b32 s{S_XOFF}, {WS_XF}
    s_mov_b32 s{S_TAG}, 1.0
    s_mov_b32 s{S_TAG4}, 4.0
    s_xor_b32 s{S_INC}, s{S_SLOW}, 1
    s_mov_b32 s{S_THR}, s{S_INC}
    ''')
    a(f's_mov_b32 s{S_T0}, {F_EP+66}\nv_mov_b32 v{QA}, 0')
    flag_poll(a, lambda r: f'buffer_load_ushort v{r}, v{QA}, {sr(S_WS,4)}, s{S_T0} offen sc1', [QA+1], '1', 1)
    for l_ in xload(0): a(l_)
    EN=[a.newlabel('Aent') for _ in range(4)]
    for w in (1,2,3): a(f's_cmp_eq_u32 s{S_WAVE}, {w}\ns_cbranch_scc1 {EN[w]}')
    a(f's_branch {EN[0]}')
    ml=[f'buffer_load_dwordx4 {vr(MEMA+4*k,4)}, v{V_LIN}, {sr(S_WS,4)}, s{S_MCUR if k<4 else S_M2} offen offset:{1024*(k%4)} sc1' for k in range(7)]
    def chk(k,first):
        r=MEMA+4*k
        if first: return [f'v_max3_u32 v{CT}, v{r}, v{r+1}, v{r+2}', f'v_max_u32 v{CT}, v{CT}, v{r+3}']
        return [f'v_max3_u32 v{CT}, v{CT}, v{r}, v{r+1}', f'v_max3_u32 v{CT}, v{CT}, v{r+2}, v{r+3}']
    CMP=f'v_cmp_eq_u32 vcc, -1, v{CT}'
    def post(tl):
        tp=tl>>1; e=ACC+8*tp; o_=e+4
        vq=V_QW if tp<2 else V_QW2
        if not tl&1: return [f'v_add_f32 v{e}, v{e}, v{e+1}', f'v_add_f32 v{e+2}, v{e+2}, v{e+3}']
        return [f'v_add_f32 v{o_}, v{o_}, v{o_+1}', f'v_cvt_pk_bf16_f32 v{e+1}, v{e}, v{o_}', f'ds_write_b32 v{vq}, v{e+1} offset:{LDS_QT+512*tp}',
                f'v_add_f32 v{o_+2}, v{o_+2}, v{o_+3}', f'v_cvt_pk_bf16_f32 v{e+3}, v{e+2}, v{o_+2}', f'ds_write_b32 v{vq}, v{e+3} offset:{LDS_QT+512*tp+32}']
    for w in range(4):
        ph,par=w>>1,w&1
        od=[(OPT['rot']*w+k)%7 for k in range(7)]
        seq=[(tl,ks) for ks in od[:3] for tl in range(7)]+[(tl,ks) for ks in od[3:] for tl in (0,1)]+[(tl,ks) for tl in range(2,7) for ks in od[3:]]
        LOOP=a.newlabel('Aloop'); G0=a.newlabel('Ago'); RDO=a.newlabel('Aredo')
        a.raw('.p2align 6')
        a.label(LOOP)
        sl=OPT['xsleep']+(OPT['a2sleep'] if w==2 else OPT['a3sleep'] if w==3 else 0)
        if sl: a(f's_sleep {sl}')
        for l_ in xload(0): a(l_)
        if w==3: a(f's_sleep {OPT["asleep"]-OPT["xsleep"]}')
        a.label(EN[w])
        for r in range(ACC,SACC+12,2): a(f'v_mov_b64 {vr(r,2)}, 0')
        if w==3: flag_poll(a, lambda r: f'buffer_load_ushort v{r}, v{V_ER}, {sr(S_WS,4)}, 0 offen sc1', [QA+k for k in range(OPT['nfl'])], S_THR, 1)
        if w==3 and OPT['mdel']: a(f's_nop {OPT["mdel"]-1}')
        a('s_barrier')
        for k in range(4):
            a(ml[od[k]])
            if k==0: st.abs(8)
            if k<3: a(f's_nop {OPT["agap"]}')
        a.outl.append(redo_block(RDO,G0,ml,range(MEMA,MEMA+28),CT,range(ACC,ACC+28,2),1))
        a.label(G0)
        xl=xload(1)
        mem={4*k:(f'm{od[4+k]}',ml[od[4+k]]) for k in range(3)}
        for k in range(4): mem[OPT['x0']+OPT['xsp']*k]=('x1',xl[k])
        val={}; sal={}
        if OPT['early']:
            for k,g in ((0,1),(1,9)):
                val[g],val[g+1]=chk(od[k],True); val[g+2]=CMP; sal[g+4]=f's_cbranch_vccnz {RDO}'
            val[14],val[15]=chk(od[2],True)
        else:
            for k,g in ((0,1),(1,9),(2,14)): val[g],val[g+1]=chk(od[k],k==0)
        for k in (3,4,5,6): val[21+2*(k-3)],val[22+2*(k-3)]=chk(od[k],False)
        val[29]=CMP; sal[32]=f's_cbranch_vccnz {RDO}'
        if OPT['tag']: late=[f'v_mov_b32 v{ACC+3+4*u}, s{S_TAG}' for u in range(2)]
        else: late=[]
        a.vq=[f'm{k}' for k in od[:4]]
        q=[]
        a.wait_vm(f'm{od[0]}')
        st.abs(0)
        for g,(tl,ks) in enumerate(seq):
            a(f'{SMF} {vr(ACC+4*tl,4)}, {vr(MEMA+4*ks,4)}, {frag_reg(tl*7+ks)}, v{V_IDX}')
            if g==21: st.abs(1)
            if g in sal: a(sal[g])
            usedmem=False
            if g in mem: a.vm(mem[g][1],mem[g][0]); usedmem=True
            if g+1<len(seq): a.wait_vm(f'm{seq[g+1][1]}')
            solo=False
            if not usedmem and q and q[0][0]<=g and q[0][1].startswith('ds_'):
                solo = q[0][1].startswith('ds_write') and g<OPT['solo']
                a(q.pop(0)[1])
            if solo: pass
            elif g in val: a(val[g])
            elif q and q[0][0]<=g and not q[0][1].startswith('ds_'): a(q.pop(0)[1])
            if ks==od[6] and tl<6:
                q+=[(g+3,o) for o in post(tl)]
                if tl==3: q.append((g+3,f'ds_read_b128 {vr(QA,4)}, v{V_LDSW} offset:{LDS_QT}'))
        st.abs(2)
        L6=ACC+24
        pend=[o for _,o in q]
        assert not any('ds_read' in o for o in pend)
        pend=[o for o in pend if not o.startswith('ds_')]+[o for o in pend if o.startswith('ds_')]
        last=[f'v_add_f32 v{L6}, v{L6}, v{L6+1}', f'v_add_f32 v{L6+2}, v{L6+2}, v{L6+3}', f'v_cvt_pk_bf16_f32 v{L6}, v{L6}, v{L6+2}',
              f'ds_write_b16 v{V_QW6}, v{L6} offset:{LDS_QT+1024}', f'ds_write_b16_d16_hi v{V_QW6}, v{L6} offset:{LDS_QT+1024+32}',
              f'ds_read_b128 {vr(QA+4,4)}, v{V_LDSW} offset:{LDS_QT+1024}']
        for o in pend+last: a(o)
        a(f's_waitcnt vmcnt(0) lgkmcnt({sum(1 for o in pend+last if o.startswith("ds_"))})'); a.vq=[]
        a(f'{SMF} {vr(SACC,4)}, {vr(QA,4)}, {vr(XB,8)}, v{V_IDX}')
        if late: a(late.pop(0))
        a(f'{SMF} {vr(SACC+4,4)}, {vr(QA,4)}, {vr(XB+16,8)}, v{V_IDX}')
        if late: a(late.pop(0))
        a(f'{SMF} {vr(SACC+8,4)}, {vr(QA,4)}, {vr(MEMA+8*ph,8)}, v{V_IDX}')
        a('s_waitcnt lgkmcnt(0)')
        a(f'{SMF} {vr(SACC+8,4)}, {vr(QA+4,4)}, {vr(MEMA+16+4*ph,8)}, v{V_IDX}')
        a(f'{SMF} {vr(SACC,4)}, {vr(QA+4,4)}, {vr(XB+8,8)}, v{V_IDX}')
        a(f'{SMF} {vr(SACC+4,4)}, {vr(QA+4,4)}, {vr(XB+24,8)}, v{V_IDX}')
        st.abs(3)
        E=ACC
        qp='[0,0,2,2]' if par==0 else '[1,1,3,3]'
        a(f'v_add_f32 v{E+8}, v{SACC+8}, v{SACC+9}\nv_add_f32 v{E+9}, v{SACC+10}, v{SACC+11}')
        a(f'v_add_f32 v{E}, v{SACC}, v{SACC+1}\nv_add_f32 v{E+4}, v{SACC+2}, v{SACC+3}')
        a(f'v_mov_b32_dpp v{E+2}, v{E+8} quad_perm:{qp} row_mask:0xf bank_mask:0xf')
        a(f'v_mov_b32_dpp v{E+6}, v{E+9} quad_perm:{qp} row_mask:0xf bank_mask:0xf')
        us=[u for u in range(2) if u!=w]
        for u in us: a(f'v_add_f32 v{E+1+4*u}, v{SACC+4+2*u}, v{SACC+5+2*u}')
        for u in us: a(f'ds_write_b128 v{V_LDSW}, {vr(E+4*u,4)} offset:{LDS_SP+1024*u}')
        ew=f'buffer_store_short v{XB}, v{V_EW}, {sr(S_WS,4)}, 0 offen'
        if st.on==2: ew='s_memtime s[82:83]\n'+ew
        if not OPT['tag']: a('s_waitcnt lgkmcnt(0)')
        elif OPT['tnop']: a(f's_nop {OPT["tnop"]-1}')
        a('s_barrier')
        if w<2:
            u=w; Y=E+4*u; R=E+12; X=E+24; RR=a.newlabel('Arr')
            a.label(RR)
            for k,ww in enumerate([x for x in range(4) if x!=u]):
                a(f'ds_read_b128 {vr(R+4*k,4)}, v{V_LIN} offset:{LDS_SP+2048*ww+1024*u}')
            a(f'v_add_f32 v{Y+1}, v{SACC+4+2*u}, v{SACC+5+2*u}\nv_mov_b32 v{XB+1}, -1')
            pk=lambda d,x,y: a(f'v_pk_add_f32 {vr(d,2)}, {vr(x,2)}, {vr(y,2)}\nv_pk_add_f32 {vr(d+2,2)}, {vr(x+2,2)}, {vr(y+2,2)}')
            a('s_waitcnt lgkmcnt(2)')
            pk(X,Y,R)
            a('s_waitcnt lgkmcnt(0)')
            pk(R+4,R+4,R+8)
            pk(X,X,R+4)
            st.abs(5)
            M=R
            a(f'v_max3_f32 v{M}, v{X}, v{X+1}, v{X+2}')
            a(f'v_cmp_neq_f32 vcc, s{S_TAG4}, v{X+3}')
            for i_,sh in enumerate((1,2,4,8)):
                if i_==3:
                    if OPT['cnt']:
                        a(f's_cbranch_vccnz {RR}_c'); a.outl.append(('raw',[f'{RR}_c:','s_add_u32 s54, s54, 1',f's_branch {RR}']))
                    else: a(f's_cbranch_vccnz {RR}')
                a(f'v_max_f32_dpp v{M}, v{M}, v{M} row_ror:{sh} row_mask:0xf bank_mask:0xf')
            a(f'v_pk_add_f32 {vr(X,2)}, {vr(X,2)}, {vr(M,2)} op_sel_hi:[1,0] neg_lo:[0,1] neg_hi:[0,1]')
            a(f'v_sub_f32 v{X+2}, v{X+2}, v{M}')
            for k in range(3): a(f'v_exp_f32 v{X+k}, v{X+k}')
            a(f'v_add_f32 v{M}, v{X}, v{X+1}')
            a(f'v_fmac_f32 v{M}, 0.5, v{X+2}')
            for sh in (1,2,4,8): a(f'v_add_f32_dpp v{M}, v{M}, v{M} row_ror:{sh} row_mask:0xf bank_mask:0xf')
            a(f'v_rcp_f32 v{M}, v{M}')
            a(f'v_pk_mul_f32 {vr(X,2)}, {vr(X,2)}, {vr(M,2)} op_sel_hi:[1,0]')
            a(f'v_mul_f32 v{X+2}, v{X+2}, v{M}')
            a(f'v_cvt_pk_bf16_f32 v{X}, |v{X}|, |v{X+1}|\nv_cvt_pk_bf16_f32 v{X+2}, |v{X+2}|, |v{X+2}|')
            st.abs(6)
            pub2(a,[f'buffer_store_dword v{X}, v{V_PSX}, {sr(S_WS,4)}, s{S_PCUR} offen',
                   f'buffer_store_dword v{X+2}, v{V_PSM}, {sr(S_WS,4)}, s{S_PCUR} offen',
                   f'buffer_store_dword v{XB+1}, v{V_PSX}, {sr(S_WS,4)}, s{S_RST} offen',
                   f'buffer_store_dword v{XB+1}, v{V_PSM}, {sr(S_WS,4)}, s{S_RST} offen'])
        if w==3:
            a(f's_add_u32 s{S_T0}, s{S_STEP}, 1\nv_mov_b32 v{XB}, s{S_T0}')
            d=OPT['adel']
            while d>0: a(f's_nop {min(d,16)-1}'); d-=16
            a(ew)
        st.endstep(ACC+8)
        if a.diag and not st.on:
            K8=a.newlabel('s8')
            a(f's_cmp_lg_u32 s{S_STEP}, 7\ns_cbranch_scc1 {K8}\ns_memtime s[90:91]\ns_memrealtime s[88:89]')
            a.label(K8)
        a(f'''
        s_xor_b32 s{S_TAG}, s{S_TAG}, 0x80000000
        s_xor_b32 s{S_TAG4}, s{S_TAG4}, 0x80000000
        s_mov_b32 s{S_RST}, s{S_PCUR}
        s_add_u32 s{S_PCUR}, s{S_PCUR}, 0x4000
        s_and_b32 s{S_PCUR}, s{S_PCUR}, 0xc000
        s_add_u32 s{S_PCUR}, s{S_PCUR}, {WS_PR}
        s_add_u32 s{S_MCUR}, s{S_MCUR}, 0x2000
        s_and_b32 s{S_MCUR}, s{S_MCUR}, 0x6000
        s_add_u32 s{S_MCUR}, s{S_MCUR}, {WS_MEMR}
        s_add_u32 s{S_M2}, s{S_MCUR}, 4096
        s_add_u32 s{S_XOFF}, s{S_XOFF}, 32768
        s_add_u32 s{S_THR}, s{S_THR}, s{S_INC}
        s_add_u32 s{S_STEP}, s{S_STEP}, 1
        s_cmp_lt_u32 s{S_STEP}, {NSTEP}
        s_cbranch_scc1 {LOOP}
        s_branch {end}
        ''')
    emit_outl(a)

MEMA=0; VP=28; MBOP=60; FACC=84; PP=92; MBP=104; STG=132
B_IDX,B_M4,B_LDSW,B_LIN,B_VG,B_PX,B_PM,B_MST,B_WL,B_FW,B_INC,B_HIST,TMP=range(164,177)
B_THR=B_LDSW
B_EW,B_ER,B_EV,B_EM,FR=112,113,114,115,124
LDS_MEM=0; LDS_FP=8192; LDS_W=16384
bfr=lambda f: frag_reg(f,32,192)
stg=lambda n: [(f'ds_read_b128 {vr(STG+16*(n&1)+4*k,4)}, v{B_WL} offset:{(n%8)*4096+k*1024}',f's{n}') for k in range(4)]

def b_setup(a):
    t=0
    lane_consts(a,t)
    common_addr(a,t,B_IDX,B_LDSW,B_LIN)
    a(f'''
    v_lshlrev_b32 v{B_VG}, 9, v{t+1}
    v_lshl_add_u32 v{B_VG}, v{t+2}, 4, v{B_VG}
    s_lshl_b32 s{S_T0}, s{S_WAVE}, 15
    v_add_u32 v{B_WL}, s{S_T0}, v{B_LIN}
    v_add_u32 v{B_WL}, {LDS_W}, v{B_WL}
    ''')

def b_weights(a, team):
    a(f'''
    v_lshlrev_b32 v3, 7, v0
    s_lshl_b32 s{S_T0}, s{S_WAVE}, 9
    s_lshr_b32 s{S_T1}, s{S_ROLE}, 1
    s_lshl_b32 s{S_T1}, s{S_T1}, 2
    s_add_u32 s{S_T0}, s{S_T0}, s{S_T1}
    s_add_u32 s{S_T0}, s{S_T0}, {F_W+16*128}
    ''')
    a(f'''
    s_mov_b32 s{S_RST}, s{S_T0}
    s_lshl_b32 s{S_T0}, s{S_WAVE}, 2
    s_mul_i32 s{S_T0}, s{S_T0}, {MAT}
    s_mul_i32 s{S_T1}, s{S_ROLE}, 28672
    s_add_u32 s{S_T1}, s{S_T1}, s{S_T0}
    s_add_u32 s{S_T1}, s{S_T1}, {WS_B}
    s_lshl_b32 s{S_T2}, s{S_WAVE}, 15
    s_add_u32 s{S_T2}, s{S_T2}, {LDS_W}
    ''')
    rt(a,1)
    for stage in (1,2,3):
        wait_flags(a,3,f's{S_RST}',4,stage,sleep=1,t=8)
        if stage==1: rt(a,2)
        for hd in range(4):
            if hd==3: a('s_waitcnt vmcnt(40)')
            for dt in range(14):
                if stage_of(dt)!=stage: continue
                ks,hf=dt>>1,dt&1
                a(f's_add_u32 s{S_XOFF}, s{S_T1}, {hd*MAT+dt*2048}')
                for tt in range(2):
                    tile=2*hd+tt; imm=tt*256
                    if ks<5:
                        a(f'buffer_load_dwordx4 {frag_half(tile*5+ks,hf,32,192)}, v{B_VG}, {sr(S_WS,4)}, s{S_XOFF} offen offset:{imm} sc1')
                    else:
                        a(f's_add_u32 m0, s{S_T2}, {tile*4096+(2*(ks-5)+hf)*1024-imm}')
                        a(f'buffer_load_dwordx4 v{B_VG}, {sr(S_WS,4)}, s{S_XOFF} offen offset:{imm} sc1 lds')

def b_gemm(a, ACCS, post, hook):
    seq=[(tl,ks) for ks in range(7) for tl in (0,1)]+[(tl,ks) for tl in range(2,8) for ks in range(7)]
    a.dq=[f'm{k}' for k in range(7)]
    fill=[]; rd=[]
    for i,(tile,ks) in enumerate(seq):
        a.wait_ds(f'm{ks}')
        if ks==5: a.wait_ds(f's{tile}')
        src = bfr(tile*5+ks) if ks<5 else vr(STG+16*(tile&1)+8*(ks-5),8)
        a(f'{SMF} {vr(ACCS[tile],4)}, {vr(MEMA+4*ks,4)}, {src}, v{B_IDX}')
        hook(i,'salu')
        if not hook(i,'mem') and rd: a.ds(*rd.pop(0))
        if i+1<len(seq):
            a.wait_ds(f'm{seq[i+1][1]}')
            if seq[i+1][1]==5: a.wait_ds(f's{seq[i+1][0]}')
        if not hook(i,'valu') and fill and fill[0][0]<=i: a(fill.pop(0)[1])
        if ks==6:
            fill+=[(i+3,o) for o in post(tile)]
            rd+=stg(tile+2)
    for o in rd: a.ds(*o)
    for _,f in fill: a(f)
    a.dq=[]

def role_B(a, stamps=False, end='L_end'):
    st=Stamps(a,stamps); st.keep=(9,3,6,10,11)
    fast_srd(a)
    rt(a,0)
    a(f's_sub_u32 s{S_ROLE}, s{S_ROLE}, 16')
    srd(a,S_M0,P_MEM0,7168)
    t=0
    b_setup(a)
    b_weights(a,True)
    a(f'''
    s_mul_i32 s{S_T0}, s{S_WAVE}, 3072
    v_add_u32 v{B_PX}, s{S_T0}, v{B_LIN}
    ; mem store: 512j + 256(n>>3) + 32*(2q+u) + 4(n&7), u = wave
    s_lshl_b32 s{S_T0}, s{S_ROLE}, 9
    s_lshl_b32 s{S_T1}, s{S_WAVE}, 5
    s_add_u32 s{S_T0}, s{S_T0}, s{S_T1}
    v_lshlrev_b32 v{B_MST}, 6, v{t+1}
    v_lshrrev_b32 v{t+3}, 3, v{t+2}
    v_lshl_add_u32 v{B_MST}, v{t+3}, 8, v{B_MST}
    v_and_b32 v{t+3}, 7, v{t+2}
    v_lshl_add_u32 v{B_MST}, v{t+3}, 2, v{B_MST}
    v_add_u32 v{B_MST}, s{S_T0}, v{B_MST}
    v_lshrrev_b32 v{B_FW}, 1, v{B_LDSW}
    v_mov_b32 v{t+4}, 0
    ds_write_b64 v{B_FW}, {vr(t+4,2)} offset:{LDS_FP}
    ds_write_b64 v{B_FW}, {vr(t+4,2)} offset:{LDS_FP+512}
    s_waitcnt lgkmcnt(0)
    v_add_u32 v{B_M4}, 4096, v{B_LIN}
    v_lshlrev_b32 v{B_EW}, 7, v{t}
    s_lshl_b32 s{S_T1}, s{S_ROLE}, {3 if OPT['emall'] else 1}
    s_mul_i32 s{S_T0}, s{S_WAVE}, {2 if OPT['emall'] else 0}
    s_add_u32 s{S_T1}, s{S_T1}, s{S_T0}
    s_add_u32 s{S_T1}, s{S_T1}, {F_EM}
    v_add_u32 v{B_EW}, s{S_T1}, v{B_EW}
    v_mov_b32 v{t+3}, 0x7f000000
    v_cmp_gt_u32 vcc, {OPT['rm']}, v{t}
    v_cndmask_b32 v{B_EW}, v{t+3}, v{B_EW}, vcc
    v_and_b32 v{t+3}, {3 if OPT['pw'] else 15}, v{t}
    s_mul_i32 s{S_T1}, s{S_WAVE}, {8 if OPT['pw'] else 0}
    v_lshl_add_u32 v{t+3}, v{t+3}, 1, s{S_T1}
    v_cmp_gt_u32 vcc, 32, v{t}
    v_cndmask_b32 v{t+3}, 64, v{t+3}, vcc
    s_and_b32 s{S_T1}, s{S_ROLE}, {OPT['rp']-1}
    s_lshl_b32 s{S_T1}, s{S_T1}, 7
    s_add_u32 s{S_T1}, s{S_T1}, {F_EP}
    v_add_u32 v{B_ER}, s{S_T1}, v{t+3}
    s_xor_b32 s{S_T1}, s{S_SLOW}, 1
    v_mov_b32 v{t+3}, s{S_T1}
    v_cndmask_b32 v{B_INC}, 1, v{t+3}, vcc
    v_cndmask_b32 v{B_THR}, -1, 0, vcc
    v_cmp_gt_u32 vcc, 48, v{t}
    v_add_u32 v{t+3}, 2, v{B_ER}
    v_cndmask_b32 v{B_ER}, v{t+3}, v{B_ER}, vcc
    v_cndmask_b32 v{B_THR}, 1, v{B_THR}, vcc
    v_min_u32 v{t+3}, {55 if OPT['emall'] else 13}, v{t}
    s_and_b32 s{S_T0}, s{S_ROLE}, {OPT['rm']//2-1}
    s_lshl_b32 s{S_T0}, s{S_T0}, 7
    s_add_u32 s{S_T0}, s{S_T0}, {F_EM+OPT['rm']//2*128}
    v_lshl_add_u32 v{B_EM}, v{t+3}, 1, s{S_T0}
    ''')
    K=a.newlabel('Bi')
    a(f's_cmp_ge_u32 s{S_WAVE}, 2\ns_cbranch_scc1 {K}')
    a(f'''
    v_lshl_add_u32 v{t+3}, v{t+1}, 1, s{S_WAVE}
    v_mul_u32_u24 v{t+3}, 896, v{t+3}
    v_lshl_add_u32 v{t+3}, v{t+2}, 2, v{t+3}
    s_lshl_b32 s{S_T0}, s{S_ROLE}, 6
    buffer_load_dword v{t+4}, v{t+3}, {sr(S_M0,4)}, s{S_T0} offen
    v_mov_b32 v{t+5}, -1
    s_mov_b32 s{S_T0}, {WS_MEMR}
    s_mov_b32 s{S_T1}, {WS_MEMR+8192}
    s_mov_b32 s{S_T2}, {WS_MEMR+2*8192}
    s_mov_b32 s{S_T3}, {WS_MEMR+3*8192}
    s_waitcnt vmcnt(0)
    v_min_u32 v{B_HIST}, -2, v{t+4}
    ''')
    pub(a,[f'buffer_store_dword v{B_HIST if k==S_T0 else t+5}, v{B_MST}, {sr(S_WS,4)}, s{k} offen' for k in (S_T0,S_T1,S_T2,S_T3)])
    for k in (S_T0,S_T1,S_T2,S_T3): a(f'buffer_load_dword v{t+6}, v{B_MST}, {sr(S_WS,4)}, s{k} offen sc1')
    a.label(K)
    ACCS=[76,80,128,116,120,188,104,108]
    S_V2=S_XOFF; S_THM=S_T4; S_PAR=S_T5; S_PAR3=S_MBO
    V_FR,V_SENT=TMP+4,TMP+5
    FRS=[FR,FR+1,FR+2,FR+3,TMP+8,TMP+9,TMP+10,TMP+11][:OPT['nfl']]
    a(f'''
    s_mov_b32 s{S_STEP}, 0
    s_mul_i32 s{S_VOFF}, s{S_ROLE}, 32768
    s_lshl_b32 s{S_T0}, s{S_WAVE}, 13
    s_add_u32 s{S_VOFF}, s{S_VOFF}, s{S_T0}
    s_add_u32 s{S_VOFF}, s{S_VOFF}, {WS_V}
    s_mov_b32 s{S_VRDY}, 0
    s_mov_b32 s{S_MCUR}, {WS_MEMR}
    s_xor_b32 s{S_THM}, s{S_SLOW}, 1
    s_add_u32 s{S_V2}, s{S_VOFF}, 4096
    v_lshrrev_b32 v{V_FR}, 1, v{B_LIN}
    s_mov_b32 s{S_PAR}, 0
    v_mov_b32 v{B_PM}, v{B_MST}
    v_mov_b32 v{V_SENT}, -1
    v_mov_b32 v{B_EV}, 1
    s_mov_b32 s{S_SPIN}, 0
    ''')
    team_barrier(a,NTEAM,t+8)
    pfl=lambda r: f'buffer_load_ushort v{r}, v{B_ER}, {sr(S_WS,4)}, 0 offen sc1'
    a(f'v_max_i32 v{TMP}, 0, v{B_THR}')
    flag_poll(a, pfl, [FR], f'v{TMP}', 4)
    a(f'buffer_store_short v{B_EV}, v{B_EW}, {sr(S_WS,4)}, 0 offen')
    if a.diag: calib(a)
    st.init(8)
    for o,_ in stg(0)+stg(1): a(o)
    LOOP=a.newlabel('Bloop'); L=a.newlabel('mpoll'); MOK=a.newlabel('mok'); H01=a.newlabel('Bh01'); FIN=a.newlabel('Bfin')
    def house():
        for r in ACCS+[FACC,FACC+4]: a(f'v_mov_b64 {vr(r,2)}, 0\nv_mov_b64 {vr(r+2,2)}, 0')
    a(f's_cmp_eq_u32 s{S_WAVE}, 3\ns_cbranch_scc1 {LOOP}')
    a.label(H01)
    a(f's_cmp_eq_u32 s{S_STEP}, {NSTEP}\ns_cbranch_scc1 {FIN}')
    vl=[]
    if OPT['vload']:
        for aa in (1,0):
            for tt in range(2):
                for hb in range(2):
                    vl.append(f'buffer_load_dwordx4 {vr(VP+16*aa+8*tt+4*hb,4)}, v{B_VG}, {sr(S_WS,4)}, s{S_V2 if aa else S_VOFF} offen offset:{hb*2048+tt*256} '+('sc1','sc1 nt','nt')[OPT['vnt']])
    ve=[vl.pop(0) for _ in range(min(OPT['vearly'],len(vl)))]
    house()
    a('s_barrier')
    for x in ve: a(x)
    a(f's_waitcnt lgkmcnt(0)\ns_branch {MOK}')
    a.label(LOOP)
    a(f's_cmp_eq_u32 s{S_STEP}, {NSTEP}\ns_cbranch_scc1 {FIN}')
    fl=lambda r: f'buffer_load_ushort v{r}, v{B_EM}, {sr(S_WS,4)}, 0 offen sc1'
    flag_poll(a, fl, FRS[:4], S_THM, 2)
    if OPT['bsleep']: a(f's_nop {OPT["bsleep"]}')
    mlo=['s_mov_b32 m0, 0']+[f'buffer_load_dwordx4 v{B_LIN}, {sr(S_WS,4)}, s{S_MCUR} offen offset:{1024*k} sc1 lds' for k in range(4)]+['s_mov_b32 m0, 4096']+[f'buffer_load_dwordx4 v{B_M4}, {sr(S_WS,4)}, s{S_MCUR} offen offset:{1024*k} sc1 lds' for k in range(3)]
    for x in mlo: a(x)
    st.abs(11)
    a('s_barrier')
    for x in ve: a(x)
    house()
    a(f's_waitcnt vmcnt({len(ve)}) lgkmcnt(0)')
    a.label(MOK)
    mrd=[f'ds_read_b128 {vr(MEMA+4*ks,4)}, v{B_LIN} offset:{LDS_MEM+1024*ks}' for ks in range(7)]
    mck=[f'v_max3_u32 v{TMP}, v{MEMA}, v{MEMA+1}, v{MEMA+2}', f'v_max_u32 v{TMP}, v{TMP}, v{MEMA+3}']+[f'v_max3_u32 v{TMP}, v{TMP}, v{MEMA+r}, v{MEMA+r+1}' for r in range(4,28,2)]+[f'v_cmp_eq_u32 vcc, -1, v{TMP}']
    a.outl.append(('raw',[f'{L}:','s_waitcnt lgkmcnt(0)','s_barrier',f's_cmp_lg_u32 s{S_WAVE}, 3',f's_cbranch_scc1 {L}_w']+mlo+['s_waitcnt vmcnt(0)',f'{L}_w:','s_barrier']+mrd+['s_waitcnt lgkmcnt(0)']+mck+
        [f's_cbranch_vccz {L}_ok',f's_add_u32 s{S_SPIN}, s{S_SPIN}, 1',f's_cmp_lt_u32 s{S_SPIN}, {SPIN}',f's_cbranch_scc1 {L}',f's_mov_b32 s{S_ERR}, 2',f's_branch {end}',f'{L}_ok:']+
        (['s_add_u32 s54, s54, 1'] if OPT['cnt'] else [])+[o for o,_ in stg(0)+stg(1)]+[f'v_mov_b64 {vr(r+k,2)}, 0' for r in ACCS[:3] for k in (0,2)]+['s_waitcnt lgkmcnt(0)',f's_branch {MOK}']))
    st.abs(0)
    a('s_barrier')
    for x in mrd: a(x)
    for _ in range(min(OPT['nearly'],len(vl))): a(vl.pop(0))
    def post(tile):
        hd,tt=tile>>1,tile&1; acc=ACCS[tile]
        b=MBOP+8*tt+4*(hd>>1)+(hd&1)
        return [f'v_cvt_pk_bf16_f32 v{b}, v{acc}, v{acc+1}', f'v_cvt_pk_bf16_f32 v{b+2}, v{acc+2}, v{acc+3}']
    book=f'''s_add_u32 s{S_VOFF}, s{S_VOFF}, {SEGV}
    s_add_u32 s{S_V2}, s{S_V2}, {SEGV}
    s_xor_b32 s{S_PAR}, s{S_PAR}, 1
    s_and_b32 s{S_T0}, s{S_STEP}, 3
    s_lshl_b32 s{S_PCUR}, s{S_T0}, 14
    s_add_u32 s{S_PCUR}, s{S_PCUR}, {WS_PR}
    s_add_u32 s{S_STEP}, s{S_STEP}, 1
    s_add_u32 s{S_RST}, s{S_MCUR}, 0x6000
    s_and_b32 s{S_RST}, s{S_RST}, 0x6000
    s_add_u32 s{S_RST}, s{S_RST}, {WS_MEMR}
    s_add_u32 s{S_MCUR}, s{S_MCUR}, 0x2000
    s_and_b32 s{S_MCUR}, s{S_MCUR}, 0x6000
    s_add_u32 s{S_MCUR}, s{S_MCUR}, {WS_MEMR}
    s_xor_b32 s{S_T0}, s{S_SLOW}, 1
    s_add_u32 s{S_THM}, s{S_THM}, s{S_T0}'''.split('\n')
    PRE=[55-2*k for k in range(OPT['nfl'])][::-1]
    def hook(i,kind):
        if kind=='mem':
            for k,n in ((0,5),(14,7),(35,12),(55,13)):
                if i==k: st.abs(n)
            if vl and i%OPT['vsp']==0: a(vl.pop(0)); return True
        if kind=='valu':
            if i<15: a(mck[i]); return True
            if i==54: a(f'v_add_u32 v{B_EV}, 1, v{B_EV}'); return True
            if i==48: a(f'v_xor_b32 v{B_PM}, 0x40000000, v{B_PM}'); return True
            if i==47: a(f'v_add_u32 v{B_THR}, v{B_THR}, v{B_INC}'); return True
        if kind=='salu' and i==17: a(f's_cbranch_vccnz {L}')
        if kind=='salu' and i>=28 and book: a(book.pop(0).strip())
        return False
    b_gemm(a,ACCS,post,hook)
    assert not book and not vl
    st.abs(2)
    st.endstep(TMP+6, -2)
    if st.on==2: a('s_waitcnt vmcnt(0)')
    st.abs(10)
    pl=[f'buffer_load_dwordx4 {vr(PP+4*k,4)}, v{B_PX}, {sr(S_WS,4)}, s{S_PCUR} offen offset:{1024*k} sc1' for k in range(3)]
    fsrc=lambda k,tt: vr(VP+16*k+8*tt,8) if k<2 else vr(MBOP+8*tt,8)
    ew=f'buffer_store_short v{B_EV}, v{B_EW}, {sr(S_WS,4)}, 0 offen'
    if st.on==2: ew='s_memtime s[66:67]\n'+ew
    TL=[a.newlabel('Btail') for _ in range(4)]
    for v in (1,2,3): a(f's_cmp_eq_u32 s{S_WAVE}, {v}\ns_cbranch_scc1 {TL[v]}')
    for v in range(4):
        RDO=a.newlabel('Bredo'); G0=a.newlabel('Bgo')
        a.outl.append(redo_block(RDO,G0,pl,range(PP,PP+12),TMP,range(FACC,FACC+8,2),3))
        a.label(TL[v])
        if v==3 or OPT['pw']: flag_poll(a, pfl, FRS, f'v{B_THR}', 3)
        if not OPT['pw']: a('s_barrier')
        if v==3 and OPT['w3del']: a(f's_nop {OPT["w3del"]-1}')
        for k in range(3):
            a(pl[k])
            if k==0: st.abs(9)
            if k<2 and OPT['pgap']: a(f's_nop {OPT["pgap"]}')
        a.label(G0)
        for k in range(3):
            r=PP+4*k
            a(f's_waitcnt vmcnt({2-k})')
            if k==0: st.abs(3)
            if k==2 and OPT['bpos']==-1 and (v==3 or OPT['emall']): a(ew)
            a(f'{SMF} {vr(FACC,4)}, {vr(r,4)}, {fsrc(k,0)}, v{B_IDX}')
            a(f'v_max3_u32 v{TMP}, v{r}, v{r+1}, v{r+2}' if k==0 else f'v_max3_u32 v{TMP}, v{TMP}, v{r}, v{r+1}')
            a(f'{SMF} {vr(FACC+4,4)}, {vr(r,4)}, {fsrc(k,1)}, v{B_IDX}')
            a(f'v_max_u32 v{TMP}, v{TMP}, v{r+3}' if k==0 else f'v_max3_u32 v{TMP}, v{TMP}, v{r+2}, v{r+3}')
        a(f'v_cmp_eq_u32 vcc, -1, v{TMP}')
        if OPT['bpos']==-2: a(ew)
        st.abs(8)
        EXR=MEMA
        us=[u for u in range(2) if u!=v]
        for u in us+([v] if v<2 else []): a(f'v_add_f32 v{EXR+2*u}, v{FACC+2*u}, v{FACC+2*u+1}')
        for u in us: a(f'v_and_or_b32 v{EXR+2*u}, v{EXR+2*u}, -4, s{S_PAR}')
        a(f's_cbranch_vccnz {RDO}')
        if OPT['bpos']==0 and (v==3 or OPT['emall']): a(ew)
        for u in us: a(f'v_add_f32 v{EXR+2*u+1}, v{FACC+4+2*u}, v{FACC+5+2*u}')
        if v>=2: a(f'ds_write2st64_b64 v{B_FW}, {vr(EXR,2)}, {vr(EXR+2,2)} offset0:{LDS_FP//512} offset1:{LDS_FP//512+1}') if OPT['w2'] else [a(f'ds_write_b64 v{B_FW}, {vr(EXR+2*u,2)} offset:{LDS_FP+512*u}') for u in us]
        else: a(f'ds_write_b64 v{B_FW}, {vr(EXR+2*us[0],2)} offset:{LDS_FP+512*us[0]}')
        if OPT['bpos']==1 and (v==3 or OPT['emall']): a(ew)
        if OPT['tnop']: a(f's_nop {OPT["tnop"]-1}')
        a('s_barrier')
        if v>=2:
            if OPT['bpos']==2 and v==3: a(ew)
            a(f's_branch {LOOP if v==3 else H01}')
            continue
        RR=a.newlabel('Brr'); R=EXR+4; X=EXR+2*v
        a.label(RR)
        for k,w in enumerate([w for w in range(4) if w!=v]):
            a(f'ds_read_b64 {vr(R+2*k,2)}, v{V_FR} offset:{LDS_FP+1024*w+512*v}')
        a(f'v_add_f32 v{X+1}, v{FACC+4+2*v}, v{FACC+5+2*v}')
        a('s_waitcnt lgkmcnt(2)')
        a(f'v_pk_add_f32 {vr(R+6,2)}, {vr(X,2)}, {vr(R,2)}')
        a('s_waitcnt lgkmcnt(0)')
        a(f'v_pk_add_f32 {vr(R+10,2)}, {vr(R+2,2)}, {vr(R+4,2)}')
        a(f'v_add3_u32 v{R+8}, v{R}, v{R+2}, v{R+4}')
        a(f'v_pk_add_f32 {vr(R+6,2)}, {vr(R+6,2)}, {vr(R+10,2)}')
        a(f'v_lshl_add_u32 v{R+8}, v{R+8}, 30, v{B_PM}')
        a(f'v_cvt_pk_bf16_f32 v{R+6}, v{R+6}, v{R+7}')
        a(f'v_min_u32 v{B_HIST}, -2, v{R+6}')
        st.abs(6)
        pub2(a,[f'buffer_store_dword v{B_HIST}, v{R+8}, {sr(S_WS,4)}, s{S_MCUR} offen',
               f'buffer_store_dword v{V_SENT}, v{B_MST}, {sr(S_WS,4)}, s{S_RST} offen'])
        a(f'v_cmp_ne_u32 vcc, v{R+8}, v{B_MST}')
        if OPT['cnt']:
            a(f's_cbranch_vccnz {RR}_c'); a.outl.append(('raw',[f'{RR}_c:','s_add_u32 s53, s53, 1',f's_branch {RR}']))
        else: a(f's_cbranch_vccnz {RR}')
        a(f's_branch {H01}')
    a.label(FIN)
    a(f'''
    s_cmp_ge_u32 s{S_WAVE}, 2
    s_cbranch_scc1 {end}
    s_mov_b32 s{S_T0}, {WS_MEMH+NSTEP*8192}
    buffer_store_dword v{B_HIST}, v{B_MST}, {sr(S_WS,4)}, s{S_T0} offen sc1
    s_branch {end}
    ''')
    emit_outl(a)

def role_F(a, end='L_next'):
    a.comment('==== follower: column tile j = S_ROLE ====')
    b_setup(a)
    b_weights(a,False)
    ACCS=[76,80,128,116,120,188,92,96]
    a(f'''
    s_mov_b32 s{S_STEP}, 1
    s_mov_b32 s{S_HOFF}, {WS_MEMH}
    s_lshl_b32 s{S_MBO}, s{S_ROLE}, 13
    s_lshl_b32 s{S_T0}, s{S_WAVE}, 11
    s_add_u32 s{S_MBO}, s{S_MBO}, s{S_T0}
    s_add_u32 s{S_MBO}, s{S_MBO}, {WS_MBH}
    s_min_u32 s{S_T0}, s{S_T0}, 5120
    v_add_u32 v{B_M4}, s{S_T0}, v{B_LIN}
    s_lshl_b32 s{S_PF}, s{S_ROLE}, 7
    s_lshl_b32 s{S_T0}, s{S_WAVE}, 2
    s_add_u32 s{S_PF}, s{S_PF}, s{S_T0}
    s_add_u32 s{S_PF}, s{S_PF}, {F_B}
    v_mov_b32 v{TMP+1}, 0
    v_mov_b32 v{TMP+2}, 0
    s_mov_b32 s{S_VRDY}, 0
    s_waitcnt vmcnt(0)
    ''')
    for o,_ in stg(0)+stg(1): a(o)
    LOOP=a.newlabel('Floop'); GET=a.newlabel('Fget'); KN=a.newlabel('Fkn'); NP=a.newlabel('Fnp')
    fst=f's_mov_b64 exec, 1\nbuffer_store_dword v{TMP+2}, v{TMP+1}, {sr(S_WS,4)}, s{S_PF} offen sc1\ns_mov_b64 exec, -1'
    ld=[f'buffer_load_dwordx4 {vr(VP+4*k,4)}, v{B_M4}, {sr(S_WS,4)}, s{S_HOFF} offen offset:{1024*k} sc1' for k in range(2)]
    need=f's_sub_u32 s{S_T3}, s{S_STEP}, 2\ns_cmp_gt_u32 s{S_STEP}, {LASTSEG}\ns_cselect_b32 s{S_T3}, s{S_T3}, s{S_STEP}\ns_cmp_ge_u32 s{S_VRDY}, s{S_T3}'
    a(f's_and_b32 s{S_RST}, s{S_SLOT}, 15\ns_lshl_b32 s{S_RST}, s{S_RST}, 7\ns_add_u32 s{S_RST}, s{S_RST}, {F_R}')
    a.label(GET)
    a(need+f'\ns_cbranch_scc1 {KN}')
    a(f's_sub_u32 s{S_T0}, s{S_STEP}, 1\nv_mov_b32 v{TMP+2}, s{S_T0}\ns_waitcnt vmcnt(0)')
    a(fst)
    wait_prog(a,S_T3,t=TMP,vz=TMP+1,known=S_VRDY)
    a.label(KN)
    until_valid(a,ld,range(VP,VP+8),TMP)
    a(f's_cmp_lg_u32 s{S_ERR}, 0\ns_cbranch_scc1 L_end')
    a.label(LOOP)
    a('s_barrier')
    for k in range(2): a(f'ds_write_b128 v{B_M4}, {vr(VP+4*k,4)} offset:{LDS_MEM+1024*k}')
    for r in ACCS: a(f'v_mov_b64 {vr(r,2)}, 0\nv_mov_b64 {vr(r+2,2)}, 0')
    a('s_waitcnt lgkmcnt(0)\ns_barrier')
    for ks in range(7): a(f'ds_read_b128 {vr(MEMA+4*ks,4)}, v{B_LIN} offset:{LDS_MEM+1024*ks}')
    a(f's_add_u32 s{S_STEP}, s{S_STEP}, 1\ns_add_u32 s{S_HOFF}, s{S_HOFF}, 8192\nv_mov_b32 v{VP}, -1')
    a(need+f'\ns_cbranch_scc0 {NP}')
    for x in ld: a(x)
    a.label(NP)
    a(f'buffer_load_dword v{TMP+3}, v{TMP+1}, {sr(S_WS,4)}, s{S_RST} offen sc1')
    def post(tile):
        hd,tt=tile>>1,tile&1; acc=ACCS[tile]
        return [f'v_add_f32 v{acc}, v{acc}, v{acc+1}', f'v_add_f32 v{acc+2}, v{acc+2}, v{acc+3}', f'v_cvt_pk_bf16_f32 v{acc}, v{acc}, v{acc+2}', f'v_min_u32 v{MBP+4*tt+hd}, -2, v{acc}']
    b_gemm(a,ACCS,post,lambda i,k: False)
    for tt in range(2):
        b=MBP+4*tt
        a(f'v_permlane32_swap_b32 v{b}, v{b+2}\nv_permlane32_swap_b32 v{b+1}, v{b+3}')
    for tt in range(2):
        b=MBP+4*tt
        a(f'v_permlane16_swap_b32 v{b}, v{b+1}\nv_permlane16_swap_b32 v{b+2}, v{b+3}')
    for tt in range(2):
        a(f'buffer_store_dwordx4 {vr(MBP+4*tt,4)}, v{B_VG}, {sr(S_WS,4)}, s{S_MBO} offen offset:{256*tt} sc1')
    a(f'''
    s_cmp_gt_u32 s{S_STEP}, 64
    s_cbranch_scc1 L_end
    s_add_u32 s{S_MBO}, s{S_MBO}, {SEGMB}
    s_sub_u32 s{S_T0}, s{S_STEP}, 2
    v_mov_b32 v{TMP+2}, s{S_T0}
    s_waitcnt vmcnt(2)
    ''')
    a(fst)
    a(f'v_readfirstlane_b32 s{S_VRDY}, v{TMP+3}')
    poll_check(a, range(VP,VP+8), TMP+4)
    a(f's_cbranch_vccz {LOOP}\ns_branch {GET}')

def role_R(a, end='L_end'):
    a.comment('==== relay: copies every mem_s to the history buffer, then announces s+1 on 16 lines ====')
    t=VT
    L=a.newlabel('relay'); P=a.newlabel('relayp'); OK=a.newlabel('relayok')
    a(f's_cmp_ge_u32 s{S_WAVE}, 2\ns_cbranch_scc1 {end}')
    FW=a.newlabel('fwd'); RL=a.newlabel('rly')
    a(f'''
    v_lshlrev_b32 v{t+1}, 5, v{V_L4}
    v_mov_b32 v{t+2}, 0x7f000000
    v_cmp_gt_u32 vcc, {128*OPT['rp']}, v{t+1}
    v_cndmask_b32 v{t+3}, v{t+2}, v{t+1}, vcc
    s_cmp_eq_u32 s{S_WAVE}, 0
    s_cbranch_scc1 {RL}
    s_mov_b32 s{S_T1}, {F_M+32}
    ''')
    wait_flags(a,t+1,f's{S_T1}',16,1,sleep=4)
    a(f'''
    s_mov_b32 s{S_T1}, {F_V}
    s_mov_b32 s{S_T2}, {F_EP+66}
    s_mov_b32 s{S_STEP}, 4
    {FW}:
    ''')
    wait_flags(a,V_L4,f's{S_T1}',16,'0x01010101',sleep=2)
    a(f's_cmp_lg_u32 s{S_ERR}, 0\ns_cbranch_scc1 {end}')
    a(f'v_mov_b32 v{t+5}, s{S_STEP}')
    pub(a,[f'buffer_store_short v{t+5}, v{t+3}, {sr(S_WS,4)}, s{S_T2} offen'])
    a(f'''
    s_add_u32 s{S_T1}, s{S_T1}, 128
    s_add_u32 s{S_STEP}, s{S_STEP}, 4
    s_cmp_lg_u32 s{S_ERR}, 0
    s_cbranch_scc1 {end}
    s_cmp_le_u32 s{S_STEP}, 64
    s_cbranch_scc1 {FW}
    s_branch {end}
    {RL}:
    ''')
    team_wait(a,end,t+8)
    a(f'''
    s_mov_b32 s{S_STEP}, 0
    s_mov_b32 s{S_HOFF}, {WS_MEMH}
    s_mov_b32 s{S_T2}, {F_EP+64}
    s_mov_b32 s{S_T3}, {F_T}
    {L}:
    s_and_b32 s{S_T0}, s{S_STEP}, 3
    s_lshl_b32 s{S_T0}, s{S_T0}, 13
    s_add_u32 s{S_T0}, s{S_T0}, {WS_MEMR}
    s_add_u32 s{S_T1}, s{S_T0}, 4096
    s_add_u32 s{S_STEP}, s{S_STEP}, 1
    v_mov_b32 v{t+4}, s{S_STEP}
    s_mov_b32 s{S_SPIN}, 0
    {P}:
    ''')
    for k in range(7): a(f'buffer_load_dwordx4 {vr(4*k,4)}, v{W_LIN}, {sr(S_WS,4)}, s{S_T0 if k<4 else S_T1} offen offset:{1024*(k%4)} sc1')
    a('s_waitcnt vmcnt(0)')
    poll_check(a, range(28), t+5)
    a(f'''
    s_cbranch_vccz {OK}
    s_add_u32 s{S_SPIN}, s{S_SPIN}, 1
    s_cmp_lt_u32 s{S_SPIN}, {SPIN}
    s_cbranch_scc1 {P}
    s_mov_b32 s{S_ERR}, 5
    s_branch {end}
    {OK}:
    s_add_u32 s{S_T1}, s{S_HOFF}, 4096
    ''')
    for k in range(7): a(f'buffer_store_dwordx4 {vr(4*k,4)}, v{W_LIN}, {sr(S_WS,4)}, s{S_HOFF if k<4 else S_T1} offen offset:{1024*(k%4)} sc1')
    pub(a,[f'buffer_store_short v{t+4}, v{t+3}, {sr(S_WS,4)}, s{S_T2} offen'])
    a(f'''
    s_add_u32 s{S_HOFF}, s{S_HOFF}, 8192
    s_waitcnt vmcnt(1)
    ''')
    pub(a,[f'buffer_store_dword v{t+4}, v{V_ZERO}, {sr(S_WS,4)}, s{S_T3} offen'])
    a(f'''
    s_cmp_lt_u32 s{S_STEP}, 64
    s_cbranch_scc1 {L}
    s_branch {end}
    ''')
    emit_outl(a)

def role_W(a, end='L_end'):
    a.comment('==== cache warmer: touches the x fragments a few segments ahead of the team ====')
    t=VT
    L=a.newlabel('warm'); N=a.newlabel('warmn'); AN=a.newlabel('ann'); WM=a.newlabel('wm')
    a(f'''
    v_lshlrev_b32 v{t+1}, 5, v{V_L4}
    s_cmp_ge_u32 s{S_WAVE}, 2
    s_cbranch_scc1 {WM}
    s_cmp_eq_u32 s{S_WAVE}, 1
    s_cbranch_scc1 {end}
    s_mov_b32 s{S_STEP}, 1
    s_mov_b32 s{S_T1}, {F_T}
    s_mov_b32 s{S_T2}, {F_R}
    {AN}:
    ''')
    wait_flags(a,V_ZERO,f's{S_T1}',16,f's{S_STEP}',sleep=1)
    a(f'''
    s_cmp_lg_u32 s{S_ERR}, 0
    s_cbranch_scc1 {end}
    v_readfirstlane_b32 s{S_STEP}, v{VT+40}
    s_mov_b64 exec, 0xffff
    buffer_store_dword v{VT+40}, v{t+1}, {sr(S_WS,4)}, s{S_T2} offen sc1
    s_mov_b64 exec, -1
    s_add_u32 s{S_STEP}, s{S_STEP}, 1
    s_cmp_le_u32 s{S_STEP}, 64
    s_cbranch_scc1 {AN}
    s_branch {end}
    {WM}:
    s_mov_b32 s{S_T0}, {F_TEAM}
    ''')
    wait_flags(a,V_ZERO,f's{S_T0}',1,1,sleep=4)
    a(f'''
    s_lshl_b32 s{S_T1}, s{S_WAVE}, 14
    s_add_u32 s{S_T1}, s{S_T1}, {WS_XF-32768}
    s_mov_b32 s{S_T0}, {F_EP+64}
    s_mov_b32 s{S_STEP}, 0
    s_mov_b32 s{S_SPIN}, 0
    {L}:
    s_lshr_b32 s{S_T3}, s{S_STEP}, 2
    s_lshl_b32 s{S_T3}, s{S_T3}, 7
    s_add_u32 s{S_T3}, s{S_T3}, {F_M+32}
    buffer_load_ushort v{t}, v{V_ZERO}, {sr(S_WS,4)}, s{S_T0} offen sc1
    buffer_load_dword v{t+3}, v{V_ZERO}, {sr(S_WS,4)}, s{S_T3} offen sc1
    s_waitcnt vmcnt(0)
    v_readfirstlane_b32 s{S_T2}, v{t}
    v_readfirstlane_b32 s{S_T3}, v{t+3}
    s_cmp_eq_u32 s{S_T3}, 0
    s_cbranch_scc1 {N}
    s_add_u32 s{S_T2}, s{S_T2}, {OPT['ahead']}
    s_cmp_gt_u32 s{S_STEP}, s{S_T2}
    s_cbranch_scc1 {N}
    buffer_load_dword v{t+2}, v{t+1}, {sr(S_WS,4)}, s{S_T1} offen sc1
    s_add_u32 s{S_T1}, s{S_T1}, 8192
    buffer_load_dword v{t+2}, v{t+1}, {sr(S_WS,4)}, s{S_T1} offen sc1
    s_add_u32 s{S_T1}, s{S_T1}, 24576
    s_add_u32 s{S_STEP}, s{S_STEP}, 1
    s_mov_b32 s{S_SPIN}, 0
    s_cmp_lt_u32 s{S_STEP}, {NSTEP}
    s_cbranch_scc1 {L}
    s_branch {end}
    {N}:
    s_sleep 8
    s_add_u32 s{S_SPIN}, s{S_SPIN}, 1
    s_cmp_lt_u32 s{S_SPIN}, {SPINS}
    s_cbranch_scc1 {L}
    s_branch {end}
    ''')
```

```python
from asmb import *
from layout import *
import math, struct
def f32(x): return '0x%08x'%struct.unpack('<I',struct.pack('<f',x))[0]
LOG2E=1.4426950408889634
OPTW=dict(touch=1,nt=2,cpf=1,pprof=0,psl=24,wsl=4,tw=0,lag=1,xt=-1,st1=1,st2=3,dsp=4,nh=1,nv=4,nq=3,nm=8)

V_LIN,V_LIN2,V_DMA,V_XS,V_XR0,V_XR1,V_L4,V_ZERO,V_TR,V_TR2,V_TQ,V_TQ2,V_RM1,V_RM2,V_HH16,V_RANK=range(192,208)
VT=208
ACC=112; SAC=144; EX=160
AW=112; AMEM=144
LDS_XST=28672; LDS_TAB=143360; LDS_BC=163824

def wait_flags(a, vaddr, soff, nl, thresh, width=1, sleep=4, err=9, t=VT+40):
    L=a.newlabel('wf'); D=a.newlabel('wfd')
    if nl<32: a(f's_mov_b64 exec, {hex((1<<nl)-1)}')
    elif nl==32: a('s_mov_b32 exec_hi, 0')
    elif nl<64: a(f's_mov_b32 exec_hi, {hex((1<<(nl-32))-1)}')
    a(f's_mov_b32 s{S_SPIN}, 0')
    a.label(L)
    if width==1:
        a(f'buffer_load_dword v{t}, v{vaddr}, {sr(S_WS,4)}, {soff} offen sc1\ns_waitcnt vmcnt(0)')
    else:
        a(f'buffer_load_dwordx4 {vr(t,4)}, v{vaddr}, {sr(S_WS,4)}, {soff} offen sc1\ns_waitcnt vmcnt(0)')
        a(f'v_min3_u32 v{t}, v{t}, v{t+1}, v{t+2}\nv_min_u32 v{t}, v{t}, v{t+3}')
    a(f'v_cmp_gt_u32 vcc, {thresh}, v{t}')
    a(f's_cbranch_vccz {D}')
    a(f's_sleep {sleep if sleep<4 else OPTW["wsl"]}')
    a(f's_add_u32 s{S_SPIN}, s{S_SPIN}, 1\ns_cmp_lt_u32 s{S_SPIN}, {SPINS}\ns_cbranch_scc1 {L}')
    a(f's_mov_b32 s{S_ERR}, {err}')
    a.label(D)
    a('s_mov_b64 exec, -1')
    a.vq=[]

def wait_prog(a, thresh, t=VT+40, vz=V_ZERO, known=None):
    L=a.newlabel('wp'); D=a.newlabel('wpd'); S=a.newlabel('wps')
    a(f'''
    s_and_b32 s{S_T0}, s{S_SLOT}, 15
    s_lshl_b32 s{S_T0}, s{S_T0}, 7
    s_add_u32 s{S_T0}, s{S_T0}, {F_R}
    s_mov_b32 s{S_SPIN}, 0
    s_mov_b64 exec, 1
    {L}:
    buffer_load_dword v{t}, v{vz}, {sr(S_WS,4)}, s{S_T0} offen sc1
    s_waitcnt vmcnt(0)
    v_readfirstlane_b32 s{S_T4}, v{t}
    s_cmp_ge_u32 s{S_T4}, s{thresh}
    s_cbranch_scc1 {D}
    s_add_u32 s{S_T4}, s{S_T4}, 2
    s_cmp_gt_u32 s{S_T4}, s{thresh}
    s_cbranch_scc1 {S}
    s_sleep {OPTW['psl']}
    {S}:
    s_sleep 2
    s_add_u32 s{S_SPIN}, s{S_SPIN}, 1
    s_cmp_lt_u32 s{S_SPIN}, {SPINS}
    s_cbranch_scc1 {L}
    s_mov_b32 s{S_ERR}, 10
    {D}:
    s_mov_b64 exec, -1
    ''')
    if known: a(f's_mov_b32 s{known}, s{S_T4}')
    a.vq=[]

LASTSEG=60
def relax(a, dst, seg):
    a(f's_cmp_ge_u32 s{seg}, {LASTSEG}\ns_cselect_b32 s{dst}, -1, 1\ns_add_u32 s{dst}, s{dst}, s{seg}')

def until_valid(a, loads, regs, tmp, err=11):
    L=a.newlabel('uv'); D=a.newlabel('uvd')
    a(f's_mov_b32 s{S_SPIN}, 0')
    a.label(L)
    for x in loads: a(x)
    r=list(regs); n=len(loads); per=len(r)//n
    for i in range(n):
        a(f's_waitcnt vmcnt({n-1-i})')
        q=r[per*i:per*i+per]
        a(f'v_max3_u32 v{tmp}, v{q[0]}, v{q[1]}, v{q[2] if i==0 else tmp}')
        a(f'v_max_u32 v{tmp}, v{tmp}, v{q[3]}' if i==0 else f'v_max3_u32 v{tmp}, v{q[2]}, v{q[3]}, v{tmp}')
    a(f'v_cmp_eq_u32 vcc, -1, v{tmp}\ns_cbranch_vccz {D}')
    a(f's_add_u32 s{S_SPIN}, s{S_SPIN}, 1\ns_cmp_lt_u32 s{S_SPIN}, {SPINS}\ns_cbranch_scc1 {L}\ns_mov_b32 s{S_ERR}, {err}')
    a.label(D)
    a.vq=[]

def set_flag(a, soff, val='1', kind='dword'):
    t=VT+40
    a(f'v_mov_b32 v{t}, {val}\ns_mov_b64 exec, 1')
    a(f'buffer_store_{kind} v{t}, v{V_ZERO}, {sr(S_WS,4)}, {soff} offen sc1')
    a('s_mov_b64 exec, -1')

def wg_flag(a, soff, val='1', kind='dword'):
    K=a.newlabel('sf')
    a.drain_vm(); a('s_barrier')
    a(f's_cmp_lg_u32 s{S_WAVE}, 0\ns_cbranch_scc1 {K}')
    set_flag(a,soff,val,kind)
    a.label(K)

def work_consts(a):
    t=VT
    a(f'''
    v_mbcnt_lo_u32_b32 v{t}, -1, 0
    v_mbcnt_hi_u32_b32 v{t}, -1, v{t}
    v_lshlrev_b32 v{V_LIN}, 4, v{t}
    v_add_u32 v{V_LIN2}, 57344, v{V_LIN}
    s_mul_i32 s{S_T0}, s{S_WAVE}, 7168
    v_add_u32 v{V_DMA}, s{S_T0}, v{V_LIN}
    v_lshlrev_b32 v{V_L4}, 2, v{t}
    v_mov_b32 v{V_ZERO}, 0
    v_lshrrev_b32 v{t+1}, 4, v{t}
    v_xor_b32 v{t+1}, v{t+1}, v{t}
    v_and_b32 v{t+1}, 3, v{t+1}
    v_lshlrev_b32 v{t+1}, 4, v{t+1}
    v_lshrrev_b32 v{t+2}, 2, v{t}
    v_mul_u32_u24 v{V_XS}, 896, v{t+2}
    v_add_u32 v{V_XS}, v{V_XS}, v{t+1}
    v_lshrrev_b32 v{t+3}, 5, v{t}
    v_bfe_u32 v{t+4}, v{t}, 2, 2
    v_xor_b32 v{t+4}, v{t+4}, v{t+3}
    v_lshlrev_b32 v{t+4}, 4, v{t+4}
    v_and_b32 v{t+5}, 31, v{t}
    v_lshl_add_u32 v{V_XR0}, v{t+5}, 6, v{t+4}
    v_xor_b32 v{V_XR1}, 32, v{V_XR0}
    v_lshlrev_b32 v{V_HH16}, 4, v{t+3}
    v_bfe_u32 v{t+4}, v{t}, 2, 2
    v_lshlrev_b32 v{t+4}, 6, v{t+4}
    v_and_b32 v{t+5}, 3, v{t}
    v_lshl_add_u32 v{t+4}, v{t+5}, 3, v{t+4}
    v_bfe_u32 v{t+5}, v{t}, 4, 1
    v_lshl_add_u32 v{t+4}, v{t+5}, 5, v{t+4}
    v_lshl_add_u32 v{V_TR}, v{t+3}, 9, v{t+4}
    v_add_u32 v{V_TR2}, 57344, v{V_TR}
    v_lshl_add_u32 v{V_TQ}, v{t+3}, 8, v{t+4}
    v_add_u32 v{V_TQ2}, 57344, v{V_TQ}
    s_mul_i32 s{S_T0}, s{S_WAVE}, 112
    v_add_u32 v{t+2}, s{S_T0}, v{t+2}
    v_and_b32 v{t+5}, 3, v{t}
    v_lshlrev_b32 v{t+5}, 4, v{t+5}
    v_mul_u32_u24 v{V_RM1}, 3584, v{t+2}
    v_add_u32 v{V_RM1}, v{V_RM1}, v{t+5}
    v_mul_u32_u24 v{V_RM2}, 896, v{t+2}
    v_add_u32 v{V_RM2}, v{V_RM2}, v{t+5}
    ''')

def unit_of(a, sW):
    LB=a.newlabel('uoB'); LJ=a.newlabel('uoJ')
    assert all((u*9363)>>16==u//7 for u in range(256))
    a(f'''
    s_mul_i32 s{S_G}, s{sW}, 9363
    s_lshr_b32 s{S_G}, s{S_G}, 16
    s_mul_i32 s{S_SEG}, s{S_G}, 7
    s_sub_u32 s{S_SEG}, s{sW}, s{S_SEG}
    s_and_b32 s{S_H}, s{S_G}, 15
    s_cmp_ge_u32 s{S_G}, 16
    s_cselect_b32 s{S_R1}, s{P_WV}, s{P_WQ}
    s_cselect_b32 s{S_R1+1}, s{P_WV+1}, s{P_WQ+1}
    s_cselect_b32 s{S_R2}, s{P_WO}, s{P_WK}
    s_cselect_b32 s{S_R2+1}, s{P_WO+1}, s{P_WK+1}
    s_mov_b32 s{S_R1+2}, 3670016
    s_mov_b32 s{S_R2+2}, 3670016
    s_mov_b32 s{S_R1+3}, 0x20000
    s_mov_b32 s{S_R2+3}, 0x20000
    ''')

def first_touch(a):
    t=VT; K=a.newlabel('ft'); L=a.newlabel('ftl')
    a(f'''
    s_mov_b32 s{S_XOFF}, 0
    s_sub_u32 s{S_T0}, s{S_XCC}, 1
    s_cmp_ge_u32 s{S_T0}, 7
    s_cbranch_scc1 {K}
    s_lshl_b32 s{S_T0}, s{S_T0}, 5
    s_lshr_b32 s{S_T1}, s2, 3
    s_add_u32 s{S_T1}, s{S_T1}, s{S_T0}
    ''')
    unit_of(a,S_T1)
    a(f'''
    v_lshrrev_b32 v{t}, 2, v0
    v_lshlrev_b32 v{t}, 13, v{t}
    v_and_b32 v{t+1}, 3, v0
    v_lshl_add_u32 v{t}, v{t+1}, 7, v{t}
    v_mul_u32_u24 v{t+1}, 896, v0
    s_lshl_b32 s{S_B0}, s{S_H}, 9
    s_lshl_b32 s{S_T2}, s{S_SEG}, 19
    s_add_u32 s{S_T2}, s{S_T2}, s{S_B0}
    s_mul_i32 s{S_T3}, s{S_H}, 229376
    s_lshl_b32 s{S_T4}, s{S_SEG}, 7
    s_add_u32 s{S_T3}, s{S_T3}, s{S_T4}
    s_cmp_ge_u32 s{S_G}, 16
    s_cselect_b32 s{S_T2}, s{S_T3}, s{S_T2}
    s_cselect_b64 vcc, -1, 0
    v_cndmask_b32 v{t+1}, v{t}, v{t+1}, vcc
    buffer_load_dword v255, v{t+1}, {sr(S_R2,4)}, s{S_T2} offen nt
    s_mul_i32 s{S_T2}, s{S_G}, 7
    s_add_u32 s{S_T3}, s{S_T2}, 7
    s_max_u32 s{S_T2}, s{S_T2}, s{S_T0}
    s_add_u32 s{S_T0}, s{S_T0}, 32
    s_min_u32 s{S_T3}, s{S_T3}, s{S_T0}
    s_sub_u32 s{S_XOFF}, s{S_T3}, s{S_T2}
    s_mul_i32 s{S_T2}, s{S_SEG}, 74
    v_min_u32 v{t}, 73, v0
    v_add_u32 v{t}, s{S_T2}, v{t}
    v_min_u32 v{t}, 511, v{t}
    v_lshrrev_b32 v{t+1}, 8, v{t}
    v_mul_u32_u24 v{t+1}, 640, v{t+1}
    v_add_u32 v{t}, v{t}, v{t+1}
    v_lshrrev_b32 v{t+1}, 2, v{t}
    v_lshlrev_b32 v{t+1}, 13, v{t+1}
    v_and_b32 v{t}, 3, v{t}
    v_lshl_add_u32 v{t}, v{t}, 7, v{t+1}
    s_cmp_lt_u32 s{S_XOFF}, 7
    s_cbranch_scc1 {L}
    buffer_load_dword v255, v{t}, {sr(S_R1,4)}, s{S_B0} offen nt
    s_branch {K}
    {L}:
    buffer_load_dword v255, v{t}, {sr(S_R1,4)}, s{S_B0} offen
    {K}:
    ''')

def wait_init(a, v, have=False):
    L=a.newlabel('wi'); D=a.newlabel('wid')
    a(f's_mov_b32 s{S_SPIN}, 0')
    if not have: a(f'v_mov_b32 v{v}, 0')
    a.label(L)
    a(f'v_cmp_eq_u32 vcc, 0, v{v}\ns_cbranch_vccz {D}')
    a(f'buffer_load_dword v{v}, v{V_ZERO}, {sr(S_DBG,4)}, 0 offen offset:{D_INIT} sc1\ns_waitcnt vmcnt(0)')
    a(f's_add_u32 s{S_SPIN}, s{S_SPIN}, 1\ns_cmp_lt_u32 s{S_SPIN}, {SPINS}\ns_cbranch_scc1 {L}')
    a('s_branch L_exit')
    a.label(D)

def prep(a):
    t=VT
    BF=0; AF=64; PA=128
    V_RS,V_ST,V_RS1,V_FB=t+8,t+9,t+10,t+11
    V_AR=[t+12+k for k in range(4)]
    def radr(sbase, c=0):
        a(f's_add_u32 s{S_T1}, s{sbase}, {c}\nv_add_u32 v{V_AR[0]}, s{S_T1}, v{V_FB}')
        for kl in (1,2,3): a(f'v_xor_b32 v{V_AR[kl]}, {32*kl}, v{V_AR[0]}')
    pp(a,2)
    a(f's_sub_u32 s{S_T0}, s{S_SLOT}, 32')
    unit_of(a,S_T0)
    a(f'''
    s_and_b32 s{S_T2}, s{S_WAVE}, 1
    s_lshr_b32 s{S_T3}, s{S_WAVE}, 1
    v_lshrrev_b32 v{t}, 7, v{V_LIN}
    v_lshlrev_b32 v{V_RS}, 13, v{t}
    v_lshrrev_b32 v{t+1}, 4, v{V_LIN}
    v_and_b32 v{t+1}, 0x30, v{t+1}
    v_xor_b32 v{t+1}, v{t+1}, v{V_LIN}
    v_and_b32 v{t+1}, 0x70, v{t+1}
    v_add_u32 v{V_RS}, v{V_RS}, v{t+1}
    v_xor_b32 v{V_RS1}, 64, v{V_RS}
    v_bfe_u32 v{t}, v{V_LIN}, 5, 3
    v_lshlrev_b32 v{t}, 4, v{t}
    v_xor_b32 v{t}, v{t}, v{V_HH16}
    v_and_b32 v{t+1}, 0x1f0, v{V_LIN}
    v_lshl_add_u32 v{V_FB}, v{t+1}, 3, v{t}
    v_lshrrev_b32 v{t+2}, 6, v{V_LIN}
    v_mul_u32_u24 v{t+2}, 896, v{t+2}
    s_lshl_b32 s{S_T4}, s{S_T2}, 14
    s_add_u32 s{S_T4}, s{S_T4}, {4*32768}
    s_lshl_b32 s{S_T5}, s{S_T3}, 13
    s_add_u32 s{S_T5}, s{S_T5}, s{S_T4}
    s_lshl_b32 s{S_MBO}, s{S_SEG}, 1
    s_add_u32 s{S_MBO}, s{S_MBO}, s{S_T2}
    ''')
    LB=a.newlabel('prepB'); LJ=a.newlabel('prepJ'); LB2=a.newlabel('prepB2'); LJ2=a.newlabel('prepJ2')
    if OPTW['tw']: a('s_waitcnt vmcnt(0)')
    pp(a,13)
    a(f's_cmp_ge_u32 s{S_G}, 16\ns_cbranch_scc1 {LB}')
    a(f'''
    s_lshl_b32 s{S_T0}, s{S_MBO}, 18
    s_lshl_b32 s{S_T1}, s{S_H}, 9
    s_add_u32 s{S_T0}, s{S_T0}, s{S_T1}
    s_lshl_b32 s{S_T1}, s{S_T3}, 8
    s_add_u32 s{S_T0}, s{S_T0}, s{S_T1}
    ''')
    for R in range(4):
        a(f's_add_u32 s{S_T1}, s{S_T0}, {8*R*8192}')
        for c in range(2):
            a(f's_add_u32 m0, s{S_T5}, {c*4096+R*1024-128*c}')
            a(f'buffer_load_dwordx4 v{V_RS1 if R&1 else V_RS}, {sr(S_R2,4)}, s{S_T1} offen offset:{128*c} lds')
    a(f'''
    s_mov_b32 s{S_PF}, {f32(LOG2E/16)}
    s_mov_b32 s{S_VOFF}, {WS_A}
    v_bfe_u32 v{t}, v{V_LIN}, 5, 2
    v_bfe_u32 v{t+1}, v{V_LIN}, 4, 1
    v_lshl_add_u32 v{t}, v{t+1}, 4, v{t}
    v_bfe_u32 v{t+1}, v{V_LIN}, 7, 1
    v_lshl_add_u32 v{t}, v{t+1}, 3, v{t}
    v_bfe_u32 v{t+1}, v{V_LIN}, 8, 1
    v_lshl_add_u32 v{t}, v{t+1}, 2, v{t}
    s_branch {LJ}
    {LB}:
    v_and_b32 v{t+1}, 48, v{V_LIN}
    v_add_u32 v{t+2}, v{t+2}, v{t+1}
    s_mul_i32 s{S_T0}, s{S_H}, 229376
    s_lshl_b32 s{S_T1}, s{S_MBO}, 6
    s_add_u32 s{S_T0}, s{S_T0}, s{S_T1}
    s_mul_i32 s{S_T1}, s{S_T3}, {128*896}
    s_add_u32 s{S_T0}, s{S_T0}, s{S_T1}
    ''')
    for i in range(8):
        a(f's_add_u32 m0, s{S_T5}, {i*1024}')
        a(f'buffer_load_dwordx4 v{t+2}, {sr(S_R2,4)}, s{S_T0} offen lds')
        a(f's_add_u32 s{S_T0}, s{S_T0}, {16*896}')
    a(f'''
    s_mov_b32 s{S_PF}, 1.0
    s_mov_b32 s{S_VOFF}, {WS_B}
    v_bfe_u32 v{t}, v{V_LIN}, 5, 4
    v_bfe_u32 v{t+1}, v{V_LIN}, 4, 1
    v_lshl_add_u32 v{t}, v{t+1}, 4, v{t}
    {LJ}:
    ''')
    a.vq=['b']
    a(f'''
    s_mul_i32 s{S_B0}, s{S_T3}, {7*32*8192}
    s_lshl_b32 s{S_T0}, s{S_H}, 9
    s_add_u32 s{S_B0}, s{S_B0}, s{S_T0}
    s_lshl_b32 s{S_T0}, s{S_T2}, 8
    s_add_u32 s{S_B0}, s{S_B0}, s{S_T0}
    s_lshl_b32 s{S_B1}, s{S_WAVE}, 13
    ''')
    def step_dma(j):
        o=[]
        for R in range(4):
            o.append(f's_add_u32 s{S_T0}, s{S_B0}, {(j*32+8*R)*8192}')
            for c in range(2):
                o.append(f's_add_u32 m0, s{S_B1}, {(j%4)*32768+c*4096+R*1024-128*c}')
                o.append(('vm',f'buffer_load_dwordx4 v{V_RS1 if R&1 else V_RS}, {sr(S_R1,4)}, s{S_T0} offen offset:{128*c} lds', f'd{j}'))
        return o
    for j in range(2):
        for o in step_dma(j): a.auto(o)
    TL=a.newlabel('t2'); TK=a.newlabel('t2k')
    a(f'''
    s_mul_i32 s{S_T0}, s{S_SEG}, 183
    s_lshl_b32 s{S_T1}, s{S_WAVE}, 6
    v_lshrrev_b32 v{t+3}, 4, v{V_LIN}
    v_add_u32 v{t+3}, s{S_T1}, v{t+3}
    v_min_u32 v{t+3}, 182, v{t+3}
    v_add_u32 v{t+3}, s{S_T0}, v{t+3}
    v_min_u32 v{t+3}, 1279, v{t+3}
    v_cmp_lt_u32 vcc, 639, v{t+3}
    v_cndmask_b32 v{t+4}, 1, 2, vcc
    v_lshl_add_u32 v{t+3}, v{t+4}, 8, v{t+3}
    v_lshrrev_b32 v{t+4}, 2, v{t+3}
    v_lshlrev_b32 v{t+4}, 13, v{t+4}
    v_and_b32 v{t+3}, 3, v{t+3}
    v_lshl_add_u32 v{t+3}, v{t+3}, 7, v{t+4}
    s_mul_i32 s{S_T0}, s{S_G}, 7
    s_add_u32 s{S_T1}, s{S_T0}, 6
    s_xor_b32 s{S_T1}, s{S_T1}, s{S_T0}
    s_lshl_b32 s{S_T0}, s{S_H}, 9
    s_cmp_ge_u32 s{S_T1}, 32
    s_cbranch_scc1 {TL}
    buffer_load_dword v255, v{t+3}, {sr(S_R1,4)}, s{S_T0} offen nt
    s_branch {TK}
    {TL}:
    buffer_load_dword v255, v{t+3}, {sr(S_R1,4)}, s{S_T0} offen
    {TK}:
    ''')
    a.vq.append('t2')
    a(f'''
    v_and_b32 v{t+1}, 512, v{V_LIN}
    v_lshl_add_u32 v{V_ST}, v{t}, 4, v{t+1}
    s_mul_i32 s{S_T1}, s{S_H}, {MAT}
    s_add_u32 s{S_VOFF}, s{S_VOFF}, s{S_T1}
    s_mul_i32 s{S_T0}, s{S_MBO}, 28672
    s_add_u32 s{S_VOFF}, s{S_VOFF}, s{S_T0}
    s_mul_i32 s{S_T0}, s{S_T3}, {7*2048}
    s_add_u32 s{S_VOFF}, s{S_VOFF}, s{S_T0}
    s_lshl_b32 s{S_T5}, s{S_T3}, 14
    s_lshl_b32 s{S_RST}, s{S_G}, 7
    s_lshl_b32 s{S_T1}, s{S_SEG}, 2
    s_add_u32 s{S_RST}, s{S_RST}, s{S_T1}
    s_add_u32 s{S_RST}, s{S_RST}, {F_W}
    ''')
    radr(S_T4)
    pp(a,3)
    a.wait_vm('b'); pp(a,4); a('s_barrier')
    a(f's_cmp_ge_u32 s{S_G}, 16\ns_cbranch_scc1 {LB2}')
    for k in range(16):
        a(f'ds_read_b128 {vr(BF+4*k,4)}, v{V_AR[k&3]} offset:{4096*(k>>2)}')
    a(f's_branch {LJ2}')
    a.label(LB2)
    a(f'v_add_u32 v{V_AR[0]}, s{S_T4}, v{V_TR}')
    for k in range(16):
        a(f'ds_read_b64_tr_b16 {vr(BF+4*k,2)}, v{V_AR[0]} offset:{1024*k}')
        a(f'ds_read_b64_tr_b16 {vr(BF+4*k+2,2)}, v{V_AR[0]} offset:{1024*k+256}')
    a.label(LJ2)
    a.drain_ds()
    if a.diag: a('s_memrealtime s[44:45]\ns_waitcnt lgkmcnt(0)')
    def epi(dt):
        acc=PA+16*(dt&1); o=[]
        for r in range(16): o.append(f'v_mul_f32 v{acc+r}, s{S_PF}, v{acc+r}')
        for p in range(2):
            for d,(x,y) in enumerate(((0,1),(4,5),(2,3),(6,7))):
                o.append(f'v_cvt_pk_bf16_f32 v{EX+4*p+d}, v{acc+8*p+x}, v{acc+8*p+y}')
        o.append(f's_add_u32 s{S_T1}, s{S_VOFF}, {dt*2048}')
        for p in range(2):
            o.append(('vm',f'buffer_store_dwordx4 {vr(EX+4*p,4)}, v{V_ST}, {sr(S_WS,4)}, s{S_T1} offen offset:{1024*p} sc1',f'st{dt}'))
        return o
    D=6
    V_A2=[t+20+k for k in range(4)]
    def radr2(j):
        R=V_AR if j%2==0 else V_A2
        return [f's_add_u32 s{S_T1}, s{S_T5}, {(j%4)*32768}', f'v_add_u32 v{R[0]}, s{S_T1}, v{V_FB}']+[f'v_xor_b32 v{R[kl]}, {32*kl}, v{R[0]}' for kl in (1,2,3)]
    def read(g):
        if g<112:
            j,k=g>>4,g&15; R=V_AR if j%2==0 else V_A2
            a.ds(f'ds_read_b128 {vr(AF+4*(g%8),4)}, v{R[k&3]} offset:{4096*(k>>2)}', f'a{g}')
    for o in radr2(0): a(o)
    a.wait_vm('d0'); a('s_barrier')
    pp(a,5)
    for g in range(D): read(g)
    fill=radr2(1); dq=step_dma(2)
    for dt in range(7):
        acc=PA+16*(dt&1)
        for k in range(16):
            g=16*dt+k
            if k==16-D-1 and dt<6:
                lag=OPTW['lag']
                stage={OPTW['st1']+lag:1, OPTW['st2']+lag:2}.get(dt)
                if stage: a.wait_vm(f'st{dt-lag-1}')
                a.wait_vm(f'd{dt+1}'); a('s_barrier')
                if stage:
                    K=a.newlabel('pf')
                    a(f's_cmp_lg_u32 s{S_WAVE}, 0\ns_cbranch_scc1 {K}')
                    if stage==1: wait_init(a,t+19,True)
                    set_flag(a,f's{S_RST}',str(stage))
                    a.label(K)
                if dt+3<7: dq+=step_dma(dt+3)
                if dt==OPTW['xt']:
                    a(f's_sub_u32 s{S_T2}, s{S_SLOT}, 32\ns_lshl_b32 s{S_T2}, s{S_T2}, 2\ns_add_u32 s{S_T2}, s{S_T2}, s{S_WAVE}\ns_lshl_b32 s{S_T2}, s{S_T2}, 11\nv_lshlrev_b32 v{t+24}, 1, v{V_LIN}')
                    a.vm(f'buffer_load_dword v255, v{t+24}, {sr(S_X,4)}, s{S_T2} offen')
                if dt==0: a.vm(f'buffer_load_dword v{t+19}, v{V_ZERO}, {sr(S_DBG,4)}, 0 offen offset:{D_INIT} sc1','ini')
            a.wait_ds(f'a{g}')
            a(f'v_mfma_f32_32x32x16_bf16 {vr(acc,16)}, {vr(AF+4*(g%8),4)}, {vr(BF+4*k,4)}, {vr(acc,16) if k else 0}')
            read(g+D)
            if k%2==0 or dt==0:
                while dq:
                    o=dq.pop(0); a.auto(o)
                    if isinstance(o,tuple): break
            if k>=2 or dt==0:
                for _ in range(3):
                    if fill: a.auto(fill.pop(0))
        assert not fill
        pp(a,6+dt)
        fill=(radr2(dt+2) if dt+2<7 else [])+epi(dt)
    assert not dq
    for f in fill: a.auto(f)
    if a.diag: a('s_memrealtime s[46:47]\ns_waitcnt lgkmcnt(0)')
    K=a.newlabel('pf')
    pp(a,19)
    a.drain_vm(); pp(a,20); a('s_barrier')
    a(f's_cmp_lg_u32 s{S_WAVE}, 0\ns_cbranch_scc1 {K}')
    set_flag(a,f's{S_RST}','3')
    a.label(K)
    if getattr(a,'pprof',0):
        a(f's_lshl_b32 s{S_T0}, s{S_SLOT}, 2\ns_add_u32 s{S_T0}, s{S_T0}, s{S_WAVE}\ns_lshl_b32 s{S_T0}, s{S_T0}, 8\ns_add_u32 s{S_T0}, s{S_T0}, {WS_TS+0x200000}')
        a(f'buffer_store_dword v254, v{V_L4}, {sr(S_WS,4)}, s{S_T0} offen')

def dma_piece(t, sbase):
    o=[]; buf=(t%4)*28672
    for grp in range(2):
        o.append(f's_add_u32 s{S_T0}, s{sbase}, {t*28672+4096*grp}')
        o.append(f's_add_u32 m0, s{S_XL}, {buf+4096*grp}')
        for i in range(4 if grp==0 else 3):
            o.append(('vm',f'buffer_load_dwordx4 v{V_DMA}, {sr(S_WS,4)}, s{S_T0} offen offset:{1024*i} sc1 lds',f'w{t}'))
    return o
def dma_rows(t, tloc, srdreg, vreg, sbase, stride):
    o=[]; buf=(t%4)*28672
    for i in range(7):
        o.append(f's_add_u32 s{S_T0}, s{sbase}, {64*tloc+i*16*stride}')
        o.append(f's_add_u32 m0, s{S_XL}, {buf+1024*i}')
        o.append(('vm',f'buffer_load_dwordx4 v{vreg}, {sr(srdreg,4)}, s{S_T0} offen lds',f'w{t}'))
    return o
def rd_piece(t,k,dst):
    off=(t%4)*28672+1024*k
    return [f'ds_read_b128 {ar(dst,4)}, v{V_LIN if off<57344 else V_LIN2} offset:{off%57344}']
def rd_tr(t,k,dst,va,vb,second):
    off=(t%4)*28672+1024*k
    v=va if off<57344 else vb
    return [f'ds_read_b64_tr_b16 {ar(dst,2)}, v{v} offset:{off%57344}', f'ds_read_b64_tr_b16 {ar(dst+2,2)}, v{v} offset:{off%57344+second}']

def gemm(a, nt, dma, rd, mf, epi, pre=None, depth=7, finish_by=None):
    for t in (1,2):
        for o in dma(t): a.auto(o)
    if pre:
        for o in pre(0): a.auto(o)
    a.wait_vm('w0'); a('s_barrier')
    N=28*nt
    def read(g):
        if g<N:
            for o in rd(g//28,g%28,AW+4*(g%8)): a.ds(o,f'r{g}')
    for g in range(depth): read(g)
    fill=list(pre(1)) if pre else []
    dq=[]; g0=0
    for t in range(nt):
        acc=ACC+16*(t&1)
        lim = finish_by(t) if finish_by else 27
        for k in range(28):
            g=28*t+k
            if k==28-depth-1 and t+1<nt:
                assert not dq
                a.wait_vm(f'w{t+1}'); a('s_barrier')
                if t+3<nt: dq=dma(t+3); g0=g
            if k==lim:
                while fill: a.auto(fill.pop(0))
            if k==0: a.wait_ds(f'pre{t}')
            a.wait_ds(f'r{g}')
            a(mf(t,k,ar(AW+4*(g%8),4),vr(acc,16)))
            read(g+depth)
            if dq and (g-g0)%OPTW['dsp']==0:
                while dq:
                    o=dq.pop(0); a.auto(o)
                    if isinstance(o,tuple): break
            if k>=2 and fill:
                n=math.ceil(len(fill)/max(1,lim-k))
                for _ in range(n):
                    if fill: a.auto(fill.pop(0))
        while fill: a.auto(fill.pop(0))
        fill=list(epi(t,acc))
        if pre and t+2<nt: fill+=list(pre(t+2))
    while fill: a.auto(fill.pop(0))

def load_x(a, natural, xf=False):
    a(f'''
    s_mul_i32 s{S_T1}, s{S_SEG}, 28672
    s_add_u32 s{S_T2}, s{S_T1}, 14336
    s_mul_i32 s{S_T3}, s{S_WAVE}, 28672
    s_add_u32 s{S_T3}, s{S_T3}, {LDS_XST}
    v_add_u32 v{VT}, s{S_T3}, v{V_XR0}
    v_add_u32 v{VT+1}, s{S_T3}, v{V_XR1}
    ''')
    for ch in range(14):
        for rh in range(2):
            a(f's_add_u32 m0, s{S_T3}, {(2*ch+rh)*1024-64*ch}')
            a.vm(f'buffer_load_dwordx4 v{V_XS}, {sr(S_X,4)}, s{S_T2 if rh else S_T1} offen offset:{64*ch} lds',f'x{ch}')
    for ch in range(14):
        if natural is None: break
        a.wait_vm(f'x{ch}')
        for kl in range(2):
            a.ds(f'ds_read_b128 {vr(8*ch+4*kl,4)}, v{VT+kl} offset:{2048*ch}',f'xr{2*ch+kl}')
    if natural is None: a.drain_vm()
    elif natural:
        a.drain_ds()
    else:
        for kb in range(28):
            r=4*kb
            a.wait_ds(f'xr{kb}')
            a(f'v_permlane32_swap_b32 v{r}, v{r+2}\nv_permlane32_swap_b32 v{r+1}, v{r+3}')
        for kb in range(28):
            r=4*kb
            for d,s in enumerate((0,2,1,3)): a(f'v_accvgpr_write_b32 a{r+d}, v{r+s}')
    if xf:
        t=VT+2
        a(f'''
        v_bfe_u32 v{t}, v{V_LIN}, 4, 1
        v_bfe_u32 v{t+1}, v{V_LIN}, 5, 1
        v_lshl_add_u32 v{t}, v{t}, 1, v{t+1}
        v_bfe_u32 v{t+1}, v{V_LIN}, 8, 1
        v_lshlrev_b32 v{t+1}, 1, v{t+1}
        v_xor_b32 v{t+1}, v{t+1}, v{t}
        v_lshlrev_b32 v{t+1}, 4, v{t+1}
        v_lshl_add_u32 v{t+1}, v{t}, 8, v{t+1}
        v_bfe_u32 v{t}, v{V_LIN}, 6, 1
        v_lshl_add_u32 v{t+1}, v{t}, 7, v{t+1}
        v_bfe_u32 v{t}, v{V_LIN}, 7, 1
        v_lshl_add_u32 v{t+1}, v{t}, 10, v{t+1}
        v_bfe_u32 v{t}, v{V_LIN}, 9, 1
        v_lshl_add_u32 v{t+1}, v{t}, 11, v{t+1}
        v_add_u32 v{t}, s{S_T3}, v{t+1}
        v_xor_b32 v{t+1}, 16, v{t}
        s_lshl_b32 s{S_T2}, s{S_SEG}, 15
        s_add_u32 s{S_T2}, s{S_T2}, {WS_XF}
        ''')
        for half in range(2):
            for i in range(16*half,16*half+16):
                cw,kt,p=i>>3,(i>>2)&1,i&3
                P=(2*(cw>>1)+p) if p<2 else (4+(cw>>1)+(p&1))
                a(f'ds_read_b128 {vr(4*(i&15)+64*half,4) if half==0 else ar(144+4*(i&15),4)}, v{t+(cw&1)} offset:{4096*P+64*kt}')
        a('s_waitcnt lgkmcnt(0)')
        for i in range(32):
            if i%4==0: a(f's_add_u32 s{S_T1}, s{S_T2}, {1024*i}')
            a(f'buffer_store_dwordx4 {vr(4*i,4) if i<16 else ar(144+4*(i&15),4)}, v{V_LIN}, {sr(S_WS,4)}, s{S_T1} offen offset:{1024*(i%4)} sc1')
        return
    a('s_barrier')

def unit_head(a, mat0, wsbase, half=False):
    a(f'''
    s_lshl_b32 s{S_SEG}, s{S_G}, 2
    s_add_u32 s{S_SEG}, s{S_SEG}, s{S_WAVE}
    s_lshl_b32 s{S_T5}, s{S_H}, 7
    s_add_u32 s{S_T5}, s{S_T5}, {F_W+128*mat0}
    s_mul_i32 s{S_B0}, s{S_H}, {MAT}
    s_add_u32 s{S_B0}, s{S_B0}, {wsbase}
    s_mul_i32 s{S_XL}, s{S_WAVE}, 7168
    ''')
    if half: a(f's_mul_i32 s{S_T0}, s{S_MBO}, 28672\ns_add_u32 s{S_B0}, s{S_B0}, s{S_T0}')
    load_x(a,False)
    if mat0: rt1(a,1)
    wait_flags(a,V_L4,f's{S_T5}',7,3,sleep=1)
    if mat0: rt1(a,2)
    for o in dma_piece(0,S_B0): a.auto(o)

def rt1(a,i):
    if a.diag:
        K=a.newlabel('rt1')
        a(f's_cmp_lg_u32 s{S_STEP}, 0\ns_cbranch_scc1 {K}')
        rt(a,i)
        if i==2: a('s_memtime s[78:79]\ns_waitcnt lgkmcnt(0)')
        if i==3: a(f's_mov_b32 s{S_STEP}, 1\ns_mov_b32 s77, s78\ns_memtime s[78:79]\ns_waitcnt lgkmcnt(0)\ns_sub_u32 s78, s78, s77')
        a.label(K)

def unit_V(a, half=False):
    a.comment('==== V unit ====')
    rt1(a,0)
    nt=4 if half else 14
    if half: a(f's_mov_b32 s{S_VRDY}, s{S_T5}\ns_lshl_b32 s{S_MBO}, s{S_T5}, 2\ns_min_u32 s{S_MBO}, s{S_MBO}, 10')
    unit_head(a,16,WS_B,half)
    a(f'''
    s_mul_i32 s{S_B1}, s{S_SEG}, {SEGV}
    s_lshl_b32 s{S_T1}, s{S_H}, 11
    s_add_u32 s{S_B1}, s{S_B1}, s{S_T1}
    s_add_u32 s{S_B1}, s{S_B1}, {WS_V}
    ''')
    if half: a(f's_mul_i32 s{S_T1}, s{S_MBO}, 32768\ns_add_u32 s{S_B1}, s{S_B1}, s{S_T1}')
    def epi(t,acc):
        o=[f'v_cvt_pk_bf16_f32 v{EX+d}, v{acc+2*d}, v{acc+2*d+1}' for d in range(8)]
        o.append(f's_add_u32 s{S_T1}, s{S_B1}, {t*32768}')
        o+=[f'buffer_store_dwordx4 {vr(EX+4*p,4)}, v{V_LIN}, {sr(S_WS,4)}, s{S_T1} offen offset:{1024*p} sc1' for p in range(2)]
        return o
    gemm(a,nt,lambda t:dma_piece(t,S_B0),rd_piece,
         lambda t,k,w,acc:f'v_mfma_f32_32x32x16_bf16 {acc}, {ar(4*k,4)}, {w}, {acc if k else 0}', epi)
    a(f's_lshl_b32 s{S_T0}, s{S_G}, 7\ns_lshl_b32 s{S_T1}, s{S_H}, 2\ns_add_u32 s{S_T0}, s{S_T0}, s{S_T1}\ns_add_u32 s{S_T0}, s{S_T0}, {F_V}')
    if half: a(f's_add_u32 s{S_T0}, s{S_T0}, s{S_VRDY}')
    wg_flag(a,f's{S_T0}','0x01010101','byte' if half else 'dword')
    rt1(a,3)

def unit_X(a):
    a.comment('==== X unit: x fragments for the team ====')
    a(f's_lshl_b32 s{S_SEG}, s{S_G}, 2\ns_add_u32 s{S_SEG}, s{S_SEG}, s{S_WAVE}')
    for r in range(4): a(f'v_mov_b32 v{ACC+r}, -1')
    for base,n in ((WS_MEMH+LASTSEG*8192,32),(WS_PX+LASTSEG*SEGP,160),(WS_MBH+LASTSEG*SEGMB,448)):
        for k in range((n+63)//64):
            a(f's_add_u32 s{S_T0}, s{S_SEG}, {64*k}\ns_min_u32 s{S_T0}, s{S_T0}, {n-1}\ns_lshl_b32 s{S_T0}, s{S_T0}, 10\ns_add_u32 s{S_T0}, s{S_T0}, {base}')
            a(f'buffer_store_dwordx4 {vr(ACC,4)}, v{V_LIN}, {sr(S_WS,4)}, s{S_T0} offen sc1')
    load_x(a,None,True)
    a(f's_lshl_b32 s{S_T0}, s{S_G}, 7\ns_add_u32 s{S_T0}, s{S_T0}, {F_M+32}')
    wg_flag(a,f's{S_T0}')

def unit_Q(a):
    a.comment('==== Q unit ====')
    unit_head(a,0,WS_A)
    def epi(t,acc):
        o=[]
        for c2 in range(2):
            for d in range(4):
                r=4*(d&1)+2*c2+(d>>1)
                o.append(f'v_cvt_pk_bf16_f32 v{8*t+4*c2+d}, v{acc+r}, v{acc+8+r}')
        o+=[f'v_permlane32_swap_b32 v{8*t+d}, v{8*t+4+d}' for d in range(4)]
        for p in range(2):
            kb=2*t+p
            o.append(f'v_mfma_f32_32x32x16_bf16 {vr(SAC,16)}, {ar(4*kb,4)}, {vr(4*kb,4)}, {vr(SAC,16) if kb else 0}')
        return o
    gemm(a,14,lambda t:dma_piece(t,S_B0),rd_piece,
         lambda t,k,w,acc:f'v_mfma_f32_32x32x16_bf16 {acc}, {w}, {ar(4*k,4)}, {acc if k else 0}', epi)
    t=VT
    a(f'''
    v_bfe_u32 v{t}, v{V_LIN}, 4, 5
    v_lshrrev_b32 v{t+1}, 2, v{V_HH16}
    v_sub_u32 v{t}, v{t}, v{t+1}
    v_mov_b32 v{t+1}, {f32(-1e9*LOG2E)}
    ''')
    for r in range(16):
        a(f'v_cmp_le_i32 vcc, {8*(r>>2)+(r&3)}, v{t}')
        a(f'v_cndmask_b32 v{SAC+r}, v{t+1}, v{SAC+r}, vcc')
    a(f'v_max3_f32 v{t+2}, v{SAC}, v{SAC+1}, v{SAC+2}')
    for r in range(3,15,2): a(f'v_max3_f32 v{t+2}, v{t+2}, v{SAC+r}, v{SAC+r+1}')
    a(f'v_max_f32 v{t+2}, v{t+2}, v{SAC+15}')
    a(f'''
    v_and_b32 v{t+3}, 0x1f0, v{V_LIN}
    v_lshl_add_u32 v{t+4}, v{t+3}, 1, v{V_HH16}
    v_lshrrev_b32 v{t+5}, 1, v{V_HH16}
    v_add_u32 v{t+5}, v{t+5}, v{t+3}
    ''')
    relax(a,S_T1,S_SEG)
    wait_prog(a,S_T1)
    a(f's_lshl_b32 s{S_T0}, s{S_SEG}, 13\ns_add_u32 s{S_T0}, s{S_T0}, {WS_MEMH}\ns_add_u32 s{S_T1}, s{S_T0}, 4096')
    MF=t+16
    rt(a,0)
    until_valid(a,[f'buffer_load_dwordx4 {vr(MF+4*i,4)}, v{t+4}, {sr(S_WS,4)}, s{S_T0 if i<4 else S_T1} offen offset:{1024*(i%4)} sc1' for i in range(7)],range(MF,MF+28),t+6)
    rt(a,1)
    accs=[ACC,ACC+16,EX,EX+16]
    def fix(i):
        r=MF+4*i
        a.wait_vm(f'm{i}')
        a(f'v_permlane32_swap_b32 v{r}, v{r+2}\nv_permlane32_swap_b32 v{r+1}, v{r+3}\nv_swap_b32 v{r+1}, v{r+2}')
    fix(0)
    for i in range(7):
        for j in range(4):
            a(f'v_mfma_f32_32x32x16_bf16 {vr(accs[j],16)}, {vr(MF+4*i,4)}, {vr(4*(4*i+j),4)}, {vr(accs[j],16) if i else 0}')
            if j==1 and i<6: fix(i+1)
    a(f'''
    s_mul_i32 s{S_T0}, s{S_SEG}, {SEGP}
    s_lshr_b32 s{S_T1}, s{S_H}, 2
    s_mul_i32 s{S_T1}, s{S_T1}, 10240
    s_add_u32 s{S_T0}, s{S_T0}, s{S_T1}
    s_add_u32 s{S_T0}, s{S_T0}, {WS_PX}
    s_and_b32 s{S_T2}, s{S_H}, 3
    s_lshl_b32 s{S_T1}, s{S_T2}, 9
    s_add_u32 s{S_T1}, s{S_T1}, s{S_T0}
    s_add_u32 s{S_T1}, s{S_T1}, 8192
    s_lshl_b32 s{S_T2}, s{S_T2}, 11
    s_add_u32 s{S_T0}, s{S_T0}, s{S_T2}
    ''')
    M=t+8
    for r in range(4):
        a(f'v_add_f32 v{M+r}, v{accs[0]+r}, v{accs[1]+4+r}')
    for r in range(4):
        a(f'v_add_f32 v{M+4+r}, v{accs[2]+8+r}, v{accs[3]+12+r}')
    for r in range(4):
        a(f'v_add_f32 v{M+r}, v{M+r}, v{M+4+r}')
    a(f'v_max3_f32 v{t+2}, v{t+2}, v{M}, v{M+1}\nv_max3_f32 v{t+2}, v{t+2}, v{M+2}, v{M+3}')
    a(f'v_mov_b32 v{t+6}, v{t+2}\nv_permlane32_swap_b32 v{t+2}, v{t+6}\nv_max_f32 v{t+2}, v{t+2}, v{t+6}')
    vals=[SAC+r for r in range(16)]+[M+r for r in range(4)]
    for v in vals: a(f'v_sub_f32 v{v}, v{v}, v{t+2}')
    for v in vals: a(f'v_exp_f32 v{v}, v{v}')
    a(f'v_add_f32 v{t+6}, v{vals[0]}, v{vals[1]}\nv_add_f32 v{t+7}, v{vals[2]}, v{vals[3]}')
    for k in range(4,20,2):
        a(f'v_add_f32 v{t+6}, v{t+6}, v{vals[k]}\nv_add_f32 v{t+7}, v{t+7}, v{vals[k+1]}')
    a(f'v_add_f32 v{t+6}, v{t+6}, v{t+7}\nv_mov_b32 v{t+7}, v{t+6}\nv_permlane32_swap_b32 v{t+6}, v{t+7}\nv_add_f32 v{t+6}, v{t+6}, v{t+7}')
    a(f'v_rcp_f32 v{t+6}, v{t+6}')
    for v in vals: a(f'v_mul_f32 v{v}, v{v}, v{t+6}')
    for d in range(10): a(f'v_cvt_pk_bf16_f32 v{ACC+d}, |v{vals[2*d]}|, |v{vals[2*d+1]}|')
    rt(a,2)
    a(f'buffer_store_dwordx4 {vr(ACC,4)}, v{V_LIN}, {sr(S_WS,4)}, s{S_T0} offen sc1')
    a(f'buffer_store_dwordx4 {vr(ACC+4,4)}, v{V_LIN}, {sr(S_WS,4)}, s{S_T0} offen offset:1024 sc1')
    a(f'buffer_store_dwordx2 {vr(ACC+8,2)}, v{t+5}, {sr(S_WS,4)}, s{S_T1} offen sc1')
    a(f's_lshl_b32 s{S_T0}, s{S_SEG}, 7\ns_lshl_b32 s{S_T1}, s{S_H}, 2\ns_add_u32 s{S_T0}, s{S_T0}, s{S_T1}\ns_add_u32 s{S_T0}, s{S_T0}, {F_P}')
    a.drain_vm()
    set_flag(a,f's{S_T0}')

def unit_M(a):
    a.comment('==== MLP unit ====')
    t=VT
    T1=LDS_TAB; T2=LDS_TAB+2048; TG=LDS_TAB+4096
    srd(a,S_R1,P_W1,448*1792*2)
    a(f'''
    s_lshl_b32 s{S_SEG}, s{S_G}, 2
    s_add_u32 s{S_SEG}, s{S_SEG}, s{S_WAVE}
    s_mul_i32 s{S_XL}, s{S_WAVE}, 7168
    s_mul_i32 s{S_B0}, s{S_H}, 896
    s_mul_i32 s{S_B1}, s{S_H}, {448*896}
    ''')
    d1=lambda tt: dma_rows(tt,tt,S_R1,V_RM1,S_B0,3584)
    d2=lambda tt: dma_rows(tt,tt-14,S_R2,V_RM2,S_B1,896)
    for o in d1(0): a.auto(o)
    a(f's_lshl_b32 s{S_T0}, s{S_WAVE}, 8\nv_add_u32 v{t+2}, s{S_T0}, v{V_L4}')
    srd(a,S_R2,P_B1,3584)
    a.vm(f'buffer_load_dword v{t+3}, v{t+2}, {sr(S_R2,4)}, s{S_B0} offen','tb')
    srd(a,S_R2,P_B2,896)
    a(f's_lshl_b32 s{S_T0}, s{S_H}, 12')
    a.vm(f'buffer_load_dword v{t+4}, v{t+2}, {sr(S_R2,4)}, s{S_T0} offen','tb')
    srd(a,S_R2,P_GATE,896)
    a.vm(f'buffer_load_dword v{t+5}, v{t+2}, {sr(S_R2,4)}, 0 offen','tb')
    a.wait_vm('tb')
    srd(a,S_R2,P_W2,448*1792*2)
    a(f'''
    v_lshlrev_b32 v{t+6}, 16, v{t+3}
    v_and_b32 v{t+7}, 0xffff0000, v{t+3}
    v_lshlrev_b32 v{t+8}, 16, v{t+4}
    v_and_b32 v{t+9}, 0xffff0000, v{t+4}
    v_lshlrev_b32 v{t+10}, 1, v{t+2}
    v_add_u32 v{t+10}, {LDS_TAB}, v{t+10}
    v_add_u32 v{t+11}, {TG}, v{t+2}
    ds_write_b64 v{t+10}, {vr(t+6,2)}
    ds_write_b64 v{t+10}, {vr(t+8,2)} offset:2048
    ds_write_b32 v{t+11}, v{t+5}
    v_add_u32 v{t+12}, {LDS_TAB}, v{V_HH16}
    ''')
    V_TAB=t+12
    load_x(a,True)
    K=a.newlabel('nog')
    a(f's_cmp_lg_u32 s{S_H}, 0\ns_cbranch_scc1 {K}')
    a(f'v_mov_b32 v{t+2}, 0\nv_mov_b32 v{t+3}, 0')
    for kb0 in range(0,28,7):
        for kb in range(kb0,kb0+7): a.ds(f'ds_read_b128 {vr(ACC+4*(kb-kb0),4)}, v{V_TAB} offset:{4096+32*kb}',f'g{kb}')
        for kb in range(kb0,kb0+7):
            a.wait_ds(f'g{kb}')
            for d in range(4): a(f'v_dot2_f32_bf16 v{t+2+(d&1)}, v{4*kb+d}, v{ACC+4*(kb-kb0)+d}, v{t+2+(d&1)}')
        a('s_nop 2')
    a(f'''
    v_add_f32 v{t+2}, v{t+2}, v{t+3}
    v_mov_b32 v{t+3}, v{t+2}
    v_permlane32_swap_b32 v{t+2}, v{t+3}
    v_add_f32 v{t+2}, v{t+2}, v{t+3}
    v_mul_f32 v{t+2}, {f32(-LOG2E)}, v{t+2}
    v_exp_f32 v{t+2}, v{t+2}
    v_add_f32 v{t+2}, 1.0, v{t+2}
    v_rcp_f32 v{t+2}, v{t+2}
    v_and_b32 v{t+3}, 127, v{V_L4}
    s_lshl_b32 s{S_T0}, s{S_SEG}, 7
    s_add_u32 s{S_T0}, s{S_T0}, {WS_G}
    buffer_store_dword v{t+2}, v{t+3}, {sr(S_WS,4)}, s{S_T0} offen sc1
    ''')
    a.label(K)
    a(f'v_mov_b32 v{t+2}, 0\nv_mov_b32 v{t+3}, 0\nv_mov_b32 v{t+4}, 0x3f803f80')
    for r in range(112): a(f'v_dot2_f32_bf16 v{t+2+(r&1)}, v{r}, v{t+4}, v{t+2+(r&1)}')
    a(f'''
    s_nop 2
    v_add_f32 v{t+2}, v{t+2}, v{t+3}
    v_mov_b32 v{t+3}, v{t+2}
    v_permlane32_swap_b32 v{t+2}, v{t+3}
    v_add_f32 v{t+2}, v{t+2}, v{t+3}
    v_mul_f32 v{t+2}, {f32(1/448)}, v{t+2}
    v_mov_b32 v{t+3}, 0
    v_mov_b32 v{t+4}, 0
    s_mov_b32 s{S_T0}, 0xffff0000
    ''')
    for r in range(112):
        a(f'v_lshlrev_b32 v{t+5}, 16, v{r}\nv_and_b32 v{t+6}, s{S_T0}, v{r}')
        a(f'v_sub_f32 v{t+5}, v{t+5}, v{t+2}\nv_sub_f32 v{t+6}, v{t+6}, v{t+2}')
        a(f'v_fmac_f32 v{t+3}, v{t+5}, v{t+5}\nv_fmac_f32 v{t+4}, v{t+6}, v{t+6}')
    a(f'''
    v_add_f32 v{t+3}, v{t+3}, v{t+4}
    v_mov_b32 v{t+4}, v{t+3}
    v_permlane32_swap_b32 v{t+3}, v{t+4}
    v_add_f32 v{t+3}, v{t+3}, v{t+4}
    v_mov_b32 v{t+4}, {f32(1e-5)}
    v_fmac_f32 v{t+4}, {f32(1/448)}, v{t+3}
    v_rsq_f32 v{t+3}, v{t+4}
    ''')
    for r in range(112):
        a(f'v_lshlrev_b32 v{t+5}, 16, v{r}\nv_and_b32 v{t+6}, s{S_T0}, v{r}')
        a(f'v_sub_f32 v{t+5}, v{t+5}, v{t+2}\nv_sub_f32 v{t+6}, v{t+6}, v{t+2}')
        a(f'v_mul_f32 v{t+5}, v{t+5}, v{t+3}\nv_mul_f32 v{t+6}, v{t+6}, v{t+3}')
        a(f'v_cvt_pk_bf16_f32 v{t+5}, v{t+5}, v{t+6}\nv_accvgpr_write_b32 a{r}, v{t+5}')
    kk=2*math.sqrt(2/math.pi)*LOG2E
    a(f'''
    s_mov_b32 s{S_T4}, {f32(-kk*0.044715)}
    v_mov_b32 v{t+2}, {f32(-kk)}
    v_and_b32 v{t+3}, 0x1f0, v{V_LIN}
    v_lshl_add_u32 v{t+3}, v{t+3}, 1, v{V_HH16}
    s_mul_i32 s{S_T5}, s{S_H}, {64*SEGM}
    s_mul_i32 s{S_T1}, s{S_SEG}, {SEGM}
    s_add_u32 s{S_T5}, s{S_T5}, s{S_T1}
    s_add_u32 s{S_T5}, s{S_T5}, {WS_MLP}
    ''')
    def pre(tt):
        acc=ACC+16*(tt&1); base=(0 if tt<14 else 2048)+128*(tt%14)
        return [('ds',f'ds_read_b128 {vr(acc+4*q,4)}, v{V_TAB} offset:{base+32*q}',f'pre{tt}') for q in range(4)]
    def epi(tt,acc):
        o=[]
        if tt<14:
            for h in range(2):
                R=range(8*h,8*h+8); x=lambda r: SAC+(r&7)
                o+=[f'v_mul_f32 v{x(r)}, v{acc+r}, v{acc+r}' for r in R]
                o+=[f'v_fma_f32 v{x(r)}, v{x(r)}, s{S_T4}, v{t+2}' for r in R]
                o+=[f'v_mul_f32 v{x(r)}, v{x(r)}, v{acc+r}' for r in R]
                o+=[f'v_exp_f32 v{x(r)}, v{x(r)}' for r in R]
                o+=[f'v_add_f32 v{x(r)}, 1.0, v{x(r)}' for r in R]
                o+=[f'v_rcp_f32 v{x(r)}, v{x(r)}' for r in R]
                o+=[f'v_mul_f32 v{x(r)}, v{x(r)}, v{acc+r}' for r in R]
                o+=[f'v_cvt_pk_bf16_f32 v{8*tt+4*h+d}, v{SAC+2*d}, v{SAC+2*d+1}' for d in range(4)]
        else:
            o.append(f's_add_u32 s{S_T1}, s{S_T5}, {(tt-14)*4096}')
            o+=[f'buffer_store_dwordx4 {vr(acc+4*q,4)}, v{t+3}, {sr(S_WS,4)}, s{S_T1} offen offset:{1024*q} sc1' for q in range(4)]
            o.append('s_nop 1')
        return o
    gemm(a,28,lambda tt: d1(tt) if tt<14 else d2(tt),
         lambda tt,k,dst: rd_tr(tt,k,dst,V_TR,V_TR2,256) if tt<14 else rd_tr(tt,k,dst,V_TQ,V_TQ2,512),
         lambda tt,k,w,acc: f'v_mfma_f32_32x32x16_bf16 {acc}, {w}, {ar(4*k,4) if tt<14 else vr(4*k,4)}, {acc}',
         epi, pre=pre, depth=5, finish_by=lambda tt: 26)
    a(f's_lshl_b32 s{S_T0}, s{S_G}, 7\ns_lshl_b32 s{S_T1}, s{S_H}, 2\ns_add_u32 s{S_T0}, s{S_T0}, s{S_T1}\ns_add_u32 s{S_T0}, s{S_T0}, {F_M}')
    wg_flag(a,f's{S_T0}')

def unit_F(a):
    a.comment('==== final unit ====')
    t=VT
    VV=0; PX=64; PM=96; MB=104; FA=120; ML=152; GG=184
    a(f'''
    s_lshr_b32 s{S_G}, s{S_SEG}, 2
    s_lshl_b32 s{S_T0}, s{S_G}, 7
    s_lshl_b32 s{S_T5}, s{S_WAVE}, 4
    s_add_u32 s{S_T1}, s{S_T0}, s{S_T5}
    s_add_u32 s{S_T1}, s{S_T1}, {F_V}
    s_add_u32 s{S_T2}, s{S_T0}, {F_M}
    ''')
    wait_flags(a,V_L4,f's{S_T1}',4,'0x01010101')
    a(f'''
    s_mul_i32 s{S_B0}, s{S_SEG}, {SEGV}
    s_lshl_b32 s{S_T0}, s{S_H}, 16
    s_add_u32 s{S_B0}, s{S_B0}, s{S_T0}
    s_lshl_b32 s{S_T0}, s{S_WAVE}, 13
    s_add_u32 s{S_B0}, s{S_B0}, s{S_T0}
    s_add_u32 s{S_B0}, s{S_B0}, {WS_V}
    ''')
    for n in range(2):
        for g in range(2):
            a(f's_add_u32 s{S_T0}, s{S_B0}, {n*32768+g*4096}')
            for i in range(4):
                a(f'buffer_load_dwordx4 {vr(VV+32*n+16*g+4*i,4)}, v{V_LIN}, {sr(S_WS,4)}, s{S_T0} offen offset:{1024*i} sc1')
    wait_flags(a,V_L4,f's{S_T2}',4,1)
    a(f'''
    v_and_b32 v{t}, 0x1f0, v{V_LIN}
    v_lshlrev_b32 v{t}, 1, v{t}
    v_lshl_add_u32 v{t}, v{V_HH16}, 6, v{t}
    s_mul_i32 s{S_T0}, s{S_SEG}, {SEGM}
    s_lshl_b32 s{S_T1}, s{S_H}, 13
    s_add_u32 s{S_T0}, s{S_T0}, s{S_T1}
    s_lshl_b32 s{S_T1}, s{S_WAVE}, 11
    s_add_u32 s{S_T0}, s{S_T0}, s{S_T1}
    s_add_u32 s{S_T0}, s{S_T0}, {WS_MLP}
    ''')
    for c in range(4):
        a(f'buffer_load_dwordx4 {vr(ML+8*c,4)}, v{t}, {sr(S_WS,4)}, s{S_T0} offen sc1')
        a(f'buffer_load_dwordx4 {vr(ML+8*c+4,4)}, v{t}, {sr(S_WS,4)}, s{S_T0} offen offset:16 sc1')
        if c<3: a(f's_add_u32 s{S_T0}, s{S_T0}, {64*SEGM}')
    a(f'''
    v_and_b32 v{t+1}, 127, v{V_L4}
    s_lshl_b32 s{S_T0}, s{S_SEG}, 7
    s_add_u32 s{S_T1}, s{S_T0}, {WS_G}
    buffer_load_dword v{GG}, v{t+1}, {sr(S_WS,4)}, s{S_T1} offen sc1
    s_add_u32 s{S_T1}, s{S_T0}, s{S_T5}
    s_add_u32 s{S_T1}, s{S_T1}, {F_P}
    ''')
    relax(a,S_T3,S_SEG)
    wait_prog(a,S_T3)
    for r in range(8):
        a(f'v_add_f32 v{ML+r}, v{ML+r}, v{ML+8+r}\nv_add_f32 v{ML+16+r}, v{ML+16+r}, v{ML+24+r}')
    for r in range(8): a(f'v_add_f32 v{ML+r}, v{ML+r}, v{ML+16+r}')
    a(f'v_sub_f32 v{GG+1}, 1.0, v{GG}')
    for r in range(8): a(f'v_mul_f32 v{ML+r}, v{ML+r}, v{GG+1}')
    NW=a.newlabel('nowait')
    a(f'''
    s_cmp_ge_u32 s{S_SEG}, {LASTSEG}
    s_cbranch_scc1 {NW}
    v_lshlrev_b32 v{t+1}, 3, v{V_LIN}
    s_lshl_b32 s{S_T2}, s{S_H}, 8
    s_lshl_b32 s{S_T0}, s{S_WAVE}, 2
    s_add_u32 s{S_T2}, s{S_T2}, s{S_T0}
    s_add_u32 s{S_T2}, s{S_T2}, {F_B}
    ''')
    wait_flags(a,t+1,f's{S_T2}',2,f's{S_T3}',sleep=4)
    wait_flags(a,V_L4,f's{S_T1}',4,1,sleep=4)
    a.label(NW)
    srd(a,S_R1,P_OUT,2048*448*2)
    a(f'''
    v_bfe_u32 v{t}, v{V_LIN}, 4, 5
    v_mul_u32_u24 v{t}, 896, v{t}
    v_add_u32 v{t}, v{t}, v{V_HH16}
    s_mul_i32 s{S_T0}, s{S_SEG}, 28672
    s_lshl_b32 s{S_T1}, s{S_H}, 7
    s_add_u32 s{S_T0}, s{S_T0}, s{S_T1}
    s_lshl_b32 s{S_T1}, s{S_WAVE}, 5
    s_add_u32 s{S_T0}, s{S_T0}, s{S_T1}
    s_lshl_b32 s{S_T1}, s{S_WAVE}, 13
    v_add_u32 v{t+1}, s{S_T1}, v{V_LIN}
    s_lshr_b32 s{S_T1}, s{S_WAVE}, 1
    s_lshl_b32 s{S_T1}, s{S_T1}, 12
    s_and_b32 s{S_T2}, s{S_WAVE}, 1
    s_lshl_b32 s{S_T2}, s{S_T2}, 10
    s_add_u32 s{S_T1}, s{S_T1}, s{S_T2}
    v_add_u32 v{t+2}, s{S_T1}, v{V_LIN}
    ''')
    a(f'''
    s_mul_i32 s{S_T2}, s{S_SEG}, {SEGP}
    s_mul_i32 s{S_T1}, s{S_WAVE}, 10240
    s_add_u32 s{S_T2}, s{S_T2}, s{S_T1}
    s_add_u32 s{S_T2}, s{S_T2}, {WS_PX}
    s_add_u32 s{S_T3}, s{S_T2}, 4096
    s_add_u32 s{S_T4}, s{S_T2}, 8192
    s_mul_i32 s{S_B0}, s{S_SEG}, {SEGMB}
    s_lshl_b32 s{S_T1}, s{S_H}, 14
    s_add_u32 s{S_B0}, s{S_B0}, s{S_T1}
    s_lshl_b32 s{S_T1}, s{S_WAVE}, 11
    s_add_u32 s{S_B0}, s{S_B0}, s{S_T1}
    s_add_u32 s{S_B0}, s{S_B0}, {WS_MBH}
    s_add_u32 s{S_B1}, s{S_B0}, 8192
    ''')
    pld=[f'buffer_load_dwordx4 {vr(PX+4*i,4)}, v{V_LIN}, {sr(S_WS,4)}, s{(S_T2,S_T3,S_T4)[i>>2]} offen offset:{1024*(i%4)} sc1' for i in range(10)]
    mld=[f'buffer_load_dwordx4 {vr(MB+8*n+4*k,4)}, v{V_LIN}, {sr(S_WS,4)}, s{S_B1 if n else S_B0} offen offset:{1024*k} sc1' for n in range(2) for k in range(2)]
    rt(a,0)
    until_valid(a,pld[8:],range(PM,PM+8),t+3)
    rt(a,1)
    AG=a.newlabel('again')
    a(f's_mov_b32 s{S_SPIN}, 0')
    a.label(AG)
    for i,x in enumerate(pld[:8]): a.vm(x,f'p{i}')
    for i,x in enumerate(mld): a.vm(x,f'b{i}')
    for i in range(8):
        r=PX+4*i
        a.wait_vm(f'p{i}')
        for n in range(2):
            a(f'v_mfma_f32_32x32x16_bf16 {vr(FA+16*n,16)}, {vr(VV+32*n+4*i,4)}, {vr(r,4)}, {vr(FA+16*n,16) if i else 0}')
            if n==0:
                a(f'v_max3_u32 v{t+3}, v{r}, v{r+1}, v{r+2 if i==0 else t+3}')
                a(f'v_max_u32 v{t+3}, v{t+3}, v{r+3}' if i==0 else f'v_max3_u32 v{t+3}, v{r+2}, v{r+3}, v{t+3}')
    a(f'v_cmp_eq_u32 vcc, -1, v{t+3}\ns_cbranch_vccz {AG}_d')
    a(f's_add_u32 s{S_SPIN}, s{S_SPIN}, 1\ns_cmp_lt_u32 s{S_SPIN}, {SPINS}\ns_cbranch_scc1 {AG}\ns_mov_b32 s{S_ERR}, 12')
    a.label(AG+'_d')
    a.drain_vm()
    rt(a,2)
    a(f'v_max3_u32 v{t+3}, v{MB}, v{MB+1}, v{MB+15}')
    for r in range(MB+2,MB+14,2): a(f'v_max3_u32 v{t+3}, v{r}, v{r+1}, v{t+3}')
    a(f'v_max_u32 v{t+3}, v{MB+14}, v{t+3}\nv_cmp_eq_u32 vcc, -1, v{t+3}\ns_cbranch_vccz {AG}_m')
    until_valid(a,mld,range(MB,MB+16),t+3)
    a.label(AG+'_m')
    rt(a,3)
    for i in range(2):
        for n in range(2):
            a(f'v_mfma_f32_32x32x16_bf16 {vr(FA+16*n,16)}, {vr(MB+8*n+4*i,4)}, {vr(PM+4*i,4)}, {vr(FA+16*n,16)}')
    for n in range(2):
        for q in range(4):
            a(f'ds_write_b128 v{t+1}, {vr(FA+16*n+4*q,4)} offset:{4096*n+1024*q}')
    a('s_waitcnt lgkmcnt(0)\ns_barrier')
    for w in range(4):
        a(f'ds_read_b128 {vr(VV+8*w,4)}, v{t+2} offset:{8192*w}')
        a(f'ds_read_b128 {vr(VV+8*w+4,4)}, v{t+2} offset:{8192*w+2048}')
    a('s_waitcnt lgkmcnt(0)')
    for r in range(8):
        a(f'v_add_f32 v{VV+r}, v{VV+r}, v{VV+8+r}\nv_add_f32 v{VV+16+r}, v{VV+16+r}, v{VV+24+r}')
    for r in range(8): a(f'v_add_f32 v{VV+r}, v{VV+r}, v{VV+16+r}')
    for r in range(4):
        a(f'v_fma_f32 v{ML+2*r}, v{VV+r}, v{GG}, v{ML+2*r}\nv_fma_f32 v{ML+2*r+1}, v{VV+4+r}, v{GG}, v{ML+2*r+1}')
    for d in range(4): a(f'v_cvt_pk_bf16_f32 v{ML+8+d}, v{ML+2*d}, v{ML+2*d+1}')
    a(f'buffer_store_dwordx4 {vr(ML+8,4)}, v{t}, {sr(S_R1,4)}, s{S_T0} offen')
    a.vq=[]; a.dq=[]
```

```python
import sys
from asmb import *
from layout import *
import team, work
from work import *
KN='gated_mix__memory_aug_recurrent_mem_tr__mixer_channel_mlp__prompt'
HDR=open('cdna_kernels/'+KN+'.s.ref').read().split('; Override launch geometry')[0]

def make_table():
    O=work.OPTW
    V=lambda G,h:(0<<12)|(G<<4)|h
    Q=lambda G,h:(1<<12)|(G<<4)|h
    M=lambda G,c:(2<<12)|(G<<4)|c
    F=lambda s,c:(3<<12)|(s<<4)|c
    nv,nq,nm=O['nv'],O['nq'],O['nm']
    H=lambda G,h,k:((4+k)<<12)|(G<<4)|h
    X=lambda G:(8<<12)|(G<<4)
    nhf=O['nh']
    heads=[x for h in range(16) for x in [H(G,h,k) for G in range(nhf) for k in range(4)]+[V(G,h) for G in range(nhf,nv)]+[Q(G,h) for G in range(nq)]]
    rest=[]
    for G in range(16):
        if G+nv-1<16 and G>=1: rest+=[V(G+nv-1,h) for h in range(16)]
        if G+nm-1<16 and G>=1: rest+=[M(G+nm-1,c) for c in range(4)]
        if G>=nq: rest+=[Q(G,h) for h in range(16)]
        rest+=[F(4*G+i,c) for i in range(4) for c in range(7)]
    fill=[M(G,c) for c in range(4) for G in range(nm)]+[X(G) for G in range(16)]
    nfill=210-len(heads)
    while len(fill)<nfill: fill.append(rest.pop(0))
    assert len(fill)==nfill
    first=[]; hi=fi=0
    for d in range(7):
        nh=round(len(heads)*(d+1)/7)-hi
        first+=heads[hi:hi+nh]; hi+=nh
        fl=[fill[k] for k in range(len(fill))][fi:fi+30-nh]; fi+=30-nh
        first+=fl
    T=first+rest[:-44]+[x|0x400 for x in rest[-44:]]
    assert len(first)==210 and len(set(T))==len(T)==256+256+64+448+16+48*nhf
    return T

def build(name=KN+'_kernel', stamps=0, force_slow=False, diag=False):
    a=Asm(); a.diag=diag; a.force_slow=force_slow; a.pprof=work.OPTW['pprof']
    TABLE=make_table()
    a.raw(HDR+f'''; Generated by a hand-written generator. One persistent launch, one 256-thread workgroup per CU.
; @launch grid=(256,1,1) block=(256,1,1) lds=163840
.amdgcn_target "amdgcn-amd-amdhsa--gfx950"
.text
.globl {name}
.p2align 8
.type {name},@function
{name}:''')
    t=VT
    a(f'''
    s_cmp_ge_u32 s2, 256
    s_cbranch_scc1 L_exit
    s_load_dwordx16 s[64:79], s[0:1], 0
    s_load_dwordx16 s[80:95], s[0:1], 64
    s_getreg_b32 s{S_XCC}, hwreg(HW_REG_XCC_ID, 0, 4)
    v_lshrrev_b32 v1, 6, v0
    v_readfirstlane_b32 s{S_WAVE}, v1
    s_mov_b32 s{S_ERR}, 0
    s_mov_b32 s{S_SLOW}, 0
    s_mov_b32 s{S_STEP}, 0
    ''')
    if diag: a('s_memrealtime s[40:41]')
    if work.OPTW['cpf']:
        a(f'''
        s_getpc_b64 s[4:5]
        s_and_b32 s4, s4, 0xffffff00
        s_mov_b32 s6, L_codeend-{name}
        s_mov_b32 s7, 0x20000
        s_lshr_b32 s{S_T0}, s2, 3
        v_and_b32 v2, 63, v0
        v_lshlrev_b32 v2, 5, v2
        v_add_u32 v2, s{S_T0}, v2
        v_lshlrev_b32 v2, 7, v2
        s_cmp_lg_u32 s{S_WAVE}, 3
        s_cbranch_scc1 L_nocpf
        buffer_load_dword v255, v2, s[4:7], 0 offen
        L_nocpf:
        ''')
    if force_slow==2: a(f's_mul_i32 s{S_XCC}, s2, 11\ns_lshr_b32 s{S_XCC}, s{S_XCC}, 8')
    elif force_slow: a(f's_lshr_b32 s{S_XCC}, s2, 5')
    a(f'v_mov_b32 v{V_ZERO}, 0\nv_mov_b32 v{V_RANK}, 1\ns_waitcnt lgkmcnt(0)')
    pp(a,0)
    srd(a,S_DBG,P_DBG,256)
    a(f'''
    s_cmp_lg_u32 s{S_WAVE}, 0
    s_cbranch_scc1 L_norank
    s_lshl_b32 s{S_T0}, s{S_XCC}, 5
    s_lshr_b32 s{S_T1}, s{S_T0}, 4
    s_and_b32 s{S_T1}, s{S_T1}, 16
    s_and_b32 s{S_T0}, s{S_T0}, 0xe0
    s_or_b32 s{S_T0}, s{S_T0}, s{S_T1}
    s_mov_b64 exec, 1
    buffer_atomic_add v{V_RANK}, v{V_ZERO}, {sr(S_DBG,4)}, s{S_T0} offen sc0
    s_mov_b64 exec, -1
    L_norank:
    ''')
    srd(a,S_R1,P_X,1835008); srd(a,S_R2,P_X,1835008)
    first_touch(a)
    srd(a,S_X,P_X,1835008); srd(a,S_WS,P_WS,0x10000000)
    work_consts(a)
    a(f'''
    v_mov_b32 v{t+1}, {LDS_BC}
    s_cmp_lg_u32 s{S_WAVE}, 0
    s_cbranch_scc1 L_slotw
    s_waitcnt vmcnt(2)
    s_sub_u32 s{S_T0}, s{S_XCC}, 1
    s_cmp_lt_u32 s{S_T0}, 7
    s_cbranch_scc1 L_rkok
    s_waitcnt vmcnt(0)
    L_rkok:
    v_readfirstlane_b32 s{S_T0}, v{V_RANK}
    s_lshl_b32 s{S_SLOT}, s{S_XCC}, 5
    s_add_u32 s{S_SLOT}, s{S_SLOT}, s{S_T0}
    s_cmp_ge_u32 s{S_XCC}, 8
    s_cbranch_scc1 L_ovf
    s_cmp_lt_u32 s{S_T0}, 32
    s_cbranch_scc1 L_slotok
    L_ovf:
    v_mov_b32 v{t}, 1
    s_mov_b64 exec, 1
    buffer_atomic_add v{t}, v{V_ZERO}, {sr(S_DBG,4)}, 0 offen offset:{D_OVF} sc0
    s_waitcnt vmcnt(0)
    s_mov_b64 exec, -1
    v_readfirstlane_b32 s{S_T4}, v{t}
    s_mov_b32 s{S_SPIN}, 0
    L_cl:
    buffer_load_dword v{t}, v{V_LIN}, {sr(S_DBG,4)}, 0 offen sc1
    s_waitcnt vmcnt(0)
    v_readlane_b32 s{S_T1}, v{t}, 0
    ''')
    for i in range(1,16):
        a(f'v_readlane_b32 s{S_T0}, v{t}, {i}\ns_add_u32 s{S_T1}, s{S_T1}, s{S_T0}')
    a(f'''
    s_cmp_ge_u32 s{S_T1}, 256
    s_cbranch_scc1 L_all
    s_sleep 4
    s_add_u32 s{S_SPIN}, s{S_SPIN}, 1
    s_cmp_lt_u32 s{S_SPIN}, {SPINS}
    s_cbranch_scc1 L_cl
    s_mov_b32 s{S_SLOT}, 0xffff
    s_branch L_slotok
    L_all:
    ''')
    for i in range(8):
        a(f'''
        v_readlane_b32 s{S_T0}, v{t}, {2*i}
        s_min_u32 s{S_T0}, s{S_T0}, 32
        s_add_u32 s{S_T4}, s{S_T4}, s{S_T0}
        s_add_u32 s{S_SLOT}, s{S_T4}, {32*i}
        s_cmp_lt_u32 s{S_T4}, 32
        s_cbranch_scc1 L_slotok
        s_sub_u32 s{S_T4}, s{S_T4}, 32
        ''')
    a(f'''
    s_mov_b32 s{S_SLOT}, 0xffff
    L_slotok:
    ''')
    a(f'''
    v_mov_b32 v{t}, s{S_SLOT}
    ds_write_b32 v{t+1}, v{t}
    s_waitcnt lgkmcnt(0)
    L_slotw:
    s_barrier
    ds_read_b32 v{t}, v{t+1}
    s_waitcnt lgkmcnt(0)
    v_readfirstlane_b32 s{S_T0}, v{t}
    s_barrier
    s_mov_b32 s{S_SLOT}, s{S_T0}
    ''')
    pp(a,1)
    rt(a,4)
    a(f'''
    s_mov_b32 s{S_ROLE}, s{S_SLOT}
    s_cmp_ge_u32 s{S_SLOT}, 256
    s_cbranch_scc1 L_exit
    s_cmp_ge_u32 s{S_SLOT}, 32
    s_cbranch_scc1 L_worker
    ''')
    if diag: a('s_memrealtime s[42:43]\ns_memrealtime s[44:45]\ns_memrealtime s[46:47]')
    a(f'''
    s_cmp_lg_u32 s{S_SLOT}, 31
    s_cbranch_scc1 L_nozero
    v_mov_b32 v0, 0
    v_mov_b32 v1, 0
    v_mov_b32 v2, 0
    v_mov_b32 v3, 0
    s_mul_i32 s{S_T0}, s{S_WAVE}, 7168
    s_add_u32 s{S_T0}, s{S_T0}, {WS_FLAG}
    s_add_u32 s{S_T1}, s{S_T0}, 4096
    ''')
    for i in range(7):
        a(f'buffer_store_dwordx4 v[0:3], v{V_LIN}, {sr(S_WS,4)}, s{S_T0 if i<4 else S_T1} offen offset:{1024*(i%4)} sc1')
    a(f'''
    s_waitcnt vmcnt(0)
    s_barrier
    v_mov_b32 v{t}, 1
    buffer_store_dword v{t}, v{V_ZERO}, {sr(S_DBG,4)}, 0 offen offset:{D_INIT} sc1
    L_nozero:
    ''')
    a(f'''
    s_lshl_b32 s{S_T0}, s{S_SLOT}, 2
    s_add_u32 s{S_T0}, s{S_T0}, s{S_WAVE}
    s_mul_i32 s{S_T0}, s{S_T0}, 14336
    s_add_u32 s{S_T1}, s{S_T0}, 8192
    v_lshlrev_b32 v{t}, 3, v{V_LIN}
    buffer_load_dword v255, v{t}, {sr(S_X,4)}, s{S_T0} offen
    buffer_load_dword v255, v{t}, {sr(S_X,4)}, s{S_T1} offen
    ''')
    wait_init(a,t+2)
    team.census(a,t)
    a(f'''
    s_cmp_eq_u32 s{S_SLOT}, 31
    s_cbranch_scc1 L_roleW
    s_cmp_eq_u32 s{S_SLOT}, 30
    s_cbranch_scc1 L_roleR
    s_cmp_ge_u32 s{S_SLOT}, 16
    s_cbranch_scc1 L_roleB
    ''')
    team.role_A(a,stamps)
    a.label('L_roleB')
    team.role_B(a,stamps)
    a.label('L_roleR')
    team.role_R(a)
    a.label('L_roleW')
    team.role_W(a)
    a.label('L_roleF')
    team.role_F(a)
    a.label('L_worker')
    prep(a)
    if diag: a('s_memrealtime s[42:43]')
    a(f'''
    ; ranks 0,1 of dies 1..7 follow the team; the others start with a V unit: u = 30*(die-1) + rank-2
    s_lshr_b32 s{S_T1}, s{S_SLOT}, 5
    s_sub_u32 s{S_T1}, s{S_T1}, 1
    s_and_b32 s{S_T0}, s{S_SLOT}, 31
    s_lshl_b32 s{S_ROLE}, s{S_T1}, 1
    s_add_u32 s{S_ROLE}, s{S_ROLE}, s{S_T0}
    s_cmp_lt_u32 s{S_T0}, 2
    s_cbranch_scc1 L_roleF
    s_mul_i32 s{S_T1}, s{S_T1}, 30
    s_add_u32 s{S_T0}, s{S_T0}, s{S_T1}
    s_sub_u32 s{S_T0}, s{S_T0}, 2
    s_branch L_item
    ''')
    a.label('L_uV'); unit_V(a)
    a.label('L_next')
    a(f'''
    s_or_b32 s{S_T0}, s{S_ERR}, s{S_MNXT}
    s_cbranch_scc1 L_end
    v_mov_b32 v{t+1}, {LDS_BC}
    s_cmp_lg_u32 s{S_WAVE}, 0
    s_cbranch_scc1 L_popw
    v_mov_b32 v{t}, 1
    s_mov_b64 exec, 1
    s_mov_b32 s{S_T1}, {F_Q}
    buffer_atomic_add v{t}, v{V_ZERO}, {sr(S_WS,4)}, s{S_T1} offen sc0
    s_waitcnt vmcnt(0)
    ds_write_b32 v{t+1}, v{t}
    s_waitcnt lgkmcnt(0)
    s_mov_b64 exec, -1
    L_popw:
    s_barrier
    ds_read_b32 v{t}, v{t+1}
    s_waitcnt lgkmcnt(0)
    v_readfirstlane_b32 s{S_T0}, v{t}
    s_barrier
    s_add_u32 s{S_T0}, s{S_T0}, 210
    L_item:
    s_cmp_ge_u32 s{S_T0}, {len(TABLE)}
    s_cbranch_scc1 L_end
    s_getpc_b64 s[{S_T2}:{S_T3}]
    L_pc:
    s_add_u32 s{S_T2}, s{S_T2}, L_table-L_pc
    s_addc_u32 s{S_T3}, s{S_T3}, 0
    s_lshl_b32 s{S_T0}, s{S_T0}, 2
    s_load_dword s{S_T0}, s[{S_T2}:{S_T3}], s{S_T0}
    s_waitcnt lgkmcnt(0)
    s_and_b32 s{S_H}, s{S_T0}, 15
    s_bfe_u32 s{S_G}, s{S_T0}, 0x60004
    s_mov_b32 s{S_SEG}, s{S_G}
    s_and_b32 s{S_MNXT}, s{S_T0}, 0x400
    s_mov_b32 s{S_HOFF}, s{S_T0}
    s_lshr_b32 s{S_T0}, s{S_T0}, 12
    s_cmp_eq_u32 s{S_T0}, 0
    s_cbranch_scc1 L_uV
    s_cmp_eq_u32 s{S_T0}, 1
    s_cbranch_scc1 L_uQ
    s_cmp_eq_u32 s{S_T0}, 2
    s_cbranch_scc1 L_uM
    s_cmp_eq_u32 s{S_T0}, 8
    s_cbranch_scc1 L_uX
    s_sub_u32 s{S_T5}, s{S_T0}, 4
    s_cmp_ge_u32 s{S_T0}, 4
    s_cbranch_scc1 L_uH
    ''')
    unit_F(a); a('s_branch L_next')
    a.label('L_uH'); unit_V(a,True); a('s_branch L_next')
    a.label('L_uX'); unit_X(a); a('s_branch L_next')
    a.label('L_uQ'); unit_Q(a); a('s_branch L_next')
    a.label('L_uM'); unit_M(a); a('s_branch L_next')
    a.label('L_end')
    if diag:
        a('''
        s_memrealtime s[4:5]
        s_waitcnt lgkmcnt(0)
        s_mov_b32 s3, s4
        L_cal:
        s_memrealtime s[4:5]
        s_memtime s[6:7]
        s_waitcnt lgkmcnt(0)
        s_cmp_eq_u32 s3, s4
        s_cbranch_scc1 L_cal
        s_mov_b32 s7, s6
        s_waitcnt vmcnt(0)
        ''')
    if stamps==2:
        a(f'''
        s_cmp_ge_u32 s{S_SLOT}, 30
        s_cbranch_scc1 L_nost
        s_mov_b64 exec, -1
        v_mbcnt_lo_u32_b32 v0, -1, 0
        v_mbcnt_hi_u32_b32 v0, -1, v0
        v_lshlrev_b32 v0, 4, v0
        s_lshl_b32 s44, s{S_WAVE}, 12
        s_add_u32 s45, s44, 147456
        v_add_u32 v1, s45, v0
        s_lshl_b32 s45, s{S_SLOT}, 14
        s_add_u32 s44, s44, s45
        s_add_u32 s44, s44, {WS_TS+0x100000}
        ''')
        for i in range(4):
            a(f'ds_read_b128 v[4:7], v1 offset:{1024*i}\ns_waitcnt lgkmcnt(0)\nbuffer_store_dwordx4 v[4:7], v0, {sr(S_WS,4)}, s44 offen offset:{1024*i}\ns_waitcnt vmcnt(0)')
        a.label('L_nost')
    if diag:
        a(f'''
        s_sub_u32 s6, s7, s2
        s_lshl_b32 s{S_T0}, s{S_SLOT}, 2
        s_add_u32 s{S_T0}, s{S_T0}, s{S_WAVE}
        s_lshl_b32 s{S_T0}, s{S_T0}, 7
        s_add_u32 s{S_T0}, s{S_T0}, {WS_TS}
        v_mov_b32 v0, 0
        s_mov_b64 exec, 1
        ''')
        for i,sg in enumerate([6,S_ERR,S_STEP,S_SLOW]+list(range(44,56))+[40,42,4,0,2,76,78,7,90,S_HOFF,88]):
            a(f'v_mov_b32 v1, s{sg}\nbuffer_store_dword v1, v0, {sr(S_WS,4)}, s{S_T0} offen offset:{4*i}')
        if diag==2:
            a(f'v_mov_b32 v1, s4\nbuffer_atomic_umax v1, v0, {sr(S_DBG,4)}, 0 offen offset:60')
            a(f'v_mov_b32 v1, s42\nbuffer_atomic_umax v1, v0, {sr(S_DBG,4)}, 0 offen offset:56')
            a(f's_or_b32 s{S_T0}, s{S_SLOT}, s{S_WAVE}\ns_cmp_lg_u32 s{S_T0}, 0\ns_cbranch_scc1 L_exit')
            for i,sg in enumerate([40,44,52,54,0,4]):
                a(f'v_mov_b32 v1, s{sg}\nbuffer_store_dword v1, v0, {sr(S_DBG,4)}, 0 offen offset:{32+4*i}')
        a('s_waitcnt vmcnt(0)')
    a.label('L_exit')
    a('s_endpgm')
    a.label('L_codeend')
    a.raw('.p2align 2\n.type L_table,@object\nL_table:\n'+'\n'.join('.long '+','.join(str(x) for x in TABLE[i:i+16]) for i in range(0,len(TABLE),16))+'\n.size L_table, %d'%(4*len(TABLE)))
    a.raw(f'''.section .rodata,"a"
.p2align 6
.amdhsa_kernel {name}
  .amdhsa_next_free_vgpr 512
  .amdhsa_next_free_sgpr 102
  .amdhsa_accum_offset 256
  .amdhsa_group_segment_fixed_size 0
  .amdhsa_kernarg_size 128
  .amdhsa_user_sgpr_count 2
  .amdhsa_user_sgpr_kernarg_segment_ptr 1
  .amdhsa_system_sgpr_workgroup_id_x 1
.end_amdhsa_kernel''')
    return a.text()

if __name__=='__main__':
    if len(sys.argv)==1:
        open('cdna_kernels/'+KN+'.s','w').write(build())
        open('full_diag.s','w').write(build('bench_kernel',diag=True))
        open('full_slow.s','w').write(build('bench_kernel',diag=True,force_slow=True))
        open('full_slow2.s','w').write(build('bench_kernel',diag=True,force_slow=2))
    for arg in sys.argv[1:]:
        nm,_,kv=arg.partition(':')
        base=dict(team.OPT); basew=dict(work.OPTW); st=0; prod=False
        for e in filter(None,kv.split(',')):
            k,v=e.split('=')
            if k=='st': st=int(v)
            elif k=='prod': prod=int(v)
            elif k in work.OPTW: work.OPTW[k]=int(v)
            else: team.OPT[k]=int(v)
        if prod: open(f'exp/{nm}.s','w').write(build(diag=prod-1))
        else: open(f'exp/{nm}.s','w').write(build('bench_kernel',stamps=st,diag=True))
        team.OPT.clear(); team.OPT.update(base); work.OPTW.update(basew)
```

```python
import re

TRANS = ('v_exp_f32','v_log_f32','v_rcp_f32','v_rsq_f32','v_sqrt_f32','v_sin_f32','v_cos_f32','v_rcp_iflag_f32')

def _regs(tok):
    tok = tok.strip()
    tok = tok.lstrip('-')
    m = re.match(r'^abs\((.*)\)$', tok)
    if m: tok = m.group(1)
    m = re.match(r'^\|(.*)\|$', tok)
    if m: tok = m.group(1)
    m = re.match(r'^([vas])(\d+)$', tok)
    if m: return {(m.group(1), int(m.group(2)))}
    m = re.match(r'^([vas])\[(\d+):(\d+)\]$', tok)
    if m: return {(m.group(1), i) for i in range(int(m.group(2)), int(m.group(3))+1)}
    if tok == 'vcc': return {('s','vcc_lo'),('s','vcc_hi')}
    if tok in ('vcc_lo','vcc_hi'): return {('s',tok)}
    if tok == 'exec': return {('s','exec')}
    if tok == 'm0': return {('s','m0')}
    return set()

def _split_ops(rest):
    ops=[]; depth=0; cur=''
    for ch in rest:
        if ch in '[(': depth+=1
        if ch in '])': depth-=1
        if ch==',' and depth==0:
            ops.append(cur.strip()); cur=''
        else: cur+=ch
    if cur.strip(): ops.append(cur.strip())
    mods=''
    if ops:
        parts = ops[-1].split(None,1)
        if len(parts)==2 and not ops[-1].startswith('hwreg') :
            ops[-1]=parts[0]; mods=parts[1]
    return ops, mods

class Ins:
    def __init__(self, text):
        self.text=text
        t=text.split(';')[0].strip()
        parts=t.split(None,1)
        self.op=parts[0]
        rest=parts[1] if len(parts)>1 else ''
        self.ops,self.mods=_split_ops(rest)
        op=self.op
        self.kind='other'; self.wr=set(); self.rd=set(); self.passes=0
        self.mA=set(); self.mC=set(); self.dpp=False; self.store_data=set(); self.wide=False
        R=[_regs(o) for o in self.ops]
        if op.startswith('v_mfma') or op.startswith('v_smfmac'):
            self.kind='mfma'
            self.passes = 8 if '32x32' in op else 4
            self.wr=R[0]
            if op.startswith('v_mfma'):
                self.mA=R[1]|R[2]; self.mC=R[3]
            else:
                self.mA=R[1]|R[2]|R[3]; self.mC=R[0]
            self.rd=self.mA|self.mC
        elif op.startswith('v_'):
            self.kind='valu'
            base=op.replace('_e32','').replace('_e64','').replace('_dpp','').replace('_sdwa','')
            self.base=base
            self.dpp = ('_dpp' in op) or any(k in self.mods for k in ('row_','quad_perm','wave_'))
            if base.startswith('v_cmp'):
                self.wr=R[0]; self.rd=set().union(*R[1:])
            elif base in ('v_readfirstlane_b32','v_readlane_b32'):
                self.wr=R[0]; self.rd=set().union(*R[1:])
            elif base.startswith('v_permlane') and 'swap' in base or base=='v_swap_b32':
                self.wr=R[0]|R[1]; self.rd=R[0]|R[1]
            elif base in ('v_add_co_u32','v_sub_co_u32','v_subrev_co_u32','v_addc_co_u32','v_subb_co_u32','v_mad_u64_u32','v_div_scale_f32'):
                self.wr=R[0]|R[1]; self.rd=set().union(*R[2:])
            elif base=='v_nop':
                pass
            else:
                self.wr=R[0]; self.rd=set().union(*R[1:]) if len(R)>1 else set()
                if base in ('v_fmac_f32','v_writelane_b32','v_dot2c_f32_bf16','v_pk_fmac_f16') or self.dpp: self.rd|=R[0]
        elif op.startswith('buffer_') or op.startswith('global_') or op.startswith('flat_'):
            self.kind='vmem'
            if op in ('buffer_wbl2','buffer_inv'): pass
            elif 'lds' in op.split('_') or re.search(r'\blds\b', self.mods):
                self.rd=set().union(*R)|{('s','m0')}; self.ldsdma=True
            elif '_load_' in op:
                self.wr=R[0]; self.rd=set().union(*R[1:])
            elif '_store_' in op:
                self.rd=set().union(*R)
                self.store_data = R[0] if op.startswith('buffer_') else R[1]
                self.wide = op.endswith('x3') or op.endswith('x4')
            elif '_atomic_' in op:
                self.rd=set().union(*R)
                if re.search(r'\bsc0\b', self.mods): self.wr=R[0]
        elif op.startswith('ds_'):
            self.kind='ds'
            if op.startswith('ds_read') or op.startswith('ds_bpermute') or op.startswith('ds_permute') or op.startswith('ds_swizzle') or '_rtn' in op:
                self.wr=R[0]; self.rd=set().union(*R[1:])
            else:
                self.rd=set().union(*R)
        elif op.startswith('s_'):
            self.kind='salu'
            if op.startswith('s_cmp') or op.startswith('s_cbranch') or op in ('s_branch','s_waitcnt','s_nop','s_barrier','s_endpgm','s_sleep','s_setprio','s_bitcmp0_b32','s_bitcmp1_b32'):
                self.rd=set().union(*R) if R else set()
            else:
                self.wr=R[0] if R else set(); self.rd=set().union(*R[1:]) if len(R)>1 else set()
                if 'saveexec' in op: self.wr=self.wr|{('s','exec')}
    def states(self):
        if self.op=='s_nop': return int(self.ops[0],0)+1
        return 1

def need(p, c):
    n=0
    vw = {r for r in p.wr if r[0] in 'va'}
    sw = {r for r in p.wr if r[0]=='s'}
    if p.kind=='valu':
        if c.kind=='mfma' and vw & c.rd: n=max(n,2)
        if c.kind=='valu':
            if c.dpp and vw & c.rd: n=max(n,2)
            if c.base.startswith('v_permlane') and vw & c.rd: n=max(n,2)
            if c.base in ('v_readfirstlane_b32','v_readlane_b32') and vw & c.rd: n=max(n,1)
            if p.base in TRANS and vw & c.rd: n=max(n,1)
            if sw & c.rd:
                n=max(n, 4 if c.base in ('v_readlane_b32','v_writelane_b32','v_div_fmas_f32') else 2)
            if c.base in ('v_cndmask_b32','v_addc_co_u32','v_subb_co_u32','v_div_fmas_f32') and (sw & {('s','vcc_lo')}) and (len(c.ops)<4 or 'vcc' in c.ops[-1]): n=max(n,4 if c.base=='v_div_fmas_f32' else 2)
            if ('sdwa' in p.op or ('op_sel' in p.mods and not p.op.startswith('v_pk_'))) and vw & (c.rd|c.wr): n=max(n,1)
        if c.kind=='vmem' and sw & c.rd: n=max(n,5)
        if c.kind=='mfma' and ('s','exec') in p.wr: n=max(n,4)
    if p.kind=='mfma':
        big = {4:8, 8:12}[p.passes]
        if c.kind=='mfma':
            if p.wr & c.mA: n=max(n,big)
            if p.wr & c.mC:
                if not (p.wr==c.mC and p.passes==c.passes and p.op==c.op): n=max(n,big-2)
            elif p.wr & c.wr: n=max(n,big)
        elif c.kind in ('valu','vmem','ds'):
            if p.wr & (c.rd|c.wr): n=max(n,big)
            if c.kind=='valu' and p.mC & c.wr: n=max(n,{4:3,8:7}[p.passes])
    if p.kind=='vmem' and p.wide and (p.store_data & c.wr): n=max(n,2)
    if p.kind=='ds' and p.op in ('ds_write_b128','ds_write_b96','ds_write2_b64','ds_write2st64_b64') and c.kind=='valu' and (p.rd & c.wr): n=max(n,1)
    if p.kind=='salu' and ('s','m0') in p.wr and c.kind=='vmem' and getattr(c,'ldsdma',False): n=max(n,1)
    return n

class Asm:
    def __init__(self):
        self.lines=[]
        self.hist=[]
        self.uid=0
        self.nops=0
        self.vq=[]; self.dq=[]; self.outl=[]
    def vm(self, text, tag=None):
        self.i(text); self.vq.append(tag)
    def ds(self, text, tag=None):
        self.i(text); self.dq.append(tag)
    def _cnt(self, q, tag):
        idx=[k for k,t in enumerate(q) if t==tag]
        if not idx: return None
        n=len(q)-idx[-1]-1
        del q[:idx[-1]+1]
        return n
    def wait_vm(self, tag):
        n=self._cnt(self.vq,tag)
        if n is not None: self.i(f's_waitcnt vmcnt({min(n,63)})')
    def wait_ds(self, tag):
        n=self._cnt(self.dq,tag)
        if n is not None: self.i(f's_waitcnt lgkmcnt({min(n,15)})')
    def drain_vm(self):
        self.i('s_waitcnt vmcnt(0)'); self.vq=[]
    def drain_ds(self):
        self.i('s_waitcnt lgkmcnt(0)'); self.dq=[]
    def auto(self, text, tag=None):
        if isinstance(text, tuple):
            if text[0]=='wait_ds': self.wait_ds(text[1])
            elif text[0]=='wait_vm': self.wait_vm(text[1])
            elif text[0]=='ds': self.ds(text[1], text[2])
            elif text[0]=='vm': self.vm(text[1], text[2])
            return
        if text.startswith('ds_'): self.ds(text,tag)
        elif text.startswith('buffer_') or text.startswith('global_'): self.vm(text,tag)
        else: self.i(text)
    def raw(self, s): self.lines.append(s)
    def comment(self, s): self.lines.append('; '+s)
    def label(self, name):
        self.lines.append(name+':')
    def newlabel(self, p='L'):
        self.uid+=1; return f'{p}_{self.uid}'
    def flush(self, n=None):
        req=0; dist=0
        for p in reversed(self.hist):
            w=0
            if p.kind=='mfma': w={4:8,8:12}[p.passes]
            elif p.kind=='valu': w=5 if any(r[0]=='s' for r in p.wr) else 2
            elif p.kind=='vmem' and p.wide: w=2
            req=max(req,w-dist); dist+=p.states()
            if dist>=12: break
        if req>0: self.i(f's_nop {req-1}')
    def i(self, text):
        c=Ins(text)
        req=0; dist=0
        k=None; psum=0
        for p in reversed(self.hist):
            d=dist
            if p.kind=='mfma':
                if k is None: k=dist
                else:
                    psum+=p.passes
                    d=max(d, psum+k-1)
            req=max(req, need(p,c)-d)
            dist+=p.states()
            if dist>=20: break
        if req>0:
            nop=Ins(f's_nop {req-1}')
            self.lines.append(f's_nop {req-1}')
            self.hist.append(nop); self.nops+=1
        self.lines.append(text.replace(', ',',').replace(' offset:0 ',' ') if not text.startswith('s_getreg') else text)
        self.hist.append(c)
        if len(self.hist)>40: self.hist=self.hist[-30:]
    def __call__(self, text):
        for l in text.strip().split('\n'):
            l=l.strip()
            if not l: continue
            if l.startswith(';'): self.comment(l[1:].strip())
            elif l.endswith(':'): self.label(l[:-1])
            else: self.i(l)
    def text(self): return '\n'.join(self.lines)+'\n'

def vr(b,n=1,k='v'):
    return f'{k}{b}' if n==1 else f'{k}[{b}:{b+n-1}]'
def ar(b,n=1): return vr(b,n,'a')
def sr(b,n=1): return vr(b,n,'s')
```

```python
from asmb import *
from layout import *
from work import wait_flags, wait_prog, until_valid, V_L4, V_ZERO, VT, OPTW, LASTSEG, LDS_BC, wait_init, f32, LOG2E, V_HH16, V_LIN as W_LIN
OPT = dict(vload=1, xdma=1, hist=1, full=1, tag=1, tnop=0, vearly=4, xsleep=4, nfl=5, rot=2, xk=3, lin=0, skipx=0, skipm=0, tailv=0, n0=0, dbl=0, mord=0, wnt=0, allr=0, bh=1, bthr=0, bthn=2, ehold=0, dry=1, tis=0, nh1=7, nu=4, agap2=12, msp=4, t6=1, il=4, nochk=0, ka=1, kb=3, nxi=4, fard=0, nearfirst=1, fx=4, side=1, hold=0, slowstep=0, aw=1, xbar=0, heat=0, pre=1, nob=0, bslow=0, bsn=4, bwait=0, unr=3, early=0, solo=0, w2=0, lite=0, pw=1, emall=0, w3del=0, fast=0, adel=34, mdel=0, bdel=0, two=3, wb=0, vnt=0, x0=12, xsp=4, vpf=0, ahead=3, pf=0, xadv=1, rp=8, rm=16, nearly=2, hfirst=0, vsp=2, fgap=9, apos=6, bpos=2, cnt=0, asleep=7, a2sleep=5, a3sleep=2, bsleep=2, pgap=2, agap=12)
S_M0=S_R1

def frag_reg(f, nacc=32, vbase=120):
    return ar(8*f,8) if f<nacc else vr(vbase+8*(f-nacc),8)
def frag_half(f, hf, nacc=32, vbase=120):
    return ar(8*f+4*hf,4) if f<nacc else vr(vbase+8*(f-nacc)+4*hf,4)

class Stamps:
    def __init__(self, a, on): self.a=a; self.on=on; self.n=0
    def init(self, n):
        if OPT['cnt']: self.a('s_mov_b32 s53, 0\ns_mov_b32 s54, 0\ns_mov_b32 s55, 0')
        if not self.on: return
        for i in range(12): self.a(f's_mov_b32 s{44+i}, 0')
        if self.on==1: self.a('s_memtime s[40:41]\ns_waitcnt lgkmcnt(0)\ns_mov_b32 s42, s40')
    def mark(self, i):
        if self.on==1:
            self.a(f's_memtime s[40:41]\ns_waitcnt lgkmcnt(0)\ns_sub_u32 s43, s40, s42\ns_mov_b32 s42, s40\ns_add_u32 s{44+i}, s{44+i}, s43')
    def abs(self, i):
        if self.on==2 and (not OPT['lite'] or i in self.keep): self.a(f's_memtime s[{64+2*i}:{65+2*i}]')
    def endstep(self, t, d=0):
        if self.on==2:
            a=self.a
            SK=a.newlabel('nost')
            if d: a(f's_and_b32 s44, s{S_STEP}, 3\ns_cbranch_scc1 {SK}')
            a('s_waitcnt lgkmcnt(0)')
            for i in range(14): a(f'v_writelane_b32 v{t}, s{64+2*i}, {i}')
            a(f'''
            v_mbcnt_lo_u32_b32 v{t+1}, -1, 0
            v_lshlrev_b32 v{t+1}, 2, v{t+1}
            s_lshl_b32 s44, s{S_WAVE}, 6
            s_add_u32 s44, s44, s{S_STEP}
            s_lshl_b32 s44, s44, 6
            s_add_u32 s44, s44, 147456
            v_add_u32 v{t+1}, s44, v{t+1}
            s_mov_b64 exec, 0x3fff
            ds_write_b32 v{t+1}, v{t}
            s_mov_b64 exec, -1
            ''')
            a.label(SK)

def poll_check(a, regs, tmp):
    r=list(regs)
    a(f'v_max3_u32 v{tmp}, v{r[0]}, v{r[1]}, v{r[2]}')
    a(f'v_max3_u32 v{tmp+1}, v{r[3]}, v{r[4]}, v{r[5]}')
    rest=r[6:]
    k=0
    while len(rest)>=2:
        a(f'v_max3_u32 v{tmp+k}, v{tmp+k}, v{rest[0]}, v{rest[1]}'); rest=rest[2:]; k^=1
    a(f'v_max_u32 v{tmp}, v{tmp}, v{tmp+1}')
    a(f'v_cmp_eq_u32 vcc, -1, v{tmp}')


def calib(a):
    L=a.newlabel('cal')
    a('s_memrealtime s[2:3]\ns_waitcnt lgkmcnt(0)\ns_mov_b32 s92, s2')
    a.label(L)
    a(f's_memrealtime s[0:1]\ns_memtime s[2:3]\ns_waitcnt lgkmcnt(0)\ns_cmp_eq_u32 s0, s92\ns_cbranch_scc1 {L}')

def chk4(a, r, tmp):
    a(f'v_max3_u32 v{tmp}, v{r}, v{r+1}, v{r+2}\nv_max_u32 v{tmp}, v{tmp}, v{r+3}\nv_cmp_eq_u32 vcc, -1, v{tmp}')

def repoll(a, load, r, tmp, err):
    L=a.newlabel('rp'); R=a.newlabel('rpr')
    a(f's_cbranch_vccnz {L}')
    a.label(R)
    a.outl.append(('raw',[f'{L}:', load, 's_waitcnt vmcnt(0)',
        f'v_max3_u32 v{tmp}, v{r}, v{r+1}, v{r+2}', f'v_max_u32 v{tmp}, v{tmp}, v{r+3}', f'v_cmp_eq_u32 vcc, -1, v{tmp}',
        f's_cbranch_vccz {R}', f's_add_u32 s{S_SPIN}, s{S_SPIN}, 1', f's_cmp_lt_u32 s{S_SPIN}, {SPIN}', f's_cbranch_scc1 {L}',
        f's_mov_b32 s{S_ERR}, {err}', f's_branch {R}']))

def ring_poll(a, loads, regs, tmp, gap, err):
    n=len(loads); L=a.newlabel('poll'); T=[a.newlabel('first') for _ in range(n)]
    a(f's_mov_b32 s{S_SPIN}, 0')
    for k in range(n):
        a(loads[k])
        if k<n-1 and gap: a(f's_nop {gap}')
    a.label(L)
    for k in range(n):
        a(f's_waitcnt vmcnt({n-1})')
        chk4(a,regs[k],tmp)
        a(f's_cbranch_vccz {T[k]}')
        a(loads[k])
    a(f's_add_u32 s{S_SPIN}, s{S_SPIN}, 1\ns_cmp_lt_u32 s{S_SPIN}, {SPIN}\ns_cbranch_scc1 {L}')
    a(f's_mov_b32 s{S_ERR}, {err}\ns_waitcnt vmcnt(0)')
    return T

def flag_poll(a, load, regs, thr, err, pre=False):
    n=len(regs); L=a.newlabel('fp'); D=a.newlabel('fpd')
    a(f's_mov_b32 s{S_SPIN}, 0')
    if OPT['fast'] and n>1: a('s_mov_b64 vcc, -1')
    for k,r in enumerate(regs):
        if pre is True or (OPT['fast'] and n>1 and k==n-1): break
        if k<pre: continue
        a(load(r))
        if k<n-1: a(f's_nop {OPT["fgap"]}')
    a.label(L)
    th=thr if isinstance(thr,str) else f's{thr}'
    for rep in range(OPT['unr'] if n>1 else 1):
        for k,r in enumerate(regs):
            if OPT['fast'] and n>1:
                a(load(regs[k-1]))
                a(f's_waitcnt vmcnt({n-1})\ns_cbranch_vccz {D}\nv_cmp_gt_u32 vcc, {th}, v{r}')
            else:
                a(f's_waitcnt vmcnt({n-1})\nv_cmp_gt_u32 vcc, {th}, v{r}')
                a(load(r))
                a(f's_cbranch_vccz {D}')
    a(f's_add_u32 s{S_SPIN}, s{S_SPIN}, 1\ns_cmp_lt_u32 s{S_SPIN}, {SPIN}\ns_cbranch_scc1 {L}')
    a(f's_mov_b32 s{S_ERR}, {err}\ns_branch L_end')
    a.label(D)

def redo_block(L, back, loads, regs, tmp, zero, err, extra=[]):
    r=list(regs); o=[f'{L}:']+loads+['s_waitcnt vmcnt(0)', f'v_max3_u32 v{tmp}, v{r[0]}, v{r[1]}, v{r[2]}']
    r=r[3:]
    while len(r)>=2: o.append(f'v_max3_u32 v{tmp}, v{tmp}, v{r[0]}, v{r[1]}'); r=r[2:]
    o+=[f'v_max_u32 v{tmp}, v{tmp}, v{r[0]}', f'v_cmp_eq_u32 vcc, -1, v{tmp}', f's_cbranch_vccz {L}_ok',
        f's_add_u32 s{S_SPIN}, s{S_SPIN}, 1', f's_cmp_lt_u32 s{S_SPIN}, {SPIN}', f's_cbranch_scc1 {L}', f's_mov_b32 s{S_ERR}, {err}', 's_branch L_end',
        f'{L}_ok:']+(['s_add_u32 s55, s55, 1'] if OPT['cnt'] else [])+[f'v_mov_b64 {vr(z,2)}, 0' for z in zero]+['s_nop 1']+extra+[f's_branch {back}']
    return ('raw',o)

def pub(a, stores, cmp=True):
    L=a.newlabel('slow'); R=a.newlabel('slowr')
    if cmp: a(f's_cmp_lg_u32 s{S_SLOW}, 0')
    a(f's_cbranch_scc1 {L}')
    for x in stores: a(x)
    a.label(R)
    a.outl.append((L,R,[x+' sc1' if x.startswith('buffer_store') else x for x in stores]))

def fast_srd(a):
    srd(a,S_R2,P_WS,0x10000000)
    a(f's_cmp_lg_u32 s{S_SLOW}, 0\ns_cselect_b32 s{S_R2+2}, 0, s{S_R2+2}')

def pub2(a, stores):
    L=a.newlabel('slow'); R=a.newlabel('slowr')
    for x in stores: a(x.replace(sr(S_WS,4),sr(S_R2,4)))
    a(f's_cmp_lg_u32 s{S_SLOW}, 0\ns_cbranch_scc1 {L}')
    a.label(R)
    a.outl.append((L,R,[x+' sc1' for x in stores]))

def emit_outl(a):
    for e in a.outl:
        if e[0]=='raw':
            a('\n'.join(e[1])); continue
        L,R,st=e
        a.label(L)
        for x in st: a(x)
        a(f's_branch {R}')
    a.outl=[]

def lane_consts(a, t):
    a(f'v_mbcnt_lo_u32_b32 v{t}, -1, 0\nv_mbcnt_hi_u32_b32 v{t}, -1, v{t}')
    a(f'v_lshrrev_b32 v{t+1}, 4, v{t}\nv_and_b32 v{t+2}, 15, v{t}')

def common_addr(a, t, V_IDX, V_LDSW, V_LIN):
    a(f'''
    v_and_b32 v{t+3}, 1, v{t}
    v_mov_b32 v{V_IDX}, 0x4444
    v_mov_b32 v{t+4}, 0xeeee
    v_cmp_eq_u32 vcc, 1, v{t+3}
    v_cndmask_b32 v{V_IDX}, v{V_IDX}, v{t+4}, vcc
    v_lshlrev_b32 v{V_LIN}, 4, v{t}
    s_lshl_b32 s{S_T0}, s{S_WAVE}, 11
    v_add_u32 v{V_LDSW}, s{S_T0}, v{V_LIN}
    ''')

def team_barrier(a, nteam, tmp):
    L=a.newlabel('tb'); D=a.newlabel('tbd'); K=a.newlabel('tbs')
    a('s_waitcnt vmcnt(0)')
    rt(a,3)
    a('s_barrier')
    a(f's_cmp_lg_u32 s{S_WAVE}, 3\ns_cbranch_scc1 {K}')
    a(f'v_mov_b32 v{tmp}, 1\nv_mov_b32 v{tmp+1}, 0')
    a('s_mov_b64 exec, 1')
    a(f's_lshl_b32 s{S_T0}, s{S_SLOT}, 2\ns_add_u32 s{S_T0}, s{S_T0}, {F_TEAM}')
    pub(a,[f'buffer_store_dword v{tmp}, v{tmp+1}, {sr(S_WS,4)}, s{S_T0} offen'])
    a('s_mov_b64 exec, -1')
    a.label(K)
    a(f's_cmp_eq_u32 s{S_SLOW}, 0\ns_cbranch_scc1 {D}')
    team_wait(a,'L_end',tmp)
    a.label(D)

def team_wait(a, end, t):
    B0=a.newlabel('tw')
    a(f'''
    v_mbcnt_lo_u32_b32 v{t+1}, -1, 0
    v_min_u32 v{t+1}, {NTEAM-1}, v{t+1}
    v_lshlrev_b32 v{t+1}, 2, v{t+1}
    s_mov_b32 s{S_SPIN}, 0
    s_mov_b32 s{S_T0}, {F_TEAM}
    {B0}:
    buffer_load_dword v{t}, v{t+1}, {sr(S_WS,4)}, s{S_T0} offen sc1
    s_waitcnt vmcnt(0)
    v_cmp_eq_u32 vcc, 0, v{t}
    s_cbranch_vccz {B0}_d
    s_sleep 2
    s_add_u32 s{S_SPIN}, s{S_SPIN}, 1
    s_cmp_lt_u32 s{S_SPIN}, {SPIN}
    s_cbranch_scc1 {B0}
    s_mov_b32 s{S_ERR}, 6
    s_branch {end}
    {B0}_d:
    ''')

def census(a, t):
    L=a.newlabel('cen'); D=a.newlabel('cend')
    a(f'''
    v_mbcnt_lo_u32_b32 v{t+1}, -1, 0
    v_and_b32 v{t+1}, 15, v{t+1}
    v_lshlrev_b32 v{t+1}, 4, v{t+1}
    s_mov_b32 s{S_SPIN}, 0
    {L}:
    buffer_load_dword v{t}, v{t+1}, {sr(S_DBG,4)}, 0 offen sc1
    s_waitcnt vmcnt(0)
    v_readlane_b32 s{S_PF}, v{t}, 0
    s_mov_b32 s{S_SLOW}, {1 if a.force_slow else 0}
    s_cmp_ge_u32 s{S_PF}, 32
    s_cbranch_scc1 {D}
    s_mov_b32 s{S_SLOW}, 1
    ''')
    for i in range(1,16): a(f'v_readlane_b32 s{S_T0}, v{t}, {i}\ns_add_u32 s{S_PF}, s{S_PF}, s{S_T0}')
    a(f'''
    s_cmp_ge_u32 s{S_PF}, 256
    s_cbranch_scc1 {D}
    s_sleep 2
    s_add_u32 s{S_SPIN}, s{S_SPIN}, 1
    s_cmp_lt_u32 s{S_SPIN}, {SPINS}
    s_cbranch_scc1 {L}
    s_mov_b32 s{S_ERR}, 7
    s_branch L_end
    {D}:
    ''')

def pick_role(a, t):
    K=a.newlabel('pr')
    a(f'''
    v_mov_b32 v{t+1}, {LDS_BC}
    s_cmp_lg_u32 s{S_WAVE}, 0
    s_cbranch_scc1 {K}
    s_getreg_b32 s{S_T1}, hwreg(HW_REG_HW_ID, 14, 1)
    s_lshl_b32 s{S_T2}, s{S_T1}, 3
    v_mov_b32 v{t}, 1
    s_mov_b64 exec, 1
    buffer_atomic_add v{t}, v{V_ZERO}, {sr(S_DBG,4)}, s{S_T2} offen offset:{D_SIDE} sc0
    s_waitcnt vmcnt(0)
    s_mov_b64 exec, -1
    v_readfirstlane_b32 s{S_T0}, v{t}
    s_sub_u32 s{S_T2}, 31, s{S_T0}
    s_xor_b32 s{S_T3}, s{S_T1}, 1
    s_cmp_ge_u32 s{S_T0}, 16
    s_cselect_b32 s{S_T0}, s{S_T2}, s{S_T0}
    s_cselect_b32 s{S_T1}, s{S_T3}, s{S_T1}
    s_and_b32 s{S_T2}, s{S_T0}, 12
    s_add_u32 s{S_T0}, s{S_T0}, s{S_T2}
    s_lshl_b32 s{S_T1}, s{S_T1}, 2
    s_add_u32 s{S_T0}, s{S_T0}, s{S_T1}
    v_mov_b32 v{t}, s{S_T0}
    ds_write_b32 v{t+1}, v{t}
    s_waitcnt lgkmcnt(0)
    {K}:
    s_barrier
    ds_read_b32 v{t}, v{t+1}
    s_waitcnt lgkmcnt(0)
    v_readfirstlane_b32 s{S_SLOT}, v{t}
    s_barrier
    s_and_b32 s{S_SLOT}, s{S_SLOT}, 31
    s_mov_b32 s{S_ROLE}, s{S_SLOT}
    ''')

def measure_pol(a, t):
    a(f'''
    s_mov_b32 s{S_T0}, {WS_MEMR}
    v_lshlrev_b32 v{t+2}, 2, v{W_LIN}
    buffer_load_dword v{t}, v{t+2}, {sr(S_WS,4)}, s{S_T0} offen sc1
    s_waitcnt vmcnt(0)
    s_mov_b32 s{S_T1}, -1
    s_mov_b32 s{S_T2}, -1
    ''')
    a(f's_mov_b32 s{S_T3}, 0\nL_pol:')
    for half in range(2):
        a(f's_memtime s[44:45]\ns_waitcnt lgkmcnt(0)\nbuffer_load_dword v{t}, v{V_ZERO}, {sr(S_WS,4)}, s{S_T0} offen offset:{2048*half} sc1\ns_waitcnt vmcnt(0)\ns_memtime s[46:47]\ns_waitcnt lgkmcnt(0)')
        a(f's_sub_u32 s46, s46, s44\ns_min_u32 s{(S_T1,S_T2)[half]}, s{(S_T1,S_T2)[half]}, s46')
    a(f'''
    s_add_u32 s{S_T3}, s{S_T3}, 256
    s_and_b32 s{S_T0}, s{S_T3}, 0x700
    s_add_u32 s{S_T0}, s{S_T0}, {WS_MEMR}
    s_cmp_le_u32 s{S_T3}, 2048
    s_cbranch_scc1 L_pol
    s_cmp_gt_u32 s{S_T1}, s{S_T2}
    s_cselect_b32 s{S_T1}, 1, 0
    s_getreg_b32 s{S_T2}, hwreg(HW_REG_HW_ID, 14, 1)
    s_xor_b32 s{S_T1}, s{S_T1}, s{S_T2}
    s_lshl_b32 s{S_T1}, s{S_T1}, 11
    s_or_b32 s{S_T1}, s{S_T1}, 1
    v_mov_b32 v{t}, s{S_T1}
    buffer_store_dword v{t}, v{V_ZERO}, {sr(S_DBG,4)}, 0 offen offset:{D_POL} sc1
    ''')

def dbg_word(a, t, off, have=False):
    L=a.newlabel('dw'); D=a.newlabel('dwd')
    if not have: a(f'v_mov_b32 v{t}, 0\nv_mov_b32 v{t+1}, 0')
    a(f'''
    s_mov_b32 s{S_SPIN}, 0
    {L}:
    v_cmp_eq_u32 vcc, 0, v{t}
    s_cbranch_vccz {D}
    buffer_load_dword v{t}, v{t+1}, {sr(S_DBG,4)}, 0 offen offset:{off} sc1
    s_waitcnt vmcnt(0)
    s_add_u32 s{S_SPIN}, s{S_SPIN}, 1
    s_cmp_lt_u32 s{S_SPIN}, {SPINS}
    s_cbranch_scc1 {L}
    s_branch L_exit
    {D}:
    ''')

def info1(a, t):
    census(a,t)
    dbg_word(a,t,D_INIT)

def info2_issue(a, t):
    a(f'v_mov_b32 v{t+1}, 0\nbuffer_load_dword v{t}, v{t+1}, {sr(S_DBG,4)}, 0 offen offset:{D_POL} sc1')

def info2(a, t, have=True):
    dbg_word(a,t,D_POL,have)
    a(f'''
    v_readfirstlane_b32 s{S_POL}, v{t}
    s_and_b32 s{S_POL}, s{S_POL}, 0x800
    s_lshr_b32 s{S_FX}, s{S_POL}, 9
    s_xor_b32 s{S_FX}, s{S_FX}, 4
    ''')

def team_info(a, t):
    info1(a,t); info2(a,t,False)

def afrag(tile,ks):
    if tile==6: return 18+ks
    if ks>=4: return 3*tile+ks-4
    return 25+4*tile+ks

def x_touch(a):
    a(f'''
    ; slots 0..27 pull x into the memory-side cache for everybody (speed only)
    s_lshl_b32 s{S_T0}, s{S_SLOT}, 2
    s_add_u32 s{S_T0}, s{S_T0}, s{S_WAVE}
    s_lshl_b32 s{S_T0}, s{S_T0}, 14
    s_add_u32 s{S_T1}, s{S_T0}, 8192
    v_lshlrev_b32 v{VT}, 3, v{W_LIN}
    buffer_load_dword v255, v{VT}, {sr(S_X,4)}, s{S_T0} offen
    buffer_load_dword v255, v{VT}, {sr(S_X,4)}, s{S_T1} offen
    ''')

def all_ready(a, t, lane):
    a(f'v_lshrrev_b32 v{t}, 1, v{lane}\nv_lshlrev_b32 v{t}, 7, v{t}\nv_and_b32 v{t+1}, 1, v{lane}\nv_mul_u32_u24 v{t+1}, 12, v{t+1}\nv_add_u32 v{t}, v{t}, v{t+1}\ns_mov_b32 s{S_T0}, {F_W}')
    wait_flags(a,t,f's{S_T0}',64,3,width=4,sleep=2,t=t+2)

def stage_of(dt): return 1 if dt%7<OPTW['st1'] else 2 if dt%7<OPTW['st2'] else 3
SMF='v_smfmac_f32_16x16x64_bf16'
def role_A(a, stamps=False, end='L_end'):
    st=Stamps(a,stamps); st.keep=(8,0,6,OPT['ka'])
    MEMA=0; XB=28; ACC=60; SACC=88; QA=100
    V_IDX,V_LIN,V_LDSW,V_XG,V_XR,V_QW,V_QW2,V_QW6,V_PSX,V_PSM,V_EW,V_ER=range(108,120)
    V_PFD=QA+6; V_EV=QA+7
    CT=QA
    LDS_QT=0; LDS_SP=8192; LDS_X=16384
    S_PH=S_T4; S_PAR=S_T5; S_TAG=S_HOFF; S_TAG4=S_VOFF; S_INC=S_MNXT; S_THR=S_MBO; S_M2=S_VRDY
    rt(a,0)
    t=0
    a(f's_lshr_b32 s{S_PH}, s{S_WAVE}, 1\ns_and_b32 s{S_PAR}, s{S_WAVE}, 1')
    def setup1():
        lane_consts(a,t)
        common_addr(a,t,V_IDX,V_LDSW,V_LIN)
        a(f's_lshl_b32 s{S_T0}, s{S_WAVE}, 13\nv_add_u32 v{V_XG}, s{S_T0}, v{V_LIN}\nv_add_u32 v{V_XR}, 4096, v{V_XG}')
    def setup2():
        a(f'''
        s_lshl_b32 s{S_T0}, s{S_WAVE}, 11
        v_lshlrev_b32 v{t+5}, 6, v{t+1}
        v_add_u32 v{t+5}, s{S_T0}, v{t+5}
        v_lshrrev_b32 v{t+3}, 3, v{t+2}
        v_lshl_add_u32 v{V_QW}, v{t+3}, 8, v{t+5}
        v_and_b32 v{t+3}, 1, v{t+2}
        v_lshl_add_u32 v{V_QW}, v{t+3}, 4, v{V_QW}
        v_bfe_u32 v{t+4}, v{t+2}, 1, 2
        v_lshl_add_u32 v{V_QW}, v{t+4}, 2, v{V_QW}
        s_lshl_b32 s{S_T0}, s{S_PH}, 9
        v_add_u32 v{V_QW2}, s{S_T0}, v{V_QW}
        v_lshl_add_u32 v{V_QW6}, v{t+3}, 4, v{t+5}
        v_lshl_add_u32 v{V_QW6}, v{t+4}, 2, v{V_QW6}
        v_lshrrev_b32 v{t+4}, 3, v{t+2}
        v_lshl_add_u32 v{V_QW6}, v{t+4}, 1, v{V_QW6}
        s_lshl_b32 s{S_T0}, s{S_PH}, 8
        s_sub_u32 s{S_T0}, 512, s{S_T0}
        v_add_u32 v{V_QW6}, s{S_T0}, v{V_QW6}
        v_mov_b32 v{t+8}, 0
        v_mov_b32 v{t+9}, 0
        v_mov_b32 v{t+10}, 0
        v_mov_b32 v{t+11}, 0
        ds_write_b128 v{V_LDSW}, {vr(t+8,4)} offset:{LDS_QT+1024}
        v_mov_b32 v{t+15}, -0.5
        ds_write_b128 v{V_LDSW}, {vr(t+12,4)} offset:{LDS_SP}
        ds_write_b128 v{V_LDSW}, {vr(t+12,4)} offset:{LDS_SP+1024}
        s_waitcnt lgkmcnt(0)
        ''')
        a(f'''
        ; x part: 512h + 256(n>>3)+64q+32u+4(n&7) ; mem part: 8192+2048((h>>2)&1)+1024(h>>3)+512((h>>1)&1)+16(h&1) + 256(n>>3)+64q+32u+4((n>>1)&3)
        s_lshl_b32 s{S_T0}, s{S_PAR}, 5
        v_lshrrev_b32 v{t+3}, 3, v{t+2}
        v_lshlrev_b32 v{t+3}, 8, v{t+3}
        v_lshl_add_u32 v{t+3}, v{t+1}, 6, v{t+3}
        v_add_u32 v{t+3}, s{S_T0}, v{t+3}
        v_and_b32 v{t+4}, 7, v{t+2}
        v_lshl_add_u32 v{V_PSX}, v{t+4}, 2, v{t+3}
        s_lshl_b32 s{S_T1}, s{S_ROLE}, 9
        v_add_u32 v{V_PSX}, s{S_T1}, v{V_PSX}
        ; mem part (2-byte words): 256(hd>>1) + 64(n>>2) + 8(2q+u) + 4(hd&1) + 2((n>>1)&1)
        v_lshrrev_b32 v{t+4}, 2, v{t+2}
        v_lshlrev_b32 v{V_PSM}, 6, v{t+4}
        v_lshl_add_u32 v{V_PSM}, v{t+1}, 4, v{V_PSM}
        v_and_b32 v{t+4}, 2, v{t+2}
        v_add_u32 v{V_PSM}, v{V_PSM}, v{t+4}
        s_and_b32 s{S_T1}, s{S_ROLE}, 2
        s_lshl_b32 s{S_T1}, s{S_T1}, 7
        s_lshl_b32 s{S_T2}, s{S_PAR}, 3
        s_add_u32 s{S_T1}, s{S_T1}, s{S_T2}
        s_and_b32 s{S_T2}, s{S_ROLE}, 1
        s_lshl_b32 s{S_T2}, s{S_T2}, 2
        s_add_u32 s{S_T1}, s{S_T1}, s{S_T2}
        s_and_b32 s{S_T2}, s{S_ROLE}, 4
        s_lshl_b32 s{S_T2}, s{S_T2}, 9
        s_add_u32 s{S_T1}, s{S_T1}, s{S_T2}
        s_and_b32 s{S_T2}, s{S_ROLE}, 8
        s_lshl_b32 s{S_T2}, s{S_T2}, 7
        s_add_u32 s{S_T1}, s{S_T1}, s{S_T2}
        s_add_u32 s{S_T1}, s{S_T1}, 8192
        v_add_u32 v{V_PSM}, s{S_T1}, v{V_PSM}
        s_mov_b32 s{S_XOFF}, {WS_XF-32768}
        v_lshlrev_b32 v{V_EW}, 9, v{t}
        s_and_b32 s{S_T0}, s{S_ROLE}, 4
        s_xor_b32 s{S_T0}, s{S_T0}, s{S_FX}
        s_lshl_b32 s{S_T0}, s{S_T0}, 8
        s_add_u32 s{S_T0}, s{S_T0}, s{S_ROLE}
        s_lshl_b32 s{S_T0}, s{S_T0}, 1
        s_add_u32 s{S_T0}, s{S_T0}, {F_EP}
        v_add_u32 v{V_EW}, s{S_T0}, v{V_EW}
        v_mov_b32 v{t+3}, 0x7f000000
        v_cmp_gt_u32 vcc, {2 if OPT['fard'] else 4}, v{t}
        v_cndmask_b32 v{V_EW}, v{t+3}, v{V_EW}, vcc
        v_min_u32 v{t+3}, 13, v{t}
        v_and_b32 v{t+4}, 4, v{t+3}
        v_xor_b32 v{t+4}, s{S_FX}, v{t+4}
        v_lshl_add_u32 v{t+3}, v{t+4}, 8, v{t+3}
        s_and_b32 s{S_T0}, s{S_ROLE}, 3
        s_lshl_b32 s{S_T0}, s{S_T0}, 9
        s_add_u32 s{S_T0}, s{S_T0}, {F_EP+256}
        v_lshl_add_u32 v{V_ER}, v{t+3}, 1, s{S_T0}
        ''')
    def setup3():
        a(f'''
        s_add_u32 s{S_MCUR}, s{S_POL}, {WS_MEMR}
        s_add_u32 s{S_M2}, s{S_POL}, {WS_MEMR+4096}
        s_add_u32 s{S_PCUR}, s{S_POL}, {WS_PR}
        s_add_u32 s{S_RST}, s{S_POL}, {WS_PR+3*16384}
        s_mov_b32 s{S_XOFF}, {WS_XF}
        s_mov_b32 s{S_TAG}, 0.5
        s_mov_b32 s{S_TAG4}, 2.0
        s_xor_b32 s{S_INC}, s{S_SLOW}, 1
        s_mov_b32 s{S_THR}, s{S_INC}
        ''')
    def dry_on():
        srd(a,S_R2,P_WS,0)
        a(f's_mov_b32 s{S_WS+2}, 0\ns_mov_b32 s{S_DRY}, 1\ns_mov_b32 s{S_STEP}, {NSTEP-1}')
    def dry_off():
        a(f's_waitcnt vmcnt(0) lgkmcnt(0)\ns_mov_b32 s{S_WS+2}, 0x10000000\ns_mov_b32 s{S_DRY}, 0\ns_barrier')
    DSP=a.newlabel('Adsp'); BK=a.newlabel('Aback'); AEX=a.newlabel('Aexit')
    a(f's_mov_b32 s{S_DRY}, 0')
    if OPT['dry']:
        a(f's_mov_b32 s{S_POL}, 0\ns_mov_b32 s{S_FX}, 4')
        setup1(); setup2(); setup3(); dry_on()
        a(f's_mov_b32 s{S_THR}, 0\ns_barrier\ns_branch {DSP}')
        a.label(BK)
        dry_off()
    setup1()
    def xload(ks):
        return [f'buffer_load_dwordx4 {vr(XB+16*kt+8*ks+4*hf,4)}, v{V_XR if kt else V_XG}, {sr(S_WS,4)}, s{S_XOFF} offen offset:{2048*ks+1024*hf} sc1' for kt in range(2) for hf in range(2)]
    a(f'''
    v_lshlrev_b32 v{t+3}, 9, v{t+1}
    v_lshrrev_b32 v{t+4}, 3, v{t+2}
    v_mul_u32_u24 v{t+5}, 28672, v{t+4}
    v_add_u32 v{t+5}, v{t+5}, v{t+3}
    v_and_b32 v{t+6}, 7, v{t+2}
    v_lshl_add_u32 v{t+5}, v{t+6}, 4, v{t+5}
    v_lshl_add_u32 v{t+7}, v{t+4}, 7, v{t+3}
    v_lshl_add_u32 v{t+7}, v{t+6}, 4, v{t+7}
    s_mul_i32 s{S_T0}, s{S_ROLE}, {MAT}
    s_lshl_b32 s{S_T1}, s{S_PAR}, 8
    s_add_u32 s{S_T0}, s{S_T0}, s{S_T1}
    s_add_u32 s{S_T0}, s{S_T0}, {WS_A}
    s_mul_i32 s{S_T1}, s{S_PH}, {4*28672}
    s_add_u32 s{S_T1}, s{S_T1}, s{S_T0}
    s_mul_i32 s{S_T2}, s{S_PH}, 28672
    s_add_u32 s{S_T2}, s{S_T2}, s{S_T0}
    ''')
    a(f's_lshl_b32 s{S_RST}, s{S_ROLE}, 7\ns_add_u32 s{S_RST}, s{S_RST}, {F_W}')
    a(f's_lshl_b32 s{S_T0}, s{S_PH}, 3\nv_mov_b32 v{t+8}, 20\nv_writelane_b32 v{t+8}, s{S_T0}, 0\ns_add_u32 s{S_T0}, s{S_T0}, 4\nv_writelane_b32 v{t+8}, s{S_T0}, 1\ns_add_u32 s{S_T0}, s{S_T0}, 12\nv_writelane_b32 v{t+8}, s{S_T0}, 2')
    info1(a,t+10); fast_srd(a)
    for stage in (1,2,3):
        if stage==3: info2_issue(a,t+16)
        if stage==3 and OPT['allr']&1: all_ready(a,t+10,t)
        else: wait_flags(a,t+8,f's{S_RST}',4,stage,sleep=1,t=t+10)
        rt(a,stage-1)
        if stage==3: info2(a,t+16)
        for tp in range(4):
            for dt in range(14):
                if stage_of(dt)!=stage: continue
                ks,hf=dt>>1,dt&1
                if tp<3: a(f's_add_u32 s{S_XOFF}, s{S_T1}, {(2*tp if tp<2 else 8)*28672+dt*2048}')
                else: a(f's_add_u32 s{S_XOFF}, s{S_T2}, {10*28672+dt*2048}')
                for e in range(2 if tp<3 else 1):
                    if OPT['lin']:
                        a(f's_mul_i32 s{S_T0}, s{S_PAR}, {28672-256 if tp<3 else 768}\ns_add_u32 s{S_T0}, s{S_T0}, s{S_XOFF}')
                        a(f'buffer_load_dwordx4 {frag_half(afrag(2*tp+e,ks),hf)}, v{V_LIN}, {sr(S_WS,4)}, s{S_T0} offen offset:{e*1024} sc1')
                        continue
                    a(f'buffer_load_dwordx4 {frag_half(afrag(2*tp+e,ks),hf)}, v{t+5 if tp<3 else t+7}, {sr(S_WS,4)}, s{S_XOFF} offen offset:{e*128} sc1'+(' nt' if OPT['wnt'] else ''))
    setup2()
    a(f'v_mov_b32 v{t+12}, -1\ns_waitcnt vmcnt(24)')
    ini=[]
    for k in range(4):
        ini+=[f's_add_u32 s{S_T0}, s{S_POL}, {WS_PR+16384*k}']+[f'buffer_store_{kd} v{t+12}, v{r}, {sr(S_WS,4)}, s{S_T0} offen' for r,kd in ((V_PSX,'dword'),(V_PSM,'short'))]
    pub(a,ini)
    for k in range(4):
        a(f's_add_u32 s{S_T0}, s{S_POL}, {WS_PR+16384*k}')
        for r in (V_PSX,V_PSM): a(f'buffer_load_ushort v{t+13}, v{r}, {sr(S_WS,4)}, s{S_T0} offen sc1')
    team_barrier(a,NTEAM,t+8)
    a(f'''
    s_mov_b32 s{S_STEP}, 0
    s_lshl_b32 s{S_PF}, s{S_ROLE}, 11
    s_lshl_b32 s{S_T0}, s{S_PAR}, 10
    s_add_u32 s{S_PF}, s{S_PF}, s{S_T0}
    s_add_u32 s{S_PF}, s{S_PF}, {WS_XF+2*32768}
    ''')
    if a.diag: calib(a)
    st.init(8)
    setup3()
    a(f's_mov_b32 s{S_T0}, {F_EP+66}\nv_mov_b32 v{QA}, 0')
    flag_poll(a, lambda r: f'buffer_load_ushort v{r}, v{QA}, {sr(S_WS,4)}, s{S_T0} offen sc1', [QA+1], '1', 1)
    for l_ in xload(0): a(l_)
    a.label(DSP)
    NV=8 if OPT['nearfirst'] else 4
    EN=[a.newlabel('Aent') for _ in range(NV)]
    a(f's_and_b32 s{S_T0}, s{S_ROLE}, {NV-4}\ns_add_u32 s{S_T0}, s{S_T0}, s{S_WAVE}')
    for w in range(1,NV): a(f's_cmp_eq_u32 s{S_T0}, {w}\ns_cbranch_scc1 {EN[w]}')
    a(f's_branch {EN[0]}')
    ml=[f'buffer_load_dwordx4 {vr(MEMA+4*k,4)}, v{V_LIN}, {sr(S_WS,4)}, s{S_MCUR if k<4 else S_M2} offen offset:{1024*(k%4)} sc1' for k in range(7)]
    def chk(k,first):
        r=MEMA+4*k
        if first: return [f'v_max3_u32 v{CT}, v{r}, v{r+1}, v{r+2}', f'v_max_u32 v{CT}, v{CT}, v{r+3}']
        return [f'v_max3_u32 v{CT}, v{CT}, v{r}, v{r+1}', f'v_max3_u32 v{CT}, v{CT}, v{r+2}, v{r+3}']
    CMP=f'v_cmp_eq_u32 vcc, -1, v{CT}'
    def post(tl):
        tp=tl>>1; e=ACC+8*tp; o_=e+4
        vq=V_QW if tp<2 else V_QW2
        if not tl&1: return [f'v_add_f32 v{e}, v{e}, v{e+1}', f'v_add_f32 v{e+2}, v{e+2}, v{e+3}']
        return [f'v_add_f32 v{o_}, v{o_}, v{o_+1}', f'v_cvt_pk_bf16_f32 v{e+1}, v{e}, v{o_}', f'ds_write_b32 v{vq}, v{e+1} offset:{LDS_QT+512*tp}',
                f'v_add_f32 v{o_+2}, v{o_+2}, v{o_+3}', f'v_cvt_pk_bf16_f32 v{e+3}, v{e+2}, v{o_+2}', f'ds_write_b32 v{vq}, v{e+3} offset:{LDS_QT+512*tp+32}']
    for w8 in range(NV):
        w=w8&3
        ph,par=w>>1,w&1
        od=[((OPT['rot']*w if NV==4 else (0,1,4,5,2,3,6,2)[w8])+k)%7 for k in range(7)]
        if w8==7: od=[3,2,1,0,6,5,4]
        if OPT['t6']:
            IL=OPT['il']
            seq=[(tl,ks) for ks in od[:3] for tl in range(6)]+[(tl,ks) for ks in od[3:] for tl in range(IL)]+[(tl,ks) for tl in range(IL,6) for ks in od[3:]]+[(6,ks) for ks in od]
            if OPT['t6']==2:
                n0=OPT['n0']
                seq=[(tl,ks) for ks in od[:2] for tl in range(6)]+[(tl,od[2]) for tl in range(4+n0)]+[(tl,ks) for ks in od[3:] for tl in range(4)]
                seq+=[(tl,ks) for tl in (4,5) for ks in od if (tl,ks) not in seq]+[(6,ks) for ks in od]
        else:
            seq=[(tl,ks) for ks in od[:3] for tl in range(7)]+[(tl,ks) for ks in od[3:] for tl in (0,1)]+[(tl,ks) for tl in range(2,7) for ks in od[3:]]
        first={k:min(g for g,(tl,ks) in enumerate(seq) if ks==od[k]) for k in range(7)}
        LOOP=a.newlabel('Aloop'); G0=a.newlabel('Ago'); RDO=a.newlabel('Aredo')
        a.raw('.p2align 6')
        a.label(LOOP)
        sl=OPT['xsleep']+(OPT['a2sleep'] if w==2 else OPT['a3sleep'] if w==3 else 0)
        if sl: a(f's_sleep {sl}')
        for l_ in xload(0)[:OPT['nxi']]:
            if not OPT['skipx']: a(l_)
        if (w==3 or OPT['aw']) and OPT['asleep']>OPT['xsleep']: a(f's_sleep {OPT["asleep"]-OPT["xsleep"]}')
        if w<3:
            for k in range(OPT['heat']): a(f'{SMF} {vr(ACC+4*(k%7),4)}, {vr(MEMA+4*(k%7),4)}, {frag_reg(k%49)}, v{V_IDX}')
        a.label(EN[w8])
        for r in range(ACC,SACC+12,2): a(f'v_mov_b64 {vr(r,2)}, 0')
        if w==3 or OPT['aw']: flag_poll(a, lambda r: f'buffer_load_ushort v{r}, v{V_ER}, {sr(S_WS,4)}, 0 offen sc1', [QA+k for k in range(OPT['nfl'])], S_THR, 1)
        if w==3 and OPT['mdel']: a(f's_nop {OPT["mdel"]-1}')
        if not OPT['aw']: a('s_barrier')
        NU=OPT['nu']
        for k in range(NU):
            a(ml[od[k]])
            if k==0: st.abs(8)
            if k<NU-1: a(f's_nop {OPT["agap"] if k==0 else OPT["agap2"]}')
        a.outl.append(redo_block(RDO,G0,ml,range(MEMA,MEMA+28),CT,range(ACC,ACC+28,2),1))
        a.label(G0)
        xl=xload(0)[OPT['nxi']:]+xload(1)
        mem={OPT['msp']*k:(f'm{od[NU+k]}',ml[od[NU+k]]) for k in range(7-NU)}
        if OPT['skipm']: mem={}
        for k in range(len(xl)): mem[OPT['x0']+OPT['xsp']*k]=('x1',xl[k])
        val={}; sal={}
        if OPT['nochk']: pass
        else:
            for k in range(7):
                g=first[k]+(1 if k<3 else 0)
                val[g],val[g+1]=chk(od[k], k==0 or (OPT['early'] and k<3))
                if OPT['early'] and k<2: val[g+2]=CMP; sal[g+4]=f's_cbranch_vccnz {RDO}'
            val[first[6]+2]=CMP; sal[first[6]+5]=f's_cbranch_vccnz {RDO}'
        if OPT['tag']: late=[f'v_mov_b32 v{ACC+3+4*u}, s{S_TAG}' for u in range(2)]
        else: late=[]
        a.vq=[f'm{k}' for k in od[:NU]]
        q=[]
        a.wait_vm(f'm{od[0]}')
        st.abs(0)
        for g,(tl,ks) in enumerate(seq):
            a(f'{SMF} {vr(ACC+4*tl,4)}, {vr(MEMA+4*ks,4)}, {frag_reg(afrag(tl,ks))}, v{V_IDX}')
            if g==21: st.abs(1)
            if g in sal: a(sal[g])
            usedmem=False
            if g in mem: a.vm(mem[g][1],mem[g][0]); usedmem=True
            if g+1<len(seq): a.wait_vm(f'm{seq[g+1][1]}')
            solo=False; usedds=False
            if not usedmem and q and q[0][0]<=g and q[0][1].startswith('ds_'):
                usedds=True
                solo = q[0][1].startswith('ds_write') and g<OPT['solo']
                a(q.pop(0)[1])
            if solo: pass
            elif g in val: a(val[g])
            elif q and q[0][0]<=g and not q[0][1].startswith('ds_'):
                a(q.pop(0)[1])
                if g<OPT['dbl'] and not usedds and q and q[0][0]<=g and not q[0][1].startswith('ds_'): a(q.pop(0)[1])
            if ks==od[6] and tl<6:
                q+=[(g+3,o) for o in post(tl)]
                if tl==3: q.append((g+3,f'ds_read_b128 {vr(QA,4)}, v{V_LDSW} offset:{LDS_QT}'))
        st.abs(2)
        if OPT['slowstep']: a(f's_sleep {OPT["slowstep"]}')
        L6=ACC+24
        pend=[o for _,o in q]
        assert not any('ds_read' in o for o in pend)
        pend=[o for o in pend if not o.startswith('ds_')]+[o for o in pend if o.startswith('ds_')]
        last=[f'v_add_f32 v{L6}, v{L6}, v{L6+1}', f'v_add_f32 v{L6+2}, v{L6+2}, v{L6+3}', f'v_cvt_pk_bf16_f32 v{L6}, v{L6}, v{L6+2}',
              f'ds_write_b16 v{V_QW6}, v{L6} offset:{LDS_QT+1024}', f'ds_write_b16_d16_hi v{V_QW6}, v{L6} offset:{LDS_QT+1024+32}',
              f'ds_read_b128 {vr(QA+4,4)}, v{V_LDSW} offset:{LDS_QT+1024}']
        allo=pend+last
        if OPT['tailv']: allo=[o for o in allo if not o.startswith('ds_')]+[o for o in allo if o.startswith('ds_')]
        for o in allo: a(o)
        st.abs(11)
        a(f's_waitcnt vmcnt(0) lgkmcnt({sum(1 for o in pend+last if o.startswith("ds_"))})'); a.vq=[]
        a(f'{SMF} {vr(SACC,4)}, {vr(QA,4)}, {vr(XB,8)}, v{V_IDX}')
        if late: a(late.pop(0))
        a(f'{SMF} {vr(SACC+4,4)}, {vr(QA,4)}, {vr(XB+16,8)}, v{V_IDX}')
        if late: a(late.pop(0))
        a(f'{SMF} {vr(SACC+8,4)}, {vr(QA,4)}, {vr(MEMA+8*ph,8)}, v{V_IDX}')
        a('s_waitcnt lgkmcnt(0)')
        st.abs(10)
        a(f'{SMF} {vr(SACC+8,4)}, {vr(QA+4,4)}, {vr(MEMA+16+4*ph,8)}, v{V_IDX}')
        a(f'{SMF} {vr(SACC,4)}, {vr(QA+4,4)}, {vr(XB+8,8)}, v{V_IDX}')
        a(f'{SMF} {vr(SACC+4,4)}, {vr(QA+4,4)}, {vr(XB+24,8)}, v{V_IDX}')
        st.abs(3)
        E=ACC
        qp='[0,0,2,2]' if par==0 else '[1,1,3,3]'
        a(f'v_add_f32 v{E+8}, v{SACC+8}, v{SACC+9}\nv_add_f32 v{E+9}, v{SACC+10}, v{SACC+11}')
        a(f'v_add_f32 v{E}, v{SACC}, v{SACC+1}\nv_add_f32 v{E+4}, v{SACC+2}, v{SACC+3}')
        a(f'v_mov_b32_dpp v{E+2}, v{E+8} quad_perm:{qp} row_mask:0xf bank_mask:0xf')
        a(f'v_mov_b32_dpp v{E+6}, v{E+9} quad_perm:{qp} row_mask:0xf bank_mask:0xf')
        us=[u for u in range(2) if u!=w]
        for u in us: a(f'v_add_f32 v{E+1+4*u}, v{SACC+4+2*u}, v{SACC+5+2*u}')
        for u in us: a(f'ds_write_b128 v{V_LDSW}, {vr(E+4*u,4)} offset:{LDS_SP+1024*u}')
        ew=f'buffer_store_short v{XB}, v{V_EW}, {sr(S_WS,4)}, 0 offen'
        if st.on==2: ew='s_memtime s[82:83]\n'+ew
        if not OPT['tag']: a('s_waitcnt lgkmcnt(0)')
        elif OPT['tnop']: a(f's_nop {OPT["tnop"]-1}')
        st.abs(4)
        a('s_barrier')
        st.abs(7)
        if w<2:
            u=w; Y=E+4*u; R=E+12; X=E+24; RR=a.newlabel('Arr')
            a.label(RR)
            for k,ww in enumerate([x for x in range(4) if x!=u]):
                a(f'ds_read_b128 {vr(R+4*k,4)}, v{V_LIN} offset:{LDS_SP+2048*ww+1024*u}')
            a(f'v_add_f32 v{Y+1}, v{SACC+4+2*u}, v{SACC+5+2*u}\nv_mov_b32 v{XB+1}, -1')
            pk=lambda d,x,y: a(f'v_pk_add_f32 {vr(d,2)}, {vr(x,2)}, {vr(y,2)}\nv_pk_add_f32 {vr(d+2,2)}, {vr(x+2,2)}, {vr(y+2,2)}')
            a('s_waitcnt lgkmcnt(2)')
            pk(X,Y,R)
            a('s_waitcnt lgkmcnt(1)')
            pk(X,X,R+4)
            a('s_waitcnt lgkmcnt(0)')
            pk(X,X,R+8)
            st.abs(5)
            M=R
            a(f'v_max3_f32 v{M}, v{X}, v{X+1}, v{X+2}')
            a(f'v_cmp_neq_f32 vcc, s{S_TAG4}, v{X+3}')
            for sh in (1,2,4,8): a(f'v_max_f32_dpp v{M}, v{M}, v{M} row_ror:{sh} row_mask:0xf bank_mask:0xf')
            a(f'v_pk_add_f32 {vr(X,2)}, {vr(X,2)}, {vr(M,2)} op_sel_hi:[1,0] neg_lo:[0,1] neg_hi:[0,1]')
            a(f'v_sub_f32 v{X+2}, v{X+2}, v{M}')
            for k in range(3): a(f'v_exp_f32 v{X+k}, v{X+k}')
            a(f'v_add_f32 v{M}, v{X}, v{X+1}')
            a(f'v_fmac_f32 v{M}, 0.5, v{X+2}')
            a(f's_cmp_lg_u64 vcc, 0\ns_cselect_b32 s{S_T1}, 0x7f000000, s{S_PCUR}')
            for sh in (1,2,4,8): a(f'v_add_f32_dpp v{M}, v{M}, v{M} row_ror:{sh} row_mask:0xf bank_mask:0xf')
            a(f'v_rcp_f32 v{M}, v{M}')
            a(f'v_pk_mul_f32 {vr(X,2)}, {vr(X,2)}, {vr(M,2)} op_sel_hi:[1,0]')
            a(f'v_mul_f32 v{X+2}, v{X+2}, v{M}')
            a(f'v_cvt_pk_bf16_f32 v{X}, |v{X}|, |v{X+1}|\nv_cvt_pk_bf16_f32 v{X+2}, |v{X+2}|, |v{X+2}|')
            st.abs(6)
            ps=[f'buffer_store_dword v{X}, v{V_PSX}, {sr(S_WS,4)}, s{S_T1} offen', f'buffer_store_short v{X+2}, v{V_PSM}, {sr(S_WS,4)}, s{S_T1} offen']
            pub2(a,(ps[::-1] if OPT['mord']==1 else ps)+[
                   f'buffer_store_dword v{XB+1}, v{V_PSX}, {sr(S_WS,4)}, s{S_RST} offen',
                   f'buffer_store_short v{XB+1}, v{V_PSM}, {sr(S_WS,4)}, s{S_RST} offen'])
            a(f's_cbranch_vccnz {RR}')
        if w==3:
            a(f's_add_u32 s{S_T0}, s{S_STEP}, 1\nv_mov_b32 v{XB}, s{S_T0}')
            d=OPT['adel']-OPT['fard']
            while d>0: a(f's_nop {min(d,16)-1}'); d-=16
            a(ew)
            if OPT['fard']: a(f's_nop {OPT["fard"]-2}\nbuffer_store_short v{XB}, v{V_EW}, {sr(S_WS,4)}, 0 offen offset:1024')
        st.endstep(ACC+8)
        if a.diag and not st.on:
            K8=a.newlabel('s8')
            a(f's_cmp_lg_u32 s{S_STEP}, 7\ns_cbranch_scc1 {K8}\ns_memtime s[90:91]\ns_memrealtime s[88:89]')
            a.label(K8)
        a(f'''
        s_xor_b32 s{S_TAG}, s{S_TAG}, 0x80000000
        s_xor_b32 s{S_TAG4}, s{S_TAG4}, 0x80000000
        s_mov_b32 s{S_RST}, s{S_PCUR}
        s_add_u32 s{S_PCUR}, s{S_PCUR}, 0x4000
        s_and_b32 s{S_PCUR}, s{S_PCUR}, 0xc800
        s_add_u32 s{S_PCUR}, s{S_PCUR}, {WS_PR}
        s_add_u32 s{S_MCUR}, s{S_MCUR}, 0x2000
        s_and_b32 s{S_MCUR}, s{S_MCUR}, 0x6800
        s_add_u32 s{S_MCUR}, s{S_MCUR}, {WS_MEMR}
        s_add_u32 s{S_M2}, s{S_MCUR}, 4096
        s_add_u32 s{S_XOFF}, s{S_XOFF}, 32768
        s_add_u32 s{S_THR}, s{S_THR}, s{S_INC}
        s_add_u32 s{S_STEP}, s{S_STEP}, 1
        s_cmp_lt_u32 s{S_STEP}, {NSTEP}
        s_cbranch_scc1 {LOOP}
        s_branch {AEX}
        ''')
    a.label(AEX)
    if OPT['dry']: a(f's_cmp_lg_u32 s{S_DRY}, 0\ns_cbranch_scc1 {BK}')
    a(f's_branch {end}')
    emit_outl(a)

MEMA=0; VP=28; MBOP=60; FACC=84; PP=92; MBP=104; STG=132
B_IDX,B_M4,B_LDSW,B_LIN,B_VG,B_PX,B_PM,B_MST,B_WL,B_FW,B_INC,B_HIST,TMP=range(164,177)
B_THR=B_LDSW
B_EW,B_ER,B_EV,B_EM,FR=112,113,114,115,124
LDS_MEM=0; LDS_FP=8192; LDS_W=16384
bfr=lambda f: frag_reg(f,32,192)
stg=lambda n: [(f'ds_read_b128 {vr(STG+16*(n&1)+4*k,4)}, v{B_WL} offset:{(n%8)*4096+k*1024}',f's{n}') for k in range(4)]

def b_setup(a):
    t=0
    lane_consts(a,t)
    common_addr(a,t,B_IDX,B_LDSW,B_LIN)
    a(f'''
    v_lshlrev_b32 v{B_VG}, 9, v{t+1}
    v_lshl_add_u32 v{B_VG}, v{t+2}, 4, v{B_VG}
    s_lshl_b32 s{S_T0}, s{S_WAVE}, 15
    v_add_u32 v{B_WL}, s{S_T0}, v{B_LIN}
    v_add_u32 v{B_WL}, {LDS_W}, v{B_WL}
    ''')

def b_weights(a, team):
    a(f'''
    v_lshlrev_b32 v3, 7, v0
    s_lshl_b32 s{S_T0}, s{S_WAVE}, 9
    s_lshr_b32 s{S_T1}, s{S_ROLE}, 1
    s_lshl_b32 s{S_T1}, s{S_T1}, 2
    s_add_u32 s{S_T0}, s{S_T0}, s{S_T1}
    s_add_u32 s{S_T0}, s{S_T0}, {F_W+16*128}
    ''')
    a(f'''
    s_mov_b32 s{S_RST}, s{S_T0}
    s_lshl_b32 s{S_T0}, s{S_WAVE}, 2
    s_mul_i32 s{S_T0}, s{S_T0}, {MAT}
    s_mul_i32 s{S_T1}, s{S_ROLE}, 28672
    s_add_u32 s{S_T1}, s{S_T1}, s{S_T0}
    s_add_u32 s{S_T1}, s{S_T1}, {WS_B}
    s_lshl_b32 s{S_T2}, s{S_WAVE}, 15
    s_add_u32 s{S_T2}, s{S_T2}, {LDS_W}
    ''')
    if team:
        info1(a,8); fast_srd(a)
    for stage in (1,2,3):
        if stage==2 and team: info2_issue(a,14)
        if stage==3 and team and OPT['allr']&2: all_ready(a,8,0)
        else: wait_flags(a,3,f's{S_RST}',4,stage,sleep=1,t=8)
        rt(a,stage-1)
        if stage==2 and team: info2(a,14)
        if stage==3 and team: team(2)
        for hd in range(4):
            if hd==3: a('s_waitcnt vmcnt(40)')
            for dt in range(14):
                if stage_of(dt)!=stage: continue
                ks,hf=dt>>1,dt&1
                a(f's_add_u32 s{S_XOFF}, s{S_T1}, {hd*MAT+dt*2048}')
                if team and OPT['bthr'] and (stage<3 or hd<OPT['bthn']): a(f's_waitcnt vmcnt({OPT["bthr"]})')
                for tt in range(2):
                    tile=2*hd+tt; imm=tt*(1024 if OPT['lin'] else 256); B_VG=(B_LIN if OPT['lin'] else 168)
                    if ks<5:
                        a(f'buffer_load_dwordx4 {frag_half(tile*5+ks,hf,32,192)}, v{B_VG}, {sr(S_WS,4)}, s{S_XOFF} offen offset:{imm} sc1'+(' nt' if OPT['wnt'] else ''))
                    else:
                        a(f's_add_u32 m0, s{S_T2}, {tile*4096+(2*(ks-5)+hf)*1024-imm}')
                        a(f'buffer_load_dwordx4 v{B_VG}, {sr(S_WS,4)}, s{S_XOFF} offen offset:{imm} sc1'+(' nt' if OPT['wnt'] else '')+' lds')
        if stage==2 and team: team(1)

def b_gemm(a, ACCS, post, hook, team=False):
    seq=[(tl,ks) for ks in range(7) for tl in (0,1)]+[(tl,ks) for tl in range(2,8) for ks in range(7)]
    a.dq=[f'm{k}' for k in range(7)]
    fill=[]; rd=[]
    for i,(tile,ks) in enumerate(seq):
        a.wait_ds(f'm{ks}')
        if ks==5: a.wait_ds(f's{tile}')
        src = bfr(tile*5+ks) if ks<5 else vr(STG+16*(tile&1)+8*(ks-5),8)
        if not (team and 20<=i<20+OPT['nob']): a(f'{SMF} {vr(ACCS[tile],4)}, {vr(MEMA+4*ks,4)}, {src}, v{B_IDX}')
        if team and i<OPT['bslow'] : a(f's_nop {OPT["bsn"]}')
        hook(i,'salu')
        if not hook(i,'mem') and rd: a.ds(*rd.pop(0))
        if i+1<len(seq):
            a.wait_ds(f'm{seq[i+1][1]}')
            if seq[i+1][1]==5: a.wait_ds(f's{seq[i+1][0]}')
        if not hook(i,'valu') and fill and fill[0][0]<=i: a(fill.pop(0)[1])
        if ks==6:
            fill+=[(i+3,o) for o in post(tile)]
            rd+=stg(tile+2)
    for o in rd: a.ds(*o)
    for _,f in fill: a(f)
    a.dq=[]

def role_B(a, stamps=False, end='L_end'):
    st=Stamps(a,stamps); st.keep=(9,3,6,10,11,OPT['kb'])
    rt(a,0)
    a(f's_sub_u32 s{S_ROLE}, s{S_ROLE}, 16')
    srd(a,S_M0,P_MEM0,7168)
    t=0
    ACCS=[76,80,128,116,120,188,104,108]
    S_V2=S_XOFF; S_THM=S_T4; S_PAR=S_T5; S_PAR3=S_MBO
    V_FR,V_SENT=TMP+4,TMP+5
    FRS=[FR,FR+1,FR+2,FR+3,TMP+8,TMP+9,TMP+10,TMP+11][:OPT['nfl']]
    def setup1():
        a(f'''
        v_mov_b32 v{B_PX}, v{B_LDSW}
        ; this wave's mem piece inside a P slot
        s_and_b32 s{S_T0}, s{S_WAVE}, 1
        s_lshl_b32 s{S_T0}, s{S_T0}, 11
        s_lshr_b32 s{S_T1}, s{S_WAVE}, 1
        s_lshl_b32 s{S_T1}, s{S_T1}, 10
        s_add_u32 s{S_HOFF}, s{S_T0}, s{S_T1}
        s_add_u32 s{S_HOFF}, s{S_HOFF}, 8192
        v_lshlrev_b32 v{MBOP+8}, 2, v{t}
        v_mov_b32 v{MBOP+9}, 0x80008000
        ; mem store: 512j + 256(n>>3) + 32*(2q+u) + 4(n&7), u = wave
        s_lshl_b32 s{S_T0}, s{S_ROLE}, 9
        s_lshl_b32 s{S_T1}, s{S_WAVE}, 5
        s_add_u32 s{S_T0}, s{S_T0}, s{S_T1}
        v_lshlrev_b32 v{B_MST}, 6, v{t+1}
        v_lshrrev_b32 v{t+3}, 3, v{t+2}
        v_lshl_add_u32 v{B_MST}, v{t+3}, 8, v{B_MST}
        v_and_b32 v{t+3}, 7, v{t+2}
        v_lshl_add_u32 v{B_MST}, v{t+3}, 2, v{B_MST}
        v_add_u32 v{B_MST}, s{S_T0}, v{B_MST}
        v_lshrrev_b32 v{B_FW}, 1, v{B_LDSW}
        v_mov_b32 v{t+4}, 0
        ds_write_b64 v{B_FW}, {vr(t+4,2)} offset:{LDS_FP}
        ds_write_b64 v{B_FW}, {vr(t+4,2)} offset:{LDS_FP+512}
        s_waitcnt lgkmcnt(0)
        v_add_u32 v{B_M4}, 4096, v{B_LIN}
        v_and_b32 v{B_EW}, 3, v{t}
        v_lshlrev_b32 v{B_EW}, 9, v{B_EW}
        v_and_b32 v{t+3}, 4, v{t}
        v_lshlrev_b32 v{t+3}, 5, v{t+3}
        v_sub_u32 v{B_EW}, v{B_EW}, v{t+3}
        s_and_b32 s{S_T1}, s{S_ROLE}, 4
        s_xor_b32 s{S_T1}, s{S_T1}, s{S_FX}
        s_lshl_b32 s{S_T1}, s{S_T1}, 8
        s_add_u32 s{S_T1}, s{S_T1}, s{S_ROLE}
        s_lshl_b32 s{S_T1}, s{S_T1}, 1
        s_add_u32 s{S_T1}, s{S_T1}, {F_EP+256}
        v_add_u32 v{B_EW}, s{S_T1}, v{B_EW}
        v_mov_b32 v{t+3}, 0x7f000000
        v_cmp_gt_u32 vcc, 8, v{t}
        v_cndmask_b32 v{B_EW}, v{t+3}, v{B_EW}, vcc
        v_and_b32 v{t+3}, {3 if OPT['pw'] else 15}, v{t}
        s_mul_i32 s{S_T1}, s{S_WAVE}, {8 if OPT['pw'] else 0}
        v_lshl_add_u32 v{t+3}, v{t+3}, 1, s{S_T1}
        v_cmp_gt_u32 vcc, 32, v{t}
        v_cndmask_b32 v{t+3}, 64, v{t+3}, vcc
        s_and_b32 s{S_T2}, s{S_ROLE}, 3
        s_lshl_b32 s{S_T2}, s{S_T2}, 9
        s_add_u32 s{S_T2}, s{S_T2}, {F_EP}
        s_and_b32 s{S_T1}, s{S_WAVE}, 1
        s_lshl_b32 s{S_T1}, s{S_T1}, 2
        s_xor_b32 s{S_T1}, s{S_T1}, s{S_FX}
        s_lshl_b32 s{S_T1}, s{S_T1}, 9
        ''')
        if OPT['fard']:
            a(f'''
            s_lshr_b32 s{S_T0}, s{S_ROLE}, 2
            s_xor_b32 s{S_T0}, s{S_T0}, s{S_WAVE}
            s_and_b32 s{S_T0}, s{S_T0}, 1
            s_xor_b32 s{S_T0}, s{S_T0}, 1
            s_lshl_b32 s{S_T0}, s{S_T0}, 10
            s_add_u32 s{S_T1}, s{S_T1}, s{S_T0}
            s_and_b32 s{S_T0}, s{S_ROLE}, 1
            s_lshl_b32 s{S_T0}, s{S_T0}, 9
            s_add_u32 s{S_T1}, s{S_T1}, s{S_T0}
            s_add_u32 s{S_T1}, s{S_T1}, {F_EP}
            ''')
        else: a(f's_add_u32 s{S_T1}, s{S_T1}, s{S_T2}')
        a(f'''
        v_add_u32 v{B_ER}, s{S_T1}, v{t+3}
        s_xor_b32 s{S_T1}, s{S_SLOW}, 1
        v_mov_b32 v{t+3}, s{S_T1}
        v_cndmask_b32 v{B_INC}, 1, v{t+3}, vcc
        v_cndmask_b32 v{B_THR}, -1, 0, vcc
        v_cmp_gt_u32 vcc, 48, v{t}
        v_add_u32 v{t+3}, 2, v{B_ER}
        v_cndmask_b32 v{B_ER}, v{t+3}, v{B_ER}, vcc
        v_cndmask_b32 v{B_THR}, 1, v{B_THR}, vcc
        v_min_u32 v{t+3}, 13, v{t}
        v_and_b32 v{t+4}, 4, v{t+3}
        v_xor_b32 v{t+4}, s{S_FX}, v{t+4}
        v_lshl_add_u32 v{t+3}, v{t+4}, 8, v{t+3}
        s_add_u32 s{S_T0}, s{S_T2}, 128
        v_lshl_add_u32 v{B_EM}, v{t+3}, 1, s{S_T0}
        ''')
    def setup2():
        a(f'''
        s_mov_b32 s{S_STEP}, 0
        s_mul_i32 s{S_VOFF}, s{S_ROLE}, 32768
        s_lshl_b32 s{S_T0}, s{S_WAVE}, 13
        s_add_u32 s{S_VOFF}, s{S_VOFF}, s{S_T0}
        s_add_u32 s{S_VOFF}, s{S_VOFF}, {WS_V}
        s_mov_b32 s{S_VRDY}, 0
        s_add_u32 s{S_MCUR}, s{S_POL}, {WS_MEMR}
        s_add_u32 s{S_PCUR}, s{S_POL}, {WS_PR+3*16384}
        s_xor_b32 s{S_THM}, s{S_SLOW}, 1
        s_add_u32 s{S_V2}, s{S_VOFF}, 4096
        v_lshrrev_b32 v{V_FR}, 1, v{B_LIN}
        s_mov_b32 s{S_PAR}, 0
        v_mov_b32 v{B_PM}, v{B_MST}
        v_mov_b32 v{V_SENT}, -1
        v_mov_b32 v{B_EV}, 1
        s_mov_b32 s{S_SPIN}, 0
        ''')
    def dry_on():
        srd(a,S_R2,P_WS,0)
        a(f's_mov_b32 s{S_WS+2}, 0\ns_mov_b32 s{S_DRY}, 1\ns_mov_b32 s{S_STEP}, {NSTEP-1}')
    def dry_off():
        a(f's_waitcnt vmcnt(0) lgkmcnt(0)\ns_mov_b32 s{S_WS+2}, 0x10000000\ns_mov_b32 s{S_DRY}, 0\ns_barrier')
    DSP=a.newlabel('Bdsp'); BK=a.newlabel('Bback')
    a(f's_mov_b32 s{S_DRY}, 0')
    if OPT['dry']:
        a(f's_mov_b32 s{S_POL}, 0\ns_mov_b32 s{S_FX}, 4')
        b_setup(a); setup1(); setup2(); dry_on()
        a(f's_mov_b32 s{S_THM}, 0\nv_mov_b32 v{B_THR}, 0\nv_mov_b32 v{B_INC}, 0\ns_barrier\ns_branch {DSP}')
        a.label(BK)
        dry_off()
    def early(phase):
        if phase==2:
            team_barrier(a,NTEAM,t+8)
            a(f'v_mov_b32 v{B_EV}, 1\nbuffer_store_short v{B_EV}, v{B_EW}, {sr(S_WS,4)}, 0 offen')
            return
        a(f's_mov_b32 s{S_B0}, s{S_T1}\ns_mov_b32 s{S_B1}, s{S_T2}\nv_mov_b32 v12, v3')
        setup1()
        K=a.newlabel('Bi')
        a(f's_cmp_ge_u32 s{S_WAVE}, 2\ns_cbranch_scc1 {K}')
        a(f'''
        v_mov_b32 v{t+5}, -1
        s_add_u32 s{S_T0}, s{S_POL}, {WS_MEMR}
        s_add_u32 s{S_T1}, s{S_POL}, {WS_MEMR+8192}
        s_add_u32 s{S_T2}, s{S_POL}, {WS_MEMR+2*8192}
        s_add_u32 s{S_T3}, s{S_POL}, {WS_MEMR+3*8192}
        v_min_u32 v{B_HIST}, -2, v13
        ''')
        pub(a,[f'buffer_store_dword v{B_HIST if k==S_T0 else t+5}, v{B_MST}, {sr(S_WS,4)}, s{k} offen' for k in (S_T0,S_T1,S_T2,S_T3)])
        a.label(K)
        a(f's_mov_b32 s{S_T1}, s{S_B0}\ns_mov_b32 s{S_T2}, s{S_B1}\nv_mov_b32 v3, v12')
    b_setup(a)
    a(f'''
    v_lshl_add_u32 v{t+3}, v{t+1}, 1, s{S_WAVE}
    v_mul_u32_u24 v{t+3}, 896, v{t+3}
    v_lshl_add_u32 v{t+3}, v{t+2}, 2, v{t+3}
    s_lshl_b32 s{S_T0}, s{S_ROLE}, 6
    buffer_load_dword v13, v{t+3}, {sr(S_M0,4)}, s{S_T0} offen
    ''')
    b_weights(a,early)
    for k in range(4): a(f's_add_u32 s{S_T0}, s{S_POL}, {WS_MEMR+8192*k}\nbuffer_load_dword v{t+6}, v{B_MST}, {sr(S_WS,4)}, s{S_T0} offen sc1')
    setup2()
    a('s_waitcnt vmcnt(0)')
    rt(a,3)
    pfl=lambda r: f'buffer_load_ushort v{r}, v{B_ER}, {sr(S_WS,4)}, 0 offen sc1'
    a(f'v_max_i32 v{TMP}, 0, v{B_THR}')
    flag_poll(a, pfl, [FR], f'v{TMP}', 4)
    if OPT['hold']:
        a(f'L_hold:\ns_memrealtime s[42:43]\ns_waitcnt lgkmcnt(0)\ns_sub_u32 s42, s42, s40\ns_cmp_lt_u32 s42, {OPT["hold"]}\ns_cbranch_scc1 L_hold')
    if a.diag: calib(a)
    st.init(8)
    for o,_ in stg(0)+stg(1): a(o)
    LOOP=a.newlabel('Bloop'); L=a.newlabel('mpoll'); MOK=a.newlabel('mok'); H01=a.newlabel('Bh01'); FIN=a.newlabel('Bfin')
    def house():
        for r in ACCS+[FACC,FACC+4]: a(f'v_mov_b64 {vr(r,2)}, 0\nv_mov_b64 {vr(r+2,2)}, 0')
    a.label(DSP)
    a(f's_cmp_eq_u32 s{S_WAVE}, 3\ns_cbranch_scc1 {LOOP}')
    a.label(H01)
    a(f's_cmp_eq_u32 s{S_STEP}, {NSTEP}\ns_cbranch_scc1 {FIN}')
    vl=[]
    if OPT['vload']:
        for aa in (1,0):
            for tt in range(2):
                for hb in range(2):
                    vl.append(f'buffer_load_dwordx4 {vr(VP+16*aa+8*tt+4*hb,4)}, v{B_VG}, {sr(S_WS,4)}, s{S_V2 if aa else S_VOFF} offen offset:{hb*2048+tt*256} '+('sc1','sc1 nt','nt')[OPT['vnt']])
    ve=[vl.pop(0) for _ in range(min(OPT['vearly'],len(vl)))]
    house()
    a('s_barrier')
    for x in ve: a(x)
    a(f's_waitcnt lgkmcnt(0)\ns_branch {MOK}')
    a.label(LOOP)
    a(f's_cmp_eq_u32 s{S_STEP}, {NSTEP}\ns_cbranch_scc1 {FIN}')
    fl=lambda r: f'buffer_load_ushort v{r}, v{B_EM}, {sr(S_WS,4)}, 0 offen sc1'
    flag_poll(a, fl, FRS[:4], S_THM, 2)
    if OPT['bsleep']: a(f's_nop {OPT["bsleep"]}')
    mlo=['s_mov_b32 m0, 0']+[f'buffer_load_dwordx4 v{B_LIN}, {sr(S_WS,4)}, s{S_MCUR} offen offset:{1024*k} sc1 lds' for k in range(4)]+['s_mov_b32 m0, 4096']+[f'buffer_load_dwordx4 v{B_M4}, {sr(S_WS,4)}, s{S_MCUR} offen offset:{1024*k} sc1 lds' for k in range(3)]
    for x in mlo: a(x)
    st.abs(11)
    a('s_barrier')
    for x in ve: a(x)
    house()
    a(f's_waitcnt vmcnt({len(ve)}) lgkmcnt(0)')
    a.label(MOK)
    mrd=[f'ds_read_b128 {vr(MEMA+4*ks,4)}, v{B_LIN} offset:{LDS_MEM+1024*ks}' for ks in range(7)]
    mck=[f'v_max3_u32 v{TMP}, v{MEMA}, v{MEMA+1}, v{MEMA+2}', f'v_max_u32 v{TMP}, v{TMP}, v{MEMA+3}']+[f'v_max3_u32 v{TMP}, v{TMP}, v{MEMA+r}, v{MEMA+r+1}' for r in range(4,28,2)]+[f'v_cmp_eq_u32 vcc, -1, v{TMP}']
    a.outl.append(('raw',[f'{L}:','s_waitcnt lgkmcnt(0)','s_barrier',f's_cmp_lg_u32 s{S_WAVE}, 3',f's_cbranch_scc1 {L}_w']+mlo+['s_waitcnt vmcnt(0)',f'{L}_w:','s_barrier']+mrd+['s_waitcnt lgkmcnt(0)']+mck+
        [f's_cbranch_vccz {L}_ok',f's_add_u32 s{S_SPIN}, s{S_SPIN}, 1',f's_cmp_lt_u32 s{S_SPIN}, {SPIN}',f's_cbranch_scc1 {L}',f's_mov_b32 s{S_ERR}, 2',f's_branch {end}',f'{L}_ok:']+
        (['s_add_u32 s54, s54, 1'] if OPT['cnt'] else [])+[o for o,_ in stg(0)+stg(1)]+[f'v_mov_b64 {vr(r+k,2)}, 0' for r in ACCS[:3] for k in (0,2)]+['s_waitcnt lgkmcnt(0)',f's_branch {MOK}']))
    st.abs(0)
    a('s_barrier')
    for x in mrd: a(x)
    for _ in range(min(OPT['nearly'],len(vl))): a(vl.pop(0))
    def post(tile):
        hd,tt=tile>>1,tile&1; acc=ACCS[tile]
        return [f'v_add_f32 v{acc}, v{acc}, v{acc+1}', f'v_add_f32 v{acc+2}, v{acc+2}, v{acc+3}', f'v_cvt_pk_bf16_f32 v{MBOP+4*tt+hd}, v{acc}, v{acc+2}']
    book=f'''s_add_u32 s{S_VOFF}, s{S_VOFF}, {SEGV}
    s_add_u32 s{S_V2}, s{S_V2}, {SEGV}
    s_xor_b32 s{S_PAR}, s{S_PAR}, 1
    s_add_u32 s{S_PCUR}, s{S_PCUR}, 0x4000
    s_and_b32 s{S_PCUR}, s{S_PCUR}, 0xc800
    s_add_u32 s{S_PCUR}, s{S_PCUR}, {WS_PR}
    s_add_u32 s{S_PF}, s{S_PCUR}, s{S_HOFF}
    s_add_u32 s{S_STEP}, s{S_STEP}, 1
    s_add_u32 s{S_RST}, s{S_MCUR}, 0x6000
    s_and_b32 s{S_RST}, s{S_RST}, 0x6800
    s_add_u32 s{S_RST}, s{S_RST}, {WS_MEMR}
    s_add_u32 s{S_MCUR}, s{S_MCUR}, 0x2000
    s_and_b32 s{S_MCUR}, s{S_MCUR}, 0x6800
    s_add_u32 s{S_MCUR}, s{S_MCUR}, {WS_MEMR}
    s_xor_b32 s{S_T0}, s{S_SLOW}, 1
    s_add_u32 s{S_THM}, s{S_THM}, s{S_T0}'''.split('\n')
    PRE=[55-3*k for k in range(OPT['pre'])][::-1]
    def hook(i,kind):
        if kind=='mem':
            for k,n in ((0,5),(14,7),(35,12),(55,13)):
                if i==k: st.abs(n)
            if vl and i%OPT['vsp']==0: a(vl.pop(0)); return True
            if OPT['pre'] and i in PRE: a(pfl(FRS[PRE.index(i)])); return i<49
        if kind=='valu':
            if i<15: a(mck[i]); return True
            if i==54: a(f'v_add_u32 v{B_EV}, 1, v{B_EV}'); return True
            if i==48: a(f'v_xor_b32 v{B_PM}, 0x40000000, v{B_PM}'); return True
            if i==47: a(f'v_add_u32 v{B_THR}, v{B_THR}, v{B_INC}'); return True
        if kind=='salu' and i==17: a(f's_cbranch_vccnz {L}')
        if kind=='salu' and i>=28 and book: a(book.pop(0).strip())
        return False
    if OPT['bwait']: a(f's_sleep {OPT["bwait"]}')
    b_gemm(a,ACCS,post,hook,True)
    assert not book and not vl
    if OPT['pre']: a(pfl(FRS[OPT['pre']]))
    st.abs(2)
    st.endstep(TMP+6, -2)
    st.abs(10)
    V_L4B=MBOP+8; V_SGN=MBOP+9
    pl=[f'buffer_load_dwordx4 {vr(PP+4*k,4)}, v{B_PX}, {sr(S_WS,4)}, s{S_PCUR} offen offset:{1024*k} sc1' for k in range(2)]+\
       [f'buffer_load_dword v{PP+8+k}, v{V_L4B}, {sr(S_WS,4)}, s{S_PF} offen offset:{256*k} sc1' for k in range(2)]
    def fmm(k,tt):
        if k<2: return f'{SMF} {vr(FACC+4*tt,4)}, {vr(PP+4*k,4)}, {vr(VP+16*k+8*tt,8)}, v{B_IDX}'
        return f'v_smfmac_f32_16x16x32_bf16 {vr(FACC+4*tt,4)}, {vr(PP+8,2)}, {vr(MBOP+4*tt,4)}, v{B_IDX}'
    pck=[f'v_or3_b32 v{TMP}, v{PP}, v{PP+1}, v{PP+2}', f'v_or_b32 v{TMP}, v{TMP}, v{PP+3}', f'v_or3_b32 v{TMP}, v{TMP}, v{PP+4}, v{PP+5}', f'v_or3_b32 v{TMP}, v{TMP}, v{PP+6}, v{PP+7}',
         f'v_or3_b32 v{TMP}, v{TMP}, v{PP+8}, v{PP+9}', f'v_and_b32 v{TMP}, v{V_SGN}, v{TMP}', f'v_cmp_ne_u32 vcc, 0, v{TMP}']
    ew=f'buffer_store_short v{B_EV}, v{B_EW}, {sr(S_WS,4)}, 0 offen'
    if st.on==2: ew='s_memtime s[66:67]\n'+ew
    TL=[a.newlabel('Btail') for _ in range(4)]
    for v in (1,2,3): a(f's_cmp_eq_u32 s{S_WAVE}, {v}\ns_cbranch_scc1 {TL[v]}')
    for v in range(4):
        RDO=a.newlabel('Bredo'); G0=a.newlabel('Bgo')
        a.outl.append(('raw',[f'{RDO}:']+pl+[f'v_mov_b64 {vr(z,2)}, 0' for z in range(FACC,FACC+8,2)]+['s_waitcnt vmcnt(0)']+pck+[f's_cbranch_vccz {RDO}_ok',
            f's_add_u32 s{S_SPIN}, s{S_SPIN}, 1', f's_cmp_lt_u32 s{S_SPIN}, {SPIN}', f's_cbranch_scc1 {RDO}', f's_mov_b32 s{S_ERR}, 3', 's_branch L_end', f'{RDO}_ok:']+
            (['s_add_u32 s55, s55, 1'] if OPT['cnt'] else [])+[fmm(k,tt) for k in range(3) for tt in range(2)]+['s_nop 7',f's_branch {G0}']))
        a.label(TL[v])
        if v==3 or OPT['pw']: flag_poll(a, pfl, FRS, f'v{B_THR}', 3, pre=OPT['pre']+1 if OPT['pre'] else 0)
        if not OPT['pw']: a('s_barrier')
        if v==3 and OPT['w3del']: a(f's_nop {OPT["w3del"]-1}')
        if OPT['mord']==0:
            for k in range(4):
                a(pl[k])
                if k==0: st.abs(9)
                if k<2 and OPT['pgap']: a(f's_nop {OPT["pgap"]}')
            for k in range(3):
                a(f's_waitcnt vmcnt({(3,2,0)[k]})')
                if k==0: st.abs(3)
                a(fmm(k,0)); a(pck[2*k]); a(fmm(k,1)); a(pck[2*k+1])
        else:
            lo={1:(2,3,0,1),2:(0,2,3,1)}[OPT['mord']]
            for i_,k in enumerate(lo):
                a(pl[k])
                if i_==0: st.abs(9)
                if i_==2 and OPT['pgap']: a(f's_nop {OPT["pgap"]}')
            if OPT['mord']==1:
                a('s_waitcnt vmcnt(2)'); st.abs(3); a(fmm(2,0)); a(fmm(2,1))
                a('s_waitcnt vmcnt(1)'); a(fmm(0,0)); a(pck[0]); a(fmm(0,1)); a(pck[1]); a(pck[4])
            else:
                a('s_waitcnt vmcnt(3)'); st.abs(3); a(fmm(0,0)); a(pck[0]); a(fmm(0,1)); a(pck[1])
                a('s_waitcnt vmcnt(1)'); a(fmm(2,0)); a(pck[4]); a(fmm(2,1))
            a('s_waitcnt vmcnt(0)'); a(fmm(1,0)); a(pck[2]); a(fmm(1,1)); a(pck[3]); a(pck[5])
        a(pck[6])
        if OPT['xbar']==2: a('s_barrier')
        if OPT['bpos']==-2 and (v==3 or OPT['emall']): a(ew)
        st.abs(8)
        a.label(G0)
        EXR=MEMA
        us=[u for u in range(2) if u!=v]
        for u in us+([v] if v<2 else []): a(f'v_add_f32 v{EXR+2*u}, v{FACC+2*u}, v{FACC+2*u+1}')
        for u in us: a(f'v_and_or_b32 v{EXR+2*u}, v{EXR+2*u}, -4, s{S_PAR}')
        a(f's_cbranch_vccnz {RDO}')
        if OPT['bpos']==0 and (v==3 or OPT['emall']): a(ew)
        for u in us: a(f'v_add_f32 v{EXR+2*u+1}, v{FACC+4+2*u}, v{FACC+5+2*u}')
        if v>=2: a(f'ds_write2st64_b64 v{B_FW}, {vr(EXR,2)}, {vr(EXR+2,2)} offset0:{LDS_FP//512} offset1:{LDS_FP//512+1}') if OPT['w2'] else [a(f'ds_write_b64 v{B_FW}, {vr(EXR+2*u,2)} offset:{LDS_FP+512*u}') for u in us]
        else: a(f'ds_write_b64 v{B_FW}, {vr(EXR+2*us[0],2)} offset:{LDS_FP+512*us[0]}')
        if OPT['bpos']==1 and (v==3 or OPT['emall']): a(ew)
        if OPT['tnop']: a(f's_nop {OPT["tnop"]-1}')
        st.abs(4)
        a('s_barrier')
        if v>=2:
            if OPT['bpos']==2 and v==3: a(ew)
            a(f's_branch {LOOP if v==3 else H01}')
            continue
        RR=a.newlabel('Brr'); R=EXR+4; X=EXR+2*v
        a.label(RR)
        for k,w in enumerate([w for w in range(4) if w!=v]):
            a(f'ds_read_b64 {vr(R+2*k,2)}, v{V_FR} offset:{LDS_FP+1024*w+512*v}')
        a(f'v_add_f32 v{X+1}, v{FACC+4+2*v}, v{FACC+5+2*v}')
        a('s_waitcnt lgkmcnt(2)')
        a(f'v_pk_add_f32 {vr(R+6,2)}, {vr(X,2)}, {vr(R,2)}')
        a('s_waitcnt lgkmcnt(1)')
        a(f'v_pk_add_f32 {vr(R+6,2)}, {vr(R+6,2)}, {vr(R+2,2)}')
        a('s_waitcnt lgkmcnt(0)')
        a(f'v_pk_add_f32 {vr(R+6,2)}, {vr(R+6,2)}, {vr(R+4,2)}')
        a(f'v_add3_u32 v{R+8}, v{R}, v{R+2}, v{R+4}')
        a(f'v_lshl_add_u32 v{R+8}, v{R+8}, 30, v{B_PM}')
        a(f'v_cvt_pk_bf16_f32 v{R+6}, v{R+6}, v{R+7}')
        a(f'v_min_u32 v{B_HIST}, -2, v{R+6}')
        st.abs(6)
        pub2(a,[f'buffer_store_dword v{B_HIST}, v{R+8}, {sr(S_WS,4)}, s{S_MCUR} offen',
               f'buffer_store_dword v{V_SENT}, v{B_MST}, {sr(S_WS,4)}, s{S_RST} offen'])
        a(f'v_cmp_ne_u32 vcc, v{R+8}, v{B_MST}')
        if OPT['cnt']:
            a(f's_cbranch_vccnz {RR}_c'); a.outl.append(('raw',[f'{RR}_c:','s_add_u32 s53, s53, 1',f's_branch {RR}']))
        else: a(f's_cbranch_vccnz {RR}')
        a(f's_branch {H01}')
    a.label(FIN)
    if OPT['dry']: a(f's_cmp_lg_u32 s{S_DRY}, 0\ns_cbranch_scc1 {BK}')
    a(f'''
    s_cmp_ge_u32 s{S_WAVE}, 2
    s_cbranch_scc1 {end}
    s_mov_b32 s{S_T0}, {WS_MEMH+NSTEP*8192}
    {'' if OPT['bh']&1 else ';'}buffer_store_dword v{B_HIST}, v{B_MST}, {sr(S_WS,4)}, s{S_T0} offen sc1
    s_branch {end}
    ''')
    emit_outl(a)

def role_F(a, end='L_next'):
    a.comment('==== follower: column tile j = S_ROLE ====')
    b_setup(a)
    b_weights(a,False)
    ACCS=[76,80,128,116,120,188,92,96]
    a(f'''
    s_mov_b32 s{S_STEP}, 1
    s_mov_b32 s{S_HOFF}, {WS_MEMH}
    s_lshl_b32 s{S_MBO}, s{S_ROLE}, 13
    s_lshl_b32 s{S_T0}, s{S_WAVE}, 11
    s_add_u32 s{S_MBO}, s{S_MBO}, s{S_T0}
    s_add_u32 s{S_MBO}, s{S_MBO}, {WS_MBH}
    s_min_u32 s{S_T0}, s{S_T0}, 5120
    v_add_u32 v{B_M4}, s{S_T0}, v{B_LIN}
    s_lshl_b32 s{S_PF}, s{S_ROLE}, 7
    s_lshl_b32 s{S_T0}, s{S_WAVE}, 2
    s_add_u32 s{S_PF}, s{S_PF}, s{S_T0}
    s_add_u32 s{S_PF}, s{S_PF}, {F_B}
    v_mov_b32 v{TMP+1}, 0
    v_mov_b32 v{TMP+2}, 0
    s_mov_b32 s{S_VRDY}, 0
    s_waitcnt vmcnt(0)
    ''')
    for o,_ in stg(0)+stg(1): a(o)
    LOOP=a.newlabel('Floop'); GET=a.newlabel('Fget'); KN=a.newlabel('Fkn'); NP=a.newlabel('Fnp')
    fst=f's_mov_b64 exec, 1\nbuffer_store_dword v{TMP+2}, v{TMP+1}, {sr(S_WS,4)}, s{S_PF} offen sc1\ns_mov_b64 exec, -1'
    ld=[f'buffer_load_dwordx4 {vr(VP+4*k,4)}, v{B_M4}, {sr(S_WS,4)}, s{S_HOFF} offen offset:{1024*k} sc1' for k in range(2)]
    need=f's_sub_u32 s{S_T3}, s{S_STEP}, 2\ns_cmp_gt_u32 s{S_STEP}, {LASTSEG}\ns_cselect_b32 s{S_T3}, s{S_T3}, s{S_STEP}\ns_cmp_ge_u32 s{S_VRDY}, s{S_T3}'
    a(f's_and_b32 s{S_RST}, s{S_SLOT}, 15\ns_lshl_b32 s{S_RST}, s{S_RST}, 7\ns_add_u32 s{S_RST}, s{S_RST}, {F_R}')
    a.label(GET)
    a(need+f'\ns_cbranch_scc1 {KN}')
    a(f's_sub_u32 s{S_T0}, s{S_STEP}, 1\nv_mov_b32 v{TMP+2}, s{S_T0}\ns_waitcnt vmcnt(0)')
    a(fst)
    wait_prog(a,S_T3,t=TMP,vz=TMP+1,known=S_VRDY)
    a.label(KN)
    until_valid(a,ld,range(VP,VP+8),TMP)
    a(f's_cmp_lg_u32 s{S_ERR}, 0\ns_cbranch_scc1 L_end')
    a.label(LOOP)
    a('s_barrier')
    for k in range(2): a(f'ds_write_b128 v{B_M4}, {vr(VP+4*k,4)} offset:{LDS_MEM+1024*k}')
    for r in ACCS: a(f'v_mov_b64 {vr(r,2)}, 0\nv_mov_b64 {vr(r+2,2)}, 0')
    a('s_waitcnt lgkmcnt(0)\ns_barrier')
    for ks in range(7): a(f'ds_read_b128 {vr(MEMA+4*ks,4)}, v{B_LIN} offset:{LDS_MEM+1024*ks}')
    a(f's_add_u32 s{S_STEP}, s{S_STEP}, 1\ns_add_u32 s{S_HOFF}, s{S_HOFF}, 8192\nv_mov_b32 v{VP}, -1')
    a(need+f'\ns_cbranch_scc0 {NP}')
    for x in ld: a(x)
    a.label(NP)
    a(f'buffer_load_dword v{TMP+3}, v{TMP+1}, {sr(S_WS,4)}, s{S_RST} offen sc1')
    def post(tile):
        hd,tt=tile>>1,tile&1; acc=ACCS[tile]
        return [f'v_add_f32 v{acc}, v{acc}, v{acc+1}', f'v_add_f32 v{acc+2}, v{acc+2}, v{acc+3}', f'v_cvt_pk_bf16_f32 v{acc}, v{acc}, v{acc+2}', f'v_min_u32 v{MBP+4*tt+hd}, -2, v{acc}']
    b_gemm(a,ACCS,post,lambda i,k: False)
    for tt in range(2):
        b=MBP+4*tt
        a(f'v_permlane32_swap_b32 v{b}, v{b+2}\nv_permlane32_swap_b32 v{b+1}, v{b+3}')
    for tt in range(2):
        b=MBP+4*tt
        a(f'v_permlane16_swap_b32 v{b}, v{b+1}\nv_permlane16_swap_b32 v{b+2}, v{b+3}')
    for tt in range(2):
        a(f'buffer_store_dwordx4 {vr(MBP+4*tt,4)}, v{B_VG}, {sr(S_WS,4)}, s{S_MBO} offen offset:{256*tt} sc1')
    a(f'''
    s_cmp_gt_u32 s{S_STEP}, 64
    s_cbranch_scc1 L_end
    s_add_u32 s{S_MBO}, s{S_MBO}, {SEGMB}
    s_sub_u32 s{S_T0}, s{S_STEP}, 2
    v_mov_b32 v{TMP+2}, s{S_T0}
    s_waitcnt vmcnt(2)
    ''')
    a(fst)
    a(f'v_readfirstlane_b32 s{S_VRDY}, v{TMP+3}')
    poll_check(a, range(VP,VP+8), TMP+4)
    a(f's_cbranch_vccz {LOOP}\ns_branch {GET}')

def role_R(a, end='L_end'):
    a.comment('==== relay: copies every mem_s to the history buffer, then announces s+1 on 16 lines ====')
    t=VT
    L=a.newlabel('relay'); P=a.newlabel('relayp'); OK=a.newlabel('relayok')
    a(f's_cmp_ge_u32 s{S_WAVE}, 2\ns_cbranch_scc1 {end}')
    FW=a.newlabel('fwd'); RL=a.newlabel('rly')
    a(f'''
    v_lshlrev_b32 v{t+1}, 5, v{V_L4}
    v_mov_b32 v{t+2}, 0x7f000000
    v_cmp_gt_u32 vcc, 32, v{V_L4}
    v_lshlrev_b32 v{t+3}, 2, v{t+1}
    v_cndmask_b32 v{t+3}, v{t+2}, v{t+3}, vcc
    s_cmp_eq_u32 s{S_WAVE}, 0
    s_cbranch_scc1 {RL}
    s_mov_b32 s{S_T1}, {F_M+32}
    ''')
    wait_flags(a,t+1,f's{S_T1}',16,1,sleep=4)
    a(f'''
    s_mov_b32 s{S_T1}, {F_V}
    s_mov_b32 s{S_T2}, {F_EP+66}
    s_mov_b32 s{S_STEP}, 4
    {FW}:
    ''')
    wait_flags(a,V_L4,f's{S_T1}',32,'0x01010101',sleep=2)
    a(f's_cmp_lg_u32 s{S_ERR}, 0\ns_cbranch_scc1 {end}')
    a(f'v_mov_b32 v{t+5}, s{S_STEP}')
    pub(a,[f'buffer_store_short v{t+5}, v{t+3}, {sr(S_WS,4)}, s{S_T2} offen'])
    a(f'''
    s_add_u32 s{S_T1}, s{S_T1}, 128
    s_add_u32 s{S_STEP}, s{S_STEP}, 4
    s_cmp_lg_u32 s{S_ERR}, 0
    s_cbranch_scc1 {end}
    s_cmp_le_u32 s{S_STEP}, 64
    s_cbranch_scc1 {FW}
    s_branch {end}
    {RL}:
    ''')
    team_wait(a,end,t+8)
    a(f'''
    s_mov_b32 s{S_STEP}, 0
    s_mov_b32 s{S_HOFF}, {WS_MEMH}
    s_mov_b32 s{S_T2}, {F_EP+64}
    s_mov_b32 s{S_T3}, {F_T}
    {L}:
    s_and_b32 s{S_T0}, s{S_STEP}, 3
    s_lshl_b32 s{S_T0}, s{S_T0}, 13
    s_add_u32 s{S_T0}, s{S_T0}, {WS_MEMR}
    s_add_u32 s{S_T0}, s{S_T0}, s{S_POL}
    s_add_u32 s{S_T1}, s{S_T0}, 4096
    s_add_u32 s{S_STEP}, s{S_STEP}, 1
    v_mov_b32 v{t+4}, s{S_STEP}
    s_mov_b32 s{S_SPIN}, 0
    {P}:
    ''')
    for k in range(7): a(f'buffer_load_dwordx4 {vr(4*k,4)}, v{W_LIN}, {sr(S_WS,4)}, s{S_T0 if k<4 else S_T1} offen offset:{1024*(k%4)} sc1')
    a('s_waitcnt vmcnt(0)')
    poll_check(a, range(28), t+5)
    a(f'''
    s_cbranch_vccz {OK}
    s_add_u32 s{S_SPIN}, s{S_SPIN}, 1
    s_cmp_lt_u32 s{S_SPIN}, {SPIN}
    s_cbranch_scc1 {P}
    s_mov_b32 s{S_ERR}, 5
    s_branch {end}
    {OK}:
    s_add_u32 s{S_T1}, s{S_HOFF}, 4096
    ''')
    for k in range(7): a(f'buffer_store_dwordx4 {vr(4*k,4)}, v{W_LIN}, {sr(S_WS,4)}, s{S_HOFF if k<4 else S_T1} offen offset:{1024*(k%4)} sc1')
    pub(a,[f'buffer_store_short v{t+4}, v{t+3}, {sr(S_WS,4)}, s{S_T2} offen'])
    a(f'''
    s_add_u32 s{S_HOFF}, s{S_HOFF}, 8192
    s_waitcnt vmcnt(1)
    ''')
    pub(a,[f'buffer_store_dword v{t+4}, v{V_ZERO}, {sr(S_WS,4)}, s{S_T3} offen'])
    a(f'''
    s_cmp_lt_u32 s{S_STEP}, {64 if OPT['bh']&2 else 63}
    s_cbranch_scc1 {L}
    s_branch {end}
    ''')
    emit_outl(a)

def role_W(a, end='L_end'):
    a.comment('==== cache warmer: touches the x fragments a few segments ahead of the team ====')
    t=VT
    L=a.newlabel('warm'); N=a.newlabel('warmn'); AN=a.newlabel('ann'); WM=a.newlabel('wm'); KW=a.newlabel('kw')
    a(f'''
    v_lshlrev_b32 v{t+1}, 5, v{V_L4}
    s_cmp_ge_u32 s{S_WAVE}, 2
    s_cbranch_scc1 {WM}
    s_cmp_eq_u32 s{S_WAVE}, 1
    s_cbranch_scc1 {KW}
    s_mov_b32 s{S_STEP}, 1
    s_mov_b32 s{S_T1}, {F_T}
    s_mov_b32 s{S_T2}, {F_R}
    {AN}:
    ''')
    wait_flags(a,V_ZERO,f's{S_T1}',16,f's{S_STEP}',sleep=1)
    a(f'''
    s_cmp_lg_u32 s{S_ERR}, 0
    s_cbranch_scc1 {end}
    v_readfirstlane_b32 s{S_STEP}, v{VT+40}
    s_mov_b64 exec, 0xffff
    buffer_store_dword v{VT+40}, v{t+1}, {sr(S_WS,4)}, s{S_T2} offen sc1
    s_mov_b64 exec, -1
    s_add_u32 s{S_STEP}, s{S_STEP}, 1
    s_cmp_le_u32 s{S_STEP}, 62
    s_cbranch_scc1 {AN}
    s_branch {end}
    {WM}:
    s_mov_b32 s{S_T0}, {F_TEAM}
    ''')
    wait_flags(a,V_ZERO,f's{S_T0}',1,1,sleep=4)
    a(f'''
    s_lshl_b32 s{S_T1}, s{S_WAVE}, 14
    s_add_u32 s{S_T1}, s{S_T1}, {WS_XF-32768}
    s_mov_b32 s{S_T0}, {F_EP+64}
    s_mov_b32 s{S_STEP}, 0
    s_mov_b32 s{S_SPIN}, 0
    {L}:
    s_lshr_b32 s{S_T3}, s{S_STEP}, 2
    s_lshl_b32 s{S_T3}, s{S_T3}, 7
    s_add_u32 s{S_T3}, s{S_T3}, {F_M+32}
    buffer_load_ushort v{t}, v{V_ZERO}, {sr(S_WS,4)}, s{S_T0} offen sc1
    buffer_load_dword v{t+3}, v{V_ZERO}, {sr(S_WS,4)}, s{S_T3} offen sc1
    s_waitcnt vmcnt(0)
    v_readfirstlane_b32 s{S_T2}, v{t}
    v_readfirstlane_b32 s{S_T3}, v{t+3}
    s_cmp_eq_u32 s{S_T3}, 0
    s_cbranch_scc1 {N}
    s_add_u32 s{S_T2}, s{S_T2}, {OPT['ahead']}
    s_cmp_gt_u32 s{S_STEP}, s{S_T2}
    s_cbranch_scc1 {N}
    buffer_load_dword v{t+2}, v{t+1}, {sr(S_WS,4)}, s{S_T1} offen sc1
    s_add_u32 s{S_T1}, s{S_T1}, 8192
    buffer_load_dword v{t+2}, v{t+1}, {sr(S_WS,4)}, s{S_T1} offen sc1
    s_add_u32 s{S_T1}, s{S_T1}, 24576
    s_add_u32 s{S_STEP}, s{S_STEP}, 1
    s_mov_b32 s{S_SPIN}, 0
    s_cmp_lt_u32 s{S_STEP}, {NSTEP}
    s_cbranch_scc1 {L}
    s_branch {end}
    {N}:
    s_sleep 8
    s_add_u32 s{S_SPIN}, s{S_SPIN}, 1
    s_cmp_lt_u32 s{S_SPIN}, {SPINS}
    s_cbranch_scc1 {L}
    s_branch {end}
    ''')
    a(f'''
    {KW}:
    s_mov_b32 s{S_SPIN}, 0
    s_mov_b32 s{S_T2}, {F_EP+64}
    {KW}_l:
    ''')
    for base in [WS_MEMR+8192*k for k in range(4)]+[WS_PR+16384*k+o for k in range(4) for o in (0,8192)]:
        a(f's_add_u32 s{S_T0}, s{S_POL}, {base}\nbuffer_load_dword v{t+2}, v{t+1}, {sr(S_WS,4)}, s{S_T0} offen sc1')
    a(f'''
    buffer_load_ushort v{t}, v{V_ZERO}, {sr(S_WS,4)}, s{S_T2} offen sc1
    s_waitcnt vmcnt(0)
    v_readfirstlane_b32 s{S_T1}, v{t}
    s_cmp_ge_u32 s{S_T1}, 2
    s_cbranch_scc1 {end}
    s_sleep 16
    s_add_u32 s{S_SPIN}, s{S_SPIN}, 1
    s_cmp_lt_u32 s{S_SPIN}, {SPINS//4}
    s_cbranch_scc1 {KW}_l
    s_branch {end}
    ''')
```

```python
from asmb import *
from layout import *
import math, struct
def f32(x): return '0x%08x'%struct.unpack('<I',struct.pack('<f',x))[0]
LOG2E=1.4426950408889634
OPTW=dict(touch=1,nt=2,cpf=1,pprof=0,nc=3,idle=0,xi=8,fd=0,fe=10,xtt=1,hm=0,hv=2,pm4=1,usl=0,frel=-1,ep=0,ost=0,t2e=0,xs=0,only=0,psl=24,wsl=4,tw=0,lag=1,xt=-1,st1=1,st2=3,dsp=4,nh=1,nv=4,nq=3,nm=8)

V_LIN,V_LIN2,V_DMA,V_XS,V_XR0,V_XR1,V_L4,V_ZERO,V_TR,V_TR2,V_TQ,V_TQ2,V_RM1,V_RM2,V_HH16,V_RANK=range(192,208)
VT=208
ACC=112; SAC=144; EX=160
AW=112; AMEM=144
LDS_XST=28672; LDS_TAB=143360; LDS_BC=163824

def wait_flags(a, vaddr, soff, nl, thresh, width=1, sleep=4, err=9, t=VT+40):
    L=a.newlabel('wf'); D=a.newlabel('wfd')
    if nl<32: a(f's_mov_b64 exec, {hex((1<<nl)-1)}')
    elif nl==32: a('s_mov_b32 exec_hi, 0')
    elif nl<64: a(f's_mov_b32 exec_hi, {hex((1<<(nl-32))-1)}')
    a(f's_mov_b32 s{S_SPIN}, 0')
    a.label(L)
    if width==1:
        a(f'buffer_load_dword v{t}, v{vaddr}, {sr(S_WS,4)}, {soff} offen sc1\ns_waitcnt vmcnt(0)')
    else:
        a(f'buffer_load_dwordx4 {vr(t,4)}, v{vaddr}, {sr(S_WS,4)}, {soff} offen sc1\ns_waitcnt vmcnt(0)')
        a(f'v_min3_u32 v{t}, v{t}, v{t+1}, v{t+2}\nv_min_u32 v{t}, v{t}, v{t+3}')
    a(f'v_cmp_gt_u32 vcc, {thresh}, v{t}')
    a(f's_cbranch_vccz {D}')
    if sleep: a(f's_sleep {sleep if sleep<4 else OPTW["wsl"]}')
    a(f's_add_u32 s{S_SPIN}, s{S_SPIN}, 1\ns_cmp_lt_u32 s{S_SPIN}, {SPINS}\ns_cbranch_scc1 {L}')
    a(f's_mov_b32 s{S_ERR}, {err}')
    a.label(D)
    a('s_mov_b64 exec, -1')
    a.vq=[]

def wait_prog(a, thresh, t=VT+40, vz=V_ZERO, known=None):
    L=a.newlabel('wp'); D=a.newlabel('wpd'); S=a.newlabel('wps')
    a(f'''
    s_and_b32 s{S_T0}, s{S_SLOT}, 15
    s_lshl_b32 s{S_T0}, s{S_T0}, 7
    s_add_u32 s{S_T0}, s{S_T0}, {F_R}
    s_mov_b32 s{S_SPIN}, 0
    s_mov_b64 exec, 1
    {L}:
    buffer_load_dword v{t}, v{vz}, {sr(S_WS,4)}, s{S_T0} offen sc1
    s_waitcnt vmcnt(0)
    v_readfirstlane_b32 s{S_T4}, v{t}
    s_cmp_ge_u32 s{S_T4}, s{thresh}
    s_cbranch_scc1 {D}
    s_add_u32 s{S_T4}, s{S_T4}, 2
    s_cmp_gt_u32 s{S_T4}, s{thresh}
    s_cbranch_scc1 {S}
    s_sleep {OPTW['psl']}
    {S}:
    s_sleep 2
    s_add_u32 s{S_SPIN}, s{S_SPIN}, 1
    s_cmp_lt_u32 s{S_SPIN}, {SPINS}
    s_cbranch_scc1 {L}
    s_mov_b32 s{S_ERR}, 10
    {D}:
    s_mov_b64 exec, -1
    ''')
    if known: a(f's_mov_b32 s{known}, s{S_T4}')
    a.vq=[]

LASTSEG=60
def relax(a, dst, seg, d=-1):
    a(f's_cmp_ge_u32 s{seg}, {LASTSEG}\ns_cselect_b32 s{dst}, {d}, 1\ns_add_u32 s{dst}, s{dst}, s{seg}')

def until_valid(a, loads, regs, tmp, err=11):
    L=a.newlabel('uv'); D=a.newlabel('uvd')
    a(f's_mov_b32 s{S_SPIN}, 0')
    a.label(L)
    for x in loads: a(x)
    r=list(regs); n=len(loads); per=len(r)//n
    for i in range(n):
        a(f's_waitcnt vmcnt({n-1-i})')
        q=r[per*i:per*i+per]
        a(f'v_max3_u32 v{tmp}, v{q[0]}, v{q[1]}, v{q[2] if i==0 else tmp}')
        a(f'v_max_u32 v{tmp}, v{tmp}, v{q[3]}' if i==0 else f'v_max3_u32 v{tmp}, v{q[2]}, v{q[3]}, v{tmp}')
    a(f'v_cmp_eq_u32 vcc, -1, v{tmp}\ns_cbranch_vccz {D}')
    if OPTW['usl']: a(f's_sleep {OPTW["usl"]}')
    a(f's_add_u32 s{S_SPIN}, s{S_SPIN}, 1\ns_cmp_lt_u32 s{S_SPIN}, {SPINS}\ns_cbranch_scc1 {L}\ns_mov_b32 s{S_ERR}, {err}')
    a.label(D)
    a.vq=[]

def set_flag(a, soff, val='1', kind='dword'):
    t=VT+40
    a(f'v_mov_b32 v{t}, {val}\ns_mov_b64 exec, 1')
    a(f'buffer_store_{kind} v{t}, v{V_ZERO}, {sr(S_WS,4)}, {soff} offen sc1')
    a('s_mov_b64 exec, -1')

def wg_flag(a, soff, val='1', kind='dword'):
    K=a.newlabel('sf')
    a.drain_vm(); a('s_barrier')
    a(f's_cmp_lg_u32 s{S_WAVE}, 0\ns_cbranch_scc1 {K}')
    set_flag(a,soff,val,kind)
    a.label(K)

def work_consts(a):
    t=VT
    a(f'''
    v_mbcnt_lo_u32_b32 v{t}, -1, 0
    v_mbcnt_hi_u32_b32 v{t}, -1, v{t}
    v_lshlrev_b32 v{V_LIN}, 4, v{t}
    v_add_u32 v{V_LIN2}, 57344, v{V_LIN}
    s_mul_i32 s{S_T0}, s{S_WAVE}, 7168
    v_add_u32 v{V_DMA}, s{S_T0}, v{V_LIN}
    v_lshlrev_b32 v{V_L4}, 2, v{t}
    v_mov_b32 v{V_ZERO}, 0
    v_lshrrev_b32 v{t+1}, 4, v{t}
    v_xor_b32 v{t+1}, v{t+1}, v{t}
    v_and_b32 v{t+1}, 3, v{t+1}
    v_lshlrev_b32 v{t+1}, 4, v{t+1}
    v_lshrrev_b32 v{t+2}, 2, v{t}
    v_mul_u32_u24 v{V_XS}, 896, v{t+2}
    v_add_u32 v{V_XS}, v{V_XS}, v{t+1}
    v_lshrrev_b32 v{t+3}, 5, v{t}
    v_bfe_u32 v{t+4}, v{t}, 2, 2
    v_xor_b32 v{t+4}, v{t+4}, v{t+3}
    v_lshlrev_b32 v{t+4}, 4, v{t+4}
    v_and_b32 v{t+5}, 31, v{t}
    v_lshl_add_u32 v{V_XR0}, v{t+5}, 6, v{t+4}
    v_xor_b32 v{V_XR1}, 32, v{V_XR0}
    v_lshlrev_b32 v{V_HH16}, 4, v{t+3}
    v_bfe_u32 v{t+4}, v{t}, 2, 2
    v_lshlrev_b32 v{t+4}, 6, v{t+4}
    v_and_b32 v{t+5}, 3, v{t}
    v_lshl_add_u32 v{t+4}, v{t+5}, 3, v{t+4}
    v_bfe_u32 v{t+5}, v{t}, 4, 1
    v_lshl_add_u32 v{t+4}, v{t+5}, 5, v{t+4}
    v_lshl_add_u32 v{V_TR}, v{t+3}, 9, v{t+4}
    v_add_u32 v{V_TR2}, 57344, v{V_TR}
    v_lshl_add_u32 v{V_TQ}, v{t+3}, 8, v{t+4}
    v_add_u32 v{V_TQ2}, 57344, v{V_TQ}
    s_mul_i32 s{S_T0}, s{S_WAVE}, 112
    v_add_u32 v{t+2}, s{S_T0}, v{t+2}
    v_and_b32 v{t+5}, 3, v{t}
    v_lshlrev_b32 v{t+5}, 4, v{t+5}
    v_mul_u32_u24 v{V_RM1}, 3584, v{t+2}
    v_add_u32 v{V_RM1}, v{V_RM1}, v{t+5}
    v_mul_u32_u24 v{V_RM2}, 896, v{t+2}
    v_add_u32 v{V_RM2}, v{V_RM2}, v{t+5}
    ''')

def unit_of(a, sW):
    LB=a.newlabel('uoB'); LJ=a.newlabel('uoJ')
    assert all((u*9363)>>16==u//7 for u in range(256))
    a(f'''
    s_mul_i32 s{S_G}, s{sW}, 9363
    s_lshr_b32 s{S_G}, s{S_G}, 16
    s_mul_i32 s{S_VRDY}, s{S_G}, 7
    s_sub_u32 s{S_SEG}, s{sW}, s{S_VRDY}
    s_lshr_b32 s{S_H}, s{S_G}, 1
    s_and_b32 s{S_G}, s{S_G}, 1
    s_lshl_b32 s{S_G}, s{S_G}, 4
    s_add_u32 s{S_G}, s{S_G}, s{S_H}
    s_add_u32 s{S_XOFF}, s{S_VRDY}, 6
    s_xor_b32 s{S_VRDY}, s{S_VRDY}, s{S_XOFF}
    s_cmp_ge_u32 s{S_G}, 16
    s_cselect_b32 s{S_R1}, s{P_WV}, s{P_WQ}
    s_cselect_b32 s{S_R1+1}, s{P_WV+1}, s{P_WQ+1}
    s_cselect_b32 s{S_R2}, s{P_WO}, s{P_WK}
    s_cselect_b32 s{S_R2+1}, s{P_WO+1}, s{P_WK+1}
    s_mov_b32 s{S_R1+2}, 3670016
    s_mov_b32 s{S_R2+2}, 3670016
    s_mov_b32 s{S_R1+3}, 0x20000
    s_mov_b32 s{S_R2+3}, 0x20000
    ''')

def first_touch(a):
    t=VT; K=a.newlabel('ft'); L=a.newlabel('ftl')
    a(f'''
    s_sub_u32 s{S_T0}, s{S_XCC}, 1
    s_cmp_ge_u32 s{S_T0}, 7
    s_cbranch_scc1 {K}
    s_lshl_b32 s{S_T0}, s{S_T0}, 5
    s_lshr_b32 s{S_T1}, s2, 3
    s_add_u32 s{S_T1}, s{S_T1}, s{S_T0}
    ''')
    unit_of(a,S_T1)
    a(f'''
    v_lshrrev_b32 v{t}, 2, v0
    v_lshlrev_b32 v{t}, 13, v{t}
    v_and_b32 v{t+1}, 3, v0
    v_lshl_add_u32 v{t}, v{t+1}, 7, v{t}
    v_mul_u32_u24 v{t+1}, 896, v0
    s_lshl_b32 s{S_B0}, s{S_H}, 9
    s_lshl_b32 s{S_T2}, s{S_SEG}, 19
    s_add_u32 s{S_T2}, s{S_T2}, s{S_B0}
    s_mul_i32 s{S_T3}, s{S_H}, 229376
    s_lshl_b32 s{S_T4}, s{S_SEG}, 7
    s_add_u32 s{S_T3}, s{S_T3}, s{S_T4}
    s_cmp_ge_u32 s{S_G}, 16
    s_cselect_b32 s{S_T2}, s{S_T3}, s{S_T2}
    s_cselect_b64 vcc, -1, 0
    v_cndmask_b32 v{t+1}, v{t}, v{t+1}, vcc
    buffer_load_dword v255, v{t+1}, {sr(S_R2,4)}, s{S_T2} offen nt
    s_mul_i32 s{S_T2}, s{S_SEG}, 74
    v_min_u32 v{t}, 73, v0
    v_add_u32 v{t}, s{S_T2}, v{t}
    v_min_u32 v{t}, 511, v{t}
    v_lshrrev_b32 v{t+1}, 8, v{t}
    v_mul_u32_u24 v{t+1}, 640, v{t+1}
    v_add_u32 v{t}, v{t}, v{t+1}
    v_lshrrev_b32 v{t+1}, 2, v{t}
    v_lshlrev_b32 v{t+1}, 13, v{t+1}
    v_and_b32 v{t}, 3, v{t}
    v_lshl_add_u32 v{t}, v{t}, 7, v{t+1}
    s_cmp_ge_u32 s{S_VRDY}, 32
    s_cbranch_scc1 {L}
    buffer_load_dword v255, v{t}, {sr(S_R1,4)}, s{S_B0} offen nt
    s_branch {K}
    {L}:
    buffer_load_dword v255, v{t}, {sr(S_R1,4)}, s{S_B0} offen
    {K}:
    ''')

def wait_init(a, v, have=False):
    L=a.newlabel('wi'); D=a.newlabel('wid')
    a(f's_mov_b32 s{S_SPIN}, 0')
    if not have: a(f'v_mov_b32 v{v}, 0')
    a.label(L)
    a(f'v_cmp_eq_u32 vcc, 0, v{v}\ns_cbranch_vccz {D}')
    a(f'buffer_load_dword v{v}, v{V_ZERO}, {sr(S_DBG,4)}, 0 offen offset:{D_INIT} sc1\ns_waitcnt vmcnt(0)')
    a(f's_add_u32 s{S_SPIN}, s{S_SPIN}, 1\ns_cmp_lt_u32 s{S_SPIN}, {SPINS}\ns_cbranch_scc1 {L}')
    a('s_branch L_exit')
    a.label(D)

def prep(a):
    t=VT
    BF=0; AF=64; PA=128
    V_RS,V_ST,V_RS1,V_FB=t+8,t+9,t+10,t+11
    V_AR=[t+12+k for k in range(4)]
    def radr(sbase, c=0):
        a(f's_add_u32 s{S_T1}, s{sbase}, {c}\nv_add_u32 v{V_AR[0]}, s{S_T1}, v{V_FB}')
        for kl in (1,2,3): a(f'v_xor_b32 v{V_AR[kl]}, {32*kl}, v{V_AR[0]}')
    pp(a,2)
    a(f's_sub_u32 s{S_T0}, s{S_SLOT}, 32')
    if OPTW['xs']:
        a(f's_lshl_b32 s{S_T1}, s{S_T0}, 2\ns_add_u32 s{S_T1}, s{S_T1}, s{S_WAVE}\ns_lshl_b32 s{S_T1}, s{S_T1}, 11\ns_add_u32 s50, s{P_X}, s{S_T1}\ns_addc_u32 s51, s{P_X+1}, 0')
        for k in range(16): a(f's_load_dword s52, s[50:51], {128*k}')
    unit_of(a,S_T0)
    a(f'''
    s_and_b32 s{S_T2}, s{S_WAVE}, 1
    s_lshr_b32 s{S_T3}, s{S_WAVE}, 1
    v_lshrrev_b32 v{t}, 7, v{V_LIN}
    v_lshlrev_b32 v{V_RS}, 13, v{t}
    v_lshrrev_b32 v{t+1}, 4, v{V_LIN}
    v_and_b32 v{t+1}, 0x30, v{t+1}
    v_xor_b32 v{t+1}, v{t+1}, v{V_LIN}
    v_and_b32 v{t+1}, 0x70, v{t+1}
    v_add_u32 v{V_RS}, v{V_RS}, v{t+1}
    v_xor_b32 v{V_RS1}, 64, v{V_RS}
    v_bfe_u32 v{t}, v{V_LIN}, 5, 3
    v_lshlrev_b32 v{t}, 4, v{t}
    v_xor_b32 v{t}, v{t}, v{V_HH16}
    v_and_b32 v{t+1}, 0x1f0, v{V_LIN}
    v_lshl_add_u32 v{V_FB}, v{t+1}, 3, v{t}
    v_lshrrev_b32 v{t+2}, 6, v{V_LIN}
    v_mul_u32_u24 v{t+2}, 896, v{t+2}
    s_lshl_b32 s{S_T4}, s{S_T2}, 14
    s_add_u32 s{S_T4}, s{S_T4}, {4*32768}
    s_lshl_b32 s{S_T5}, s{S_T3}, 13
    s_add_u32 s{S_T5}, s{S_T5}, s{S_T4}
    s_lshl_b32 s{S_MBO}, s{S_SEG}, 1
    s_add_u32 s{S_MBO}, s{S_MBO}, s{S_T2}
    ''')
    LB=a.newlabel('prepB'); LJ=a.newlabel('prepJ'); LB2=a.newlabel('prepB2'); LJ2=a.newlabel('prepJ2')
    def touch2():
        TL=a.newlabel('t2'); TK=a.newlabel('t2k')
        a(f'''
        s_mul_i32 s{S_T0}, s{S_SEG}, 183
        s_lshl_b32 s{S_T1}, s{S_WAVE}, 6
        v_lshrrev_b32 v{t+3}, 4, v{V_LIN}
        v_add_u32 v{t+3}, s{S_T1}, v{t+3}
        v_min_u32 v{t+3}, 182, v{t+3}
        v_add_u32 v{t+3}, s{S_T0}, v{t+3}
        v_min_u32 v{t+3}, 1279, v{t+3}
        v_cmp_lt_u32 vcc, 639, v{t+3}
        v_cndmask_b32 v{t+4}, 1, 2, vcc
        v_lshl_add_u32 v{t+3}, v{t+4}, 8, v{t+3}
        v_lshrrev_b32 v{t+4}, 2, v{t+3}
        v_lshlrev_b32 v{t+4}, 13, v{t+4}
        v_and_b32 v{t+3}, 3, v{t+3}
        v_lshl_add_u32 v{t+3}, v{t+3}, 7, v{t+4}
        s_lshl_b32 s{S_T0}, s{S_H}, 9
        s_cmp_ge_u32 s{S_VRDY}, 32
        s_cbranch_scc1 {TL}
        buffer_load_dword v255, v{t+3}, {sr(S_R1,4)}, s{S_T0} offen nt
        s_branch {TK}
        {TL}:
        buffer_load_dword v255, v{t+3}, {sr(S_R1,4)}, s{S_T0} offen
        {TK}:
        ''')
    if OPTW['t2e']: touch2()
    if OPTW['tw']: a('s_waitcnt vmcnt(0)')
    pp(a,13)
    a(f's_cmp_ge_u32 s{S_G}, 16\ns_cbranch_scc1 {LB}')
    a(f'''
    s_lshl_b32 s{S_T0}, s{S_MBO}, 18
    s_lshl_b32 s{S_T1}, s{S_H}, 9
    s_add_u32 s{S_T0}, s{S_T0}, s{S_T1}
    s_lshl_b32 s{S_T1}, s{S_T3}, 8
    s_add_u32 s{S_T0}, s{S_T0}, s{S_T1}
    ''')
    for R in range(4):
        a(f's_add_u32 s{S_T1}, s{S_T0}, {8*R*8192}')
        for c in range(2):
            a(f's_add_u32 m0, s{S_T5}, {c*4096+R*1024-128*c}')
            a(f'buffer_load_dwordx4 v{V_RS1 if R&1 else V_RS}, {sr(S_R2,4)}, s{S_T1} offen offset:{128*c} lds')
    a(f'''
    s_mov_b32 s{S_PF}, {f32(LOG2E/16)}
    s_mov_b32 s{S_VOFF}, {WS_A}
    v_bfe_u32 v{t}, v{V_LIN}, 5, 2
    v_bfe_u32 v{t+1}, v{V_LIN}, 4, 1
    v_lshl_add_u32 v{t}, v{t+1}, 3, v{t}
    v_bfe_u32 v{t+1}, v{V_LIN}, 7, 1
    v_lshl_add_u32 v{t}, v{t+1}, 4, v{t}
    v_bfe_u32 v{t+1}, v{V_LIN}, 8, 1
    v_lshl_add_u32 v{t}, v{t+1}, 2, v{t}
    s_branch {LJ}
    {LB}:
    v_and_b32 v{t+1}, 48, v{V_LIN}
    v_add_u32 v{t+2}, v{t+2}, v{t+1}
    s_mul_i32 s{S_T0}, s{S_H}, 229376
    s_lshl_b32 s{S_T1}, s{S_MBO}, 6
    s_add_u32 s{S_T0}, s{S_T0}, s{S_T1}
    s_mul_i32 s{S_T1}, s{S_T3}, {128*896}
    s_add_u32 s{S_T0}, s{S_T0}, s{S_T1}
    ''')
    for i in range(8):
        a(f's_add_u32 m0, s{S_T5}, {i*1024}')
        a(f'buffer_load_dwordx4 v{t+2}, {sr(S_R2,4)}, s{S_T0} offen lds')
        a(f's_add_u32 s{S_T0}, s{S_T0}, {16*896}')
    a(f'''
    s_mov_b32 s{S_PF}, 1.0
    s_mov_b32 s{S_VOFF}, {WS_B}
    v_bfe_u32 v{t}, v{V_LIN}, 5, 4
    v_bfe_u32 v{t+1}, v{V_LIN}, 4, 1
    v_lshl_add_u32 v{t}, v{t+1}, 4, v{t}
    {LJ}:
    ''')
    a.vq=['b']
    a(f'''
    s_mul_i32 s{S_B0}, s{S_T3}, {7*32*8192}
    s_lshl_b32 s{S_T0}, s{S_H}, 9
    s_add_u32 s{S_B0}, s{S_B0}, s{S_T0}
    s_lshl_b32 s{S_T0}, s{S_T2}, 8
    s_add_u32 s{S_B0}, s{S_B0}, s{S_T0}
    s_lshl_b32 s{S_B1}, s{S_WAVE}, 13
    ''')
    def step_dma(j):
        o=[]
        for R in range(4):
            o.append(f's_add_u32 s{S_T0}, s{S_B0}, {(j*32+8*R)*8192}')
            for c in range(2):
                o.append(f's_add_u32 m0, s{S_B1}, {(j%4)*32768+c*4096+R*1024-128*c}')
                o.append(('vm',f'buffer_load_dwordx4 v{V_RS1 if R&1 else V_RS}, {sr(S_R1,4)}, s{S_T0} offen offset:{128*c} lds', f'd{j}'))
        return o
    for j in range(2):
        for o in step_dma(j): a.auto(o)
    if not OPTW['t2e']: touch2(); a.vq.append('t2')
    a(f'''
    v_and_b32 v{t+1}, 512, v{V_LIN}
    v_lshl_add_u32 v{V_ST}, v{t}, 4, v{t+1}
    s_mul_i32 s{S_T1}, s{S_H}, {MAT}
    s_add_u32 s{S_VOFF}, s{S_VOFF}, s{S_T1}
    s_mul_i32 s{S_T0}, s{S_MBO}, 28672
    s_add_u32 s{S_VOFF}, s{S_VOFF}, s{S_T0}
    s_mul_i32 s{S_T0}, s{S_T3}, {7*2048}
    s_add_u32 s{S_VOFF}, s{S_VOFF}, s{S_T0}
    s_lshl_b32 s{S_T5}, s{S_T3}, 14
    s_lshl_b32 s{S_RST}, s{S_G}, 7
    s_lshl_b32 s{S_T1}, s{S_SEG}, 2
    s_add_u32 s{S_RST}, s{S_RST}, s{S_T1}
    s_add_u32 s{S_RST}, s{S_RST}, {F_W}
    ''')
    radr(S_T4)
    pp(a,3)
    a.wait_vm('b'); pp(a,4); a('s_barrier')
    a(f's_cmp_ge_u32 s{S_G}, 16\ns_cbranch_scc1 {LB2}')
    for k in range(16):
        a(f'ds_read_b128 {vr(BF+4*k,4)}, v{V_AR[k&3]} offset:{4096*(k>>2)}')
    a(f's_branch {LJ2}')
    a.label(LB2)
    a(f'v_add_u32 v{V_AR[0]}, s{S_T4}, v{V_TR}')
    for k in range(16):
        a(f'ds_read_b64_tr_b16 {vr(BF+4*k,2)}, v{V_AR[0]} offset:{1024*k}')
        a(f'ds_read_b64_tr_b16 {vr(BF+4*k+2,2)}, v{V_AR[0]} offset:{1024*k+256}')
    a.label(LJ2)
    a.drain_ds()
    if a.diag: a('s_memrealtime s[44:45]\ns_waitcnt lgkmcnt(0)')
    def epi(dt):
        acc=PA+16*(dt&1); o=[]
        for r in range(16): o.append(f'v_mul_f32 v{acc+r}, s{S_PF}, v{acc+r}')
        for p in range(2):
            for d,(x,y) in enumerate(((0,1),(4,5),(2,3),(6,7))):
                o.append(f'v_cvt_pk_bf16_f32 v{EX+4*p+d}, v{acc+8*p+x}, v{acc+8*p+y}')
        o.append(f's_add_u32 s{S_T1}, s{S_VOFF}, {dt*2048}')
        for p in range(2):
            o.append(('vm',f'buffer_store_dwordx4 {vr(EX+4*p,4)}, v{V_ST}, {sr(S_WS,4)}, s{S_T1} offen offset:{1024*p} sc1',f'st{dt}'))
        return o
    D=6
    V_A2=[t+20+k for k in range(4)]
    def radr2(j):
        R=V_AR if j%2==0 else V_A2
        return [f's_add_u32 s{S_T1}, s{S_T5}, {(j%4)*32768}', f'v_add_u32 v{R[0]}, s{S_T1}, v{V_FB}']+[f'v_xor_b32 v{R[kl]}, {32*kl}, v{R[0]}' for kl in (1,2,3)]
    def read(g):
        if g<112:
            j,k=g>>4,g&15; R=V_AR if j%2==0 else V_A2
            a.ds(f'ds_read_b128 {vr(AF+4*(g%8),4)}, v{R[k&3]} offset:{4096*(k>>2)}', f'a{g}')
    for o in radr2(0): a(o)
    a.wait_vm('d0'); a('s_barrier')
    pp(a,5)
    for g in range(D): read(g)
    fill=radr2(1); dq=step_dma(2)
    for dt in range(7):
        acc=PA+16*(dt&1)
        for k in range(16):
            g=16*dt+k
            if k==16-D-1 and dt<6:
                lag=OPTW['lag']
                stage={OPTW['st1']+lag:1, OPTW['st2']+lag:2}.get(dt)
                if stage: a.wait_vm(f'st{dt-lag-1}')
                a.wait_vm(f'd{dt+1}'); a('s_barrier')
                if stage:
                    K=a.newlabel('pf')
                    a(f's_cmp_lg_u32 s{S_WAVE}, 0\ns_cbranch_scc1 {K}')
                    if stage==1: wait_init(a,t+19,True)
                    set_flag(a,f's{S_RST}',str(stage))
                    a.label(K)
                if dt+3<7: dq+=step_dma(dt+3)
                if dt==OPTW['xt']:
                    a(f's_sub_u32 s{S_T2}, s{S_SLOT}, 32\ns_lshl_b32 s{S_T2}, s{S_T2}, 2\ns_add_u32 s{S_T2}, s{S_T2}, s{S_WAVE}\ns_lshl_b32 s{S_T2}, s{S_T2}, 11\nv_lshlrev_b32 v{t+24}, 1, v{V_LIN}')
                    a.vm(f'buffer_load_dword v255, v{t+24}, {sr(S_X,4)}, s{S_T2} offen')
                if dt==0: a.vm(f'buffer_load_dword v{t+19}, v{V_ZERO}, {sr(S_DBG,4)}, 0 offen offset:{D_INIT} sc1','ini')
            a.wait_ds(f'a{g}')
            a(f'v_mfma_f32_32x32x16_bf16 {vr(acc,16)}, {vr(AF+4*(g%8),4)}, {vr(BF+4*k,4)}, {vr(acc,16) if k else 0}')
            read(g+D)
            if k%2==0 or dt==0:
                while dq:
                    o=dq.pop(0); a.auto(o)
                    if isinstance(o,tuple): break
            if k>=2 or dt==0:
                for _ in range(3):
                    if fill: a.auto(fill.pop(0))
        assert not fill
        pp(a,6+dt)
        fill=(radr2(dt+2) if dt+2<7 else [])+epi(dt)
    assert not dq
    for f in fill: a.auto(f)
    if a.diag: a('s_memrealtime s[46:47]\ns_waitcnt lgkmcnt(0)')
    K=a.newlabel('pf')
    pp(a,19)
    a.drain_vm(); pp(a,20); a('s_barrier')
    a(f's_cmp_lg_u32 s{S_WAVE}, 0\ns_cbranch_scc1 {K}')
    set_flag(a,f's{S_RST}','3')
    a.label(K)
    if getattr(a,'pprof',0):
        a(f's_lshl_b32 s{S_T0}, s{S_SLOT}, 2\ns_add_u32 s{S_T0}, s{S_T0}, s{S_WAVE}\ns_lshl_b32 s{S_T0}, s{S_T0}, 8\ns_add_u32 s{S_T0}, s{S_T0}, {WS_TS+0x200000}')
        a(f'buffer_store_dword v254, v{V_L4}, {sr(S_WS,4)}, s{S_T0} offen')

def dma_piece(t, sbase):
    o=[]; buf=(t%4)*28672
    for grp in range(2):
        o.append(f's_add_u32 s{S_T0}, s{sbase}, {t*28672+4096*grp}')
        o.append(f's_add_u32 m0, s{S_XL}, {buf+4096*grp}')
        for i in range(4 if grp==0 else 3):
            o.append(('vm',f'buffer_load_dwordx4 v{V_DMA}, {sr(S_WS,4)}, s{S_T0} offen offset:{1024*i} sc1 lds',f'w{t}'))
    return o
def dma_rows(t, tloc, srdreg, vreg, sbase, stride):
    o=[]; buf=(t%4)*28672
    for i in range(7):
        o.append(f's_add_u32 s{S_T0}, s{sbase}, {64*tloc+i*16*stride}')
        o.append(f's_add_u32 m0, s{S_XL}, {buf+1024*i}')
        o.append(('vm',f'buffer_load_dwordx4 v{vreg}, {sr(srdreg,4)}, s{S_T0} offen lds',f'w{t}'))
    return o
def rd_piece(t,k,dst):
    off=(t%4)*28672+1024*k
    return [f'ds_read_b128 {ar(dst,4)}, v{V_LIN if off<57344 else V_LIN2} offset:{off%57344}']
def rd_tr(t,k,dst,va,vb,second):
    off=(t%4)*28672+1024*k
    v=va if off<57344 else vb
    return [f'ds_read_b64_tr_b16 {ar(dst,2)}, v{v} offset:{off%57344}', f'ds_read_b64_tr_b16 {ar(dst+2,2)}, v{v} offset:{off%57344+second}']

def gemm(a, nt, dma, rd, mf, epi, pre=None, depth=7, finish_by=None):
    for t in (1,2):
        if t<nt:
            for o in dma(t): a.auto(o)
    if pre:
        for o in pre(0): a.auto(o)
    a.wait_vm('w0'); a('s_barrier')
    N=28*nt
    def read(g):
        if g<N:
            for o in rd(g//28,g%28,AW+4*(g%8)): a.ds(o,f'r{g}')
    for g in range(depth): read(g)
    fill=list(pre(1)) if pre else []
    dq=[]; g0=0
    for t in range(nt):
        acc=ACC+16*(t&1)
        lim = finish_by(t) if finish_by else 27
        for k in range(28):
            g=28*t+k
            if k==28-depth-1 and t+1<nt:
                assert not dq
                a.wait_vm(f'w{t+1}'); a('s_barrier')
                if t+3<nt: dq=dma(t+3); g0=g
            if k==lim:
                while fill: a.auto(fill.pop(0))
            if k==0: a.wait_ds(f'pre{t}')
            a.wait_ds(f'r{g}')
            a(mf(t,k,ar(AW+4*(g%8),4),vr(acc,16)))
            read(g+depth)
            if dq and (g-g0)%OPTW['dsp']==0:
                while dq:
                    o=dq.pop(0); a.auto(o)
                    if isinstance(o,tuple): break
            if k>=2 and fill:
                n=math.ceil(len(fill)/max(1,lim-k))
                for _ in range(n):
                    if fill: a.auto(fill.pop(0))
        while fill: a.auto(fill.pop(0))
        fill=list(epi(t,acc))
        if pre and t+2<nt: fill+=list(pre(t+2))
    while fill: a.auto(fill.pop(0))

def load_x(a, natural, xf=False):
    a(f'''
    s_mul_i32 s{S_T1}, s{S_SEG}, 28672
    s_add_u32 s{S_T2}, s{S_T1}, 14336
    s_mul_i32 s{S_T3}, s{S_WAVE}, 28672
    s_add_u32 s{S_T3}, s{S_T3}, {LDS_XST}
    v_add_u32 v{VT}, s{S_T3}, v{V_XR0}
    v_add_u32 v{VT+1}, s{S_T3}, v{V_XR1}
    ''')
    for ch in range(14):
        for rh in range(2):
            a(f's_add_u32 m0, s{S_T3}, {(2*ch+rh)*1024-64*ch}')
            a.vm(f'buffer_load_dwordx4 v{V_XS}, {sr(S_X,4)}, s{S_T2 if rh else S_T1} offen offset:{64*ch} lds',f'x{ch}')
    for ch in range(14):
        if natural is None: break
        a.wait_vm(f'x{ch}')
        for kl in range(2):
            a.ds(f'ds_read_b128 {vr(8*ch+4*kl,4)}, v{VT+kl} offset:{2048*ch}',f'xr{2*ch+kl}')
    if natural is None: a.drain_vm()
    elif natural:
        a.drain_ds()
    else:
        for kb in range(28):
            r=4*kb
            a.wait_ds(f'xr{kb}')
            a(f'v_permlane32_swap_b32 v{r}, v{r+2}\nv_permlane32_swap_b32 v{r+1}, v{r+3}')
        for kb in range(28):
            r=4*kb
            for d,s in enumerate((0,2,1,3)): a(f'v_accvgpr_write_b32 a{r+d}, v{r+s}')
    if xf:
        t=VT+2
        a(f'''
        v_bfe_u32 v{t}, v{V_LIN}, 4, 1
        v_bfe_u32 v{t+1}, v{V_LIN}, 5, 1
        v_lshl_add_u32 v{t}, v{t}, 1, v{t+1}
        v_bfe_u32 v{t+1}, v{V_LIN}, 8, 1
        v_lshlrev_b32 v{t+1}, 1, v{t+1}
        v_xor_b32 v{t+1}, v{t+1}, v{t}
        v_lshlrev_b32 v{t+1}, 4, v{t+1}
        v_lshl_add_u32 v{t+1}, v{t}, 8, v{t+1}
        v_bfe_u32 v{t}, v{V_LIN}, 6, 1
        v_lshl_add_u32 v{t+1}, v{t}, 7, v{t+1}
        v_bfe_u32 v{t}, v{V_LIN}, 7, 1
        v_lshl_add_u32 v{t+1}, v{t}, 10, v{t+1}
        v_bfe_u32 v{t}, v{V_LIN}, 9, 1
        v_lshl_add_u32 v{t+1}, v{t}, 11, v{t+1}
        v_add_u32 v{t}, s{S_T3}, v{t+1}
        v_xor_b32 v{t+1}, 16, v{t}
        s_lshl_b32 s{S_T2}, s{S_SEG}, 15
        s_add_u32 s{S_T2}, s{S_T2}, {WS_XF}
        ''')
        for half in range(2):
            for i in range(16*half,16*half+16):
                cw,kt,p=i>>3,(i>>2)&1,i&3
                P=(2*(cw>>1)+p) if p<2 else (4+(cw>>1)+(p&1))
                a(f'ds_read_b128 {vr(4*(i&15)+64*half,4) if half==0 else ar(144+4*(i&15),4)}, v{t+(cw&1)} offset:{4096*P+64*kt}')
        a('s_waitcnt lgkmcnt(0)')
        for i in range(32):
            if i%4==0: a(f's_add_u32 s{S_T1}, s{S_T2}, {1024*i}')
            a(f'buffer_store_dwordx4 {vr(4*i,4) if i<16 else ar(144+4*(i&15),4)}, v{V_LIN}, {sr(S_WS,4)}, s{S_T1} offen offset:{1024*(i%4)} sc1')
        return
    a('s_barrier')

def unit_head(a, mat0, wsbase, half=False):
    a(f'''
    s_lshl_b32 s{S_SEG}, s{S_G}, 2
    s_add_u32 s{S_SEG}, s{S_SEG}, s{S_WAVE}
    s_lshl_b32 s{S_T5}, s{S_H}, 7
    s_add_u32 s{S_T5}, s{S_T5}, {F_W+128*mat0}
    s_mul_i32 s{S_B0}, s{S_H}, {MAT}
    s_add_u32 s{S_B0}, s{S_B0}, {wsbase}
    s_mul_i32 s{S_XL}, s{S_WAVE}, 7168
    ''')
    if half: a(f's_mul_i32 s{S_T0}, s{S_MBO}, 28672\ns_add_u32 s{S_B0}, s{S_B0}, s{S_T0}')
    if half:
        for o in dma_piece(0,S_B0): a.auto(o)
    load_x(a,False)
    if not half:
        wait_flags(a,V_L4,f's{S_T5}',7,3,sleep=1)
        for o in dma_piece(0,S_B0): a.auto(o)

def rt1(a,i):
    if a.diag:
        K=a.newlabel('rt1')
        a(f's_cmp_lg_u32 s{S_STEP}, 0\ns_cbranch_scc1 {K}')
        rt(a,i)
        if i==2: a('s_memtime s[78:79]\ns_waitcnt lgkmcnt(0)')
        if i==3: a(f's_mov_b32 s{S_STEP}, 1\ns_mov_b32 s77, s78\ns_memtime s[78:79]\ns_waitcnt lgkmcnt(0)\ns_sub_u32 s78, s78, s77')
        a.label(K)

def unit_V(a, half=False):
    a.comment('==== V unit ====')
    rt1(a,0)
    nt=2 if half else 14
    if half: a(f's_mov_b32 s{S_VRDY}, s{S_G}\ns_lshl_b32 s{S_MBO}, s{S_G}, 1\ns_mov_b32 s{S_G}, 0')
    unit_head(a,16,WS_B,half)
    a(f'''
    s_mul_i32 s{S_B1}, s{S_SEG}, {SEGV}
    s_lshl_b32 s{S_T1}, s{S_H}, 11
    s_add_u32 s{S_B1}, s{S_B1}, s{S_T1}
    s_add_u32 s{S_B1}, s{S_B1}, {WS_V}
    ''')
    if half: a(f's_mul_i32 s{S_T1}, s{S_MBO}, 32768\ns_add_u32 s{S_B1}, s{S_B1}, s{S_T1}')
    def epi(t,acc):
        o=[f'v_cvt_pk_bf16_f32 v{EX+d}, v{acc+2*d}, v{acc+2*d+1}' for d in range(8)]
        o.append(f's_add_u32 s{S_T1}, s{S_B1}, {t*32768}')
        o+=[f'buffer_store_dwordx4 {vr(EX+4*p,4)}, v{V_LIN}, {sr(S_WS,4)}, s{S_T1} offen offset:{1024*p} sc1' for p in range(2)]
        return o
    gemm(a,nt,lambda t:dma_piece(t,S_B0),rd_piece,
         lambda t,k,w,acc:f'v_mfma_f32_32x32x16_bf16 {acc}, {ar(4*k,4)}, {w}, {acc if k else 0}', epi)
    a(f's_lshl_b32 s{S_T0}, s{S_G}, 7\ns_lshl_b32 s{S_T1}, s{S_H}, 3\ns_add_u32 s{S_T0}, s{S_T0}, s{S_T1}\ns_add_u32 s{S_T0}, s{S_T0}, {F_V}')
    K=a.newlabel('sf')
    a.drain_vm(); a('s_barrier')
    a(f's_cmp_lg_u32 s{S_WAVE}, 0\ns_cbranch_scc1 {K}')
    a(f'v_mov_b32 v{VT+40}, 0x01010101')
    if half:
        a(f's_add_u32 s{S_T0}, s{S_T0}, s{S_VRDY}\nv_lshrrev_b32 v{VT+41}, 2, v{V_L4}\ns_cmp_eq_u32 s{S_VRDY}, 6\ns_cselect_b64 exec, 3, 1')
        a(f'buffer_store_byte v{VT+40}, v{VT+41}, {sr(S_WS,4)}, s{S_T0} offen sc1')
    else:
        a(f's_mov_b64 exec, 3\nbuffer_store_dword v{VT+40}, v{V_L4}, {sr(S_WS,4)}, s{S_T0} offen sc1')
    a('s_mov_b64 exec, -1')
    a.label(K)
    rt1(a,3)

def unit_X(a):
    a.comment('==== X unit: x fragments for the team ====')
    a(f's_lshl_b32 s{S_SEG}, s{S_G}, 2\ns_add_u32 s{S_SEG}, s{S_SEG}, s{S_WAVE}')
    for r in range(4): a(f'v_mov_b32 v{ACC+r}, -1')
    for base,n in ((WS_MEMH+LASTSEG*8192,32),(WS_PX+LASTSEG*SEGP,160),(WS_MBH+LASTSEG*SEGMB,448)):
        for k in range((n+63)//64):
            a(f's_add_u32 s{S_T0}, s{S_SEG}, {64*k}\ns_min_u32 s{S_T0}, s{S_T0}, {n-1}\ns_lshl_b32 s{S_T0}, s{S_T0}, 10\ns_add_u32 s{S_T0}, s{S_T0}, {base}')
            a(f'buffer_store_dwordx4 {vr(ACC,4)}, v{V_LIN}, {sr(S_WS,4)}, s{S_T0} offen sc1')
    load_x(a,None,True)
    a(f's_lshl_b32 s{S_T0}, s{S_G}, 7\ns_add_u32 s{S_T0}, s{S_T0}, {F_M+32}')
    wg_flag(a,f's{S_T0}')

def unit_Q(a):
    a.comment('==== Q unit ====')
    unit_head(a,0,WS_A)
    def epi(t,acc):
        o=[]
        for c2 in range(2):
            for d in range(4):
                r=8*(d&1)+2*c2+(d>>1)
                o.append(f'v_cvt_pk_bf16_f32 v{8*t+4*c2+d}, v{acc+r}, v{acc+4+r}')
        o+=[f'v_permlane32_swap_b32 v{8*t+d}, v{8*t+4+d}' for d in range(4)]
        for p in range(2):
            kb=2*t+p
            o.append(f'v_mfma_f32_32x32x16_bf16 {vr(SAC,16)}, {ar(4*kb,4)}, {vr(4*kb,4)}, {vr(SAC,16) if kb else 0}')
        return o
    gemm(a,14,lambda t:dma_piece(t,S_B0),rd_piece,
         lambda t,k,w,acc:f'v_mfma_f32_32x32x16_bf16 {acc}, {w}, {ar(4*k,4)}, {acc if k else 0}', epi)
    t=VT
    a(f'''
    v_bfe_u32 v{t}, v{V_LIN}, 4, 5
    v_lshrrev_b32 v{t+1}, 2, v{V_HH16}
    v_sub_u32 v{t}, v{t}, v{t+1}
    v_mov_b32 v{t+1}, {f32(-1e9*LOG2E)}
    ''')
    for r in range(16):
        a(f'v_cmp_le_i32 vcc, {8*(r>>2)+(r&3)}, v{t}')
        a(f'v_cndmask_b32 v{SAC+r}, v{t+1}, v{SAC+r}, vcc')
    a(f'v_max3_f32 v{t+2}, v{SAC}, v{SAC+1}, v{SAC+2}')
    for r in range(3,15,2): a(f'v_max3_f32 v{t+2}, v{t+2}, v{SAC+r}, v{SAC+r+1}')
    a(f'v_max_f32 v{t+2}, v{t+2}, v{SAC+15}')
    a(f'''
    v_and_b32 v{t+3}, 0x1f0, v{V_LIN}
    v_and_b32 v{t+4}, 0x30, v{V_LIN}
    v_bfe_u32 v{t+6}, v{V_LIN}, 7, 1
    v_lshl_add_u32 v{t+4}, v{t+6}, 6, v{t+4}
    v_bfe_u32 v{t+6}, v{V_LIN}, 6, 1
    v_lshl_add_u32 v{t+4}, v{t+6}, 7, v{t+4}
    v_bfe_u32 v{t+6}, v{V_LIN}, 8, 1
    v_lshl_add_u32 v{t+4}, v{t+6}, 9, v{t+4}
    v_lshl_add_u32 v{t+4}, v{V_HH16}, 4, v{t+4}
    v_bfe_u32 v{t+6}, v{V_LIN}, 4, 1
    v_mul_u32_u24 v{t+6}, 0xaaaa, v{t+6}
    v_add_u32 v{EX}, 0x4444, v{t+6}
    v_lshrrev_b32 v{t+5}, 1, v{V_HH16}
    v_add_u32 v{t+5}, v{t+5}, v{t+3}
    ''')
    for r in range(ACC,ACC+32,2): a(f'v_mov_b64 {vr(r,2)}, 0')
    relax(a,S_T1,S_SEG)
    wait_prog(a,S_T1)
    a(f's_lshl_b32 s{S_T0}, s{S_SEG}, 13\ns_add_u32 s{S_T0}, s{S_T0}, {WS_MEMH}\ns_add_u32 s{S_T1}, s{S_T0}, 4096')
    MF=t+16
    rt(a,0)
    until_valid(a,[f'buffer_load_dwordx4 {vr(MF+4*i,4)}, v{t+4}, {sr(S_WS,4)}, s{S_T0 if i<4 else S_T1} offen offset:{1024*(i%4)} sc1' for i in range(7)],range(MF,MF+28),t+6)
    rt(a,1)
    for i in range(7):
        for j in range(2):
            a(f'v_smfmac_f32_32x32x32_bf16 {vr(ACC+16*j,16)}, {vr(MF+4*i,4)}, {vr(8*(2*i+j),8)}, v{EX}')
    a(f'''
    s_mul_i32 s{S_T0}, s{S_SEG}, {SEGP}
    s_lshr_b32 s{S_T1}, s{S_H}, 2
    s_mul_i32 s{S_T1}, s{S_T1}, 10240
    s_add_u32 s{S_T0}, s{S_T0}, s{S_T1}
    s_add_u32 s{S_T0}, s{S_T0}, {WS_PX}
    s_and_b32 s{S_T2}, s{S_H}, 3
    s_lshl_b32 s{S_T1}, s{S_T2}, 9
    s_add_u32 s{S_T1}, s{S_T1}, s{S_T0}
    s_add_u32 s{S_T1}, s{S_T1}, 8192
    s_lshl_b32 s{S_T2}, s{S_T2}, 11
    s_add_u32 s{S_T0}, s{S_T0}, s{S_T2}
    ''')
    a(f's_lshl_b32 s{S_T3}, s{S_SEG}, 7\ns_lshl_b32 s{S_T2}, s{S_H}, 2\ns_add_u32 s{S_T3}, s{S_T3}, s{S_T2}\ns_add_u32 s{S_T3}, s{S_T3}, {F_P}')
    if OPTW['ep']:
        K=a.newlabel('ep')
        a(f's_cmp_lt_u32 s{S_SEG}, {LASTSEG}\ns_cbranch_scc1 {K}')
        set_flag(a,f's{S_T3}')
        a.label(K)
    M=t+8
    for r in range(4):
        a(f'v_add_f32 v{M+r}, v{ACC+2*r}, v{ACC+2*r+1}')
    for r in range(4):
        a(f'v_add_f32 v{M+4+r}, v{ACC+24+2*r}, v{ACC+24+2*r+1}')
    for r in range(4):
        a(f'v_add_f32 v{M+r}, v{M+r}, v{M+4+r}')
    a(f'v_max3_f32 v{t+2}, v{t+2}, v{M}, v{M+1}\nv_max3_f32 v{t+2}, v{t+2}, v{M+2}, v{M+3}')
    a(f'v_mov_b32 v{t+6}, v{t+2}\nv_permlane32_swap_b32 v{t+2}, v{t+6}\nv_max_f32 v{t+2}, v{t+2}, v{t+6}')
    vals=[SAC+r for r in range(16)]+[M+r for r in range(4)]
    for v in vals: a(f'v_sub_f32 v{v}, v{v}, v{t+2}')
    for v in vals: a(f'v_exp_f32 v{v}, v{v}')
    a(f'v_add_f32 v{t+6}, v{vals[0]}, v{vals[1]}\nv_add_f32 v{t+7}, v{vals[2]}, v{vals[3]}')
    for k in range(4,20,2):
        a(f'v_add_f32 v{t+6}, v{t+6}, v{vals[k]}\nv_add_f32 v{t+7}, v{t+7}, v{vals[k+1]}')
    a(f'v_add_f32 v{t+6}, v{t+6}, v{t+7}\nv_mov_b32 v{t+7}, v{t+6}\nv_permlane32_swap_b32 v{t+6}, v{t+7}\nv_add_f32 v{t+6}, v{t+6}, v{t+7}')
    a(f'v_rcp_f32 v{t+6}, v{t+6}')
    for v in vals: a(f'v_mul_f32 v{v}, v{v}, v{t+6}')
    for d in range(10): a(f'v_cvt_pk_bf16_f32 v{ACC+d}, |v{vals[2*d]}|, |v{vals[2*d+1]}|')
    rt(a,2)
    a(f'buffer_store_dwordx4 {vr(ACC,4)}, v{V_LIN}, {sr(S_WS,4)}, s{S_T0} offen sc1')
    a(f'buffer_store_dwordx4 {vr(ACC+4,4)}, v{V_LIN}, {sr(S_WS,4)}, s{S_T0} offen offset:1024 sc1')
    if OPTW['pm4']:
        a(f'v_permlane32_swap_b32 v{ACC+8}, v{ACC+10}\nv_permlane32_swap_b32 v{ACC+9}, v{ACC+11}\ns_mov_b32 exec_hi, 0')
        a(f'buffer_store_dwordx4 {vr(ACC+8,4)}, v{V_LIN}, {sr(S_WS,4)}, s{S_T1} offen sc1\ns_mov_b64 exec, -1')
    else: a(f'buffer_store_dwordx2 {vr(ACC+8,2)}, v{t+5}, {sr(S_WS,4)}, s{S_T1} offen sc1')
    a(f's_cmp_ge_u32 s{S_SEG}, {LASTSEG}\ns_cbranch_scc1 L_next')
    a.drain_vm()
    set_flag(a,f's{S_T3}')

def unit_M(a):
    a.comment('==== MLP unit ====')
    t=VT
    T1=LDS_TAB; T2=LDS_TAB+2048; TG=LDS_TAB+4096
    srd(a,S_R1,P_W1,448*1792*2)
    a(f'''
    s_lshl_b32 s{S_SEG}, s{S_G}, 2
    s_add_u32 s{S_SEG}, s{S_SEG}, s{S_WAVE}
    s_mul_i32 s{S_XL}, s{S_WAVE}, 7168
    s_mul_i32 s{S_B0}, s{S_H}, 896
    s_mul_i32 s{S_B1}, s{S_H}, {448*896}
    ''')
    d1=lambda tt: dma_rows(tt,tt,S_R1,V_RM1,S_B0,3584)
    d2=lambda tt: dma_rows(tt,tt-14,S_R2,V_RM2,S_B1,896)
    for o in d1(0): a.auto(o)
    a(f's_lshl_b32 s{S_T0}, s{S_WAVE}, 8\nv_add_u32 v{t+2}, s{S_T0}, v{V_L4}')
    srd(a,S_R2,P_B1,3584)
    a.vm(f'buffer_load_dword v{t+3}, v{t+2}, {sr(S_R2,4)}, s{S_B0} offen','tb')
    srd(a,S_R2,P_B2,896)
    a(f's_lshl_b32 s{S_T0}, s{S_H}, 12')
    a.vm(f'buffer_load_dword v{t+4}, v{t+2}, {sr(S_R2,4)}, s{S_T0} offen','tb')
    srd(a,S_R2,P_GATE,896)
    a.vm(f'buffer_load_dword v{t+5}, v{t+2}, {sr(S_R2,4)}, 0 offen','tb')
    a.wait_vm('tb')
    srd(a,S_R2,P_W2,448*1792*2)
    a(f'''
    v_lshlrev_b32 v{t+6}, 16, v{t+3}
    v_and_b32 v{t+7}, 0xffff0000, v{t+3}
    v_lshlrev_b32 v{t+8}, 16, v{t+4}
    v_and_b32 v{t+9}, 0xffff0000, v{t+4}
    v_lshlrev_b32 v{t+10}, 1, v{t+2}
    v_add_u32 v{t+10}, {LDS_TAB}, v{t+10}
    v_add_u32 v{t+11}, {TG}, v{t+2}
    ds_write_b64 v{t+10}, {vr(t+6,2)}
    ds_write_b64 v{t+10}, {vr(t+8,2)} offset:2048
    ds_write_b32 v{t+11}, v{t+5}
    v_add_u32 v{t+12}, {LDS_TAB}, v{V_HH16}
    ''')
    V_TAB=t+12
    load_x(a,True)
    K=a.newlabel('nog')
    a(f's_cmp_lg_u32 s{S_H}, 0\ns_cbranch_scc1 {K}')
    a(f'v_mov_b32 v{t+2}, 0\nv_mov_b32 v{t+3}, 0')
    for kb0 in range(0,28,7):
        for kb in range(kb0,kb0+7): a.ds(f'ds_read_b128 {vr(ACC+4*(kb-kb0),4)}, v{V_TAB} offset:{4096+32*kb}',f'g{kb}')
        for kb in range(kb0,kb0+7):
            a.wait_ds(f'g{kb}')
            for d in range(4): a(f'v_dot2_f32_bf16 v{t+2+(d&1)}, v{4*kb+d}, v{ACC+4*(kb-kb0)+d}, v{t+2+(d&1)}')
        a('s_nop 2')
    a(f'''
    v_add_f32 v{t+2}, v{t+2}, v{t+3}
    v_mov_b32 v{t+3}, v{t+2}
    v_permlane32_swap_b32 v{t+2}, v{t+3}
    v_add_f32 v{t+2}, v{t+2}, v{t+3}
    v_mul_f32 v{t+2}, {f32(-LOG2E)}, v{t+2}
    v_exp_f32 v{t+2}, v{t+2}
    v_add_f32 v{t+2}, 1.0, v{t+2}
    v_rcp_f32 v{t+2}, v{t+2}
    v_and_b32 v{t+3}, 127, v{V_L4}
    s_lshl_b32 s{S_T0}, s{S_SEG}, 7
    s_add_u32 s{S_T0}, s{S_T0}, {WS_G}
    buffer_store_dword v{t+2}, v{t+3}, {sr(S_WS,4)}, s{S_T0} offen sc1
    ''')
    a.label(K)
    a(f'v_mov_b32 v{t+2}, 0\nv_mov_b32 v{t+3}, 0\nv_mov_b32 v{t+4}, 0x3f803f80')
    for r in range(112): a(f'v_dot2_f32_bf16 v{t+2+(r&1)}, v{r}, v{t+4}, v{t+2+(r&1)}')
    a(f'''
    s_nop 2
    v_add_f32 v{t+2}, v{t+2}, v{t+3}
    v_mov_b32 v{t+3}, v{t+2}
    v_permlane32_swap_b32 v{t+2}, v{t+3}
    v_add_f32 v{t+2}, v{t+2}, v{t+3}
    v_mul_f32 v{t+2}, {f32(1/448)}, v{t+2}
    v_mov_b32 v{t+3}, 0
    v_mov_b32 v{t+4}, 0
    s_mov_b32 s{S_T0}, 0xffff0000
    ''')
    for r in range(112):
        a(f'v_lshlrev_b32 v{t+5}, 16, v{r}\nv_and_b32 v{t+6}, s{S_T0}, v{r}')
        a(f'v_sub_f32 v{t+5}, v{t+5}, v{t+2}\nv_sub_f32 v{t+6}, v{t+6}, v{t+2}')
        a(f'v_fmac_f32 v{t+3}, v{t+5}, v{t+5}\nv_fmac_f32 v{t+4}, v{t+6}, v{t+6}')
    a(f'''
    v_add_f32 v{t+3}, v{t+3}, v{t+4}
    v_mov_b32 v{t+4}, v{t+3}
    v_permlane32_swap_b32 v{t+3}, v{t+4}
    v_add_f32 v{t+3}, v{t+3}, v{t+4}
    v_mov_b32 v{t+4}, {f32(1e-5)}
    v_fmac_f32 v{t+4}, {f32(1/448)}, v{t+3}
    v_rsq_f32 v{t+3}, v{t+4}
    ''')
    for r in range(112):
        a(f'v_lshlrev_b32 v{t+5}, 16, v{r}\nv_and_b32 v{t+6}, s{S_T0}, v{r}')
        a(f'v_sub_f32 v{t+5}, v{t+5}, v{t+2}\nv_sub_f32 v{t+6}, v{t+6}, v{t+2}')
        a(f'v_mul_f32 v{t+5}, v{t+5}, v{t+3}\nv_mul_f32 v{t+6}, v{t+6}, v{t+3}')
        a(f'v_cvt_pk_bf16_f32 v{t+5}, v{t+5}, v{t+6}\nv_accvgpr_write_b32 a{r}, v{t+5}')
    kk=2*math.sqrt(2/math.pi)*LOG2E
    a(f'''
    s_mov_b32 s{S_T4}, {f32(-kk*0.044715)}
    v_mov_b32 v{t+2}, {f32(-kk)}
    v_and_b32 v{t+3}, 0x1f0, v{V_LIN}
    v_lshl_add_u32 v{t+3}, v{t+3}, 1, v{V_HH16}
    s_mul_i32 s{S_T5}, s{S_H}, {64*SEGM}
    s_mul_i32 s{S_T1}, s{S_SEG}, {SEGM}
    s_add_u32 s{S_T5}, s{S_T5}, s{S_T1}
    s_add_u32 s{S_T5}, s{S_T5}, {WS_MLP}
    ''')
    def pre(tt):
        acc=ACC+16*(tt&1); base=(0 if tt<14 else 2048)+128*(tt%14)
        return [('ds',f'ds_read_b128 {vr(acc+4*q,4)}, v{V_TAB} offset:{base+32*q}',f'pre{tt}') for q in range(4)]
    def epi(tt,acc):
        o=[]
        if tt<14:
            for h in range(2):
                R=range(8*h,8*h+8); x=lambda r: SAC+(r&7)
                o+=[f'v_mul_f32 v{x(r)}, v{acc+r}, v{acc+r}' for r in R]
                o+=[f'v_fma_f32 v{x(r)}, v{x(r)}, s{S_T4}, v{t+2}' for r in R]
                o+=[f'v_mul_f32 v{x(r)}, v{x(r)}, v{acc+r}' for r in R]
                o+=[f'v_exp_f32 v{x(r)}, v{x(r)}' for r in R]
                o+=[f'v_add_f32 v{x(r)}, 1.0, v{x(r)}' for r in R]
                o+=[f'v_rcp_f32 v{x(r)}, v{x(r)}' for r in R]
                o+=[f'v_mul_f32 v{x(r)}, v{x(r)}, v{acc+r}' for r in R]
                o+=[f'v_cvt_pk_bf16_f32 v{8*tt+4*h+d}, v{SAC+2*d}, v{SAC+2*d+1}' for d in range(4)]
        else:
            o.append(f's_add_u32 s{S_T1}, s{S_T5}, {(tt-14)*4096}')
            o+=[f'buffer_store_dwordx4 {vr(acc+4*q,4)}, v{t+3}, {sr(S_WS,4)}, s{S_T1} offen offset:{1024*q} sc1' for q in range(4)]
            o.append('s_nop 1')
        return o
    gemm(a,28,lambda tt: d1(tt) if tt<14 else d2(tt),
         lambda tt,k,dst: rd_tr(tt,k,dst,V_TR,V_TR2,256) if tt<14 else rd_tr(tt,k,dst,V_TQ,V_TQ2,512),
         lambda tt,k,w,acc: f'v_mfma_f32_32x32x16_bf16 {acc}, {w}, {ar(4*k,4) if tt<14 else vr(4*k,4)}, {acc}',
         epi, pre=pre, depth=5, finish_by=lambda tt: 26)
    a(f's_lshl_b32 s{S_T0}, s{S_G}, 7\ns_lshl_b32 s{S_T1}, s{S_H}, 2\ns_add_u32 s{S_T0}, s{S_T0}, s{S_T1}\ns_add_u32 s{S_T0}, s{S_T0}, {F_M}')
    wg_flag(a,f's{S_T0}')

def unit_F(a):
    a.comment('==== final unit ====')
    t=VT
    VV=0; PX=64; PM=96; MB=104; FA=120; ML=152; GG=184
    a(f'''
    s_lshr_b32 s{S_G}, s{S_SEG}, 2
    s_lshl_b32 s{S_T0}, s{S_G}, 7
    s_lshl_b32 s{S_T5}, s{S_WAVE}, 4
    s_add_u32 s{S_T1}, s{S_T0}, s{S_T5}
    s_add_u32 s{S_T1}, s{S_T1}, s{S_T5}
    s_add_u32 s{S_T1}, s{S_T1}, {F_V}
    s_add_u32 s{S_T2}, s{S_T0}, {F_M}
    ''')
    wait_flags(a,V_L4,f's{S_T1}',8,'0x01010101')
    a(f'''
    s_mul_i32 s{S_B0}, s{S_SEG}, {SEGV}
    s_lshl_b32 s{S_T0}, s{S_H}, 16
    s_add_u32 s{S_B0}, s{S_B0}, s{S_T0}
    s_lshl_b32 s{S_T0}, s{S_WAVE}, 13
    s_add_u32 s{S_B0}, s{S_B0}, s{S_T0}
    s_add_u32 s{S_B0}, s{S_B0}, {WS_V}
    ''')
    for n in range(2):
        for g in range(2):
            a(f's_add_u32 s{S_T0}, s{S_B0}, {n*32768+g*4096}')
            for i in range(4):
                a(f'buffer_load_dwordx4 {vr(VV+32*n+16*g+4*i,4)}, v{V_LIN}, {sr(S_WS,4)}, s{S_T0} offen offset:{1024*i} sc1')
    wait_flags(a,V_L4,f's{S_T2}',4,1)
    a(f'''
    v_and_b32 v{t}, 0x1f0, v{V_LIN}
    v_lshlrev_b32 v{t}, 1, v{t}
    v_lshl_add_u32 v{t}, v{V_HH16}, 6, v{t}
    s_mul_i32 s{S_T0}, s{S_SEG}, {SEGM}
    s_lshl_b32 s{S_T1}, s{S_H}, 13
    s_add_u32 s{S_T0}, s{S_T0}, s{S_T1}
    s_lshl_b32 s{S_T1}, s{S_WAVE}, 11
    s_add_u32 s{S_T0}, s{S_T0}, s{S_T1}
    s_add_u32 s{S_T0}, s{S_T0}, {WS_MLP}
    ''')
    for c in range(4):
        a(f'buffer_load_dwordx4 {vr(ML+8*c,4)}, v{t}, {sr(S_WS,4)}, s{S_T0} offen sc1')
        a(f'buffer_load_dwordx4 {vr(ML+8*c+4,4)}, v{t}, {sr(S_WS,4)}, s{S_T0} offen offset:16 sc1')
        if c<3: a(f's_add_u32 s{S_T0}, s{S_T0}, {64*SEGM}')
    a(f'''
    v_and_b32 v{t+1}, 127, v{V_L4}
    s_lshl_b32 s{S_T0}, s{S_SEG}, 7
    s_add_u32 s{S_T1}, s{S_T0}, {WS_G}
    buffer_load_dword v{GG}, v{t+1}, {sr(S_WS,4)}, s{S_T1} offen sc1
    s_add_u32 s{S_T1}, s{S_T0}, s{S_T5}
    s_add_u32 s{S_T1}, s{S_T1}, {F_P}
    ''')
    relax(a,S_T3,S_SEG,OPTW['frel'])
    wait_prog(a,S_T3)
    for r in range(8):
        a(f'v_add_f32 v{ML+r}, v{ML+r}, v{ML+8+r}\nv_add_f32 v{ML+16+r}, v{ML+16+r}, v{ML+24+r}')
    for r in range(8): a(f'v_add_f32 v{ML+r}, v{ML+r}, v{ML+16+r}')
    a(f'v_sub_f32 v{GG+1}, 1.0, v{GG}')
    for r in range(8): a(f'v_mul_f32 v{ML+r}, v{ML+r}, v{GG+1}')
    NW=a.newlabel('nowait')
    a(f'''
    s_cmp_ge_u32 s{S_SEG}, {LASTSEG}
    s_cbranch_scc1 {NW}
    v_lshlrev_b32 v{t+1}, 3, v{V_LIN}
    s_lshl_b32 s{S_T2}, s{S_H}, 8
    s_lshl_b32 s{S_T0}, s{S_WAVE}, 2
    s_add_u32 s{S_T2}, s{S_T2}, s{S_T0}
    s_add_u32 s{S_T2}, s{S_T2}, {F_B}
    ''')
    wait_flags(a,t+1,f's{S_T2}',2,f's{S_T3}',sleep=4)
    if not OPTW['ep']: wait_flags(a,V_L4,f's{S_T1}',4,1,sleep=4)
    a.label(NW)
    a(f's_mov_b32 s{S_T5}, s{S_T1}')
    srd(a,S_R1,P_OUT,2048*448*2)
    a(f'''
    v_bfe_u32 v{t}, v{V_LIN}, 4, 5
    v_mul_u32_u24 v{t}, 896, v{t}
    v_add_u32 v{t}, v{t}, v{V_HH16}
    s_mul_i32 s{S_T0}, s{S_SEG}, 28672
    s_lshl_b32 s{S_T1}, s{S_H}, 7
    s_add_u32 s{S_T0}, s{S_T0}, s{S_T1}
    s_lshl_b32 s{S_T1}, s{S_WAVE}, 5
    s_add_u32 s{S_T0}, s{S_T0}, s{S_T1}
    s_lshl_b32 s{S_T1}, s{S_WAVE}, 13
    v_add_u32 v{t+1}, s{S_T1}, v{V_LIN}
    s_lshr_b32 s{S_T1}, s{S_WAVE}, 1
    s_lshl_b32 s{S_T1}, s{S_T1}, 12
    s_and_b32 s{S_T2}, s{S_WAVE}, 1
    s_lshl_b32 s{S_T2}, s{S_T2}, 10
    s_add_u32 s{S_T1}, s{S_T1}, s{S_T2}
    v_add_u32 v{t+2}, s{S_T1}, v{V_LIN}
    ''')
    a(f'''
    s_mul_i32 s{S_T2}, s{S_SEG}, {SEGP}
    s_mul_i32 s{S_T1}, s{S_WAVE}, 10240
    s_add_u32 s{S_T2}, s{S_T2}, s{S_T1}
    s_add_u32 s{S_T2}, s{S_T2}, {WS_PX}
    s_add_u32 s{S_T3}, s{S_T2}, 4096
    s_add_u32 s{S_T4}, s{S_T2}, 8192
    s_mul_i32 s{S_B0}, s{S_SEG}, {SEGMB}
    s_lshl_b32 s{S_T1}, s{S_H}, 14
    s_add_u32 s{S_B0}, s{S_B0}, s{S_T1}
    s_lshl_b32 s{S_T1}, s{S_WAVE}, 11
    s_add_u32 s{S_B0}, s{S_B0}, s{S_T1}
    s_add_u32 s{S_B0}, s{S_B0}, {WS_MBH}
    s_add_u32 s{S_B1}, s{S_B0}, 8192
    ''')
    pld=[f'buffer_load_dwordx4 {vr(PX+4*i,4)}, v{V_LIN}, {sr(S_WS,4)}, s{(S_T2,S_T3,S_T4)[i>>2]} offen offset:{1024*(i%4)} sc1' for i in range(10)]
    mld=[f'buffer_load_dwordx4 {vr(MB+8*n+4*k,4)}, v{V_LIN}, {sr(S_WS,4)}, s{S_B1 if n else S_B0} offen offset:{1024*k} sc1' for n in range(2) for k in range(2)]
    rt(a,0)
    if OPTW['ep']: wait_flags(a,V_L4,f's{S_T5}',4,1,sleep=0)
    else: until_valid(a,pld[8:],range(PM,PM+8),t+3)
    rt(a,1)
    AG=a.newlabel('again')
    a(f's_mov_b32 s{S_SPIN}, 0')
    a.label(AG)
    for i,x in enumerate(pld[:10 if OPTW['ep'] else 8]): a.vm(x,f'p{i}')
    for i,x in enumerate(mld): a.vm(x,f'b{i}')
    for i in range(8):
        r=PX+4*i
        a.wait_vm(f'p{i}')
        for n in range(2):
            a(f'v_mfma_f32_32x32x16_bf16 {vr(FA+16*n,16)}, {vr(VV+32*n+4*i,4)}, {vr(r,4)}, {vr(FA+16*n,16) if i else 0}')
            if n==0:
                a(f'v_max3_u32 v{t+3}, v{r}, v{r+1}, v{r+2 if i==0 else t+3}')
                a(f'v_max_u32 v{t+3}, v{t+3}, v{r+3}' if i==0 else f'v_max3_u32 v{t+3}, v{r+2}, v{r+3}, v{t+3}')
    if OPTW['ep']:
        a.wait_vm('p9')
        for r in range(PM,PM+8,2): a(f'v_max3_u32 v{t+3}, v{r}, v{r+1}, v{t+3}')
    a(f'v_cmp_eq_u32 vcc, -1, v{t+3}\ns_cbranch_vccz {AG}_d')
    a(f's_add_u32 s{S_SPIN}, s{S_SPIN}, 1\ns_cmp_lt_u32 s{S_SPIN}, {SPINS}\ns_cbranch_scc1 {AG}\ns_mov_b32 s{S_ERR}, 12')
    a.label(AG+'_d')
    a.drain_vm()
    rt(a,2)
    a(f'v_max3_u32 v{t+3}, v{MB}, v{MB+1}, v{MB+15}')
    for r in range(MB+2,MB+14,2): a(f'v_max3_u32 v{t+3}, v{r}, v{r+1}, v{t+3}')
    a(f'v_max_u32 v{t+3}, v{MB+14}, v{t+3}\nv_cmp_eq_u32 vcc, -1, v{t+3}\ns_cbranch_vccz {AG}_m')
    until_valid(a,mld,range(MB,MB+16),t+3)
    a.label(AG+'_m')
    rt(a,3)
    for i in range(2):
        for n in range(2):
            a(f'v_mfma_f32_32x32x16_bf16 {vr(FA+16*n,16)}, {vr(MB+8*n+4*i,4)}, {vr(PM+4*i,4)}, {vr(FA+16*n,16)}')
    for n in range(2):
        for q in range(4):
            a(f'ds_write_b128 v{t+1}, {vr(FA+16*n+4*q,4)} offset:{4096*n+1024*q}')
    a('s_waitcnt lgkmcnt(0)\ns_barrier')
    for w in range(4):
        a(f'ds_read_b128 {vr(VV+8*w,4)}, v{t+2} offset:{8192*w}')
        a(f'ds_read_b128 {vr(VV+8*w+4,4)}, v{t+2} offset:{8192*w+2048}')
    a('s_waitcnt lgkmcnt(0)')
    for r in range(8):
        a(f'v_add_f32 v{VV+r}, v{VV+r}, v{VV+8+r}\nv_add_f32 v{VV+16+r}, v{VV+16+r}, v{VV+24+r}')
    for r in range(8): a(f'v_add_f32 v{VV+r}, v{VV+r}, v{VV+16+r}')
    for r in range(4):
        a(f'v_fma_f32 v{ML+2*r}, v{VV+r}, v{GG}, v{ML+2*r}\nv_fma_f32 v{ML+2*r+1}, v{VV+4+r}, v{GG}, v{ML+2*r+1}')
    for d in range(4): a(f'v_cvt_pk_bf16_f32 v{ML+8+d}, v{ML+2*d}, v{ML+2*d+1}')
    fl=('',' sc1',' nt',' sc0 sc1')[OPTW['ost']&3]
    if OPTW['ost']&4:
        K=a.newlabel('ost')
        a(f's_cmp_ge_u32 s{S_SEG}, {LASTSEG+2}\ns_cbranch_scc1 {K}\nbuffer_store_dwordx4 {vr(ML+8,4)}, v{t}, {sr(S_R1,4)}, s{S_T0} offen{fl}\ns_branch {K}_d\n{K}:\nbuffer_store_dwordx4 {vr(ML+8,4)}, v{t}, {sr(S_R1,4)}, s{S_T0} offen\n{K}_d:')
    else: a(f'buffer_store_dwordx4 {vr(ML+8,4)}, v{t}, {sr(S_R1,4)}, s{S_T0} offen{fl}')
    a.vq=[]; a.dq=[]
```

```python
import sys
from asmb import *
from layout import *
import team, work
from work import *
KN='gated_mix__memory_aug_recurrent_mem_tr__mixer_channel_mlp__prompt'
HDR=open('cdna_kernels/'+KN+'.s.ref').read().split('; Override launch geometry')[0]

def make_table():
    O=work.OPTW
    V=lambda G,h:(0<<12)|(G<<4)|h
    Q=lambda G,h:(1<<12)|(G<<4)|h
    M=lambda G,c:(2<<12)|(G<<4)|c
    F=lambda s,c:(3<<12)|(s<<4)|c
    nv,nq,nm=O['nv'],O['nq'],O['nm']
    H=lambda k,h:(4<<12)|(k<<4)|h
    X=lambda G:(8<<12)|(G<<4)
    FO=lambda j:(9<<12)|j
    first=[None]*224
    for W in range(224):
        if (W//7)&1: first[W]=H(W%7,(W//7)>>1)
    free=[[W for W in range(32*d,32*d+32) if first[W] is None] for d in range(7)]
    for j in range(14): first[free[j//2].pop(0)]=FO(j)
    for G in range(16): first[free[G%7].pop(0)]=X(G)
    heads=[x for h in range(16) for x in (V(1,h),V(2,h),Q(0,h))]
    ms=[M(G,c) for G in range(16) for c in range(4)]
    hi=0
    for d in range(7):
        nh=min(round(len(heads)*(d+1)/7)-hi,len(free[d]))
        for x in heads[hi:hi+nh]: first[free[d].pop(0)]=x
        hi+=nh
    assert hi==len(heads)
    for d in range(7):
        for W in free[d]: first[W]=ms.pop(0)
    rest=[V(G,h) for G in range(3,nv) for h in range(16)]+[Q(G,h) for G in range(1,nq) for h in range(16)]
    while ms and (ms[0]>>4)&63<nm: rest.append(ms.pop(0))
    for G in range(16):
        if G+nv<16: rest+=[V(G+nv,h) for h in range(16)]
        rest+=[ms.pop(0) for _ in range(min(4,len(ms)))]
        if G>=nq: rest+=[Q(G,h) for h in range(16)]
        rest+=[F(4*G+i,c) for i in range(4) for c in range(7)]
    T=first+rest[:-44]+[x|0x400 for x in rest[-44:]]
    assert len(set(T))==len(T)==240+112+256+64+448+16+14
    hm=O['hm']
    def held(x):
        ty,G=x>>12,(x>>4)&63
        return (ty==1 and hm&1) or (ty==2 and hm&2) or (ty==0 and G>=O['hv'] and hm&4) or (ty==9 and hm&8)
    T=[x|0x800 if held(x) and i<400 else x for i,x in enumerate(T)]
    if O['only']:
        keep=lambda x:(x>>12) in (0,4,5,6,7,8)
        T=[x if keep(x) else X(0) for x in first]+[x for x in rest if keep(x)]
    return T

def build(name=KN+'_kernel', stamps=0, force_slow=False, diag=False):
    a=Asm(); a.diag=diag; a.force_slow=force_slow; a.pprof=work.OPTW['pprof']
    TABLE=make_table()
    a.raw(HDR+f'''; Generated by a hand-written generator. One persistent launch, one 256-thread workgroup per CU.
; @launch grid=(256,1,1) block=(256,1,1) lds=163840
.amdgcn_target "amdgcn-amd-amdhsa--gfx950"
.text
.globl {name}
.p2align 8
.type {name},@function
{name}:''')
    t=VT
    a(f'''
    s_cmp_ge_u32 s2, 256
    s_cbranch_scc1 L_exit
    s_load_dwordx16 s[64:79], s[0:1], 0
    s_load_dwordx16 s[80:95], s[0:1], 64
    s_getreg_b32 s{S_XCC}, hwreg(HW_REG_XCC_ID, 0, 4)
    v_lshrrev_b32 v1, 6, v0
    v_readfirstlane_b32 s{S_WAVE}, v1
    s_mov_b32 s{S_ERR}, 0
    s_mov_b32 s{S_SLOW}, 0
    s_mov_b32 s{S_STEP}, 0
    s_mov_b32 s{S_PCUR}, 0
    ''')
    if diag or team.OPT['hold'] or team.OPT['ehold']: a('s_memrealtime s[40:41]')
    if work.OPTW['cpf']:
        a(f'''
        s_getpc_b64 s[4:5]
        s_and_b32 s4, s4, 0xffffff00
        s_mov_b32 s6, L_codeend-{name}
        s_mov_b32 s7, 0x20000
        s_lshr_b32 s{S_T0}, s2, 3
        v_and_b32 v2, 63, v0
        v_lshlrev_b32 v2, 5, v2
        v_add_u32 v2, s{S_T0}, v2
        v_lshlrev_b32 v2, 7, v2
        s_cmp_lg_u32 s{S_WAVE}, 3
        s_cbranch_scc1 L_nocpf
        buffer_load_dword v255, v2, s[4:7], 0 offen
        L_nocpf:
        ''')
    if force_slow==2: a(f's_mul_i32 s{S_XCC}, s2, 11\ns_lshr_b32 s{S_XCC}, s{S_XCC}, 8')
    elif force_slow: a(f's_lshr_b32 s{S_XCC}, s2, 5')
    a(f'v_mov_b32 v{V_ZERO}, 0\nv_mov_b32 v{V_RANK}, 1\ns_waitcnt lgkmcnt(0)')
    pp(a,0)
    srd(a,S_DBG,P_DBG,256)
    a(f'''
    s_cmp_lg_u32 s{S_WAVE}, 0
    s_cbranch_scc1 L_norank
    s_lshl_b32 s{S_T0}, s{S_XCC}, 5
    s_lshr_b32 s{S_T1}, s{S_T0}, 4
    s_and_b32 s{S_T1}, s{S_T1}, 16
    s_and_b32 s{S_T0}, s{S_T0}, 0xe0
    s_or_b32 s{S_T0}, s{S_T0}, s{S_T1}
    s_mov_b64 exec, 1
    buffer_atomic_add v{V_RANK}, v{V_ZERO}, {sr(S_DBG,4)}, s{S_T0} offen sc0
    s_mov_b64 exec, -1
    L_norank:
    ''')
    srd(a,S_R1,P_X,1835008); srd(a,S_R2,P_X,1835008)
    first_touch(a)
    srd(a,S_X,P_X,1835008); srd(a,S_WS,P_WS,0x10000000)
    work_consts(a)
    a(f'''
    v_mov_b32 v{t+1}, {LDS_BC}
    s_cmp_lg_u32 s{S_WAVE}, 0
    s_cbranch_scc1 L_slotw
    s_waitcnt vmcnt(2)
    s_sub_u32 s{S_T0}, s{S_XCC}, 1
    s_cmp_lt_u32 s{S_T0}, 7
    s_cbranch_scc1 L_rkok
    s_waitcnt vmcnt(0)
    L_rkok:
    v_readfirstlane_b32 s{S_T0}, v{V_RANK}
    s_lshl_b32 s{S_SLOT}, s{S_XCC}, 5
    s_add_u32 s{S_SLOT}, s{S_SLOT}, s{S_T0}
    s_cmp_ge_u32 s{S_XCC}, 8
    s_cbranch_scc1 L_ovf
    s_cmp_lt_u32 s{S_T0}, 32
    s_cbranch_scc1 L_slotok
    L_ovf:
    v_mov_b32 v{t}, 1
    s_mov_b64 exec, 1
    buffer_atomic_add v{t}, v{V_ZERO}, {sr(S_DBG,4)}, 0 offen offset:{D_OVF} sc0
    s_waitcnt vmcnt(0)
    s_mov_b64 exec, -1
    v_readfirstlane_b32 s{S_T4}, v{t}
    s_mov_b32 s{S_SPIN}, 0
    L_cl:
    buffer_load_dword v{t}, v{V_LIN}, {sr(S_DBG,4)}, 0 offen sc1
    s_waitcnt vmcnt(0)
    v_readlane_b32 s{S_T1}, v{t}, 0
    ''')
    for i in range(1,16):
        a(f'v_readlane_b32 s{S_T0}, v{t}, {i}\ns_add_u32 s{S_T1}, s{S_T1}, s{S_T0}')
    a(f'''
    s_cmp_ge_u32 s{S_T1}, 256
    s_cbranch_scc1 L_all
    s_sleep 4
    s_add_u32 s{S_SPIN}, s{S_SPIN}, 1
    s_cmp_lt_u32 s{S_SPIN}, {SPINS}
    s_cbranch_scc1 L_cl
    s_mov_b32 s{S_SLOT}, 0xffff
    s_branch L_slotok
    L_all:
    ''')
    for i in range(8):
        a(f'''
        v_readlane_b32 s{S_T0}, v{t}, {2*i}
        s_min_u32 s{S_T0}, s{S_T0}, 32
        s_add_u32 s{S_T4}, s{S_T4}, s{S_T0}
        s_add_u32 s{S_SLOT}, s{S_T4}, {32*i}
        s_cmp_lt_u32 s{S_T4}, 32
        s_cbranch_scc1 L_slotok
        s_sub_u32 s{S_T4}, s{S_T4}, 32
        ''')
    a(f'''
    s_mov_b32 s{S_SLOT}, 0xffff
    L_slotok:
    ''')
    a(f'''
    v_mov_b32 v{t}, s{S_SLOT}
    ds_write_b32 v{t+1}, v{t}
    s_waitcnt lgkmcnt(0)
    L_slotw:
    s_barrier
    ds_read_b32 v{t}, v{t+1}
    s_waitcnt lgkmcnt(0)
    v_readfirstlane_b32 s{S_T0}, v{t}
    s_barrier
    s_mov_b32 s{S_SLOT}, s{S_T0}
    ''')
    pp(a,1)
    rt(a,4)
    a(f'''
    s_mov_b32 s{S_ROLE}, s{S_SLOT}
    s_cmp_ge_u32 s{S_SLOT}, 256
    s_cbranch_scc1 L_exit
    s_cmp_ge_u32 s{S_SLOT}, 32
    s_cbranch_scc1 L_worker
    ''')
    if diag: a('s_memrealtime s[42:43]\ns_memrealtime s[44:45]\ns_memrealtime s[46:47]')
    team.pick_role(a,t)
    if work.OPTW['xtt']: team.x_touch(a)
    a(f'''
    s_cmp_lt_u32 s{S_SLOT}, 16
    s_cbranch_scc1 L_roleA
    s_cmp_lg_u32 s{S_SLOT}, 30
    s_cbranch_scc1 L_nozero
    v_mov_b32 v0, 0
    v_mov_b32 v1, 0
    v_mov_b32 v2, 0
    v_mov_b32 v3, 0
    s_mul_i32 s{S_T0}, s{S_WAVE}, 9216
    s_add_u32 s{S_T0}, s{S_T0}, {WS_FLAG}
    s_add_u32 s{S_T1}, s{S_T0}, 4096
    s_add_u32 s{S_T2}, s{S_T0}, 8192
    ''')
    for i in range(9):
        a(f'buffer_store_dwordx4 v[0:3], v{V_LIN}, {sr(S_WS,4)}, s{(S_T0,S_T1,S_T2)[i>>2]} offen offset:{1024*(i%4)} sc1')
    a(f'''
    s_waitcnt vmcnt(0)
    s_barrier
    v_mov_b32 v{t}, 1
    buffer_store_dword v{t}, v{V_ZERO}, {sr(S_DBG,4)}, 0 offen offset:{D_INIT} sc1
    L_nozero:
    ''')
    a(f'''
    s_cmp_lt_u32 s{S_SLOT}, 30
    s_cbranch_scc1 L_roleB
    s_cmp_eq_u32 s{S_SLOT}, 30
    s_cbranch_scc1 L_nopol2
    s_waitcnt vmcnt(0)
    s_barrier
    s_cmp_lg_u32 s{S_WAVE}, 0
    s_cbranch_scc1 L_polw2
    ''')
    team.measure_pol(a,t)
    a('L_polw2:\ns_barrier\nL_nopol2:')
    team.team_info(a,t)
    a(f'''
    s_cmp_eq_u32 s{S_SLOT}, 31
    s_cbranch_scc1 L_roleW
    s_branch L_roleR
    L_roleA:
    ''')
    team.role_A(a,stamps)
    a.label('L_roleB')
    team.role_B(a,stamps)
    a.label('L_roleR')
    team.role_R(a)
    a.label('L_roleW')
    team.role_W(a)
    a.label('L_roleF')
    team.role_F(a)
    a.label('L_end')
    if team.OPT['ehold']:
        a(f'L_eh:\ns_sleep 2\ns_memrealtime s[42:43]\ns_waitcnt lgkmcnt(0)\ns_sub_u32 s42, s42, s40\ns_cmp_lt_u32 s42, {team.OPT["ehold"]}\ns_cbranch_scc1 L_eh')
    if diag:
        a('''
        s_memrealtime s[4:5]
        s_waitcnt lgkmcnt(0)
        s_mov_b32 s3, s4
        L_cal:
        s_memrealtime s[4:5]
        s_memtime s[6:7]
        s_waitcnt lgkmcnt(0)
        s_cmp_eq_u32 s3, s4
        s_cbranch_scc1 L_cal
        s_mov_b32 s7, s6
        s_waitcnt vmcnt(0)
        ''')
    if stamps==2:
        a(f'''
        s_cmp_ge_u32 s{S_SLOT}, 30
        s_cbranch_scc1 L_nost
        s_mov_b64 exec, -1
        v_mbcnt_lo_u32_b32 v0, -1, 0
        v_mbcnt_hi_u32_b32 v0, -1, v0
        v_lshlrev_b32 v0, 4, v0
        s_lshl_b32 s44, s{S_WAVE}, 12
        s_add_u32 s45, s44, 147456
        v_add_u32 v1, s45, v0
        s_lshl_b32 s45, s{S_SLOT}, 14
        s_add_u32 s44, s44, s45
        s_add_u32 s44, s44, {WS_TS+0x100000}
        ''')
        for i in range(4):
            a(f'ds_read_b128 v[4:7], v1 offset:{1024*i}\ns_waitcnt lgkmcnt(0)\nbuffer_store_dwordx4 v[4:7], v0, {sr(S_WS,4)}, s44 offen offset:{1024*i}\ns_waitcnt vmcnt(0)')
        a.label('L_nost')
    if diag:
        a(f'''
        s_sub_u32 s6, s7, s2
        s_lshl_b32 s{S_T0}, s{S_SLOT}, 2
        s_add_u32 s{S_T0}, s{S_T0}, s{S_WAVE}
        s_lshl_b32 s{S_T0}, s{S_T0}, 7
        s_add_u32 s{S_T0}, s{S_T0}, {WS_TS}
        v_mov_b32 v0, 0
        s_mov_b64 exec, 1
        ''')
        for i,sg in enumerate([6,S_ERR,S_STEP,S_SLOW]+list(range(44,56))+[40,42,4,0,2,76,78,7,90,S_HOFF,88,S_PCUR]):
            a(f'v_mov_b32 v1, s{sg}\nbuffer_store_dword v1, v0, {sr(S_WS,4)}, s{S_T0} offen offset:{4*i}')
        if diag==2:
            a(f'v_mov_b32 v1, s4\nbuffer_atomic_umax v1, v0, {sr(S_DBG,4)}, 0 offen offset:60')
            a(f'v_mov_b32 v1, s42\nbuffer_atomic_umax v1, v0, {sr(S_DBG,4)}, 0 offen offset:56')
            a(f's_or_b32 s{S_T0}, s{S_SLOT}, s{S_WAVE}\ns_cmp_lg_u32 s{S_T0}, 0\ns_cbranch_scc1 L_exit')
            for i,sg in enumerate([40,44,52,54,0,4]):
                a(f'v_mov_b32 v1, s{sg}\nbuffer_store_dword v1, v0, {sr(S_DBG,4)}, 0 offen offset:{32+4*i}')
        a('s_waitcnt vmcnt(0)')
    a.label('L_exit')
    a('s_endpgm')
    a.label('L_worker')
    prep(a)
    if diag: a('s_memrealtime s[42:43]')
    a(f'''
    s_sub_u32 s{S_T0}, s{S_SLOT}, 32
    s_branch L_item
    ''')
    a.label('L_uV'); unit_V(a)
    a.label('L_next')
    if diag:
        a(f's_cmp_lg_u32 s{S_PCUR}, 0\ns_cbranch_scc1 L_nf\ns_memrealtime s[0:1]\ns_waitcnt lgkmcnt(0)\ns_add_u32 s{S_PCUR}, s{S_HOFF}, 1\nL_nf:')
    a(f'''
    s_or_b32 s{S_T0}, s{S_ERR}, s{S_MNXT}
    s_cbranch_scc1 L_end
    v_mov_b32 v{t+1}, {LDS_BC}
    s_cmp_lg_u32 s{S_WAVE}, 0
    s_cbranch_scc1 L_popw
    v_mov_b32 v{t}, 1
    s_mov_b64 exec, 1
    s_mov_b32 s{S_T1}, {F_Q}
    buffer_atomic_add v{t}, v{V_ZERO}, {sr(S_WS,4)}, s{S_T1} offen sc0
    s_waitcnt vmcnt(0)
    ds_write_b32 v{t+1}, v{t}
    s_waitcnt lgkmcnt(0)
    s_mov_b64 exec, -1
    L_popw:
    s_barrier
    ds_read_b32 v{t}, v{t+1}
    s_waitcnt lgkmcnt(0)
    v_readfirstlane_b32 s{S_T0}, v{t}
    s_barrier
    s_add_u32 s{S_T0}, s{S_T0}, 224
    L_item:
    s_cmp_ge_u32 s{S_T0}, {len(TABLE)}
    s_cbranch_scc1 L_end
    s_getpc_b64 s[{S_T2}:{S_T3}]
    s_add_u32 s{S_T2}, s{S_T2}, L_table@rel32@lo+4
    s_addc_u32 s{S_T3}, s{S_T3}, L_table@rel32@hi+12
    s_lshl_b32 s{S_T0}, s{S_T0}, 2
    s_load_dword s{S_T0}, s[{S_T2}:{S_T3}], s{S_T0}
    s_waitcnt lgkmcnt(0)
    s_and_b32 s{S_H}, s{S_T0}, 15
    s_bfe_u32 s{S_G}, s{S_T0}, 0x60004
    s_mov_b32 s{S_SEG}, s{S_G}
    s_and_b32 s{S_MNXT}, s{S_T0}, 0x400
    s_mov_b32 s{S_HOFF}, s{S_T0}
    s_bitcmp0_b32 s{S_T0}, 11
    s_cbranch_scc1 L_go
    s_mov_b32 s{S_T5}, 1
    ''')
    wait_prog(a,S_T5)
    a(f'''
    s_mov_b32 s{S_T0}, s{S_HOFF}
    L_go:
    s_lshr_b32 s{S_T0}, s{S_T0}, 12
    s_cmp_eq_u32 s{S_T0}, 0
    s_cbranch_scc1 L_uV
    s_cmp_eq_u32 s{S_T0}, 1
    s_cbranch_scc1 L_uQ
    s_cmp_eq_u32 s{S_T0}, 2
    s_cbranch_scc1 L_uM
    s_cmp_eq_u32 s{S_T0}, 8
    s_cbranch_scc1 L_uX
    s_cmp_eq_u32 s{S_T0}, 4
    s_cbranch_scc1 L_uH
    s_mov_b32 s{S_ROLE}, s{S_H}
    s_cmp_eq_u32 s{S_T0}, 9
    s_cbranch_scc1 L_roleF
    ''')
    unit_F(a); a('s_branch L_next')
    a.label('L_uH'); unit_V(a,True); a('s_branch L_next')
    a.label('L_uX'); unit_X(a); a('s_branch L_next')
    a.label('L_uQ'); unit_Q(a); a('s_branch L_next')
    a.label('L_uM'); unit_M(a); a('s_branch L_next')
    a.label('L_codeend')
    a.raw(f'''.section .rodata,"a"
.p2align 6
.amdhsa_kernel {name}
  .amdhsa_next_free_vgpr 512
  .amdhsa_next_free_sgpr 102
  .amdhsa_accum_offset 256
  .amdhsa_group_segment_fixed_size 0
  .amdhsa_kernarg_size 128
  .amdhsa_user_sgpr_count 2
  .amdhsa_user_sgpr_kernarg_segment_ptr 1
  .amdhsa_system_sgpr_workgroup_id_x 1
.end_amdhsa_kernel''')
    a.raw('.p2align 2\n.type L_table,@object\nL_table:\n'+'\n'.join('.long '+','.join(str(x) for x in TABLE[i:i+16]) for i in range(0,len(TABLE),16))+'\n.size L_table, %d'%(4*len(TABLE)))
    return a.text()

if __name__=='__main__':
    if len(sys.argv)==1:
        open('cdna_kernels/'+KN+'.s','w').write(build())
        open('full_diag.s','w').write(build('bench_kernel',diag=True))
        open('full_slow.s','w').write(build('bench_kernel',diag=True,force_slow=True))
        open('full_slow2.s','w').write(build('bench_kernel',diag=True,force_slow=2))
    for arg in sys.argv[1:]:
        nm,_,kv=arg.partition(':')
        base=dict(team.OPT); basew=dict(work.OPTW); st=0; prod=False
        for e in filter(None,kv.split(',')):
            k,v=e.split('=')
            if k=='st': st=int(v)
            elif k=='prod': prod=int(v)
            elif k in work.OPTW: work.OPTW[k]=int(v)
            else: team.OPT[k]=int(v)
        if prod: open(f'exp/{nm}.s','w').write(build(diag=prod-1))
        else: open(f'exp/{nm}.s','w').write(build('bench_kernel',stamps=st,diag=True))
        team.OPT.clear(); team.OPT.update(base); work.OPTW.update(basew)
```

```python
import sys
from asmb import *
from layout import *
import team, work
from work import *
KN='gated_mix__memory_aug_recurrent_mem_tr__mixer_channel_mlp__prompt'
HDR=open('cdna_kernels/'+KN+'.s.ref').read().split('; Override launch geometry')[0]

def make_table():
    O=work.OPTW
    V=lambda G,h:(0<<12)|(G<<4)|h
    Q=lambda G,h:(1<<12)|(G<<4)|h
    M=lambda G,c:(2<<12)|(G<<4)|c
    F=lambda s,c:(3<<12)|(s<<4)|c
    nv,nq,nm=O['nv'],O['nq'],O['nm']
    H=lambda k,h:(4<<12)|(k<<4)|h
    X=lambda G:(8<<12)|(G<<4)
    FO=lambda j:(9<<12)|j
    first=[None]*224
    for W in range(224):
        if (W//7)&1: first[W]=H(W%7,(W//7)>>1)
    free=[[W for W in range(32*d,32*d+32) if first[W] is None] for d in range(7)]
    nc=O['nc']
    light=[F(s,c) for s in range(64) for c in range(nc)]
    d0=1 if (nc or O['idle']) else 0
    for j in range(14): first[free[d0+j%(7-d0)].pop(0)]=FO(j)
    if O['idle']:
        for G in range(16): first[free[0].pop(0) if G<O['xi'] else free[1+G%6].pop(0)]=X(G)
        for k,W in enumerate(free[0]): first[W]=(10<<12)|k
        nidle=len(free[0]); free[0]=[]
        for W in range(32): first[W]|=0x400
    else:
        nidle=0
        for G in range(16): first[free[G%7].pop(0)]=X(G)
    if nc:
        for W in free[0]: first[W]=light.pop(0)
        free[0]=[]
    heads=[x for h in range(16) for x in (V(1,h),V(2,h),Q(0,h))]
    ms=[M(G,c) for G in range(16) for c in range(4)]
    hi=0
    for d in range(d0,7):
        nh=min(round(len(heads)*(d+1-d0)/(7-d0))-hi,len(free[d]))
        for x in heads[hi:hi+nh]: first[free[d].pop(0)]=x
        hi+=nh
    assert hi==len(heads)
    for d in range(7):
        for W in free[d]: first[W]=ms.pop(0)
    rest=[]; fq=[]
    while ms and (ms[0]>>4)&63<nm: rest.append(ms.pop(0))
    rest+=[V(G,h) for G in range(3,nv) for h in range(16)]+[Q(G,h) for G in range(1,nq) for h in range(16)]
    for G in range(16):
        if G+nv<16: rest+=[V(G+nv,h) for h in range(16)]
        rest+=[ms.pop(0) for _ in range(min(4,len(ms)))]
        if G>=nq: rest+=[Q(G,h) for h in range(16)]
        fq+=[F(4*G+i,c) for i in range(4) for c in range(nc,7)]
        keep=max(0,min(O['fd'],O['fe']-G))*4*(7-nc)
        while len(fq)>keep: rest.append(fq.pop(0))
    assert not fq
    nl=16+4*(7-nc)
    T=first+rest[:-nl]+[x|0x400 for x in rest[-nl:]]
    global NMAIN
    NMAIN=len(T)
    if nc: T+=light[:-2*nc]+[x|0x400 for x in light[-2*nc:]]
    assert len(set(T))==len(T)==240+112+256+64+448+16+14+nidle
    hm=O['hm']
    def held(x):
        ty,G=x>>12,(x>>4)&63
        return (ty==1 and hm&1) or (ty==2 and hm&2) or (ty==0 and G>=O['hv'] and hm&4) or (ty==9 and hm&8)
    T=[x|0x800 if held(x) and i<400 else x for i,x in enumerate(T)]
    if O['only']:
        keep=lambda x:(x>>12) in (0,4,5,6,7,8)
        T=[x if keep(x) else X(0) for x in first]+[x for x in rest if keep(x)]
    return T

def build(name=KN+'_kernel', stamps=0, force_slow=False, diag=False):
    a=Asm(); a.diag=diag; a.force_slow=force_slow; a.pprof=work.OPTW['pprof']
    TABLE=make_table()
    a.raw(HDR+f'''; Generated by a hand-written generator. One persistent launch, one 256-thread workgroup per CU.
; @launch grid=(256,1,1) block=(256,1,1) lds=163840
.amdgcn_target "amdgcn-amd-amdhsa--gfx950"
.text
.globl {name}
.p2align 8
.type {name},@function
{name}:''')
    t=VT
    a(f'''
    s_cmp_ge_u32 s2, 256
    s_cbranch_scc1 L_exit
    s_load_dwordx16 s[64:79], s[0:1], 0
    s_load_dwordx16 s[80:95], s[0:1], 64
    s_getreg_b32 s{S_XCC}, hwreg(HW_REG_XCC_ID, 0, 4)
    v_lshrrev_b32 v1, 6, v0
    v_readfirstlane_b32 s{S_WAVE}, v1
    s_mov_b32 s{S_ERR}, 0
    s_mov_b32 s{S_SLOW}, 0
    s_mov_b32 s{S_STEP}, 0
    s_mov_b32 s{S_PCUR}, 0
    ''')
    if diag or team.OPT['hold'] or team.OPT['ehold']: a('s_memrealtime s[40:41]')
    if work.OPTW['cpf']:
        a(f'''
        s_getpc_b64 s[4:5]
        s_and_b32 s4, s4, 0xffffff00
        s_mov_b32 s6, L_codeend-{name}
        s_mov_b32 s7, 0x20000
        s_lshr_b32 s{S_T0}, s2, 3
        v_and_b32 v2, 63, v0
        v_lshlrev_b32 v2, 5, v2
        v_add_u32 v2, s{S_T0}, v2
        v_lshlrev_b32 v2, 7, v2
        s_cmp_lg_u32 s{S_WAVE}, 3
        s_cbranch_scc1 L_nocpf
        buffer_load_dword v255, v2, s[4:7], 0 offen
        L_nocpf:
        ''')
    if team.OPT['xk']: a(f's_xor_b32 s{S_XCC}, s{S_XCC}, {team.OPT["xk"]}')
    if force_slow==2: a(f's_mul_i32 s{S_XCC}, s2, 11\ns_lshr_b32 s{S_XCC}, s{S_XCC}, 8')
    elif force_slow: a(f's_lshr_b32 s{S_XCC}, s2, 5')
    a(f'v_mov_b32 v{V_ZERO}, 0\nv_mov_b32 v{V_RANK}, 1\ns_waitcnt lgkmcnt(0)')
    pp(a,0)
    srd(a,S_DBG,P_DBG,256)
    a(f'''
    s_cmp_lg_u32 s{S_WAVE}, 0
    s_cbranch_scc1 L_norank
    s_lshl_b32 s{S_T0}, s{S_XCC}, 5
    s_lshr_b32 s{S_T1}, s{S_T0}, 4
    s_and_b32 s{S_T1}, s{S_T1}, 16
    s_and_b32 s{S_T0}, s{S_T0}, 0xe0
    s_or_b32 s{S_T0}, s{S_T0}, s{S_T1}
    s_mov_b64 exec, 1
    buffer_atomic_add v{V_RANK}, v{V_ZERO}, {sr(S_DBG,4)}, s{S_T0} offen sc0
    s_mov_b64 exec, -1
    L_norank:
    ''')
    srd(a,S_R1,P_X,1835008); srd(a,S_R2,P_X,1835008)
    first_touch(a)
    srd(a,S_X,P_X,1835008); srd(a,S_WS,P_WS,0x10000000)
    work_consts(a)
    a(f'''
    v_mov_b32 v{t+1}, {LDS_BC}
    s_cmp_lg_u32 s{S_WAVE}, 0
    s_cbranch_scc1 L_slotw
    s_waitcnt vmcnt(2)
    s_sub_u32 s{S_T0}, s{S_XCC}, 1
    s_cmp_lt_u32 s{S_T0}, 7
    s_cbranch_scc1 L_rkok
    s_waitcnt vmcnt(0)
    L_rkok:
    v_readfirstlane_b32 s{S_T0}, v{V_RANK}
    s_lshl_b32 s{S_SLOT}, s{S_XCC}, 5
    s_add_u32 s{S_SLOT}, s{S_SLOT}, s{S_T0}
    s_cmp_ge_u32 s{S_XCC}, 8
    s_cbranch_scc1 L_ovf
    s_cmp_lt_u32 s{S_T0}, 32
    s_cbranch_scc1 L_slotok
    L_ovf:
    v_mov_b32 v{t}, 1
    s_mov_b64 exec, 1
    buffer_atomic_add v{t}, v{V_ZERO}, {sr(S_DBG,4)}, 0 offen offset:{D_OVF} sc0
    s_waitcnt vmcnt(0)
    s_mov_b64 exec, -1
    v_readfirstlane_b32 s{S_T4}, v{t}
    s_mov_b32 s{S_SPIN}, 0
    L_cl:
    buffer_load_dword v{t}, v{V_LIN}, {sr(S_DBG,4)}, 0 offen sc1
    s_waitcnt vmcnt(0)
    v_readlane_b32 s{S_T1}, v{t}, 0
    ''')
    for i in range(1,16):
        a(f'v_readlane_b32 s{S_T0}, v{t}, {i}\ns_add_u32 s{S_T1}, s{S_T1}, s{S_T0}')
    a(f'''
    s_cmp_ge_u32 s{S_T1}, 256
    s_cbranch_scc1 L_all
    s_sleep 4
    s_add_u32 s{S_SPIN}, s{S_SPIN}, 1
    s_cmp_lt_u32 s{S_SPIN}, {SPINS}
    s_cbranch_scc1 L_cl
    s_mov_b32 s{S_SLOT}, 0xffff
    s_branch L_slotok
    L_all:
    ''')
    for i in range(8):
        a(f'''
        v_readlane_b32 s{S_T0}, v{t}, {2*i}
        s_min_u32 s{S_T0}, s{S_T0}, 32
        s_add_u32 s{S_T4}, s{S_T4}, s{S_T0}
        s_add_u32 s{S_SLOT}, s{S_T4}, {32*i}
        s_cmp_lt_u32 s{S_T4}, 32
        s_cbranch_scc1 L_slotok
        s_sub_u32 s{S_T4}, s{S_T4}, 32
        ''')
    a(f'''
    s_mov_b32 s{S_SLOT}, 0xffff
    L_slotok:
    ''')
    a(f'''
    v_mov_b32 v{t}, s{S_SLOT}
    ds_write_b32 v{t+1}, v{t}
    s_waitcnt lgkmcnt(0)
    L_slotw:
    s_barrier
    ds_read_b32 v{t}, v{t+1}
    s_waitcnt lgkmcnt(0)
    v_readfirstlane_b32 s{S_T0}, v{t}
    s_barrier
    s_mov_b32 s{S_SLOT}, s{S_T0}
    ''')
    pp(a,1)
    rt(a,4)
    a(f'''
    s_mov_b32 s{S_ROLE}, s{S_SLOT}
    s_cmp_ge_u32 s{S_SLOT}, 256
    s_cbranch_scc1 L_exit
    s_cmp_ge_u32 s{S_SLOT}, 32
    s_cbranch_scc1 L_worker
    ''')
    if diag: a('s_memrealtime s[42:43]\ns_memrealtime s[44:45]\ns_memrealtime s[46:47]')
    team.pick_role(a,t)
    if work.OPTW['xtt']: team.x_touch(a)
    a(f'''
    s_cmp_lt_u32 s{S_SLOT}, 16
    s_cbranch_scc1 L_roleA
    s_cmp_lg_u32 s{S_SLOT}, 30
    s_cbranch_scc1 L_nozero
    v_mov_b32 v0, 0
    v_mov_b32 v1, 0
    v_mov_b32 v2, 0
    v_mov_b32 v3, 0
    s_mul_i32 s{S_T0}, s{S_WAVE}, 9216
    s_add_u32 s{S_T0}, s{S_T0}, {WS_FLAG}
    s_add_u32 s{S_T1}, s{S_T0}, 4096
    s_add_u32 s{S_T2}, s{S_T0}, 8192
    ''')
    for i in range(9):
        a(f'buffer_store_dwordx4 v[0:3], v{V_LIN}, {sr(S_WS,4)}, s{(S_T0,S_T1,S_T2)[i>>2]} offen offset:{1024*(i%4)} sc1')
    a(f'''
    s_waitcnt vmcnt(0)
    s_barrier
    v_mov_b32 v{t}, 1
    buffer_store_dword v{t}, v{V_ZERO}, {sr(S_DBG,4)}, 0 offen offset:{D_INIT} sc1
    L_nozero:
    ''')
    a(f'''
    s_cmp_lt_u32 s{S_SLOT}, 30
    s_cbranch_scc1 L_roleB
    s_cmp_eq_u32 s{S_SLOT}, 30
    s_cbranch_scc1 L_nopol2
    s_waitcnt vmcnt(0)
    s_barrier
    s_cmp_lg_u32 s{S_WAVE}, 0
    s_cbranch_scc1 L_polw2
    ''')
    team.measure_pol(a,t)
    a('L_polw2:\ns_barrier\nL_nopol2:')
    team.team_info(a,t)
    a(f'''
    s_cmp_eq_u32 s{S_SLOT}, 31
    s_cbranch_scc1 L_roleW
    s_branch L_roleR
    L_roleA:
    ''')
    team.role_A(a,stamps)
    a.label('L_roleB')
    team.role_B(a,stamps)
    a.label('L_roleR')
    team.role_R(a)
    a.label('L_roleW')
    team.role_W(a)
    a.label('L_roleF')
    team.role_F(a)
    a.label('L_end')
    if team.OPT['ehold']:
        a(f'L_eh:\ns_sleep 2\ns_memrealtime s[42:43]\ns_waitcnt lgkmcnt(0)\ns_sub_u32 s42, s42, s40\ns_cmp_lt_u32 s42, {team.OPT["ehold"]}\ns_cbranch_scc1 L_eh')
    if diag:
        a('''
        s_memrealtime s[4:5]
        s_waitcnt lgkmcnt(0)
        s_mov_b32 s3, s4
        L_cal:
        s_memrealtime s[4:5]
        s_memtime s[6:7]
        s_waitcnt lgkmcnt(0)
        s_cmp_eq_u32 s3, s4
        s_cbranch_scc1 L_cal
        s_mov_b32 s7, s6
        s_waitcnt vmcnt(0)
        ''')
    if stamps==2:
        a(f'''
        s_cmp_ge_u32 s{S_SLOT}, 30
        s_cbranch_scc1 L_nost
        s_mov_b64 exec, -1
        v_mbcnt_lo_u32_b32 v0, -1, 0
        v_mbcnt_hi_u32_b32 v0, -1, v0
        v_lshlrev_b32 v0, 4, v0
        s_lshl_b32 s44, s{S_WAVE}, 12
        s_add_u32 s45, s44, 147456
        v_add_u32 v1, s45, v0
        s_lshl_b32 s45, s{S_SLOT}, 14
        s_add_u32 s44, s44, s45
        s_add_u32 s44, s44, {WS_TS+0x100000}
        ''')
        for i in range(4):
            a(f'ds_read_b128 v[4:7], v1 offset:{1024*i}\ns_waitcnt lgkmcnt(0)\nbuffer_store_dwordx4 v[4:7], v0, {sr(S_WS,4)}, s44 offen offset:{1024*i}\ns_waitcnt vmcnt(0)')
        a.label('L_nost')
    if diag:
        a(f'''
        s_sub_u32 s6, s7, s2
        s_lshl_b32 s{S_T0}, s{S_SLOT}, 2
        s_add_u32 s{S_T0}, s{S_T0}, s{S_WAVE}
        s_lshl_b32 s{S_T0}, s{S_T0}, 7
        s_add_u32 s{S_T0}, s{S_T0}, {WS_TS}
        v_mov_b32 v0, 0
        s_mov_b64 exec, 1
        ''')
        for i,sg in enumerate([6,S_ERR,S_STEP,S_SLOW]+list(range(44,56))+[40,42,4,0,2,76,78,7,90,S_HOFF,88,S_PCUR]):
            a(f'v_mov_b32 v1, s{sg}\nbuffer_store_dword v1, v0, {sr(S_WS,4)}, s{S_T0} offen offset:{4*i}')
        if diag==2:
            a(f'v_mov_b32 v1, s4\nbuffer_atomic_umax v1, v0, {sr(S_DBG,4)}, 0 offen offset:60')
            a(f'v_mov_b32 v1, s42\nbuffer_atomic_umax v1, v0, {sr(S_DBG,4)}, 0 offen offset:56')
            a(f's_or_b32 s{S_T0}, s{S_SLOT}, s{S_WAVE}\ns_cmp_lg_u32 s{S_T0}, 0\ns_cbranch_scc1 L_exit')
            for i,sg in enumerate([40,44,52,54,0,4]):
                a(f'v_mov_b32 v1, s{sg}\nbuffer_store_dword v1, v0, {sr(S_DBG,4)}, 0 offen offset:{32+4*i}')
        a('s_waitcnt vmcnt(0)')
    a.label('L_exit')
    a('s_endpgm')
    a.label('L_worker')
    prep(a)
    if diag: a('s_memrealtime s[42:43]')
    a(f'''
    s_sub_u32 s{S_T0}, s{S_SLOT}, 32
    s_branch L_item
    ''')
    a.label('L_uV'); unit_V(a)
    a.label('L_next')
    if diag:
        a(f's_cmp_lg_u32 s{S_PCUR}, 0\ns_cbranch_scc1 L_nf\ns_memrealtime s[0:1]\ns_waitcnt lgkmcnt(0)\ns_add_u32 s{S_PCUR}, s{S_HOFF}, 1\nL_nf:')
    a(f'''
    s_or_b32 s{S_T0}, s{S_ERR}, s{S_MNXT}
    s_cbranch_scc1 L_end
    v_mov_b32 v{t+1}, {LDS_BC}
    s_cmp_lg_u32 s{S_WAVE}, 0
    s_cbranch_scc1 L_popw
    v_mov_b32 v{t}, 1
    s_mov_b64 exec, 1
    s_cmp_lt_u32 s{S_SLOT}, {64 if work.OPTW['nc'] else 0}
    s_cselect_b32 s{S_T1}, 128, 0
    s_add_u32 s{S_T1}, s{S_T1}, {F_Q}
    buffer_atomic_add v{t}, v{V_ZERO}, {sr(S_WS,4)}, s{S_T1} offen sc0
    s_waitcnt vmcnt(0)
    ds_write_b32 v{t+1}, v{t}
    s_waitcnt lgkmcnt(0)
    s_mov_b64 exec, -1
    L_popw:
    s_barrier
    ds_read_b32 v{t}, v{t+1}
    s_waitcnt lgkmcnt(0)
    v_readfirstlane_b32 s{S_T0}, v{t}
    s_barrier
    s_mov_b32 s{S_T1}, 224
    s_mov_b32 s{S_T2}, {NMAIN}
    s_cmp_lt_u32 s{S_SLOT}, {64 if work.OPTW['nc'] else 0}
    s_cselect_b32 s{S_T1}, s{S_T2}, s{S_T1}
    s_cselect_b32 s{S_T2}, {len(TABLE)}, s{S_T2}
    s_add_u32 s{S_T0}, s{S_T0}, s{S_T1}
    s_cmp_ge_u32 s{S_T0}, s{S_T2}
    s_cbranch_scc1 L_end
    L_item:
    s_getpc_b64 s[{S_T2}:{S_T3}]
    s_add_u32 s{S_T2}, s{S_T2}, L_table@rel32@lo+4
    s_addc_u32 s{S_T3}, s{S_T3}, L_table@rel32@hi+12
    s_lshl_b32 s{S_T0}, s{S_T0}, 2
    s_load_dword s{S_T0}, s[{S_T2}:{S_T3}], s{S_T0}
    s_waitcnt lgkmcnt(0)
    s_and_b32 s{S_H}, s{S_T0}, 15
    s_bfe_u32 s{S_G}, s{S_T0}, 0x60004
    s_mov_b32 s{S_SEG}, s{S_G}
    s_and_b32 s{S_MNXT}, s{S_T0}, 0x400
    s_mov_b32 s{S_HOFF}, s{S_T0}
    s_bitcmp0_b32 s{S_T0}, 11
    s_cbranch_scc1 L_go
    s_mov_b32 s{S_T5}, 1
    ''')
    wait_prog(a,S_T5)
    a(f'''
    s_mov_b32 s{S_T0}, s{S_HOFF}
    L_go:
    s_lshr_b32 s{S_T0}, s{S_T0}, 12
    s_cmp_eq_u32 s{S_T0}, 0
    s_cbranch_scc1 L_uV
    s_cmp_eq_u32 s{S_T0}, 1
    s_cbranch_scc1 L_uQ
    s_cmp_eq_u32 s{S_T0}, 2
    s_cbranch_scc1 L_uM
    s_cmp_eq_u32 s{S_T0}, 8
    s_cbranch_scc1 L_uX
    s_cmp_eq_u32 s{S_T0}, 4
    s_cbranch_scc1 L_uH
    s_mov_b32 s{S_ROLE}, s{S_H}
    s_cmp_eq_u32 s{S_T0}, 9
    s_cbranch_scc1 L_roleF
    s_cmp_eq_u32 s{S_T0}, 10
    s_cbranch_scc1 L_end
    ''')
    unit_F(a); a('s_branch L_next')
    a.label('L_uH'); unit_V(a,True); a('s_branch L_next')
    a.label('L_uX'); unit_X(a); a('s_branch L_next')
    a.label('L_uQ'); unit_Q(a); a('s_branch L_next')
    a.label('L_uM'); unit_M(a); a('s_branch L_next')
    a.label('L_codeend')
    a.raw(f'''.section .rodata,"a"
.p2align 6
.amdhsa_kernel {name}
  .amdhsa_next_free_vgpr 512
  .amdhsa_next_free_sgpr 102
  .amdhsa_accum_offset 256
  .amdhsa_group_segment_fixed_size 0
  .amdhsa_kernarg_size 128
  .amdhsa_user_sgpr_count 2
  .amdhsa_user_sgpr_kernarg_segment_ptr 1
  .amdhsa_system_sgpr_workgroup_id_x 1
.end_amdhsa_kernel''')
    a.raw('.p2align 2\n.type L_table,@object\nL_table:\n'+'\n'.join('.long '+','.join(str(x) for x in TABLE[i:i+16]) for i in range(0,len(TABLE),16))+'\n.size L_table, %d'%(4*len(TABLE)))
    return a.text()

if __name__=='__main__':
    if len(sys.argv)==1:
        open('cdna_kernels/'+KN+'.s','w').write(build())
        open('full_diag.s','w').write(build('bench_kernel',diag=True))
        open('full_slow.s','w').write(build('bench_kernel',diag=True,force_slow=True))
        open('full_slow2.s','w').write(build('bench_kernel',diag=True,force_slow=2))
    for arg in sys.argv[1:]:
        nm,_,kv=arg.partition(':')
        base=dict(team.OPT); basew=dict(work.OPTW); st=0; prod=False
        for e in filter(None,kv.split(',')):
            k,v=e.split('=')
            if k=='st': st=int(v)
            elif k=='prod': prod=int(v)
            elif k in work.OPTW: work.OPTW[k]=int(v)
            else: team.OPT[k]=int(v)
        if prod: open(f'exp/{nm}.s','w').write(build(diag=prod-1))
        else: open(f'exp/{nm}.s','w').write(build('bench_kernel',stamps=st,diag=True))
        team.OPT.clear(); team.OPT.update(base); work.OPTW.update(basew)
```
